```python
import torch

def _softmax(x, axis=-1):
    return torch.softmax(x, dim=axis)
def _gelu(x):
    return torch.nn.functional.gelu(x, approximate="tanh")
def _silu(x):
    return torch.nn.functional.silu(x)
def _sigmoid(x):
    return torch.sigmoid(x)
def _layernorm(x, axis=-1, eps=1e-5):
    m = x.mean(dim=axis, keepdim=True)
    v = x.var(dim=axis, keepdim=True, unbiased=False)
    return (x - m) / torch.sqrt(v + eps)
def _scatter_add(tgt, idx, src, axis=0):
    return tgt.clone().index_add_(axis, idx, src)
def _segment_sum(src, seg, n):
    out = torch.zeros((n,) + src.shape[1:], dtype=src.dtype)
    return out.index_add_(0, seg, src)
def _pad(x, pw):
    flat = tuple(v for pair in reversed(pw) for v in pair)
    return torch.nn.functional.pad(x, flat)

kernel_name = 'interleave_layers__ssm_conv_h3__glu_gated_geglu__prompt'

def setup_inputs():

    _w = (lambda a: (lambda t: t.to(torch.bfloat16) if t.is_floating_point() else t)(torch.as_tensor(a)))
    def _A_setup():
        B, S, D = 1, 2048, 1024
        ks = 4
        return {
            "q": _w((lambda *s: torch.randn(*s, dtype=torch.bfloat16) * 0.05)(B, S, D)),
            "k": _w((lambda *s: torch.randn(*s, dtype=torch.bfloat16) * 0.2)(B, S, D)),
            "v": _w((lambda *s: torch.randn(*s, dtype=torch.bfloat16) * 0.2)(B, S, D)),
            "shift_k": _w((lambda *s: torch.randn(*s, dtype=torch.bfloat16) * 0.2)(D, ks) * 0.5),
            "ssm_k": _w((lambda *s: torch.randn(*s, dtype=torch.bfloat16) * 0.4)(D, S) * (1.0 / S ** 0.5)),
            "ssm_D": _w((lambda *s: torch.randn(*s, dtype=torch.bfloat16) * 0.2)(D)),
        }
    _A_in = _A_setup()

    def _B_setup():
        B, S, Dm, Df = 1, 2048, 1024, 3584
        return {
            "x": _w((lambda *s: torch.randn(*s, dtype=torch.bfloat16) * 0.05)(B, S, Dm)),
            "w_gate": _w((lambda *s: torch.randn(*s, dtype=torch.bfloat16) * 0.4)(Dm, Df) * (Dm ** -0.5)),
            "w_up": _w((lambda *s: torch.randn(*s, dtype=torch.bfloat16) * 0.4)(Dm, Df) * (Dm ** -0.5)),
            "w_down": _w((lambda *s: torch.randn(*s, dtype=torch.bfloat16) * 0.4)(Df, Dm) * (Df ** -0.5)),
        }
    _B_in = _B_setup()

    return {
        "A_q": _A_in["q"],
        "A_k": _A_in["k"],
        "A_v": _A_in["v"],
        "A_shift_k": _A_in["shift_k"],
        "A_ssm_k": _A_in["ssm_k"],
        "A_ssm_D": _A_in["ssm_D"],
        "B_x": _B_in["x"],
        "B_w_gate": _B_in["w_gate"],
        "B_w_up": _B_in["w_up"],
        "B_w_down": _B_in["w_down"],
    }

def reference(A_q, A_k, A_v, A_shift_k, A_ssm_k, A_ssm_D, B_x, B_w_gate, B_w_up, B_w_down):
    def _A_ref(q, k, v, shift_k, ssm_k, ssm_D):
        B, S, D = q.shape
        ks = shift_k.shape[-1]
        k_pad = _pad(k, ((0, 0), (ks - 1, 0), (0, 0)))
        k_shift = torch.zeros_like(k)
        for t in range(ks):
            k_shift = k_shift + k_pad[:, t:t + S, :] * shift_k[:, ks - 1 - t][None, None, :]
        kv = k_shift * v
        L = 2 * S
        kv_pad = _pad(kv, ((0, 0), (0, S), (0, 0)))
        kf_pad = _pad(ssm_k, ((0, 0), (0, S)))
        kv_f = (lambda x, axes=(-2,-1): torch.fft.rfft2(x.float(), dim=axes))(kv_pad[:, None, :, :], axes=(1, 2))
        kf_f = (lambda x, axes=(-2,-1): torch.fft.rfft2(x.float(), dim=axes))(kf_pad[:, None, :], axes=(1, 2))
        kf_f = (lambda x, *d: x.permute(*d))(kf_f, 1, 2, 0)
        y_f = kv_f * kf_f[None, :, :, :]
        y = (lambda x, s, axes=(-2,-1): torch.fft.irfft2(x, s=s, dim=axes).to(torch.bfloat16))(y_f, (1, L), axes=(1, 2))[:, 0, :S, :]
        y = y + kv * ssm_D[None, None, :]
        return q * y

    def _B_ref(x, w_gate, w_up, w_down):
        g = torch.einsum("bsd,df->bsf", x, w_gate)
        u = torch.einsum("bsd,df->bsf", x, w_up)
        h = _gelu(g) * u
        return torch.einsum("bsf,fd->bsd", h, w_down)

    x = A_q
    x = x + _A_ref(_layernorm(x, axis=-1), A_k, A_v, A_shift_k, A_ssm_k, A_ssm_D)
    x = x + _B_ref(_layernorm(x, axis=-1), B_w_gate, B_w_up, B_w_down)
    x = x + _A_ref(_layernorm(x, axis=-1), A_k, A_v, A_shift_k, A_ssm_k, A_ssm_D)
    x = x + _B_ref(_layernorm(x, axis=-1), B_w_gate, B_w_up, B_w_down)
    return x
```

```python
import re

TRANS = ("v_exp_f32", "v_log_f32", "v_rcp_f32", "v_rsq_f32", "v_sqrt_f32", "v_sin_f32", "v_cos_f32")

def _regs(tok):
    tok = tok.strip()
    tok = re.sub(r"^-", "", tok)
    m = re.match(r"^abs\((.*)\)$", tok)
    if m: tok = m.group(1)
    tok = tok.strip("|")
    m = re.match(r"^([vas])(\d+)$", tok)
    if m: return {(m.group(1), int(m.group(2)))}
    m = re.match(r"^([vas])\[(\d+):(\d+)\]$", tok)
    if m: return {(m.group(1), i) for i in range(int(m.group(2)), int(m.group(3)) + 1)}
    if tok in ("vcc", "vcc_lo", "vcc_hi"): return {("s", "vcc")}
    if tok in ("exec", "exec_lo", "exec_hi"): return {("s", "exec")}
    if tok == "m0": return {("s", "m0")}
    return set()

class Ins:
    def __init__(self, text):
        self.text = text
        t = text.split(";")[0].strip()
        parts = t.split(None, 1)
        self.op = parts[0]
        rest = parts[1] if len(parts) > 1 else ""
        toks = [x.strip() for x in rest.split(",")]
        mods = []
        if toks:
            last = toks[-1].split()
            if last:
                toks[-1] = last[0]; mods = last[1:]
        self.mods = mods
        op = self.op
        self.mfma = op.startswith("v_mfma")
        self.valu = op.startswith("v_") and not self.mfma
        self.trans = any(op.startswith(x) for x in TRANS)
        self.vmem = op.startswith("buffer_") or op.startswith("global_")
        self.ds = op.startswith("ds_")
        self.salu = op.startswith("s_")
        self.dpp = "_dpp" in op or any(m.startswith(("row_", "quad_perm", "wave_")) for m in mods)
        self.perm = op.startswith("v_permlane")
        self.rdlane = op.startswith(("v_readlane", "v_readfirstlane"))
        self.lds_dma = self.vmem and ("lds" in mods or "_lds_" in op)
        R = [_regs(x) for x in toks]
        w = set(); r = set()
        self.srcC = set(); self.srcAB = set(); self.data = set()
        if self.mfma:
            w = R[0]; self.srcAB = R[1] | R[2]; self.srcC = R[3]; r = self.srcAB | self.srcC
            self.passes = 8 if "32x32" in op else 4
        elif self.valu:
            if self.perm and "swap" in op:
                w = R[0] | R[1]; r = R[0] | R[1]
            elif op.startswith(("v_add_co", "v_sub_co", "v_addc_co", "v_subb_co", "v_subrev_co")):
                w = R[0] | R[1]; r = set().union(*R[2:])
            elif op == "v_nop":
                pass
            else:
                w = R[0]; r = set().union(*R[1:]) if len(R) > 1 else set()
                if op.startswith(("v_fmac", "v_pk_fmac", "v_dot2c")) or self.dpp: r |= R[0]
                if op.startswith("v_cndmask") and len(R) == 3: r |= {("s", "vcc")}
        elif self.vmem:
            if "load" in op and not self.lds_dma:
                w = R[0]; r = set().union(*R[1:])
            else:
                r = set().union(*R)
                if "store" in op:
                    self.data = R[0] if op.startswith("buffer_") else R[1]
            if self.lds_dma: r |= {("s", "m0")}
        elif self.ds:
            if "read" in op or "permute" in op or "swizzle" in op:
                w = R[0]; r = set().union(*R[1:])
            else:
                r = set().union(*R)
        elif self.salu:
            if op.startswith(("s_cmp", "s_waitcnt", "s_barrier", "s_nop", "s_branch", "s_cbranch", "s_endpgm", "s_setprio", "s_sleep")):
                r = set().union(*R) if R else set()
            else:
                w = R[0]; r = set().union(*R[1:]) if len(R) > 1 else set()
                if "saveexec" in op: w = w | {("s", "exec")}
        self.w = w; self.r = r
        self.wide_store = self.vmem and "store" in op and op.endswith(("x3", "x4"))
        self.states = 1
        if op == "s_nop": self.states = int(toks[0], 0) + 1

def _need(p, c):
    n = 0
    vec = lambda s: {x for x in s if x[0] in "va"}
    sc = lambda s: {x for x in s if x[0] == "s"}
    if p.valu:
        pv = vec(p.w); ps = sc(p.w)
        if c.mfma and pv & c.r: n = max(n, 2)
        if c.rdlane and pv & c.r: n = max(n, 1)
        if (c.dpp or c.perm) and pv & c.r: n = max(n, 2)
        if p.trans and c.valu and not c.trans and pv & c.r: n = max(n, 1)
        if p.trans and (c.mfma or c.vmem or c.ds) and pv & c.r: n = max(n, 1)
        if ps:
            if c.valu and ps & c.r: n = max(n, 4 if c.rdlane else 2)
            if c.vmem and ps & c.r: n = max(n, 5)
            if c.salu and ps & c.r: n = max(n, 1)
    if p.mfma:
        big = p.passes == 8
        if c.mfma:
            if p.w & c.srcAB: n = max(n, 12 if big else 8)
            if p.w & c.srcC and not (p.w == c.srcC and p.passes == c.passes): n = max(n, 10 if big else 6)
            if p.w & c.w and not (p.w == c.srcC): n = max(n, 12 if big else 8)
        elif c.valu or c.vmem or c.ds:
            if p.w & (c.r | c.w): n = max(n, 12 if big else 8)
            if c.valu and p.srcC & c.w: n = max(n, 7 if big else 3)
    if p.salu and ("s", "m0") in p.w and c.lds_dma: n = max(n, 1)
    if p.wide_store and (c.valu or c.mfma) and p.data & c.w: n = max(n, 2)
    return n

def pad_hazards(lines):
    out = []; win = []; added = 0
    for l in lines:
        s = l.strip()
        if not s or s.endswith(":") or s.startswith((";", ".")):
            out.append(l); continue
        c = Ins(s)
        dist = 0; short = 0
        for p in reversed(win):
            short = max(short, _need(p, c) - dist)
            dist += p.states
            if dist >= 12: break
        if short > 0:
            nop = Ins(f"s_nop {short - 1}")
            out.append(f"    s_nop {short - 1}"); win.append(nop); added += 1
        out.append(l); win.append(c)
        if len(win) > 16: win = win[-16:]
    return out, added

STAMPS = [False]

class K:
    def __init__(self, name):
        self.name = name; self.lines = []; self.nl = 0
        self.nvm = 0; self.nlg = 0; self.vm_done = 0; self.lg_done = 0
    def __call__(self, s):
        last = None
        for l in s.strip("\n").split("\n"):
            l = l.strip()
            if not l: continue
            self.lines.append("    " + l)
            op = l.split()[0]
            if op.startswith(("buffer_", "global_")):
                self.nvm += 1; last = self.nvm
            elif op.startswith("ds_"):
                self.nlg += 1; last = self.nlg
            elif op == "s_waitcnt":
                m = re.search(r"vmcnt\((\d+)\)", l)
                if m: self.vm_done = max(self.vm_done, self.nvm - int(m.group(1)))
                m = re.search(r"lgkmcnt\((\d+)\)", l)
                if m: self.lg_done = max(self.lg_done, self.nlg - int(m.group(1)))
        return last
    def wait(self, vm=None, lg=None):
        parts = []
        if vm is not None and vm > self.vm_done:
            parts.append(f"vmcnt({min(62, self.nvm - vm)})")
        if lg is not None and lg > self.lg_done:
            parts.append(f"lgkmcnt({min(14, self.nlg - lg)})")
        if parts: self("s_waitcnt " + " ".join(parts))
    def stamp(self, i):
        if STAMPS[0]:
            self.lines.append(f"    s_memrealtime s[{72+2*i}:{73+2*i}]")
            if i == 0:
                self.lines.append("    s_memtime s[88:89]")
                self.lines.append("    s_mov_b32 s92, s0"); self.lines.append("    s_mov_b32 s93, s1")
                self.lines.append("    s_mov_b32 s94, s2"); self.lines.append("    v_readfirstlane_b32 s95, v0")
    def stamp_out(self, n, v=0):
        if not STAMPS[0]: return
        L = self.lines
        for t in f"""s_waitcnt vmcnt(0)
        s_memrealtime s[{72+2*n}:{73+2*n}]
        s_memtime s[90:91]
        s_load_dwordx4 s[4:7], s[92:93], 88
        s_waitcnt lgkmcnt(0)
        s_lshr_b32 s4, s4, 9
        s_and_b32 s4, s4, 15
        s_lshl_b32 s4, s4, 18
        s_lshl_b32 s5, s94, 10
        s_add_u32 s4, s4, s5
        s_and_b32 s95, s95, 0x3c0
        s_add_u32 s4, s4, s95
        s_add_u32 s8, s6, 0x8000000
        s_addc_u32 s9, s7, 0
        s_mov_b32 s10, 0x400000
        s_mov_b32 s11, 0x20000
        s_sub_u32 s90, s90, s88
        v_mov_b32 v{v+8}, s4
        s_getreg_b32 s5, hwreg(HW_REG_XCC_ID)""".split("\n"):
            L.append("    " + t.strip())
        for i in range(6):
            L.append(f"    v_mov_b32 v{v+i}, s{72+2*min(i,n)}")
        L.append(f"    v_mov_b32 v{v+6}, s5")
        L.append(f"    v_mov_b32 v{v+7}, s90")
        L.append("    s_mov_b64 exec, 1")
        L.append(f"    buffer_store_dwordx4 v[{v}:{v+3}], v{v+8}, s[8:11], 0 offen")
        L.append(f"    buffer_store_dwordx4 v[{v+4}:{v+7}], v{v+8}, s[8:11], 0 offen offset:16")
    def label(self, n):
        self.lines.append(n + ":")
    def text(self):
        lines, self.padded = pad_hazards(self.lines)
        return (f".globl {self.name}\n.p2align 8\n.type {self.name},@function\n{self.name}:\n"
                + "\n".join(lines) + "\n")

def desc(name, vgpr, accum, sgpr=96):
    return f""".p2align 6
.amdhsa_kernel {name}
  .amdhsa_next_free_vgpr {vgpr}
  .amdhsa_next_free_sgpr {sgpr}
  .amdhsa_accum_offset {accum}
  .amdhsa_group_segment_fixed_size 0
  .amdhsa_kernarg_size 104
  .amdhsa_user_sgpr_count 2
  .amdhsa_user_sgpr_kernarg_segment_ptr 1
  .amdhsa_system_sgpr_workgroup_id_x 1
  .amdhsa_float_denorm_mode_32 3
.end_amdhsa_kernel
"""

def module(header, launches, kernels):
    s = header
    for n, g, b, l in launches:
        s += f"; @launch kernel={n} grid=({g},1,1) block=({b},1,1) lds={l}\n"
    s += '.amdgcn_target "amdgcn-amd-amdhsa--gfx950"\n.text\n'
    for k, _, _ in kernels:
        s += k.text()
    s += '.section .rodata,"a"\n'
    for k, v, a in kernels:
        s += desc(k.name, v, a)
    return s
```

```python
import math, struct, sys
from asmlib import *

MB4 = 0x400000
WS_Y, WS_XN, WS_XR, WS_P0, WS_P1, WS_KV = 0x0, 0x400000, 0x800000, 0xC00000, 0x1000000, 0x1400000
WS_H, WS_W1, WS_W2 = 0x2000000, 0x3000000, 0x4000000
H_BYTES = 2048 * 3584 * 2
W_BYTES = 1024 * 3584 * 2
TBH = 224 * 512
ARG = dict(q=0, k=8, v=16, shift=24, ssm=32, D=40, wg=56, wu=64, wd=72, out=80, dbg=88, ws=96)
lg = lambda x: x.bit_length() - 1
f32bits = lambda x: struct.unpack("<I", struct.pack("<f", x))[0]

def srd(k, d, base, nbytes, off=0):
    if off: k(f"s_add_u32 s{d}, s{base}, {off:#x}\ns_addc_u32 s{d+1}, s{base+1}, 0")
    else: k(f"s_mov_b32 s{d}, s{base}\ns_mov_b32 s{d+1}, s{base+1}")
    k(f"s_mov_b32 s{d+2}, {nbytes:#x}\ns_mov_b32 s{d+3}, 0x20000")

def entry(k, n=256):
    k(f"s_cmp_ge_u32 s2, {n}\ns_cbranch_scc1 L_{k.name}_end")
    k.stamp(0)

def finish(k):
    k.label(f"L_{k.name}_end")
    k("s_endpgm")

def touch_code(k, first, last, vaddr, vdst, sb=64, v0=0, n=1, step=32768):
    k.nl += 1
    here = f"L_{k.name}_pc{k.nl}"
    k(f"s_getpc_b64 s[{sb}:{sb+1}]")
    k.label(here)
    k(f"""
    s_add_u32 s{sb}, s{sb}, {first}-{here}
    s_addc_u32 s{sb+1}, s{sb+1}, {"-1" if k.back else "0"}
    s_mov_b32 s{sb+2}, {last}-{first}
    s_mov_b32 s{sb+3}, 0x20000
    v_lshlrev_b32 v{vaddr}, 7, v{v0}
    """)
    for i in range(n):
        if i: k(f"v_add_u32 v{vaddr}, {step}, v{vaddr}")
        k(f"buffer_load_dword v{vdst}, v{vaddr}, s[{sb}:{sb+3}], 0 offen")

def unpk(k, dst, src, hi):
    k(f"v_and_b32 v{dst}, 0xffff0000, v{src}" if hi else f"v_lshlrev_b32 v{dst}, 16, v{src}")

def w1_shuffle(k, KT, first_unit, n_units, lds_base, w_mod, extra=None):
    KM = 32 - KT
    k(f"""
    s_sub_u32 s17, s17, 4
    s_lshl_b32 s18, s2, 2
    s_add_u32 s18, s18, s17
    s_cmp_lt_u32 s18, {n_units}
    s_cselect_b32 s22, {W_BYTES}, 0
    s_cselect_b32 s26, {2*W_BYTES}, 0
    s_add_u32 s18, s18, {first_unit}
    s_mul_hi_u32 s19, s18, {-(-(1 << 32) // 28)}
    s_mul_i32 s28, s19, 28
    s_sub_u32 s18, s18, s28
    s_lshr_b32 s28, s19, 5
    s_and_b32 s19, s19, 31
    s_mul_i32 s29, s19, {32*7168}
    s_lshl_b32 s30, s18, 8
    s_add_u32 s29, s29, s30
    s_lshl_b32 s31, s17, 13
    s_add_u32 s31, s31, {lds_base}
    v_lshrrev_b32 v3, 4, v2
    v_mul_u32_u24 v3, 7168, v3
    v_and_b32 v4, 15, v2
    v_lshl_add_u32 v3, v4, 4, v3
    s_waitcnt lgkmcnt(0)
    s_cmp_eq_u32 s28, 0
    s_cselect_b32 s20, s4, s6
    s_cselect_b32 s21, s5, s7
    s_mov_b32 s23, 0x20000
    s_barrier
    """)
    for j in range(8):
        k(f"s_add_u32 m0, s31, {1024*j}\ns_add_u32 s30, s29, {4*7168*j}")
        ld = k("buffer_load_dwordx4 v3, s[20:23], s30 offen lds")
    if extra: extra()
    k(f"""
    s_add_u32 s24, s14, {WS_W1}
    s_addc_u32 s25, s15, 0
    s_mov_b32 s27, 0x20000
    v_lshrrev_b32 v3, 4, v2
    v_lshlrev_b32 v3, 3, v3
    v_bfe_u32 v4, v2, 2, 2
    v_add_u32 v3, v3, v4
    v_lshlrev_b32 v3, 8, v3
    v_and_b32 v4, 3, v2
    v_lshl_add_u32 v3, v4, 3, v3
    v_add_u32 v3, s31, v3
    v_lshlrev_b32 v4, 4, v2
    s_mul_i32 s32, s19, 14
    s_mul_i32 s33, s28, 7
    s_add_u32 s32, s32, s33
    s_lshl_b32 s33, s19, 1
    s_add_u32 s33, s33, s28
    s_add_u32 s33, s33, {12*KM}
    s_cmp_lt_u32 s19, {KM}
    s_cselect_b32 s32, s32, s33
    s_cselect_b32 s33, 1, {2*KT}
    s_lshl_b32 s18, s18, 3
    """)
    for i in range(8):
        k(f"""
        s_mul_i32 s34, s18, 9363
        s_lshr_b32 s34, s34, 16
        s_mul_i32 s35, s34, 7
        s_sub_u32 s35, s18, s35
        s_mul_i32 s35, s35, s33
        s_mul_i32 s34, s34, 448
        s_add_u32 s34, s34, s35
        s_add_u32 s34, s34, s32
        s_lshl_b32 s{48+i}, s34, 10
        s_add_u32 s18, s18, 1
        """)
    assert all((x * 9363) >> 16 == x // 7 for x in range(224))
    k.wait(vm=ld); k.stamp(1)
    rid = []
    for i in range(8):
        k(f"ds_read_b64_tr_b16 v[{8+4*i}:{9+4*i}], v3 offset:{32*i}")
        rid.append(k(f"ds_read_b64_tr_b16 v[{10+4*i}:{11+4*i}], v3 offset:{32*i + 1024}"))
    for i in range(8):
        k.wait(lg=rid[i])
        k(f"buffer_store_dwordx4 v[{8+4*i}:{11+4*i}], v4, s[24:27], s{48+i} offen {w_mod}")
    k.stamp(2); k.stamp(3); k.stamp_out(4, 48)

def gen_kv(KT, st_mod="sc1", touch=("ssm",), tc=True, nsh=1024, w_mod="sc1"):
    k = K("kv_kernel"); entry(k)
    k(f"""
    v_readfirstlane_b32 s17, v0
    s_lshr_b32 s17, s17, 6
    s_cmp_ge_u32 s17, 4
    s_cbranch_scc1 L_kv_shuf
    s_load_dwordx4 s[4:7], s[0:1], {ARG['k']}
    s_load_dwordx4 s[8:11], s[0:1], {ARG['shift']}
    s_load_dwordx2 s[14:15], s[0:1], {ARG['ws']}
    s_load_dwordx2 s[12:13], s[0:1], {ARG['q']}
    s_and_b32 s3, s2, 15
    s_lshr_b32 s16, s2, 4
    v_and_b32 v1, 7, v0
    v_bfe_u32 v2, v0, 6, 1
    v_lshl_add_u32 v1, v2, 3, v1
    s_lshl_b32 s17, s16, 4
    v_add_u32 v1, s17, v1
    v_bfe_u32 v2, v0, 3, 3
    v_lshrrev_b32 v3, 7, v0
    v_lshl_add_u32 v2, v3, 3, v2
    s_lshl_b32 s17, s3, 4
    v_add_u32 v2, s17, v2
    v_lshlrev_b32 v3, 14, v1
    v_lshl_add_u32 v3, v2, 3, v3
    v_subrev_u32 v4, 0x1800, v3
    v_subrev_u32 v5, 0x1000, v3
    v_subrev_u32 v6, 0x800, v3
    v_lshlrev_b32 v7, 5, v2
    s_mov_b32 s19, 4096
    s_mov_b32 s28, 8192
    s_mov_b32 s29, 12288
    s_waitcnt lgkmcnt(0)
    """)
    srd(k, 20, 4, MB4); srd(k, 24, 6, MB4); srd(k, 32, 8, 8192)
    KR = lambda t: 16 + 2 * t
    VR = lambda t: 32 + 2 * t
    so = ["0", "s19", "s28", "s29"]
    k("buffer_load_dwordx4 v[48:51], v7, s[32:35], 0 offen\nbuffer_load_dwordx4 v[52:55], v7, s[32:35], 0 offen offset:16")
    for i in range(3):
        k(f"buffer_load_dwordx2 v[{KR(i-3)}:{KR(i-3)+1}], v{4+i}, s[20:23], 0 offen")
    for t in range(8):
        lk = k(f"buffer_load_dwordx2 v[{KR(t)}:{KR(t)+1}], v3, s[20:23], {so[t>>1]} offen offset:{(t&1)*2048}")
    for t in range(8):
        lv = k(f"buffer_load_dwordx2 v[{VR(t)}:{VR(t)+1}], v3, s[24:27], {so[t>>1]} offen offset:{(t&1)*2048}")
    if touch:
        k("v_and_b32 v8, 127, v0\ns_lshl_b32 s17, s2, 7\nv_add_u32 v8, s17, v8\nv_lshlrev_b32 v8, 7, v8")
        k("v_readfirstlane_b32 s17, v0\ns_cmp_lt_u32 s17, 128")
        b = dict(ssm=10, q=12)
        t0 = b[touch[0]]; t1 = b[touch[-1]]
        k(f"s_cselect_b32 s36, s{t0}, s{t1}\ns_cselect_b32 s37, s{t0+1}, s{t1+1}")
        k(f"s_cselect_b32 s38, {MB4}, {MB4 if len(touch) > 1 else 0}\ns_mov_b32 s39, 0x20000")
        k("buffer_load_dword v9, v8, s[36:39], 0 offen")
    k("s_barrier")
    srd(k, 40, 14, MB4, WS_KV)
    k("v_sub_u32 v7, 255, v1\nv_lshlrev_b32 v7, 4, v7\nv_lshl_add_u32 v7, v2, 14, v7")
    k.wait(vm=lk); k.stamp(1)
    W = lambda c, j: 56 + 4 * c + j
    for c in range(4):
        for j in range(4): unpk(k, W(c, j), 48 + 2 * c + (j >> 1), j & 1)
    KS = lambda c, t: 72 + 8 * c + t
    KF = lambda t: 107 + t
    for c in range(4):
        for t in range(-3, 8): unpk(k, KF(t), KR(t) + (c >> 1), c & 1)
        for t in range(8): k(f"v_mul_f32 v{KS(c,t)}, v{W(c,3)}, v{KF(t-3)}")
        for j in (2, 1, 0):
            for t in range(8): k(f"v_fmac_f32 v{KS(c,t)}, v{W(c,j)}, v{KF(t-j)}")
    k.wait(vm=lv); k.stamp(2)
    for c in range(4):
        for t in range(8): unpk(k, KF(t), VR(t) + (c >> 1), c & 1)
        for t in range(8): k(f"v_mul_f32 v{KS(c,t)}, v{KS(c,t)}, v{KF(t)}")
        for i in range(4): k(f"v_cvt_pk_bf16_f32 v{12+4*c+i}, v{KS(c,7-2*i)}, v{KS(c,6-2*i)}")
        k(f"buffer_store_dwordx4 v[{12+4*c}:{15+4*c}], v7, s[40:43], {so[c]} offen {st_mod}")
    k.stamp(3); k.stamp_out(4, 32)
    k("s_endpgm")
    k.label("L_kv_shuf")
    k(f"s_load_dwordx4 s[4:7], s[0:1], {ARG['wg']}\ns_load_dwordx2 s[14:15], s[0:1], {ARG['ws']}\nv_and_b32 v2, 63, v0")
    def extra():
        if tc:
            k.back = False
            k("v_and_b32 v5, 255, v0")
            touch_code(k, "conv_kernel", "L_fin_kernel_end", 6, 7, v0=5, n=2)
    w1_shuffle(k, KT, 0, nsh, 0, w_mod, extra)
    finish(k)
    return (k, 120, 120), ("kv_kernel", 256, 512, 32768)

CS = 4160; XS = 4640; CH_LDS = 4 * CS + 2 * XS; CONV_LDS = 4 * CH_LDS

def gen_conv(KT, st_mod="", w_mod="sc1", touchq=True, first=1024):
    KM = 32 - KT
    k = K("conv_kernel"); entry(k)
    k(f"""
    s_load_dwordx4 s[8:11], s[0:1], {ARG['ssm']}
    s_load_dwordx2 s[14:15], s[0:1], {ARG['ws']}
    s_load_dwordx4 s[4:7], s[0:1], {ARG['wg']}
    s_load_dwordx2 s[12:13], s[0:1], {ARG['q']}
    v_lshrrev_b32 v1, 6, v0
    v_and_b32 v2, 63, v0
    v_readfirstlane_b32 s17, v1
    s_and_b32 s3, s2, 7
    s_lshl_b32 s3, s3, 5
    s_lshr_b32 s16, s2, 3
    s_add_u32 s3, s3, s16
    v_lshlrev_b32 v60, 4, v2
    s_cmp_ge_u32 s17, 4
    s_cbranch_scc1 L_conv_shuf
    s_lshl_b32 s18, s3, 2
    s_add_u32 s18, s18, s17
    s_lshl_b32 s30, s18, 12
    s_mul_i32 s31, s17, {CH_LDS}
    s_waitcnt lgkmcnt(0)
    s_add_u32 s32, s8, s30
    s_addc_u32 s33, s9, 0
    s_mov_b32 s34, 4096
    s_mov_b32 s35, 0x20000
    s_add_u32 s30, s30, {WS_KV}
    s_add_u32 s24, s14, s30
    s_addc_u32 s25, s15, 0
    s_mov_b32 s26, 4100
    s_mov_b32 s27, 0x20000
    """)
    for r in (1, 0):
        k(f"s_add_u32 m0, s31, {4*CS + r*XS}\ns_mov_b32 s30, {2 - 2*r}")
        for i in range(4):
            k(f"buffer_load_dwordx4 v60, s[24:27], s30 offen offset:{i*1024} lds")
    for cc in range(4):
        k(f"s_add_u32 m0, s31, {cc*CS}\ns_mov_b32 s30, {4*cc+4}")
        for i in range(4):
            k(f"buffer_load_dwordx4 v60, s[32:35], s30 offen offset:{i*1024} lds")
    A = lambda buf, p: 64 + buf * 64 + 4 * p
    B = lambda buf, j: 96 + buf * 64 + 4 * j
    AD = 40
    k("v_and_b32 v61, 15, v2\nv_lshrrev_b32 v62, 4, v2\nv_lshlrev_b32 v63, 2, v61\nv_lshl_add_u32 v63, v62, 4, v63")
    for w in range(4): k(f"v_subrev_u32 v{4+w}, {60-4*w}, v63")
    for w in range(4): k(f"buffer_load_dword v{A(0,0)+w}, v{4+w}, s[32:35], 0 offen")
    CNT = CONV_LDS + 32768
    k(f"""
    v_mov_b32 v48, {CNT}
    v_mov_b32 v49, 0
    ds_write_b32 v48, v49
    s_waitcnt lgkmcnt(0)
    s_barrier
    s_and_b32 s30, s18, 0xfffffffe
    s_lshl_b32 s30, s30, 1
    s_add_u32 s10, s10, s30
    s_addc_u32 s11, s11, 0
    s_load_dword s44, s[10:11], 0
    v_and_b32 v8, 3, v61
    v_mul_u32_u24 v8, {CS}, v8
    v_lshrrev_b32 v9, 2, v61
    v_add_u32 v9, v9, v62
    v_lshl_add_u32 v56, v9, 4, v8
    v_add_u32 v56, s31, v56
    v_lshrrev_b32 v8, 3, v61
    v_mul_u32_u24 v9, {XS}, v8
    v_and_b32 v10, 7, v61
    v_lshlrev_b32 v11, 6, v10
    v_sub_u32 v9, v9, v11
    v_lshl_add_u32 v9, v62, 4, v9
    v_add_u32 v9, {4*CS + 4032 - 3584}, v9
    v_add_u32 v57, s31, v9
    v_lshrrev_b32 v11, 1, v10
    v_xor_b32 v11, v11, v62
    v_lshl_add_u32 v11, v10, 2, v11
    v_lshlrev_b32 v11, 4, v11
    v_lshl_add_u32 v11, v8, 12, v11
    v_add_u32 v59, s31, v11
    v_lshrrev_b32 v8, 5, v2
    v_mul_u32_u24 v8, {XS}, v8
    v_and_b32 v9, 31, v2
    v_lshl_add_u32 v8, v9, 4, v8
    v_add_u32 v8, s31, v8
    v_mov_b32 v44, 0
    v_mov_b32 v45, 0
    v_mov_b32 v46, 0
    v_mov_b32 v47, 0
    v_mov_b32 v58, s31
    ds_write_b128 v8, v[44:47] offset:{4*CS + 4096}
    s_waitcnt lgkmcnt(0)
    s_and_b32 s30, s18, 1
    s_lshl_b32 s30, s30, 4
    s_lshr_b32 s44, s44, s30
    s_and_b32 s44, s44, 0xffff
    v_mov_b32 v9, s44
    """)
    for w in range(4):
        k(f"v_cmp_eq_u32 vcc, 0, v{4+w}\nv_cndmask_b32 v{AD+w}, 0, v9, vcc")
    k(f"s_waitcnt vmcnt(0)\nds_write_b16 v58, v44 offset:{4*CS + 4094}")
    k.stamp(1)
    Y = lambda j: 8 + 4 * j
    def reads(i):
        buf = i & 1; out = []
        for x in range(8):
            out.append(("B", x, f"ds_read_b128 v[{B(buf,x)}:{B(buf,x)+3}], v57 offset:{3584-512*x+64*i}"))
            if (i, x) != (0, 0):
                out.append(("A", x, f"ds_read_b128 v[{A(buf,x)}:{A(buf,x)+3}], v56 offset:{64*(i-1)+512*x}"))
        return out
    ids = {}
    for kind, x, txt in reads(0): ids[(0, kind, x)] = k(txt)
    for j in range(8):
        k.wait(lg=ids[(0, "B", j)])
        k(f"v_mfma_f32_16x16x32_bf16 v[{Y(j)}:{Y(j)+3}], v[{AD}:{AD+3}], v[{B(0,j)}:{B(0,j)+3}], 0")
    k("s_waitcnt lgkmcnt(0)\ns_mov_b32 s30, 4")
    for rep in range(2):
        n0 = len(k.lines)
        if rep: k.label("L_conv_loop")
        for i in range(2):
            buf = i & 1
            nxt = reads(i + 1)
            order = sorted([(p, j) for p in range(8) for j in range(8 - p)], key=lambda t: (max(t), t[0] + t[1]))
            for n, (p, j) in enumerate(order):
                k.wait(lg=max(ids.get((i, "A", p), 0), ids[(i, "B", j)]))
                jp = p + j
                k(f"v_mfma_f32_16x16x32_bf16 v[{Y(jp)}:{Y(jp)+3}], v[{A(buf,p)}:{A(buf,p)+3}], v[{B(buf,j)}:{B(buf,j)+3}], v[{Y(jp)}:{Y(jp)+3}]")
                if n % 2 == 1 and nxt:
                    kind, x, txt = nxt.pop(0)
                    ids[((i + 1) & 1, kind, x)] = k(txt)
                if i == 1 and n == 32: k("v_add_u32 v56, 128, v56\nv_add_u32 v57, 128, v57")
                if i == 1 and n == 34: k("s_sub_u32 s30, s30, 1\ns_cmp_lg_u32 s30, 0")
            assert not nxt
        if not rep: del k.lines[n0:]
    k("s_cbranch_scc1 L_conv_loop\ns_waitcnt lgkmcnt(0)")
    k.stamp(2)
    k(f"""
    v_lshrrev_b32 v4, 3, v0
    v_and_b32 v4, 3, v4
    v_xor_b32 v4, v4, v0
    v_lshlrev_b32 v4, 4, v4
    v_add_u32 v5, {2*CH_LDS}, v4
    s_lshl_b32 s30, s3, 6
    v_lshlrev_b32 v6, 14, v0
    v_add_u32 v6, s30, v6
    """)
    for j in range(8): k(f"ds_write_b128 v59, v[{Y(j)}:{Y(j)+3}] offset:{512*j}")
    srd(k, 20, 14, MB4, WS_Y)
    k("""
    v_mov_b32 v49, 1
    s_mov_b64 exec, 1
    ds_add_u32 v48, v49
    s_mov_b64 exec, -1
    """)
    k.label("L_conv_spin")
    k("""
    ds_read_b32 v49, v48
    s_waitcnt lgkmcnt(0)
    v_readfirstlane_b32 s30, v49
    s_cmp_lt_u32 s30, 4
    s_cbranch_scc1 L_conv_spin
    """)
    CV = lambda c, r: 64 + 8 * c + 4 * r
    for c in range(4):
        for r in range(2):
            k(f"ds_read_b128 v[{CV(c,r)}:{CV(c,r)+3}], v{4 + (c>>1)} offset:{(c&1)*CH_LDS + 4096*r}")
    k("s_waitcnt lgkmcnt(0)")
    for t in range(8):
        for h in range(2):
            k(f"v_cvt_pk_bf16_f32 v{128+2*t+h}, v{CV(2*h,t&1)+(t>>1)}, v{CV(2*h+1,t&1)+(t>>1)}")
        if t & 1:
            k(f"buffer_store_dwordx4 v[{128+2*t-2}:{128+2*t+1}], v6, s[20:23], 0 offen offset:{8*(t-1)} {st_mod}")
    k.stamp(3); k.stamp_out(4)
    k("s_endpgm")
    k.label("L_conv_shuf")
    def extra():
        if touchq:
            srd(k, 40, 12, MB4)
            k("v_and_b32 v5, 127, v0\ns_lshl_b32 s30, s2, 7\nv_add_u32 v5, s30, v5\nv_lshlrev_b32 v5, 7, v5")
            k("s_cmp_lt_u32 s17, 2\ns_cselect_b32 s42, s42, 0")
            k("buffer_load_dword v6, v5, s[40:43], 0 offen")
    w1_shuffle(k, KT, first, 1792 - first, CONV_LDS, w_mod, extra)
    finish(k)
    return (k, 192, 192), ("conv_kernel", 256, 512, CONV_LDS + 32768 + 16)

def gen_ln(name, mode, st_mod="sc1", tc=True):
    k = K(name); entry(k)
    k(f"""
    s_load_dwordx2 s[4:5], s[0:1], {ARG['out'] if mode == 'fin' else ARG['q']}
    s_load_dwordx2 s[6:7], s[0:1], {ARG['ws']}
    v_and_b32 v1, 7, v0
    v_lshrrev_b32 v2, 3, v0
    v_lshlrev_b32 v3, 11, v1
    v_lshl_add_u32 v3, v2, 4, v3
    v_lshlrev_b32 v4, 3, v1
    v_lshl_add_u32 v4, v2, 7, v4
    v_lshlrev_b32 v5, 4, v1
    v_lshl_add_u32 v5, v2, 8, v5
    s_lshl_b32 s3, s2, 14
    s_add_u32 s24, s3, 8192
    s_lshr_b32 s25, s2, 1
    s_lshl_b32 s25, s25, 15
    s_and_b32 s26, s2, 1
    s_lshl_b32 s26, s26, 7
    s_add_u32 s25, s25, s26
    s_add_u32 s26, s25, 16384
    s_waitcnt lgkmcnt(0)
    """)
    fs = ["s25", "s26"]
    srd(k, 16, 6, MB4, WS_XR)
    if mode == "first":
        srd(k, 8, 4, MB4)
        for i in range(2): lx = k(f"buffer_load_dwordx4 v[{8+4*i}:{11+4*i}], v3, s[8:11], s3 offen offset:{1024*i}")
    else:
        srd(k, 28, 6, MB4, WS_P0); srd(k, 32, 6, MB4, WS_P1)
        for i in range(2):
            k(f"buffer_load_dwordx4 v[{80+4*i}:{83+4*i}], v5, s[28:31], {fs[i]} offen")
            lp = k(f"buffer_load_dwordx4 v[{88+4*i}:{91+4*i}], v5, s[32:35], {fs[i]} offen")
        for i in range(2): lx = k(f"buffer_load_dwordx4 v[{8+4*i}:{11+4*i}], v5, s[16:19], {fs[i]} offen")
    if mode != "fin":
        srd(k, 12, 6, MB4, WS_Y)
        for i in range(2):
            for h in range(2):
                ly = k(f"buffer_load_dwordx2 v[{16+4*i+2*h}:{17+4*i+2*h}], v4, s[12:15], {'s24' if i else 's3'} offen offset:{64*h}")
        if tc:
            k.back = mode == "mid"
            touch_code(k, "g1a_kernel", "L_g1a_kernel_end", 96, 97)
        srd(k, 20, 6, MB4, WS_XN)
        k("""
        v_lshrrev_b32 v6, 6, v0
        v_lshlrev_b32 v6, 3, v6
        v_lshl_add_u32 v6, v1, 6, v6
        v_bfe_u32 v7, v0, 4, 1
        v_lshl_add_u32 v6, v7, 2, v6
        v_lshlrev_b32 v7, 6, v1
        """)
    else:
        srd(k, 8, 4, MB4)
    X = lambda e: 24 + e
    Yv = lambda e: 40 + e
    def unpack(dst, src):
        for e in range(16): unpk(k, dst(e), src + e // 2, e & 1)
    def stats(rnd):
        k(f"v_pk_add_f32 v[56:57], v[{X(0)}:{X(1)}], v[{X(2)}:{X(3)}]")
        k(f"v_pk_mul_f32 v[58:59], v[{X(0)}:{X(1)}], v[{X(0)}:{X(1)}]")
        for e in range(2, 16, 2):
            if e > 2: k(f"v_pk_add_f32 v[56:57], v[56:57], v[{X(e)}:{X(e+1)}]")
            k(f"v_pk_fma_f32 v[58:59], v[{X(e)}:{X(e+1)}], v[{X(e)}:{X(e+1)}], v[58:59]")
        k(f"""
        v_add_f32 v56, v56, v57
        v_add_f32 v58, v58, v59
        v_permlane16_swap_b32 v56, v58
        v_add_f32 v56, v56, v58
        v_add_f32_dpp v56, v56, v56 row_ror:8 row_mask:0xf bank_mask:0xf
        v_mov_b32 v57, v56
        v_permlane32_swap_b32 v56, v57
        v_add_f32 v56, v56, v57
        ds_write_b32 v6, v56 offset:{512*rnd}
        s_waitcnt lgkmcnt(0)
        s_barrier
        """)
        for i in range(4): k(f"ds_read_b128 v[{64+4*i}:{67+4*i}], v7 offset:{512*rnd+16*i}")
        k("s_waitcnt lgkmcnt(0)")
        for i in range(4): k(f"v_pk_add_f32 v[{64+4*i}:{65+4*i}], v[{64+4*i}:{65+4*i}], v[{66+4*i}:{67+4*i}]")
        k(f"""
        v_pk_add_f32 v[64:65], v[64:65], v[68:69]
        v_pk_add_f32 v[72:73], v[72:73], v[76:77]
        v_pk_add_f32 v[64:65], v[64:65], v[72:73]
        v_mul_f32 v64, {f32bits(1/1024):#x}, v64
        v_mul_f32 v65, {f32bits(1/1024):#x}, v65
        v_fma_f32 v65, -v64, v64, v65
        v_max_f32 v65, 0, v65
        v_cvt_pk_bf16_f32 v66, v64, v65
        v_lshlrev_b32 v64, 16, v66
        v_and_b32 v65, 0xffff0000, v66
        v_add_f32 v65, {f32bits(1e-5):#x}, v65
        v_cvt_pk_bf16_f32 v65, v65, v65
        v_lshlrev_b32 v65, 16, v65
        v_sqrt_f32 v65, v65
        v_cvt_pk_bf16_f32 v65, v65, v65
        v_lshlrev_b32 v65, 16, v65
        v_rcp_f32 v60, v65
        v_mov_b32 v61, v60
        v_mul_f32_e64 v62, -v64, v60
        v_mov_b32 v63, v62
        """)
    if mode != "first":
        k.wait(vm=lp)
        unpack(X, 80); unpack(Yv, 88)
        for e in range(0, 16, 2):
            k(f"v_pk_add_f32 v[{X(e)}:{X(e+1)}], v[{X(e)}:{X(e+1)}], v[{Yv(e)}:{Yv(e+1)}]")
        k.wait(vm=lx)
        unpack(Yv, 8)
        for e in range(0, 16, 2):
            k(f"v_pk_add_f32 v[{X(e)}:{X(e+1)}], v[{X(e)}:{X(e+1)}], v[{Yv(e)}:{Yv(e+1)}]")
            k(f"v_cvt_pk_bf16_f32 v{8+e//2}, v{X(e)}, v{X(e+1)}")
    k.wait(vm=lx); k.stamp(1)
    if mode == "fin":
        for i in range(2): k(f"buffer_store_dwordx4 v[{8+4*i}:{11+4*i}], v3, s[8:11], s3 offen offset:{1024*i} {st_mod}")
        k.stamp(2)
    else:
        unpack(X, 8)
        stats(0)
        k.wait(vm=ly); k.stamp(2)
        unpack(Yv, 16)
        for e in range(0, 16, 2):
            k(f"v_pk_fma_f32 v[64:65], v[{X(e)}:{X(e+1)}], v[60:61], v[62:63]")
            k(f"v_pk_fma_f32 v[{X(e)}:{X(e+1)}], v[64:65], v[{Yv(e)}:{Yv(e+1)}], v[{X(e)}:{X(e+1)}]")
            k(f"v_cvt_pk_bf16_f32 v{8+e//2}, v{X(e)}, v{X(e+1)}")
        for i in range(2): k(f"buffer_store_dwordx4 v[{8+4*i}:{11+4*i}], v5, s[16:19], {fs[i]} offen {st_mod}")
        unpack(X, 8)
        stats(1)
        for e in range(0, 16, 2):
            k(f"v_pk_fma_f32 v[{X(e)}:{X(e+1)}], v[{X(e)}:{X(e+1)}], v[60:61], v[62:63]")
            k(f"v_cvt_pk_bf16_f32 v{16+e//2}, v{X(e)}, v{X(e+1)}")
        for i in range(2): k(f"buffer_store_dwordx4 v[{16+4*i}:{19+4*i}], v5, s[20:23], {fs[i]} offen {st_mod}")
    k.stamp(3); k.stamp_out(4, 32)
    finish(k)
    return (k, 104, 104), (name, 256, 512, 1024)

def ablate(k, abl):
    out = []; seen = False
    for l in k.lines:
        s = l.strip()
        if s == "s_barrier":
            if "nobar" in abl and seen: continue
            seen = True
        if "nomfma" in abl and s.startswith("v_mfma"): continue
        if "nods" in abl and s.startswith("ds_read"): continue
        if "novm" in abl and seen and s.startswith("buffer_load"): continue
        if "novm" in abl and seen and s.startswith("s_waitcnt vmcnt") and "vmcnt(0)" not in s:
            l = l.replace(s.split()[1] + " ", "") if "lgkm" in s else "    s_nop 0"
        out.append(l)
    k.lines = out

def gen_gemm(name, kind, KT=14, NS=10, RW=8, la_bar=5, la=32, rate=0.7, st_mod="sc1", quiet=40, abl="", xm=4, tc=True):
    G1 = kind == 1
    shuf = G1
    k = K(name)
    if G1:
        k("s_movk_i32 s62, 896")
        k.label("L_g1_body")
    entry(k)
    NT = 4 if G1 else 2
    NU = 32 if G1 else 56
    NG = 14 if G1 else 8
    RING = KT if G1 else 14
    AW = lambda i: 4 * (i % RW)
    AT = lambda u, t: 4 * RW + 4 * ((u % RING) * NT + t)
    nacc = NG * NT * 4
    VD, VTOK, VST, VC2 = nacc, nacc + 1, nacc + 2, nacc + 3
    VR = nacc + 4
    VS = nacc + 7
    TMP = nacc + 12
    NTILE = 32 if G1 else 16
    tstride = 32768 if G1 else TBH
    k(f"""
    s_load_dwordx2 s[8:9], s[0:1], {ARG['ws']}
    s_load_dwordx2 s[4:5], s[0:1], {ARG['wd']}
    v_lshrrev_b32 v1, 6, v0
    v_and_b32 v2, 63, v0
    v_readfirstlane_b32 s17, v1
    s_and_b32 s3, s2, 7
    s_lshr_b32 s16, s2, 3
    """)
    if G1:
        k(f"""
        s_and_b32 s18, s3, {8 // xm - 1}
        s_mul_i32 s18, s18, {xm}
        s_and_b32 s19, s16, {xm - 1}
        s_add_u32 s18, s18, s19
        s_lshr_b32 s19, s3, {lg(8 // xm)}
        s_mul_i32 s19, s19, {32 // xm}
        s_lshr_b32 s16, s16, {lg(xm)}
        s_add_u32 s19, s19, s16
        s_lshl_b32 s30, s18, 4
        s_lshl_b32 s16, s17, 2
        s_add_u32 s30, s30, s16
        s_lshl_b32 s34, s30, 15
        """)
    else:
        k(f"""
        s_lshr_b32 s18, s3, 1
        s_lshl_b32 s18, s18, 2
        s_and_b32 s19, s16, 3
        s_add_u32 s18, s18, s19
        s_and_b32 s28, s3, 1
        s_lshl_b32 s19, s28, 3
        s_lshr_b32 s29, s16, 2
        s_add_u32 s19, s19, s29
        s_lshl_b32 s30, s18, 3
        s_lshl_b32 s16, s17, 1
        s_add_u32 s30, s30, s16
        s_mul_i32 s34, s30, {TBH}
        s_mul_i32 s16, s28, {56*1024}
        s_add_u32 s34, s34, s16
        """)
    k(f"""
    s_mul_i32 s33, s19, {448*1024}
    s_lshl_b32 s31, s17, 12
    s_add_u32 s33, s33, s31
    v_lshlrev_b32 v{VR}, 4, v2
    v_add_u32 v{VD}, s33, v{VR}
    v_add_u32 v{VTOK}, s34, v{VR}
    s_waitcnt lgkmcnt(0)
    """)
    srd(k, 20, 8, NTILE * 448 * 1024, WS_W1 if G1 else WS_W2)
    if G1: srd(k, 24, 8, MB4, WS_XN)
    else: srd(k, 24, 8, H_BYTES, WS_H)
    tok_base = [None] * NT
    st = {"s": None}
    def dma(s, i):
        pre_ = []
        if st["s"] != s:
            pre_ = [f"s_add_u32 m0, s31, {(s % NS) * 16384}", f"s_mov_b32 s36, {s * 16384}"]; st["s"] = s
        return pre_ + [f"buffer_load_dwordx4 v{VD}, s[20:23], s36 offen offset:{1024*i} lds"]
    def tok(u, t):
        off = u * 1024; pre_ = []
        if tok_base[t] is None or off - tok_base[t] > 4095:
            tok_base[t] = off & ~4095
            pre_ = [f"s_mov_b32 s{40+t}, {t * tstride + tok_base[t]}"]
        return pre_ + [f"buffer_load_dwordx4 a[{AT(u,t)}:{AT(u,t)+3}], v{VTOK}, s[24:27], s{40+t} offen offset:{off - tok_base[t]}"]

    KM = NU - KT if G1 else NU
    groups = [(u, g) for u in range(KM) for g in range(NG)]
    tail_start = len(groups)
    if G1:
        for b in range(7):
            for u in range(KM, NU): groups += [(u, b), (u, 7 + b)]
    GPB = 2 * KT
    NGR = len(groups); assert NGR == 448
    first_use = {}; last_use = {}
    for i, (u, g) in enumerate(groups):
        first_use.setdefault(u, i); last_use[u] = i
    bars = {16 * s - la_bar: s for s in range(1, 28)}
    items = [(16 * s - la_bar, "W", s, i) for s in range(28) for i in range(4)]
    items += [(first_use[u], "T", u, t) for u in range(NU) for t in range(NT)]
    items.sort(key=lambda x: x[0])
    def earliest(it):
        if it[1] == "W": return 0 if it[2] < NS else 16 * (it[2] - NS + 2) - la_bar
        return 0 if it[2] < RING else last_use[it[2] - RING] + 1
    nxt_t = 1e9; sched = []
    for it in reversed(items):
        nxt_t = min(it[0] - la, nxt_t - 1.0 / rate)
        sched.append((max(nxt_t, earliest(it) or -1e9),) + it[1:])
    items = sorted(reversed(sched), key=lambda x: x[0])
    if G1:
        last_t = max(x[0] for x in items if x[1] == "T"); prev = last_t
        for n_, it in enumerate(items):
            if it[0] > last_t:
                prev = max(prev + 2.0, earliest(it)); items[n_] = (min(it[0], prev),) + it[1:]
    w_id = {}; t_id = {}
    def lines(it):
        return dma(it[2], it[3]) if it[1] == "W" else tok(it[2], it[3])
    def record(it, i):
        if it[1] == "W": w_id[it[2]] = i
        else: t_id[(it[2], it[3])] = i
    while items and items[0][0] < 0:
        it = items.pop(0); record(it, k("\n".join(lines(it))))
    k(f"v_add_u32 v{VR+1}, 0x10000, v{VR}\nv_add_u32 v{VR+2}, 0x20000, v{VR}\nv_mov_b32 v{VS+4}, v0")
    c1 = -2 * math.sqrt(2 / math.pi) * math.log2(math.e)
    if G1:
        srd(k, 12, 8, H_BYTES, WS_H)
        k(f"""
        s_mul_i32 s35, s30, {TBH}
        s_mul_i32 s16, s19, {7*512}
        s_add_u32 s44, s35, s16
        s_add_u32 s45, s44, {2*TBH}
        v_lshrrev_b32 v5, 5, v2
        v_and_b32 v6, 31, v2
        v_lshlrev_b32 v6, 4, v6
        v_mul_u32_u24 v7, {TBH}, v5
        v_add_u32 v{VST}, v7, v6
        v_mov_b32 v{VC2}, {f32bits(c1*0.044715):#x}
        """)
    else:
        k(f"""
        s_mul_i32 s16, s28, {WS_P1 - WS_P0}
        s_add_u32 s16, s16, {WS_P0}
        s_add_u32 s12, s8, s16
        s_addc_u32 s13, s9, 0
        s_mov_b32 s14, {MB4}
        s_mov_b32 s15, 0x20000
        s_lshl_b32 s44, s30, 15
        s_lshl_b32 s16, s29, 12
        s_add_u32 s44, s44, s16
        s_add_u32 s45, s44, 32768
        """)
    if shuf:
        k(f"""
        s_lshl_b32 s46, s2, 2
        s_add_u32 s46, s46, s17
        s_lshr_b32 s47, s46, 3
        s_and_b32 s48, s46, 7
        s_cmp_lt_u32 s46, s62
        s_cselect_b32 s54, {W_BYTES}, 0
        s_cselect_b32 s58, {W_BYTES}, 0
        s_mov_b32 s52, s4
        s_mov_b32 s53, s5
        s_mov_b32 s55, 0x20000
        s_add_u32 s56, s8, {WS_W2}
        s_addc_u32 s57, s9, 0
        s_mov_b32 s59, 0x20000
        s_lshl_b32 s49, s47, 16
        s_lshl_b32 s50, s48, 8
        s_add_u32 s49, s49, s50
        s_cmp_ge_u32 s47, 56
        s_cselect_b32 s50, {8*448 - 56*8}, 0
        s_mul_i32 s51, s48, 448
        s_add_u32 s50, s50, s51
        s_lshl_b32 s51, s47, 3
        s_add_u32 s50, s50, s51
        s_lshl_b32 s50, s50, 10
        s_add_u32 s51, s50, 4096
        v_lshrrev_b32 v3, 4, v2
        v_and_b32 v4, 15, v2
        v_lshlrev_b32 v4, 4, v4
        v_lshl_add_u32 v{VS}, v3, 11, v4
        v_lshrrev_b32 v3, 5, v2
        v_lshlrev_b32 v3, 4, v3
        v_bfe_u32 v4, v2, 2, 3
        v_add_u32 v3, v3, v4
        v_lshlrev_b32 v3, 8, v3
        v_and_b32 v4, 3, v2
        v_lshl_add_u32 v3, v4, 4, v3
        s_lshl_b32 s60, s17, 13
        """)
    acc = lambda g, t: (g * NT + t) * 4
    def rd(i):
        off = ((i // 16) % NS) * 16384 + (i % 16) * 1024
        return f"ds_read_b128 a[{AW(i)}:{AW(i)+3}], v{VR + off // 65536} offset:{off % 65536}"
    def gelu4(G, U, P):
        T = [TMP + e for e in range(4)]
        o = [f"v_mul_f32 v{T[e]}, v{G+e}, v{G+e}" for e in range(4)]
        o += [f"v_fmaak_f32 v{T[e]}, v{VC2}, v{T[e]}, {f32bits(c1):#x}" for e in range(4)]
        o += [f"v_mul_f32 v{T[e]}, v{T[e]}, v{G+e}" for e in range(4)]
        for e in range(4): o += [f"v_exp_f32 v{T[e]}, v{T[e]}", f"v_mul_f32 v{U+e}, v{U+e}, v{G+e}"]
        o += [f"v_add_f32 v{T[e]}, 1.0, v{T[e]}" for e in range(4)]
        o += [f"v_rcp_f32 v{T[e]}, v{T[e]}" for e in range(4)]
        o += [f"v_mul_f32 v{U+e}, v{U+e}, v{T[e]}" for e in range(4)]
        o += [f"v_cvt_pk_bf16_f32 v{P}, v{U}, v{U+1}", f"v_cvt_pk_bf16_f32 v{P+1}, v{U+2}, v{U+3}"]
        return o
    def epilogue(b):
        o = []
        for t in range(2):
            a = acc(b, 2 * t)
            o += gelu4(a, acc(7 + b, 2 * t), a) + gelu4(acc(b, 2 * t + 1), acc(7 + b, 2 * t + 1), a + 2)
            o += [f"v_permlane32_swap_b32 v{a}, v{a+2}", f"v_permlane32_swap_b32 v{a+1}, v{a+3}"]
            o.append(f"buffer_store_dwordx4 v[{a}:{a+3}], v{VST}, s[12:15], s{44+t} offen offset:{512*b} {st_mod}")
        return o
    cost = lambda s: 2 if s.startswith(("v_exp", "v_rcp")) else 1

    if shuf:
        free = [s % NS for s in range(28, 30)]
        assert free[1] == free[0] + 1
        k(f"s_add_u32 s60, s60, {free[0] * 16384}\nv_add_u32 v{VS+1}, s60, v3")
        shuf_at = 16 * (29 - NS + 2) - la_bar
    k.stamp(1)
    k.wait(vm=w_id[0]); k("s_barrier")
    k.stamp(2)
    published = 0; r_id = {}; rp = 0
    while rp < RW - 2:
        r_id[rp] = k(rd(rp)); rp += 1
    touch_at = 300
    credit = 0.0; seen = set(); epi = []; epi_rate = 0.0; epi_credit = 0.0
    q = []
    held = []
    shuf_state = 0; quiet_end = None; sh_ld = None
    for i, (u, g) in enumerate(groups):
        if i == tail_start or (not G1 and i == 224): k.stamp(3)
        if i in bars:
            pub = bars[i]
            assert not any(it[1] == "W" and it[2] <= pub for it in items)
            while any(c is not None and c[0] == "V" and c[1][1] == "W" and c[1][2] <= pub for _, c in q):
                t_, c = q.pop(0); id_ = k(t_)
                if c: (record(c[1], id_) if c[0] == "V" else r_id.__setitem__(c[1], id_))
            k.wait(vm=w_id[pub]); k("s_barrier"); published = pub
        n = 0
        while rp < NGR and rp <= i + RW - 2 and rp // 16 <= published and n < 2:
            q.append((rd(rp), ("R", rp))); rp += 1; n += 1
        if items and items[0][0] <= i:
            it = items.pop(0); ls = lines(it)
            q += [(x, None) for x in ls[:-1]] + [(ls[-1], ("V", it))]
        if tc and i == touch_at:
            n0 = len(k.lines); k.back = False
            touch_code(k, "g2_kernel" if G1 else "ln2_kernel", "L_fin_kernel_end", VS + 2, VS + 3, v0=VS + 4)
        if shuf and shuf_state == 0 and not items and i >= shuf_at:
            for j in range(8):
                q.append((f"s_add_u32 m0, s60, {1024*j}", None))
                q.append((f"s_add_u32 s61, s49, {8192*j}", None))
                q.append((f"buffer_load_dwordx4 v{VS}, s[52:55], s61 offen lds", ("S",)))
            shuf_state = 1; quiet_end = i + quiet
        if shuf_state == 1 and i >= quiet_end:
            q += [(x, None) for x in held]; held = []
            shuf_state = 2
        if G1 and i >= tail_start + GPB and (i - tail_start) % GPB == 0:
            assert not epi, len(epi)
            epi = epilogue((i - tail_start) // GPB - 1)
            epi_rate = sum(map(cost, epi)) / (GPB * NT - 6); epi_credit = -3 * epi_rate
        for t in range(NT):
            while i not in r_id or (u, t) not in t_id:
                t_, c = q.pop(0); id_ = k(t_)
                if c and c[0] == "V": record(c[1], id_)
                elif c and c[0] == "R": r_id[c[1]] = id_
                elif c: sh_ld = id_
            n0 = len(k.lines)
            k.wait(vm=t_id[(u, t)], lg=r_id[i])
            a = acc(g, t)
            c = f"v[{a}:{a+3}]" if (g, t) in seen else "0"
            seen.add((g, t))
            k(f"v_mfma_f32_16x16x32_bf16 v[{a}:{a+3}], a[{AW(i)}:{AW(i)+3}], a[{AT(u,t)}:{AT(u,t)+3}], {c}")
            budget = 2
            nq = 1 if len(q) <= (NT - t) + 2 else 2
            for _ in range(nq):
                if q:
                    t_, c = q.pop(0); id_ = k(t_); budget -= 1
                    if c and c[0] == "V": record(c[1], id_)
                    elif c and c[0] == "R": r_id[c[1]] = id_
                    elif c: sh_ld = id_
            epi_credit += epi_rate
            while epi and epi_credit >= cost(epi[0]) - 1e-9 and (budget >= cost(epi[0]) or epi_credit >= 3):
                x = epi.pop(0); epi_credit -= cost(x); budget -= cost(x)
                if x.startswith("buffer_store") and shuf_state == 1: held.append(x)
                else: k(x)
    assert not items and not epi and not q and not held, (len(items), len(epi), len(q), len(held))
    k.stamp(4)
    if shuf:
        assert shuf_state == 2
        k.wait(vm=sh_ld)
        rid = []
        for wb in range(8):
            off = (wb >> 1) * 64 + (wb & 1) * 8
            k(f"ds_read_b64_tr_b16 a[{4*wb}:{4*wb+1}], v{VS+1} offset:{off}")
            rid.append(k(f"ds_read_b64_tr_b16 a[{4*wb+2}:{4*wb+3}], v{VS+1} offset:{off + 2048}"))
        tail_ins = epilogue(6)
        for x in tail_ins[:12]: k(x)
        for wb in range(8):
            k.wait(lg=rid[wb])
            k(f"buffer_store_dwordx4 a[{4*wb}:{4*wb+3}], v{VR}, s[56:59], s{50 + wb//4} offen offset:{1024*(wb&3)} {st_mod}")
        for x in tail_ins[12:]: k(x)
    else:
        for p in range(4):
            for t in range(2):
                a = acc(2 * p, t); b = acc(2 * p + 1, t)
                k(f"""
                v_cvt_pk_bf16_f32 v{a}, v{a}, v{a+1}
                v_cvt_pk_bf16_f32 v{a+1}, v{a+2}, v{a+3}
                v_cvt_pk_bf16_f32 v{a+2}, v{b}, v{b+1}
                v_cvt_pk_bf16_f32 v{a+3}, v{b+2}, v{b+3}
                buffer_store_dwordx4 v[{a}:{a+3}], v{VR}, s[12:15], s{44+t} offen offset:{1024*p} {st_mod}
                """)
    k.stamp_out(5, TMP)
    ablate(k, abl)
    finish(k)
    nv = -(-(TMP + 12) // 8) * 8
    na = 4 * RW + 4 * RING * NT
    assert nv <= 256 and na <= 256
    return (k, nv + na, nv), (name, 256, 256, NS * 16384)

HEADER = open("interleave_layers__ssm_conv_h3__glu_gated_geglu__prompt.s.ref").read().split("; Override launch")[0]

def build(path, g1={}, g2={}, conv={}, ln={}, kv={}, stamps=False, only=None, order=None):
    STAMPS[0] = stamps
    KT = g1.get("KT", 14)
    g1a = gen_gemm("g1a_kernel", 1, **g1)
    kb = K("g1b_kernel"); kb("s_mov_b32 s62, 0\ns_branch L_g1_body")
    g1b = ((kb,) + g1a[0][1:], ("g1b_kernel",) + g1a[1][1:])
    g2k = gen_gemm("g2_kernel", 2, **g2)
    seq = [gen_kv(KT, **kv), gen_conv(KT, first=kv.get('nsh', 1024), **conv), gen_ln("ln1_kernel", "first", **ln), g1a, g2k,
           gen_ln("ln2_kernel", "mid", **ln), g1b, g2k, gen_ln("fin_kernel", "fin", **ln)]
    ks = [seq[i][0] for i in (0, 1, 2, 6, 3, 4, 5, 8)]
    if only: seq = seq[:only]
    if order: seq = [seq[i] for i in order]
    txt = module(HEADER, [l for _, l in seq], ks)
    txt = "\n".join(l.strip() if l.startswith("    ") else l for l in txt.split("\n"))
    open(path, "w").write(txt)
    return {kk[0].name: (len(kk[0].lines), kk[0].padded) for kk in ks}

if __name__ == "__main__":
    print(build("v2.s"))
    build("v2s.s", stamps=True)
```

```python
from v2 import *
G2 = dict(la=32, rate=0.55)
build("o_0.s", g2=G2)
build("o_1.s", g1=dict(tc=False), g2=dict(G2, tc=False), kv=dict(tc=False), ln=dict(tc=False))
build("o_2.s", g2=G2, kv=dict(nsh=768, touch=()), conv=dict(touchq=False))
build("o_3.s", g2=G2, kv=dict(nsh=896), conv=dict(touchq=False))
```

```python
import math, struct, sys
from asmlib import *

MB4 = 0x400000
WS_Y, WS_XN, WS_XR, WS_P0, WS_P1, WS_KV = 0x0, 0x400000, 0x800000, 0xC00000, 0x1000000, 0x1400000
WS_H, WS_W1, WS_W2 = 0x2000000, 0x3000000, 0x4000000
H_BYTES = 2048 * 3584 * 2
W_BYTES = 1024 * 3584 * 2
TBH = 224 * 512
ARG = dict(q=0, k=8, v=16, shift=24, ssm=32, D=40, wg=56, wu=64, wd=72, out=80, dbg=88, ws=96)
lg = lambda x: x.bit_length() - 1
f32bits = lambda x: struct.unpack("<I", struct.pack("<f", x))[0]

def srd(k, d, base, nbytes, off=0):
    if off: k(f"s_add_u32 s{d}, s{base}, {off:#x}\ns_addc_u32 s{d+1}, s{base+1}, 0")
    else: k(f"s_mov_b32 s{d}, s{base}\ns_mov_b32 s{d+1}, s{base+1}")
    k(f"s_mov_b32 s{d+2}, {nbytes:#x}\ns_mov_b32 s{d+3}, 0x20000")

def entry(k, n=256):
    k(f"s_cmp_ge_u32 s2, {n}\ns_cbranch_scc1 L_{k.name}_end")
    k.stamp(0)

def finish(k):
    k.label(f"L_{k.name}_end")
    k("s_endpgm")

def touch_code(k, first, last, vaddr, vdst, sb=64, v0=0, n=1, step=32768):
    k.nl += 1
    here = f"L_{k.name}_pc{k.nl}"
    k(f"s_getpc_b64 s[{sb}:{sb+1}]")
    k.label(here)
    k(f"""
    s_add_u32 s{sb}, s{sb}, {first}-{here}
    s_addc_u32 s{sb+1}, s{sb+1}, {"-1" if k.back else "0"}
    s_mov_b32 s{sb+2}, {last}-{first}
    s_mov_b32 s{sb+3}, 0x20000
    v_lshlrev_b32 v{vaddr}, 7, v{v0}
    """)
    for i in range(n):
        if i: k(f"v_add_u32 v{vaddr}, {step}, v{vaddr}")
        k(f"buffer_load_dword v{vdst}, v{vaddr}, s[{sb}:{sb+3}], 0 offen")

def unpk(k, dst, src, hi):
    k(f"v_and_b32 v{dst}, 0xffff0000, v{src}" if hi else f"v_lshlrev_b32 v{dst}, 16, v{src}")

def w1_shuffle(k, KT, first_unit, n_units, lds_base, w_mod, extra=None):
    KM = 32 - KT
    k(f"""
    s_sub_u32 s17, s17, 4
    s_lshl_b32 s18, s2, 2
    s_add_u32 s18, s18, s17
    s_cmp_lt_u32 s18, {n_units}
    s_cselect_b32 s22, {W_BYTES}, 0
    s_cselect_b32 s26, {2*W_BYTES}, 0
    s_add_u32 s18, s18, {first_unit}
    s_mul_hi_u32 s19, s18, {-(-(1 << 32) // 28)}
    s_mul_i32 s28, s19, 28
    s_sub_u32 s18, s18, s28
    s_lshr_b32 s28, s19, 5
    s_and_b32 s19, s19, 31
    s_mul_i32 s29, s19, {32*7168}
    s_lshl_b32 s30, s18, 8
    s_add_u32 s29, s29, s30
    s_lshl_b32 s31, s17, 13
    s_add_u32 s31, s31, {lds_base}
    v_lshrrev_b32 v3, 4, v2
    v_mul_u32_u24 v3, 7168, v3
    v_and_b32 v4, 15, v2
    v_lshl_add_u32 v3, v4, 4, v3
    s_waitcnt lgkmcnt(0)
    s_cmp_eq_u32 s28, 0
    s_cselect_b32 s20, s4, s6
    s_cselect_b32 s21, s5, s7
    s_mov_b32 s23, 0x20000
    s_barrier
    """)
    for j in range(8):
        k(f"s_add_u32 m0, s31, {1024*j}\ns_add_u32 s30, s29, {4*7168*j}")
        ld = k("buffer_load_dwordx4 v3, s[20:23], s30 offen lds")
    if extra: extra()
    k(f"""
    s_add_u32 s24, s14, {WS_W1}
    s_addc_u32 s25, s15, 0
    s_mov_b32 s27, 0x20000
    v_lshrrev_b32 v3, 4, v2
    v_lshlrev_b32 v3, 3, v3
    v_bfe_u32 v4, v2, 2, 2
    v_add_u32 v3, v3, v4
    v_lshlrev_b32 v3, 8, v3
    v_and_b32 v4, 3, v2
    v_lshl_add_u32 v3, v4, 3, v3
    v_add_u32 v3, s31, v3
    v_lshlrev_b32 v4, 4, v2
    s_mul_i32 s32, s19, 14
    s_mul_i32 s33, s28, 7
    s_add_u32 s32, s32, s33
    s_lshl_b32 s33, s19, 1
    s_add_u32 s33, s33, s28
    s_add_u32 s33, s33, {12*KM}
    s_cmp_lt_u32 s19, {KM}
    s_cselect_b32 s32, s32, s33
    s_cselect_b32 s33, 1, {2*KT}
    s_lshl_b32 s18, s18, 3
    """)
    for i in range(8):
        k(f"""
        s_mul_i32 s34, s18, 9363
        s_lshr_b32 s34, s34, 16
        s_mul_i32 s35, s34, 7
        s_sub_u32 s35, s18, s35
        s_mul_i32 s35, s35, s33
        s_mul_i32 s34, s34, 448
        s_add_u32 s34, s34, s35
        s_add_u32 s34, s34, s32
        s_lshl_b32 s{48+i}, s34, 10
        s_add_u32 s18, s18, 1
        """)
    assert all((x * 9363) >> 16 == x // 7 for x in range(224))
    k.wait(vm=ld); k.stamp(1)
    rid = []
    for i in range(8):
        k(f"ds_read_b64_tr_b16 v[{8+4*i}:{9+4*i}], v3 offset:{32*i}")
        rid.append(k(f"ds_read_b64_tr_b16 v[{10+4*i}:{11+4*i}], v3 offset:{32*i + 1024}"))
    for i in range(8):
        k.wait(lg=rid[i])
        k(f"buffer_store_dwordx4 v[{8+4*i}:{11+4*i}], v4, s[24:27], s{48+i} offen {w_mod}")
    k.stamp(2); k.stamp(3); k.stamp_out(4, 48)

def gen_kv(KT, st_mod="sc1", touch=("ssm",), tc=True, nsh=1024, w_mod="sc1"):
    k = K("kv_kernel"); entry(k)
    k(f"""
    v_readfirstlane_b32 s17, v0
    s_lshr_b32 s17, s17, 6
    s_cmp_ge_u32 s17, 4
    s_cbranch_scc1 L_kv_shuf
    s_load_dwordx4 s[4:7], s[0:1], {ARG['k']}
    s_load_dwordx4 s[8:11], s[0:1], {ARG['shift']}
    s_load_dwordx2 s[14:15], s[0:1], {ARG['ws']}
    s_load_dwordx2 s[12:13], s[0:1], {ARG['q']}
    s_and_b32 s3, s2, 15
    s_lshr_b32 s16, s2, 4
    v_and_b32 v1, 7, v0
    v_bfe_u32 v2, v0, 6, 1
    v_lshl_add_u32 v1, v2, 3, v1
    s_lshl_b32 s17, s16, 4
    v_add_u32 v1, s17, v1
    v_bfe_u32 v2, v0, 3, 3
    v_lshrrev_b32 v3, 7, v0
    v_lshl_add_u32 v2, v3, 3, v2
    s_lshl_b32 s17, s3, 4
    v_add_u32 v2, s17, v2
    v_lshlrev_b32 v3, 14, v1
    v_lshl_add_u32 v3, v2, 3, v3
    v_subrev_u32 v4, 0x1800, v3
    v_subrev_u32 v5, 0x1000, v3
    v_subrev_u32 v6, 0x800, v3
    v_lshlrev_b32 v7, 5, v2
    s_mov_b32 s19, 4096
    s_mov_b32 s28, 8192
    s_mov_b32 s29, 12288
    s_waitcnt lgkmcnt(0)
    """)
    srd(k, 20, 4, MB4); srd(k, 24, 6, MB4); srd(k, 32, 8, 8192)
    KR = lambda t: 16 + 2 * t
    VR = lambda t: 32 + 2 * t
    so = ["0", "s19", "s28", "s29"]
    k("buffer_load_dwordx4 v[48:51], v7, s[32:35], 0 offen\nbuffer_load_dwordx4 v[52:55], v7, s[32:35], 0 offen offset:16")
    for i in range(3):
        k(f"buffer_load_dwordx2 v[{KR(i-3)}:{KR(i-3)+1}], v{4+i}, s[20:23], 0 offen")
    for t in range(8):
        lk = k(f"buffer_load_dwordx2 v[{KR(t)}:{KR(t)+1}], v3, s[20:23], {so[t>>1]} offen offset:{(t&1)*2048}")
    for t in range(8):
        lv = k(f"buffer_load_dwordx2 v[{VR(t)}:{VR(t)+1}], v3, s[24:27], {so[t>>1]} offen offset:{(t&1)*2048}")
    if touch:
        k("v_and_b32 v8, 127, v0\ns_lshl_b32 s17, s2, 7\nv_add_u32 v8, s17, v8\nv_lshlrev_b32 v8, 7, v8")
        k("v_readfirstlane_b32 s17, v0\ns_cmp_lt_u32 s17, 128")
        b = dict(ssm=10, q=12)
        t0 = b[touch[0]]; t1 = b[touch[-1]]
        k(f"s_cselect_b32 s36, s{t0}, s{t1}\ns_cselect_b32 s37, s{t0+1}, s{t1+1}")
        k(f"s_cselect_b32 s38, {MB4}, {MB4 if len(touch) > 1 else 0}\ns_mov_b32 s39, 0x20000")
        k("buffer_load_dword v9, v8, s[36:39], 0 offen")
    k("s_barrier")
    srd(k, 40, 14, MB4, WS_KV)
    k("v_sub_u32 v7, 255, v1\nv_lshlrev_b32 v7, 4, v7\nv_lshl_add_u32 v7, v2, 14, v7")
    k.wait(vm=lk); k.stamp(1)
    W = lambda c, j: 56 + 4 * c + j
    for c in range(4):
        for j in range(4): unpk(k, W(c, j), 48 + 2 * c + (j >> 1), j & 1)
    KS = lambda c, t: 72 + 8 * c + t
    KF = lambda t: 107 + t
    for c in range(4):
        for t in range(-3, 8): unpk(k, KF(t), KR(t) + (c >> 1), c & 1)
        for t in range(8): k(f"v_mul_f32 v{KS(c,t)}, v{W(c,3)}, v{KF(t-3)}")
        for j in (2, 1, 0):
            for t in range(8): k(f"v_fmac_f32 v{KS(c,t)}, v{W(c,j)}, v{KF(t-j)}")
    k.wait(vm=lv); k.stamp(2)
    for c in range(4):
        for t in range(8): unpk(k, KF(t), VR(t) + (c >> 1), c & 1)
        for t in range(8): k(f"v_mul_f32 v{KS(c,t)}, v{KS(c,t)}, v{KF(t)}")
        for i in range(4): k(f"v_cvt_pk_bf16_f32 v{12+4*c+i}, v{KS(c,7-2*i)}, v{KS(c,6-2*i)}")
        k(f"buffer_store_dwordx4 v[{12+4*c}:{15+4*c}], v7, s[40:43], {so[c]} offen {st_mod}")
    k.stamp(3); k.stamp_out(4, 32)
    k("s_endpgm")
    k.label("L_kv_shuf")
    k(f"s_load_dwordx4 s[4:7], s[0:1], {ARG['wg']}\ns_load_dwordx2 s[14:15], s[0:1], {ARG['ws']}\nv_and_b32 v2, 63, v0")
    def extra():
        if tc:
            k.back = False
            k("v_and_b32 v5, 255, v0")
            touch_code(k, "conv_kernel", "L_fin_kernel_end", 6, 7, v0=5, n=2)
    w1_shuffle(k, KT, 0, nsh, 0, w_mod, extra)
    finish(k)
    return (k, 120, 120), ("kv_kernel", 256, 512, 32768)

CS = 4160; XS = 4640; CH_LDS = 4 * CS + 2 * XS; CONV_LDS = 4 * CH_LDS

def gen_conv(KT, st_mod="", w_mod="sc1", touchq=True, first=1024):
    KM = 32 - KT
    k = K("conv_kernel"); entry(k)
    k(f"""
    s_load_dwordx4 s[8:11], s[0:1], {ARG['ssm']}
    s_load_dwordx2 s[14:15], s[0:1], {ARG['ws']}
    s_load_dwordx4 s[4:7], s[0:1], {ARG['wg']}
    s_load_dwordx2 s[12:13], s[0:1], {ARG['q']}
    v_lshrrev_b32 v1, 6, v0
    v_and_b32 v2, 63, v0
    v_readfirstlane_b32 s17, v1
    s_and_b32 s3, s2, 7
    s_lshl_b32 s3, s3, 5
    s_lshr_b32 s16, s2, 3
    s_add_u32 s3, s3, s16
    v_lshlrev_b32 v60, 4, v2
    s_cmp_ge_u32 s17, 4
    s_cbranch_scc1 L_conv_shuf
    s_lshl_b32 s18, s3, 2
    s_add_u32 s18, s18, s17
    s_lshl_b32 s30, s18, 12
    s_mul_i32 s31, s17, {CH_LDS}
    s_waitcnt lgkmcnt(0)
    s_add_u32 s32, s8, s30
    s_addc_u32 s33, s9, 0
    s_mov_b32 s34, 4096
    s_mov_b32 s35, 0x20000
    s_add_u32 s30, s30, {WS_KV}
    s_add_u32 s24, s14, s30
    s_addc_u32 s25, s15, 0
    s_mov_b32 s26, 4100
    s_mov_b32 s27, 0x20000
    """)
    for r in (1, 0):
        k(f"s_add_u32 m0, s31, {4*CS + r*XS}\ns_mov_b32 s30, {2 - 2*r}")
        for i in range(4):
            k(f"buffer_load_dwordx4 v60, s[24:27], s30 offen offset:{i*1024} lds")
    for cc in range(4):
        k(f"s_add_u32 m0, s31, {cc*CS}\ns_mov_b32 s30, {4*cc+4}")
        for i in range(4):
            k(f"buffer_load_dwordx4 v60, s[32:35], s30 offen offset:{i*1024} lds")
    A = lambda buf, p: 64 + buf * 64 + 4 * p
    B = lambda buf, j: 96 + buf * 64 + 4 * j
    AD = 40
    k("v_and_b32 v61, 15, v2\nv_lshrrev_b32 v62, 4, v2\nv_lshlrev_b32 v63, 2, v61\nv_lshl_add_u32 v63, v62, 4, v63")
    for w in range(4): k(f"v_subrev_u32 v{4+w}, {60-4*w}, v63")
    for w in range(4): k(f"buffer_load_dword v{A(0,0)+w}, v{4+w}, s[32:35], 0 offen")
    CNT = CONV_LDS + 32768
    k(f"""
    v_mov_b32 v48, {CNT}
    v_mov_b32 v49, 0
    ds_write_b32 v48, v49
    s_waitcnt lgkmcnt(0)
    s_barrier
    s_and_b32 s30, s18, 0xfffffffe
    s_lshl_b32 s30, s30, 1
    s_add_u32 s10, s10, s30
    s_addc_u32 s11, s11, 0
    s_load_dword s44, s[10:11], 0
    v_and_b32 v8, 3, v61
    v_mul_u32_u24 v8, {CS}, v8
    v_lshrrev_b32 v9, 2, v61
    v_add_u32 v9, v9, v62
    v_lshl_add_u32 v56, v9, 4, v8
    v_add_u32 v56, s31, v56
    v_lshrrev_b32 v8, 3, v61
    v_mul_u32_u24 v9, {XS}, v8
    v_and_b32 v10, 7, v61
    v_lshlrev_b32 v11, 6, v10
    v_sub_u32 v9, v9, v11
    v_lshl_add_u32 v9, v62, 4, v9
    v_add_u32 v9, {4*CS + 4032 - 3584}, v9
    v_add_u32 v57, s31, v9
    v_lshrrev_b32 v11, 1, v10
    v_xor_b32 v11, v11, v62
    v_lshl_add_u32 v11, v10, 2, v11
    v_lshlrev_b32 v11, 4, v11
    v_lshl_add_u32 v11, v8, 12, v11
    v_add_u32 v59, s31, v11
    v_lshrrev_b32 v8, 5, v2
    v_mul_u32_u24 v8, {XS}, v8
    v_and_b32 v9, 31, v2
    v_lshl_add_u32 v8, v9, 4, v8
    v_add_u32 v8, s31, v8
    v_mov_b32 v44, 0
    v_mov_b32 v45, 0
    v_mov_b32 v46, 0
    v_mov_b32 v47, 0
    v_mov_b32 v58, s31
    ds_write_b128 v8, v[44:47] offset:{4*CS + 4096}
    s_waitcnt lgkmcnt(0)
    s_and_b32 s30, s18, 1
    s_lshl_b32 s30, s30, 4
    s_lshr_b32 s44, s44, s30
    s_and_b32 s44, s44, 0xffff
    v_mov_b32 v9, s44
    """)
    for w in range(4):
        k(f"v_cmp_eq_u32 vcc, 0, v{4+w}\nv_cndmask_b32 v{AD+w}, 0, v9, vcc")
    k(f"s_waitcnt vmcnt(0)\nds_write_b16 v58, v44 offset:{4*CS + 4094}")
    k.stamp(1)
    Y = lambda j: 8 + 4 * j
    def reads(i):
        buf = i & 1; out = []
        for x in range(8):
            out.append(("B", x, f"ds_read_b128 v[{B(buf,x)}:{B(buf,x)+3}], v57 offset:{3584-512*x+64*i}"))
            if (i, x) != (0, 0):
                out.append(("A", x, f"ds_read_b128 v[{A(buf,x)}:{A(buf,x)+3}], v56 offset:{64*(i-1)+512*x}"))
        return out
    ids = {}
    for kind, x, txt in reads(0): ids[(0, kind, x)] = k(txt)
    for j in range(8):
        k.wait(lg=ids[(0, "B", j)])
        k(f"v_mfma_f32_16x16x32_bf16 v[{Y(j)}:{Y(j)+3}], v[{AD}:{AD+3}], v[{B(0,j)}:{B(0,j)+3}], 0")
    k("s_waitcnt lgkmcnt(0)\ns_mov_b32 s30, 4")
    for rep in range(2):
        n0 = len(k.lines)
        if rep: k.label("L_conv_loop")
        for i in range(2):
            buf = i & 1
            nxt = reads(i + 1)
            order = sorted([(p, j) for p in range(8) for j in range(8 - p)], key=lambda t: (max(t), t[0] + t[1]))
            for n, (p, j) in enumerate(order):
                k.wait(lg=max(ids.get((i, "A", p), 0), ids[(i, "B", j)]))
                jp = p + j
                k(f"v_mfma_f32_16x16x32_bf16 v[{Y(jp)}:{Y(jp)+3}], v[{A(buf,p)}:{A(buf,p)+3}], v[{B(buf,j)}:{B(buf,j)+3}], v[{Y(jp)}:{Y(jp)+3}]")
                if n % 2 == 1 and nxt:
                    kind, x, txt = nxt.pop(0)
                    ids[((i + 1) & 1, kind, x)] = k(txt)
                if i == 1 and n == 32: k("v_add_u32 v56, 128, v56\nv_add_u32 v57, 128, v57")
                if i == 1 and n == 34: k("s_sub_u32 s30, s30, 1\ns_cmp_lg_u32 s30, 0")
            assert not nxt
        if not rep: del k.lines[n0:]
    k("s_cbranch_scc1 L_conv_loop\ns_waitcnt lgkmcnt(0)")
    k.stamp(2)
    k(f"""
    v_lshrrev_b32 v4, 3, v0
    v_and_b32 v4, 3, v4
    v_xor_b32 v4, v4, v0
    v_lshlrev_b32 v4, 4, v4
    v_add_u32 v5, {2*CH_LDS}, v4
    s_lshl_b32 s30, s3, 6
    v_lshlrev_b32 v6, 14, v0
    v_add_u32 v6, s30, v6
    """)
    for j in range(8): k(f"ds_write_b128 v59, v[{Y(j)}:{Y(j)+3}] offset:{512*j}")
    srd(k, 20, 14, MB4, WS_Y)
    k("""
    v_mov_b32 v49, 1
    s_mov_b64 exec, 1
    ds_add_u32 v48, v49
    s_mov_b64 exec, -1
    """)
    k.label("L_conv_spin")
    k("""
    ds_read_b32 v49, v48
    s_waitcnt lgkmcnt(0)
    v_readfirstlane_b32 s30, v49
    s_cmp_lt_u32 s30, 4
    s_cbranch_scc1 L_conv_spin
    """)
    CV = lambda c, r: 64 + 8 * c + 4 * r
    for c in range(4):
        for r in range(2):
            k(f"ds_read_b128 v[{CV(c,r)}:{CV(c,r)+3}], v{4 + (c>>1)} offset:{(c&1)*CH_LDS + 4096*r}")
    k("s_waitcnt lgkmcnt(0)")
    for t in range(8):
        for h in range(2):
            k(f"v_cvt_pk_bf16_f32 v{128+2*t+h}, v{CV(2*h,t&1)+(t>>1)}, v{CV(2*h+1,t&1)+(t>>1)}")
        if t & 1:
            k(f"buffer_store_dwordx4 v[{128+2*t-2}:{128+2*t+1}], v6, s[20:23], 0 offen offset:{8*(t-1)} {st_mod}")
    k.stamp(3); k.stamp_out(4)
    k("s_endpgm")
    k.label("L_conv_shuf")
    def extra():
        if touchq:
            srd(k, 40, 12, MB4)
            k("v_and_b32 v5, 127, v0\ns_lshl_b32 s30, s2, 7\nv_add_u32 v5, s30, v5\nv_lshlrev_b32 v5, 7, v5")
            k("s_cmp_lt_u32 s17, 2\ns_cselect_b32 s42, s42, 0")
            k("buffer_load_dword v6, v5, s[40:43], 0 offen")
    w1_shuffle(k, KT, first, 1792 - first, CONV_LDS, w_mod, extra)
    finish(k)
    return (k, 192, 192), ("conv_kernel", 256, 512, CONV_LDS + 32768 + 16)

def gen_ln(name, mode, st_mod="sc1", tc=True):
    k = K(name); entry(k)
    k(f"""
    s_load_dwordx2 s[4:5], s[0:1], {ARG['out'] if mode == 'fin' else ARG['q']}
    s_load_dwordx2 s[6:7], s[0:1], {ARG['ws']}
    v_and_b32 v1, 7, v0
    v_lshrrev_b32 v2, 3, v0
    v_lshlrev_b32 v3, 11, v1
    v_lshl_add_u32 v3, v2, 4, v3
    v_lshlrev_b32 v4, 3, v1
    v_lshl_add_u32 v4, v2, 7, v4
    v_lshlrev_b32 v5, 4, v1
    v_lshl_add_u32 v5, v2, 8, v5
    s_lshl_b32 s3, s2, 14
    s_add_u32 s24, s3, 8192
    s_lshr_b32 s25, s2, 1
    s_lshl_b32 s25, s25, 15
    s_and_b32 s26, s2, 1
    s_lshl_b32 s26, s26, 7
    s_add_u32 s25, s25, s26
    s_add_u32 s26, s25, 16384
    s_waitcnt lgkmcnt(0)
    """)
    fs = ["s25", "s26"]
    srd(k, 16, 6, MB4, WS_XR)
    if mode == "first":
        srd(k, 8, 4, MB4)
        for i in range(2): lx = k(f"buffer_load_dwordx4 v[{8+4*i}:{11+4*i}], v3, s[8:11], s3 offen offset:{1024*i}")
    else:
        srd(k, 28, 6, MB4, WS_P0); srd(k, 32, 6, MB4, WS_P1)
        for i in range(2):
            k(f"buffer_load_dwordx4 v[{80+4*i}:{83+4*i}], v5, s[28:31], {fs[i]} offen")
            lp = k(f"buffer_load_dwordx4 v[{88+4*i}:{91+4*i}], v5, s[32:35], {fs[i]} offen")
        for i in range(2): lx = k(f"buffer_load_dwordx4 v[{8+4*i}:{11+4*i}], v5, s[16:19], {fs[i]} offen")
    if mode != "fin":
        srd(k, 12, 6, MB4, WS_Y)
        for i in range(2):
            for h in range(2):
                ly = k(f"buffer_load_dwordx2 v[{16+4*i+2*h}:{17+4*i+2*h}], v4, s[12:15], {'s24' if i else 's3'} offen offset:{64*h}")
        if tc:
            k.back = mode == "mid"
            touch_code(k, "g1a_kernel", "L_g1a_kernel_end", 96, 97)
        srd(k, 20, 6, MB4, WS_XN)
        k("""
        v_lshrrev_b32 v6, 6, v0
        v_lshlrev_b32 v6, 3, v6
        v_lshl_add_u32 v6, v1, 6, v6
        v_bfe_u32 v7, v0, 4, 1
        v_lshl_add_u32 v6, v7, 2, v6
        v_lshlrev_b32 v7, 6, v1
        """)
    else:
        srd(k, 8, 4, MB4)
    X = lambda e: 24 + e
    Yv = lambda e: 40 + e
    def unpack(dst, src):
        for e in range(16): unpk(k, dst(e), src + e // 2, e & 1)
    def stats(rnd):
        k(f"v_pk_add_f32 v[56:57], v[{X(0)}:{X(1)}], v[{X(2)}:{X(3)}]")
        k(f"v_pk_mul_f32 v[58:59], v[{X(0)}:{X(1)}], v[{X(0)}:{X(1)}]")
        for e in range(2, 16, 2):
            if e > 2: k(f"v_pk_add_f32 v[56:57], v[56:57], v[{X(e)}:{X(e+1)}]")
            k(f"v_pk_fma_f32 v[58:59], v[{X(e)}:{X(e+1)}], v[{X(e)}:{X(e+1)}], v[58:59]")
        k(f"""
        v_add_f32 v56, v56, v57
        v_add_f32 v58, v58, v59
        v_permlane16_swap_b32 v56, v58
        v_add_f32 v56, v56, v58
        v_add_f32_dpp v56, v56, v56 row_ror:8 row_mask:0xf bank_mask:0xf
        v_mov_b32 v57, v56
        v_permlane32_swap_b32 v56, v57
        v_add_f32 v56, v56, v57
        ds_write_b32 v6, v56 offset:{512*rnd}
        s_waitcnt lgkmcnt(0)
        s_barrier
        """)
        for i in range(4): k(f"ds_read_b128 v[{64+4*i}:{67+4*i}], v7 offset:{512*rnd+16*i}")
        k("s_waitcnt lgkmcnt(0)")
        for i in range(4): k(f"v_pk_add_f32 v[{64+4*i}:{65+4*i}], v[{64+4*i}:{65+4*i}], v[{66+4*i}:{67+4*i}]")
        k(f"""
        v_pk_add_f32 v[64:65], v[64:65], v[68:69]
        v_pk_add_f32 v[72:73], v[72:73], v[76:77]
        v_pk_add_f32 v[64:65], v[64:65], v[72:73]
        v_mul_f32 v64, {f32bits(1/1024):#x}, v64
        v_mul_f32 v65, {f32bits(1/1024):#x}, v65
        v_fma_f32 v65, -v64, v64, v65
        v_max_f32 v65, 0, v65
        v_cvt_pk_bf16_f32 v66, v64, v65
        v_lshlrev_b32 v64, 16, v66
        v_and_b32 v65, 0xffff0000, v66
        v_add_f32 v65, {f32bits(1e-5):#x}, v65
        v_cvt_pk_bf16_f32 v65, v65, v65
        v_lshlrev_b32 v65, 16, v65
        v_sqrt_f32 v65, v65
        v_cvt_pk_bf16_f32 v65, v65, v65
        v_lshlrev_b32 v65, 16, v65
        v_rcp_f32 v60, v65
        v_mov_b32 v61, v60
        v_mul_f32_e64 v62, -v64, v60
        v_mov_b32 v63, v62
        """)
    if mode != "first":
        k.wait(vm=lp)
        unpack(X, 80); unpack(Yv, 88)
        for e in range(0, 16, 2):
            k(f"v_pk_add_f32 v[{X(e)}:{X(e+1)}], v[{X(e)}:{X(e+1)}], v[{Yv(e)}:{Yv(e+1)}]")
        k.wait(vm=lx)
        unpack(Yv, 8)
        for e in range(0, 16, 2):
            k(f"v_pk_add_f32 v[{X(e)}:{X(e+1)}], v[{X(e)}:{X(e+1)}], v[{Yv(e)}:{Yv(e+1)}]")
            k(f"v_cvt_pk_bf16_f32 v{8+e//2}, v{X(e)}, v{X(e+1)}")
    k.wait(vm=lx); k.stamp(1)
    if mode == "fin":
        for i in range(2): k(f"buffer_store_dwordx4 v[{8+4*i}:{11+4*i}], v3, s[8:11], s3 offen offset:{1024*i} {st_mod}")
        k.stamp(2)
    else:
        unpack(X, 8)
        stats(0)
        k.wait(vm=ly); k.stamp(2)
        unpack(Yv, 16)
        for e in range(0, 16, 2):
            k(f"v_pk_fma_f32 v[64:65], v[{X(e)}:{X(e+1)}], v[60:61], v[62:63]")
            k(f"v_pk_fma_f32 v[{X(e)}:{X(e+1)}], v[64:65], v[{Yv(e)}:{Yv(e+1)}], v[{X(e)}:{X(e+1)}]")
            k(f"v_cvt_pk_bf16_f32 v{8+e//2}, v{X(e)}, v{X(e+1)}")
        for i in range(2): k(f"buffer_store_dwordx4 v[{8+4*i}:{11+4*i}], v5, s[16:19], {fs[i]} offen {st_mod}")
        unpack(X, 8)
        stats(1)
        for e in range(0, 16, 2):
            k(f"v_pk_fma_f32 v[{X(e)}:{X(e+1)}], v[{X(e)}:{X(e+1)}], v[60:61], v[62:63]")
            k(f"v_cvt_pk_bf16_f32 v{16+e//2}, v{X(e)}, v{X(e+1)}")
        for i in range(2): k(f"buffer_store_dwordx4 v[{16+4*i}:{19+4*i}], v5, s[20:23], {fs[i]} offen {st_mod}")
    k.stamp(3); k.stamp_out(4, 32)
    finish(k)
    return (k, 104, 104), (name, 256, 512, 1024)

def ablate(k, abl):
    out = []; seen = False
    for l in k.lines:
        s = l.strip()
        if s == "s_barrier":
            if "nobar" in abl and seen: continue
            seen = True
        if "nomfma" in abl and s.startswith("v_mfma"): continue
        if "nods" in abl and s.startswith("ds_read"): continue
        if "novm" in abl and seen and s.startswith("buffer_load"): continue
        if "novm" in abl and seen and s.startswith("s_waitcnt vmcnt") and "vmcnt(0)" not in s:
            l = l.replace(s.split()[1] + " ", "") if "lgkm" in s else "    s_nop 0"
        out.append(l)
    k.lines = out

def gen_gemm(name, kind, KT=14, NS=10, RW=8, la_bar=5, la=32, rate=0.7, st_mod="sc1", quiet=40, abl="", xm=4, tc=True):
    G1 = kind == 1
    shuf = G1
    k = K(name)
    if G1:
        k("s_movk_i32 s62, 896")
        k.label("L_g1_body")
    entry(k)
    NT = 4 if G1 else 2
    NU = 32 if G1 else 56
    NG = 14 if G1 else 8
    RING = KT if G1 else 14
    AW = lambda i: 4 * (i % RW)
    AT = lambda u, t: 4 * RW + 4 * ((u % RING) * NT + t)
    nacc = NG * NT * 4
    VD, VTOK, VST, VC2 = nacc, nacc + 1, nacc + 2, nacc + 3
    VR = nacc + 4
    VS = nacc + 7
    TMP = nacc + 12
    NTILE = 32 if G1 else 16
    tstride = 32768 if G1 else TBH
    k(f"""
    s_load_dwordx2 s[8:9], s[0:1], {ARG['ws']}
    s_load_dwordx2 s[4:5], s[0:1], {ARG['wd']}
    v_lshrrev_b32 v1, 6, v0
    v_and_b32 v2, 63, v0
    v_readfirstlane_b32 s17, v1
    s_and_b32 s3, s2, 7
    s_lshr_b32 s16, s2, 3
    """)
    if G1:
        k(f"""
        s_and_b32 s18, s3, {8 // xm - 1}
        s_mul_i32 s18, s18, {xm}
        s_and_b32 s19, s16, {xm - 1}
        s_add_u32 s18, s18, s19
        s_lshr_b32 s19, s3, {lg(8 // xm)}
        s_mul_i32 s19, s19, {32 // xm}
        s_lshr_b32 s16, s16, {lg(xm)}
        s_add_u32 s19, s19, s16
        s_lshl_b32 s30, s18, 4
        s_lshl_b32 s16, s17, 2
        s_add_u32 s30, s30, s16
        s_lshl_b32 s34, s30, 15
        """)
    else:
        k(f"""
        s_lshr_b32 s18, s3, 1
        s_lshl_b32 s18, s18, 2
        s_and_b32 s19, s16, 3
        s_add_u32 s18, s18, s19
        s_and_b32 s28, s3, 1
        s_lshl_b32 s19, s28, 3
        s_lshr_b32 s29, s16, 2
        s_add_u32 s19, s19, s29
        s_lshl_b32 s30, s18, 3
        s_lshl_b32 s16, s17, 1
        s_add_u32 s30, s30, s16
        s_mul_i32 s34, s30, {TBH}
        s_mul_i32 s16, s28, {56*1024}
        s_add_u32 s34, s34, s16
        """)
    k(f"""
    s_mul_i32 s33, s19, {448*1024}
    s_lshl_b32 s31, s17, 12
    s_add_u32 s33, s33, s31
    v_lshlrev_b32 v{VR}, 4, v2
    v_add_u32 v{VD}, s33, v{VR}
    v_add_u32 v{VTOK}, s34, v{VR}
    s_waitcnt lgkmcnt(0)
    """)
    srd(k, 20, 8, NTILE * 448 * 1024, WS_W1 if G1 else WS_W2)
    if G1: srd(k, 24, 8, MB4, WS_XN)
    else: srd(k, 24, 8, H_BYTES, WS_H)
    tok_base = [None] * NT
    st = {"s": None}
    def dma(s, i):
        pre_ = []
        if st["s"] != s:
            pre_ = [f"s_add_u32 m0, s31, {(s % NS) * 16384}", f"s_mov_b32 s36, {s * 16384}"]; st["s"] = s
        return pre_ + [f"buffer_load_dwordx4 v{VD}, s[20:23], s36 offen offset:{1024*i} lds"]
    def tok(u, t):
        off = u * 1024; pre_ = []
        if tok_base[t] is None or off - tok_base[t] > 4095:
            tok_base[t] = off & ~4095
            pre_ = [f"s_mov_b32 s{40+t}, {t * tstride + tok_base[t]}"]
        return pre_ + [f"buffer_load_dwordx4 a[{AT(u,t)}:{AT(u,t)+3}], v{VTOK}, s[24:27], s{40+t} offen offset:{off - tok_base[t]}"]

    KM = NU - KT if G1 else NU
    groups = [(u, g) for u in range(KM) for g in range(NG)]
    tail_start = len(groups)
    if G1:
        for b in range(7):
            for u in range(KM, NU): groups += [(u, b), (u, 7 + b)]
    GPB = 2 * KT
    NGR = len(groups); assert NGR == 448
    first_use = {}; last_use = {}
    for i, (u, g) in enumerate(groups):
        first_use.setdefault(u, i); last_use[u] = i
    bars = {16 * s - la_bar: s for s in range(1, 28)}
    items = [(16 * s - la_bar, "W", s, i) for s in range(28) for i in range(4)]
    items += [(first_use[u], "T", u, t) for u in range(NU) for t in range(NT)]
    items.sort(key=lambda x: x[0])
    def earliest(it):
        if it[1] == "W": return 0 if it[2] < NS else 16 * (it[2] - NS + 2) - la_bar
        return 0 if it[2] < RING else last_use[it[2] - RING] + 1
    nxt_t = 1e9; sched = []
    for it in reversed(items):
        nxt_t = min(it[0] - la, nxt_t - 1.0 / rate)
        sched.append((max(nxt_t, earliest(it) or -1e9),) + it[1:])
    items = sorted(reversed(sched), key=lambda x: x[0])
    if G1:
        last_t = max(x[0] for x in items if x[1] == "T"); prev = last_t
        for n_, it in enumerate(items):
            if it[0] > last_t:
                prev = max(prev + 2.0, earliest(it)); items[n_] = (min(it[0], prev),) + it[1:]
    w_id = {}; t_id = {}
    def lines(it):
        return dma(it[2], it[3]) if it[1] == "W" else tok(it[2], it[3])
    def record(it, i):
        if it[1] == "W": w_id[it[2]] = i
        else: t_id[(it[2], it[3])] = i
    while items and items[0][0] < 0:
        it = items.pop(0); record(it, k("\n".join(lines(it))))
    k(f"v_add_u32 v{VR+1}, 0x10000, v{VR}\nv_add_u32 v{VR+2}, 0x20000, v{VR}\nv_mov_b32 v{VS+4}, v0")
    c1 = -2 * math.sqrt(2 / math.pi) * math.log2(math.e)
    if G1:
        srd(k, 12, 8, H_BYTES, WS_H)
        k(f"""
        s_mul_i32 s35, s30, {TBH}
        s_mul_i32 s16, s19, {7*512}
        s_add_u32 s44, s35, s16
        s_add_u32 s45, s44, {2*TBH}
        v_lshrrev_b32 v5, 5, v2
        v_and_b32 v6, 31, v2
        v_lshlrev_b32 v6, 4, v6
        v_mul_u32_u24 v7, {TBH}, v5
        v_add_u32 v{VST}, v7, v6
        v_mov_b32 v{VC2}, {f32bits(c1*0.044715):#x}
        """)
    else:
        k(f"""
        s_mul_i32 s16, s28, {WS_P1 - WS_P0}
        s_add_u32 s16, s16, {WS_P0}
        s_add_u32 s12, s8, s16
        s_addc_u32 s13, s9, 0
        s_mov_b32 s14, {MB4}
        s_mov_b32 s15, 0x20000
        s_lshl_b32 s44, s30, 15
        s_lshl_b32 s16, s29, 12
        s_add_u32 s44, s44, s16
        s_add_u32 s45, s44, 32768
        """)
    if shuf:
        k(f"""
        s_lshl_b32 s46, s2, 2
        s_add_u32 s46, s46, s17
        s_lshr_b32 s47, s46, 3
        s_and_b32 s48, s46, 7
        s_cmp_lt_u32 s46, s62
        s_cselect_b32 s54, {W_BYTES}, 0
        s_cselect_b32 s58, {W_BYTES}, 0
        s_mov_b32 s52, s4
        s_mov_b32 s53, s5
        s_mov_b32 s55, 0x20000
        s_add_u32 s56, s8, {WS_W2}
        s_addc_u32 s57, s9, 0
        s_mov_b32 s59, 0x20000
        s_lshl_b32 s49, s47, 16
        s_lshl_b32 s50, s48, 8
        s_add_u32 s49, s49, s50
        s_cmp_ge_u32 s47, 56
        s_cselect_b32 s50, {8*448 - 56*8}, 0
        s_mul_i32 s51, s48, 448
        s_add_u32 s50, s50, s51
        s_lshl_b32 s51, s47, 3
        s_add_u32 s50, s50, s51
        s_lshl_b32 s50, s50, 10
        s_add_u32 s51, s50, 4096
        v_lshrrev_b32 v3, 4, v2
        v_and_b32 v4, 15, v2
        v_lshlrev_b32 v4, 4, v4
        v_lshl_add_u32 v{VS}, v3, 11, v4
        v_lshrrev_b32 v3, 5, v2
        v_lshlrev_b32 v3, 4, v3
        v_bfe_u32 v4, v2, 2, 3
        v_add_u32 v3, v3, v4
        v_lshlrev_b32 v3, 8, v3
        v_and_b32 v4, 3, v2
        v_lshl_add_u32 v3, v4, 4, v3
        s_lshl_b32 s60, s17, 13
        """)
    acc = lambda g, t: (g * NT + t) * 4
    def rd(i):
        off = ((i // 16) % NS) * 16384 + (i % 16) * 1024
        return f"ds_read_b128 a[{AW(i)}:{AW(i)+3}], v{VR + off // 65536} offset:{off % 65536}"
    def gelu4(G, U, P):
        T = [TMP + e for e in range(4)]
        o = [f"v_mul_f32 v{T[e]}, v{G+e}, v{G+e}" for e in range(4)]
        o += [f"v_fmaak_f32 v{T[e]}, v{VC2}, v{T[e]}, {f32bits(c1):#x}" for e in range(4)]
        o += [f"v_mul_f32 v{T[e]}, v{T[e]}, v{G+e}" for e in range(4)]
        for e in range(4): o += [f"v_exp_f32 v{T[e]}, v{T[e]}", f"v_mul_f32 v{U+e}, v{U+e}, v{G+e}"]
        o += [f"v_add_f32 v{T[e]}, 1.0, v{T[e]}" for e in range(4)]
        o += [f"v_rcp_f32 v{T[e]}, v{T[e]}" for e in range(4)]
        o += [f"v_mul_f32 v{U+e}, v{U+e}, v{T[e]}" for e in range(4)]
        o += [f"v_cvt_pk_bf16_f32 v{P}, v{U}, v{U+1}", f"v_cvt_pk_bf16_f32 v{P+1}, v{U+2}, v{U+3}"]
        return o
    def epilogue(b):
        o = []
        for t in range(2):
            a = acc(b, 2 * t)
            o += gelu4(a, acc(7 + b, 2 * t), a) + gelu4(acc(b, 2 * t + 1), acc(7 + b, 2 * t + 1), a + 2)
            o += [f"v_permlane32_swap_b32 v{a}, v{a+2}", f"v_permlane32_swap_b32 v{a+1}, v{a+3}"]
            o.append(f"buffer_store_dwordx4 v[{a}:{a+3}], v{VST}, s[12:15], s{44+t} offen offset:{512*b} {st_mod}")
        return o
    cost = lambda s: 2 if s.startswith(("v_exp", "v_rcp")) else 1

    if shuf:
        free = [s % NS for s in range(28, 30)]
        assert free[1] == free[0] + 1
        k(f"s_add_u32 s60, s60, {free[0] * 16384}\nv_add_u32 v{VS+1}, s60, v3")
        shuf_at = 16 * (29 - NS + 2) - la_bar
    k.stamp(1)
    k.wait(vm=w_id[0]); k("s_barrier")
    k.stamp(2)
    published = 0; r_id = {}; rp = 0
    while rp < RW - 2:
        r_id[rp] = k(rd(rp)); rp += 1
    touch_at = 300
    credit = 0.0; seen = set(); epi = []; epi_rate = 0.0; epi_credit = 0.0
    q = []
    held = []
    shuf_state = 0; quiet_end = None; sh_ld = None
    for i, (u, g) in enumerate(groups):
        if i == tail_start or (not G1 and i == 224): k.stamp(3)
        if i in bars:
            pub = bars[i]
            assert not any(it[1] == "W" and it[2] <= pub for it in items)
            while any(c is not None and c[0] == "V" and c[1][1] == "W" and c[1][2] <= pub for _, c in q):
                t_, c = q.pop(0); id_ = k(t_)
                if c: (record(c[1], id_) if c[0] == "V" else r_id.__setitem__(c[1], id_))
            k.wait(vm=w_id[pub]); k("s_barrier"); published = pub
        n = 0
        while rp < NGR and rp <= i + RW - 2 and rp // 16 <= published and n < 2:
            q.append((rd(rp), ("R", rp))); rp += 1; n += 1
        if items and items[0][0] <= i:
            it = items.pop(0); ls = lines(it)
            q += [(x, None) for x in ls[:-1]] + [(ls[-1], ("V", it))]
        if tc and i == touch_at:
            n0 = len(k.lines); k.back = False
            touch_code(k, "g2_kernel" if G1 else "ln2_kernel", "L_fin_kernel_end", VS + 2, VS + 3, v0=VS + 4)
        if shuf and shuf_state == 0 and not items and i >= shuf_at:
            for j in range(8):
                q.append((f"s_add_u32 m0, s60, {1024*j}", None))
                q.append((f"s_add_u32 s61, s49, {8192*j}", None))
                q.append((f"buffer_load_dwordx4 v{VS}, s[52:55], s61 offen lds", ("S",)))
            shuf_state = 1; quiet_end = i + quiet
        if shuf_state == 1 and i >= quiet_end:
            q += [(x, None) for x in held]; held = []
            shuf_state = 2
        if G1 and i >= tail_start + GPB and (i - tail_start) % GPB == 0:
            assert not epi, len(epi)
            epi = epilogue((i - tail_start) // GPB - 1)
            epi_rate = sum(map(cost, epi)) / (GPB * NT - 6); epi_credit = -3 * epi_rate
        for t in range(NT):
            while i not in r_id or (u, t) not in t_id:
                t_, c = q.pop(0); id_ = k(t_)
                if c and c[0] == "V": record(c[1], id_)
                elif c and c[0] == "R": r_id[c[1]] = id_
                elif c: sh_ld = id_
            n0 = len(k.lines)
            k.wait(vm=t_id[(u, t)], lg=r_id[i])
            a = acc(g, t)
            c = f"v[{a}:{a+3}]" if (g, t) in seen else "0"
            seen.add((g, t))
            k(f"v_mfma_f32_16x16x32_bf16 v[{a}:{a+3}], a[{AW(i)}:{AW(i)+3}], a[{AT(u,t)}:{AT(u,t)+3}], {c}")
            budget = 2
            nq = 1 if len(q) <= (NT - t) + 2 else 2
            for _ in range(nq):
                if q:
                    t_, c = q.pop(0); id_ = k(t_); budget -= 1
                    if c and c[0] == "V": record(c[1], id_)
                    elif c and c[0] == "R": r_id[c[1]] = id_
                    elif c: sh_ld = id_
            epi_credit += epi_rate
            while epi and epi_credit >= cost(epi[0]) - 1e-9 and (budget >= cost(epi[0]) or epi_credit >= 3):
                x = epi.pop(0); epi_credit -= cost(x); budget -= cost(x)
                if x.startswith("buffer_store") and shuf_state == 1: held.append(x)
                else: k(x)
    assert not items and not epi and not q and not held, (len(items), len(epi), len(q), len(held))
    k.stamp(4)
    if shuf:
        assert shuf_state == 2
        k.wait(vm=sh_ld)
        rid = []
        for wb in range(8):
            off = (wb >> 1) * 64 + (wb & 1) * 8
            k(f"ds_read_b64_tr_b16 a[{4*wb}:{4*wb+1}], v{VS+1} offset:{off}")
            rid.append(k(f"ds_read_b64_tr_b16 a[{4*wb+2}:{4*wb+3}], v{VS+1} offset:{off + 2048}"))
        tail_ins = epilogue(6)
        for x in tail_ins[:12]: k(x)
        for wb in range(8):
            k.wait(lg=rid[wb])
            k(f"buffer_store_dwordx4 a[{4*wb}:{4*wb+3}], v{VR}, s[56:59], s{50 + wb//4} offen offset:{1024*(wb&3)} {st_mod}")
        for x in tail_ins[12:]: k(x)
    else:
        for p in range(4):
            for t in range(2):
                a = acc(2 * p, t); b = acc(2 * p + 1, t)
                k(f"""
                v_cvt_pk_bf16_f32 v{a}, v{a}, v{a+1}
                v_cvt_pk_bf16_f32 v{a+1}, v{a+2}, v{a+3}
                v_cvt_pk_bf16_f32 v{a+2}, v{b}, v{b+1}
                v_cvt_pk_bf16_f32 v{a+3}, v{b+2}, v{b+3}
                buffer_store_dwordx4 v[{a}:{a+3}], v{VR}, s[12:15], s{44+t} offen offset:{1024*p} {st_mod}
                """)
    k.stamp_out(5, TMP)
    ablate(k, abl)
    finish(k)
    nv = -(-(TMP + 12) // 8) * 8
    na = 4 * RW + 4 * RING * NT
    assert nv <= 256 and na <= 256
    return (k, nv + na, nv), (name, 256, 256, NS * 16384)

HEADER = open("interleave_layers__ssm_conv_h3__glu_gated_geglu__prompt.s.ref").read().split("; Override launch")[0]

def build(path, g1={}, g2={}, conv={}, ln={}, kv={}, stamps=False, only=None, order=None, empties=0):
    STAMPS[0] = stamps
    KT = g1.get("KT", 14)
    g1a = gen_gemm("g1a_kernel", 1, **g1)
    kb = K("g1b_kernel"); kb("s_mov_b32 s62, 0\ns_branch L_g1_body")
    g1b = ((kb,) + g1a[0][1:], ("g1b_kernel",) + g1a[1][1:])
    g2k = gen_gemm("g2_kernel", 2, **g2)
    seq = [gen_kv(KT, **kv), gen_conv(KT, first=kv.get('nsh', 1024), **conv), gen_ln("ln1_kernel", "first", **ln), g1a, g2k,
           gen_ln("ln2_kernel", "mid", **ln), g1b, g2k, gen_ln("fin_kernel", "fin", **ln)]
    ks = [seq[i][0] for i in (0, 1, 2, 6, 3, 4, 5, 8)]
    if only: seq = seq[:only]
    if order: seq = [seq[i] for i in order]
    if empties:
        ke = K("nop_kernel"); ke("s_endpgm")
        ks.append((ke, 8, 8)); seq += [(None, ("nop_kernel", 256, 256, 0))] * empties
    txt = module(HEADER, [l for _, l in seq], ks)
    txt = "\n".join(l.strip() if l.startswith("    ") else l for l in txt.split("\n"))
    open(path, "w").write(txt)
    return {kk[0].name: (len(kk[0].lines), kk[0].padded) for kk in ks}

if __name__ == "__main__":
    print(build("v2.s"))
    build("v2s.s", stamps=True)
```

```python
from v2 import *
G2 = dict(la=32, rate=0.55)
kw = dict(g2=G2, kv=dict(nsh=896), conv=dict(touchq=False))
build("o_0.s", **kw)
build("o_1.s", empties=8, **kw)
build("o_2.s", order=[0,1,2,0,1,2,3,4,5,6,7,8], **kw)
build("o_3.s", order=[0,1,2,3,3,4,4,5,6,7,8], **kw)
build("o_4.s", **kw)
```

```python
import re

TRANS = ("v_exp_f32", "v_log_f32", "v_rcp_f32", "v_rsq_f32", "v_sqrt_f32", "v_sin_f32", "v_cos_f32")

def _regs(tok):
    tok = tok.strip()
    tok = re.sub(r"^-", "", tok)
    m = re.match(r"^abs\((.*)\)$", tok)
    if m: tok = m.group(1)
    tok = tok.strip("|")
    m = re.match(r"^([vas])(\d+)$", tok)
    if m: return {(m.group(1), int(m.group(2)))}
    m = re.match(r"^([vas])\[(\d+):(\d+)\]$", tok)
    if m: return {(m.group(1), i) for i in range(int(m.group(2)), int(m.group(3)) + 1)}
    if tok in ("vcc", "vcc_lo", "vcc_hi"): return {("s", "vcc")}
    if tok in ("exec", "exec_lo", "exec_hi"): return {("s", "exec")}
    if tok == "m0": return {("s", "m0")}
    return set()

class Ins:
    def __init__(self, text):
        self.text = text
        t = text.split(";")[0].strip()
        parts = t.split(None, 1)
        self.op = parts[0]
        rest = parts[1] if len(parts) > 1 else ""
        toks = [x.strip() for x in rest.split(",")]
        mods = []
        if toks:
            last = toks[-1].split()
            if last:
                toks[-1] = last[0]; mods = last[1:]
        self.mods = mods
        op = self.op
        self.mfma = op.startswith("v_mfma")
        self.valu = op.startswith("v_") and not self.mfma
        self.trans = any(op.startswith(x) for x in TRANS)
        self.vmem = op.startswith("buffer_") or op.startswith("global_")
        self.ds = op.startswith("ds_")
        self.salu = op.startswith("s_")
        self.dpp = "_dpp" in op or any(m.startswith(("row_", "quad_perm", "wave_")) for m in mods)
        self.perm = op.startswith("v_permlane")
        self.rdlane = op.startswith(("v_readlane", "v_readfirstlane"))
        self.lds_dma = self.vmem and ("lds" in mods or "_lds_" in op)
        R = [_regs(x) for x in toks]
        w = set(); r = set()
        self.srcC = set(); self.srcAB = set(); self.data = set()
        if self.mfma:
            w = R[0]; self.srcAB = R[1] | R[2]; self.srcC = R[3]; r = self.srcAB | self.srcC
            self.passes = 8 if "32x32" in op else 4
        elif self.valu:
            if self.perm and "swap" in op:
                w = R[0] | R[1]; r = R[0] | R[1]
            elif op.startswith(("v_add_co", "v_sub_co", "v_addc_co", "v_subb_co", "v_subrev_co")):
                w = R[0] | R[1]; r = set().union(*R[2:])
            elif op == "v_nop":
                pass
            else:
                w = R[0]; r = set().union(*R[1:]) if len(R) > 1 else set()
                if op.startswith(("v_fmac", "v_pk_fmac", "v_dot2c")) or self.dpp: r |= R[0]
                if op.startswith("v_cndmask") and len(R) == 3: r |= {("s", "vcc")}
        elif self.vmem:
            if "load" in op and not self.lds_dma:
                w = R[0]; r = set().union(*R[1:])
            else:
                r = set().union(*R)
                if "store" in op:
                    self.data = R[0] if op.startswith("buffer_") else R[1]
            if self.lds_dma: r |= {("s", "m0")}
        elif self.ds:
            if "read" in op or "permute" in op or "swizzle" in op:
                w = R[0]; r = set().union(*R[1:])
            else:
                r = set().union(*R)
        elif self.salu:
            if op.startswith(("s_cmp", "s_waitcnt", "s_barrier", "s_nop", "s_branch", "s_cbranch", "s_endpgm", "s_setprio", "s_sleep")):
                r = set().union(*R) if R else set()
            else:
                w = R[0]; r = set().union(*R[1:]) if len(R) > 1 else set()
                if "saveexec" in op: w = w | {("s", "exec")}
        self.w = w; self.r = r
        self.wide_store = self.vmem and "store" in op and op.endswith(("x3", "x4"))
        self.states = 1
        if op == "s_nop": self.states = int(toks[0], 0) + 1

def _need(p, c):
    n = 0
    vec = lambda s: {x for x in s if x[0] in "va"}
    sc = lambda s: {x for x in s if x[0] == "s"}
    if p.valu:
        pv = vec(p.w); ps = sc(p.w)
        if c.mfma and pv & c.r: n = max(n, 2)
        if c.rdlane and pv & c.r: n = max(n, 1)
        if (c.dpp or c.perm) and pv & c.r: n = max(n, 2)
        if p.trans and c.valu and not c.trans and pv & c.r: n = max(n, 1)
        if p.trans and (c.mfma or c.vmem or c.ds) and pv & c.r: n = max(n, 1)
        if ps:
            if c.valu and ps & c.r: n = max(n, 4 if c.rdlane else 2)
            if c.vmem and ps & c.r: n = max(n, 5)
            if c.salu and ps & c.r: n = max(n, 1)
    if p.mfma:
        big = p.passes == 8
        if c.mfma:
            if p.w & c.srcAB: n = max(n, 12 if big else 8)
            if p.w & c.srcC and not (p.w == c.srcC and p.passes == c.passes): n = max(n, 10 if big else 6)
            if p.w & c.w and not (p.w == c.srcC): n = max(n, 12 if big else 8)
        elif c.valu or c.vmem or c.ds:
            if p.w & (c.r | c.w): n = max(n, 12 if big else 8)
            if c.valu and p.srcC & c.w: n = max(n, 7 if big else 3)
    if p.salu and ("s", "m0") in p.w and c.lds_dma: n = max(n, 1)
    if p.wide_store and (c.valu or c.mfma) and p.data & c.w: n = max(n, 2)
    return n

def pad_hazards(lines):
    out = []; win = []; added = 0
    for l in lines:
        s = l.strip()
        if not s or s.endswith(":") or s.startswith((";", ".")):
            out.append(l); continue
        c = Ins(s)
        dist = 0; short = 0
        for p in reversed(win):
            short = max(short, _need(p, c) - dist)
            dist += p.states
            if dist >= 12: break
        if short > 0:
            nop = Ins(f"s_nop {short - 1}")
            out.append(f"    s_nop {short - 1}"); win.append(nop); added += 1
        out.append(l); win.append(c)
        if len(win) > 16: win = win[-16:]
    return out, added

STAMPS = [False]
DBG_OFF = [36]

class K:
    def __init__(self, name):
        self.name = name; self.lines = []; self.nl = 0
        self.nvm = 0; self.nlg = 0; self.vm_done = 0; self.lg_done = 0
    def __call__(self, s):
        last = None
        for l in s.strip("\n").split("\n"):
            l = l.strip()
            if not l: continue
            self.lines.append("    " + l)
            op = l.split()[0]
            if op.startswith(("buffer_", "global_")):
                self.nvm += 1; last = self.nvm
            elif op.startswith("ds_"):
                self.nlg += 1; last = self.nlg
            elif op == "s_waitcnt":
                m = re.search(r"vmcnt\((\d+)\)", l)
                if m: self.vm_done = max(self.vm_done, self.nvm - int(m.group(1)))
                m = re.search(r"lgkmcnt\((\d+)\)", l)
                if m: self.lg_done = max(self.lg_done, self.nlg - int(m.group(1)))
        return last
    def wait(self, vm=None, lg=None):
        parts = []
        if vm is not None and vm > self.vm_done:
            parts.append(f"vmcnt({min(62, self.nvm - vm)})")
        if lg is not None and lg > self.lg_done:
            parts.append(f"lgkmcnt({min(14, self.nlg - lg)})")
        if parts: self("s_waitcnt " + " ".join(parts))
    def stamp(self, i):
        if STAMPS[0]:
            self.lines.append(f"    s_memrealtime s[{72+2*i}:{73+2*i}]")
            if i == 0:
                self.lines.append("    s_memtime s[88:89]")
                self.lines.append("    s_mov_b32 s92, s0"); self.lines.append("    s_mov_b32 s93, s1")
                self.lines.append("    s_mov_b32 s94, s2"); self.lines.append("    v_readfirstlane_b32 s95, v0")
    def stamp_out(self, n, v=0):
        if not STAMPS[0]: return
        L = self.lines
        if STAMPS[0] == 2:
            self.nl += 1
            lab = f"L_{self.name}_dbg{self.nl}"
            for t in f"""s_waitcnt vmcnt(0)
            s_memrealtime s[86:87]
            s_memtime s[90:91]
            s_load_dwordx2 s[4:5], s[92:93], 88
            s_waitcnt lgkmcnt(0)
            s_lshr_b32 s95, s95, 6
            s_or_b32 s95, s95, s94
            s_cmp_lg_u32 s95, 0
            s_cbranch_scc1 {lab}
            s_lshr_b32 s6, s4, 9
            s_and_b32 s6, s6, 15
            s_and_b32 s8, s4, 0xffffe000
            s_mov_b32 s9, s5
            s_mov_b32 s10, 64
            s_mov_b32 s11, 0x20000
            s_sub_u32 s90, s90, s88
            s_sub_u32 s86, s86, s72
            s_lshl_b32 s90, s90, 12
            s_or_b32 s90, s90, s86
            s_lshl_b32 s6, s6, 2
            v_mov_b32 v{v}, s6
            v_mov_b32 v{v+1}, s72
            v_mov_b32 v{v+2}, s90
            s_mov_b64 exec, 1
            buffer_store_dword v{v+1}, v{v}, s[8:11], 0 offen
            buffer_store_dword v{v+2}, v{v}, s[8:11], 0 offen offset:{DBG_OFF[0]}""".split("\n"):
                L.append("    " + t.strip())
            L.append(lab + ":")
            return
        for t in f"""s_waitcnt vmcnt(0)
        s_memrealtime s[{72+2*n}:{73+2*n}]
        s_memtime s[90:91]
        s_load_dwordx4 s[4:7], s[92:93], 88
        s_waitcnt lgkmcnt(0)
        s_lshr_b32 s4, s4, 9
        s_and_b32 s4, s4, 15
        s_lshl_b32 s4, s4, 18
        s_lshl_b32 s5, s94, 10
        s_add_u32 s4, s4, s5
        s_and_b32 s95, s95, 0x3c0
        s_add_u32 s4, s4, s95
        s_add_u32 s8, s6, 0x8000000
        s_addc_u32 s9, s7, 0
        s_mov_b32 s10, 0x400000
        s_mov_b32 s11, 0x20000
        s_sub_u32 s90, s90, s88
        v_mov_b32 v{v+8}, s4
        s_getreg_b32 s5, hwreg(HW_REG_XCC_ID)""".split("\n"):
            L.append("    " + t.strip())
        for i in range(6):
            L.append(f"    v_mov_b32 v{v+i}, s{72+2*min(i,n)}")
        L.append(f"    v_mov_b32 v{v+6}, s5")
        L.append(f"    v_mov_b32 v{v+7}, s90")
        L.append("    s_mov_b64 exec, 1")
        L.append(f"    buffer_store_dwordx4 v[{v}:{v+3}], v{v+8}, s[8:11], 0 offen")
        L.append(f"    buffer_store_dwordx4 v[{v+4}:{v+7}], v{v+8}, s[8:11], 0 offen offset:16")
    def label(self, n):
        self.lines.append(n + ":")
    def text(self):
        lines, self.padded = pad_hazards(self.lines)
        return (f".globl {self.name}\n.p2align 8\n.type {self.name},@function\n{self.name}:\n"
                + "\n".join(lines) + "\n")

def desc(name, vgpr, accum, sgpr=96):
    return f""".p2align 6
.amdhsa_kernel {name}
  .amdhsa_next_free_vgpr {vgpr}
  .amdhsa_next_free_sgpr {sgpr}
  .amdhsa_accum_offset {accum}
  .amdhsa_group_segment_fixed_size 0
  .amdhsa_kernarg_size 104
  .amdhsa_user_sgpr_count 2
  .amdhsa_user_sgpr_kernarg_segment_ptr 1
  .amdhsa_system_sgpr_workgroup_id_x 1
  .amdhsa_float_denorm_mode_32 3
.end_amdhsa_kernel
"""

def module(header, launches, kernels):
    s = header
    for n, g, b, l in launches:
        s += f"; @launch kernel={n} grid=({g},1,1) block=({b},1,1) lds={l}\n"
    s += '.amdgcn_target "amdgcn-amd-amdhsa--gfx950"\n.text\n'
    for k, _, _ in kernels:
        s += k.text()
    s += '.section .rodata,"a"\n'
    for k, v, a in kernels:
        s += desc(k.name, v, a)
    return s
```

```python
import re

TRANS = ("v_exp_f32", "v_log_f32", "v_rcp_f32", "v_rsq_f32", "v_sqrt_f32", "v_sin_f32", "v_cos_f32")

def _regs(tok):
    tok = tok.strip()
    tok = re.sub(r"^-", "", tok)
    m = re.match(r"^abs\((.*)\)$", tok)
    if m: tok = m.group(1)
    tok = tok.strip("|")
    m = re.match(r"^([vas])(\d+)$", tok)
    if m: return {(m.group(1), int(m.group(2)))}
    m = re.match(r"^([vas])\[(\d+):(\d+)\]$", tok)
    if m: return {(m.group(1), i) for i in range(int(m.group(2)), int(m.group(3)) + 1)}
    if tok in ("vcc", "vcc_lo", "vcc_hi"): return {("s", "vcc")}
    if tok in ("exec", "exec_lo", "exec_hi"): return {("s", "exec")}
    if tok == "m0": return {("s", "m0")}
    return set()

class Ins:
    def __init__(self, text):
        self.text = text
        t = text.split(";")[0].strip()
        parts = t.split(None, 1)
        self.op = parts[0]
        rest = parts[1] if len(parts) > 1 else ""
        toks = [x.strip() for x in rest.split(",")]
        mods = []
        if toks:
            last = toks[-1].split()
            if last:
                toks[-1] = last[0]; mods = last[1:]
        self.mods = mods
        op = self.op
        self.mfma = op.startswith("v_mfma")
        self.valu = op.startswith("v_") and not self.mfma
        self.trans = any(op.startswith(x) for x in TRANS)
        self.vmem = op.startswith("buffer_") or op.startswith("global_")
        self.ds = op.startswith("ds_")
        self.salu = op.startswith("s_")
        self.dpp = "_dpp" in op or any(m.startswith(("row_", "quad_perm", "wave_")) for m in mods)
        self.perm = op.startswith("v_permlane")
        self.rdlane = op.startswith(("v_readlane", "v_readfirstlane"))
        self.lds_dma = self.vmem and ("lds" in mods or "_lds_" in op)
        R = [_regs(x) for x in toks]
        w = set(); r = set()
        self.srcC = set(); self.srcAB = set(); self.data = set()
        if self.mfma:
            w = R[0]; self.srcAB = R[1] | R[2]; self.srcC = R[3]; r = self.srcAB | self.srcC
            self.passes = 8 if "32x32" in op else 4
        elif self.valu:
            if self.perm and "swap" in op:
                w = R[0] | R[1]; r = R[0] | R[1]
            elif op.startswith(("v_add_co", "v_sub_co", "v_addc_co", "v_subb_co", "v_subrev_co")):
                w = R[0] | R[1]; r = set().union(*R[2:])
            elif op == "v_nop":
                pass
            else:
                w = R[0]; r = set().union(*R[1:]) if len(R) > 1 else set()
                if op.startswith(("v_fmac", "v_pk_fmac", "v_dot2c")) or self.dpp: r |= R[0]
                if op.startswith("v_cndmask") and len(R) == 3: r |= {("s", "vcc")}
        elif self.vmem:
            if "load" in op and not self.lds_dma:
                w = R[0]; r = set().union(*R[1:])
            else:
                r = set().union(*R)
                if "store" in op:
                    self.data = R[0] if op.startswith("buffer_") else R[1]
            if self.lds_dma: r |= {("s", "m0")}
        elif self.ds:
            if "read" in op or "permute" in op or "swizzle" in op:
                w = R[0]; r = set().union(*R[1:])
            else:
                r = set().union(*R)
        elif self.salu:
            if op.startswith(("s_cmp", "s_waitcnt", "s_barrier", "s_nop", "s_branch", "s_cbranch", "s_endpgm", "s_setprio", "s_sleep")):
                r = set().union(*R) if R else set()
            else:
                w = R[0]; r = set().union(*R[1:]) if len(R) > 1 else set()
                if "saveexec" in op: w = w | {("s", "exec")}
        self.w = w; self.r = r
        self.wide_store = self.vmem and "store" in op and op.endswith(("x3", "x4"))
        self.states = 1
        if op == "s_nop": self.states = int(toks[0], 0) + 1

def _need(p, c):
    n = 0
    vec = lambda s: {x for x in s if x[0] in "va"}
    sc = lambda s: {x for x in s if x[0] == "s"}
    if p.valu:
        pv = vec(p.w); ps = sc(p.w)
        if c.mfma and pv & c.r: n = max(n, 2)
        if c.rdlane and pv & c.r: n = max(n, 1)
        if (c.dpp or c.perm) and pv & c.r: n = max(n, 2)
        if p.trans and c.valu and not c.trans and pv & c.r: n = max(n, 1)
        if p.trans and (c.mfma or c.vmem or c.ds) and pv & c.r: n = max(n, 1)
        if ps:
            if c.valu and ps & c.r: n = max(n, 4 if c.rdlane else 2)
            if c.vmem and ps & c.r: n = max(n, 5)
            if c.salu and ps & c.r: n = max(n, 1)
    if p.mfma:
        big = p.passes == 8
        if c.mfma:
            if p.w & c.srcAB: n = max(n, 12 if big else 8)
            if p.w & c.srcC and not (p.w == c.srcC and p.passes == c.passes): n = max(n, 10 if big else 6)
            if p.w & c.w and not (p.w == c.srcC): n = max(n, 12 if big else 8)
        elif c.valu or c.vmem or c.ds:
            if p.w & (c.r | c.w): n = max(n, 12 if big else 8)
            if c.valu and p.srcC & c.w: n = max(n, 7 if big else 3)
    if p.salu and ("s", "m0") in p.w and c.lds_dma: n = max(n, 1)
    if p.wide_store and (c.valu or c.mfma) and p.data & c.w: n = max(n, 2)
    return n

def pad_hazards(lines):
    out = []; win = []; added = 0
    for l in lines:
        s = l.strip()
        if not s or s.endswith(":") or s.startswith((";", ".")):
            out.append(l); continue
        c = Ins(s)
        dist = 0; short = 0
        for p in reversed(win):
            short = max(short, _need(p, c) - dist)
            dist += p.states
            if dist >= 12: break
        if short > 0:
            nop = Ins(f"s_nop {short - 1}")
            out.append(f"    s_nop {short - 1}"); win.append(nop); added += 1
        out.append(l); win.append(c)
        if len(win) > 16: win = win[-16:]
    return out, added

STAMPS = [False]
DBG_OFF = [36]

class K:
    def __init__(self, name):
        self.name = name; self.lines = []; self.nl = 0
        self.nvm = 0; self.nlg = 0; self.vm_done = 0; self.lg_done = 0
    def __call__(self, s):
        last = None
        for l in s.strip("\n").split("\n"):
            l = l.strip()
            if not l: continue
            self.lines.append("    " + l)
            op = l.split()[0]
            if op.startswith(("buffer_", "global_")):
                self.nvm += 1; last = self.nvm
            elif op.startswith("ds_"):
                self.nlg += 1; last = self.nlg
            elif op == "s_waitcnt":
                m = re.search(r"vmcnt\((\d+)\)", l)
                if m: self.vm_done = max(self.vm_done, self.nvm - int(m.group(1)))
                m = re.search(r"lgkmcnt\((\d+)\)", l)
                if m: self.lg_done = max(self.lg_done, self.nlg - int(m.group(1)))
        return last
    def wait(self, vm=None, lg=None):
        parts = []
        if vm is not None and vm > self.vm_done:
            parts.append(f"vmcnt({min(62, self.nvm - vm)})")
        if lg is not None and lg > self.lg_done:
            parts.append(f"lgkmcnt({min(14, self.nlg - lg)})")
        if parts: self("s_waitcnt " + " ".join(parts))
    def stamp(self, i):
        if STAMPS[0]:
            self.lines.append(f"    s_memrealtime s[{72+2*i}:{73+2*i}]")
            if i == 0:
                self.lines.append("    s_memtime s[88:89]")
                self.lines.append("    s_mov_b32 s92, s0"); self.lines.append("    s_mov_b32 s93, s1")
                self.lines.append("    s_mov_b32 s94, s2"); self.lines.append("    v_readfirstlane_b32 s95, v0")
    def stamp_out(self, n, v=0):
        if not STAMPS[0]: return
        L = self.lines
        if STAMPS[0] == 2:
            self.nl += 1
            lab = f"L_{self.name}_dbg{self.nl}"
            for t in f"""s_waitcnt vmcnt(0)
            s_memrealtime s[86:87]
            s_memtime s[90:91]
            s_load_dwordx2 s[4:5], s[92:93], 88
            s_waitcnt lgkmcnt(0)
            s_lshr_b32 s95, s95, 6
            s_or_b32 s95, s95, s94
            s_cmp_lg_u32 s95, 0
            s_cbranch_scc1 {lab}
            s_mov_b32 s6, s71
            s_lshl_b32 s7, s6, 9
            s_sub_u32 s8, s4, s7
            s_subb_u32 s9, s5, 0
            s_mov_b32 s10, 64
            s_mov_b32 s11, 0x20000
            s_sub_u32 s90, s90, s88
            s_sub_u32 s86, s86, s72
            s_lshl_b32 s90, s90, 12
            s_or_b32 s90, s90, s86
            s_lshl_b32 s6, s6, 2
            v_mov_b32 v{v}, s6
            v_mov_b32 v{v+1}, s72
            v_mov_b32 v{v+2}, s90
            s_mov_b64 exec, 1
            buffer_store_dword v{v+1}, v{v}, s[8:11], 0 offen
            buffer_store_dword v{v+2}, v{v}, s[8:11], 0 offen offset:{DBG_OFF[0]}""".split("\n"):
                L.append("    " + t.strip())
            L.append(lab + ":")
            return
        for t in f"""s_waitcnt vmcnt(0)
        s_memrealtime s[{72+2*n}:{73+2*n}]
        s_memtime s[90:91]
        s_load_dwordx4 s[4:7], s[92:93], 88
        s_waitcnt lgkmcnt(0)
        s_lshr_b32 s4, s4, 9
        s_and_b32 s4, s4, 15
        s_lshl_b32 s4, s4, 18
        s_lshl_b32 s5, s94, 10
        s_add_u32 s4, s4, s5
        s_and_b32 s95, s95, 0x3c0
        s_add_u32 s4, s4, s95
        s_add_u32 s8, s6, 0x8000000
        s_addc_u32 s9, s7, 0
        s_mov_b32 s10, 0x400000
        s_mov_b32 s11, 0x20000
        s_sub_u32 s90, s90, s88
        v_mov_b32 v{v+8}, s4
        s_getreg_b32 s5, hwreg(HW_REG_XCC_ID)""".split("\n"):
            L.append("    " + t.strip())
        for i in range(6):
            L.append(f"    v_mov_b32 v{v+i}, s{72+2*min(i,n)}")
        L.append(f"    v_mov_b32 v{v+6}, s5")
        L.append(f"    v_mov_b32 v{v+7}, s90")
        L.append("    s_mov_b64 exec, 1")
        L.append(f"    buffer_store_dwordx4 v[{v}:{v+3}], v{v+8}, s[8:11], 0 offen")
        L.append(f"    buffer_store_dwordx4 v[{v+4}:{v+7}], v{v+8}, s[8:11], 0 offen offset:16")
    def label(self, n):
        self.lines.append(n + ":")
    def text(self):
        lines, self.padded = pad_hazards(self.lines)
        return (f".globl {self.name}\n.p2align 8\n.type {self.name},@function\n{self.name}:\n"
                + "\n".join(lines) + "\n")

def desc(name, vgpr, accum, sgpr=96):
    return f""".p2align 6
.amdhsa_kernel {name}
  .amdhsa_next_free_vgpr {vgpr}
  .amdhsa_next_free_sgpr {sgpr}
  .amdhsa_accum_offset {accum}
  .amdhsa_group_segment_fixed_size 0
  .amdhsa_kernarg_size 104
  .amdhsa_user_sgpr_count 2
  .amdhsa_user_sgpr_kernarg_segment_ptr 1
  .amdhsa_system_sgpr_workgroup_id_x 1
  .amdhsa_float_denorm_mode_32 3
.end_amdhsa_kernel
"""

def module(header, launches, kernels):
    s = header
    for n, g, b, l in launches:
        s += f"; @launch kernel={n} grid=({g},1,1) block=({b},1,1) lds={l}\n"
    s += '.amdgcn_target "amdgcn-amd-amdhsa--gfx950"\n.text\n'
    for k, _, _ in kernels:
        s += k.text()
    s += '.section .rodata,"a"\n'
    for k, v, a in kernels:
        s += desc(k.name, v, a)
    return s
```

```python
import math, struct, sys
from asmlib import *

MB4 = 0x400000
WS_Y, WS_XN, WS_XR, WS_P0, WS_P1, WS_KV = 0x0, 0x400000, 0x800000, 0xC00000, 0x1000000, 0x1400000
WS_H, WS_W1, WS_W2 = 0x2000000, 0x3000000, 0x4000000
H_BYTES = 2048 * 3584 * 2
W_BYTES = 1024 * 3584 * 2
TBH = 224 * 512
ARG = dict(q=0, k=8, v=16, shift=24, ssm=32, D=40, wg=56, wu=64, wd=72, out=80, dbg=88, ws=96)
lg = lambda x: x.bit_length() - 1
f32bits = lambda x: struct.unpack("<I", struct.pack("<f", x))[0]

def srd(k, d, base, nbytes, off=0):
    if off: k(f"s_add_u32 s{d}, s{base}, {off:#x}\ns_addc_u32 s{d+1}, s{base+1}, 0")
    else: k(f"s_mov_b32 s{d}, s{base}\ns_mov_b32 s{d+1}, s{base+1}")
    k(f"s_mov_b32 s{d+2}, {nbytes:#x}\ns_mov_b32 s{d+3}, 0x20000")

def entry(k, n=256):
    k(f"s_cmp_ge_u32 s2, {n}\ns_cbranch_scc1 L_{k.name}_end")
    k.stamp(0)

def finish(k):
    k.label(f"L_{k.name}_end")
    k("s_endpgm")

def touch_code(k, first, last, vaddr, vdst, sb=64, v0=0, n=1, step=32768):
    k.nl += 1
    here = f"L_{k.name}_pc{k.nl}"
    k(f"s_getpc_b64 s[{sb}:{sb+1}]")
    k.label(here)
    k(f"""
    s_add_u32 s{sb}, s{sb}, {first}-{here}
    s_addc_u32 s{sb+1}, s{sb+1}, {"-1" if k.back else "0"}
    s_mov_b32 s{sb+2}, {last}-{first}
    s_mov_b32 s{sb+3}, 0x20000
    v_lshlrev_b32 v{vaddr}, 7, v{v0}
    """)
    for i in range(n):
        if i: k(f"v_add_u32 v{vaddr}, {step}, v{vaddr}")
        k(f"buffer_load_dword v{vdst}, v{vaddr}, s[{sb}:{sb+3}], 0 offen")

def unpk(k, dst, src, hi):
    k(f"v_and_b32 v{dst}, 0xffff0000, v{src}" if hi else f"v_lshlrev_b32 v{dst}, 16, v{src}")

def w1_shuffle(k, KT, first_unit, n_units, lds_base, w_mod, extra=None):
    KM = 32 - KT
    k(f"""
    s_sub_u32 s17, s17, 4
    s_lshl_b32 s18, s2, 2
    s_add_u32 s18, s18, s17
    s_cmp_lt_u32 s18, {n_units}
    s_cselect_b32 s22, {W_BYTES}, 0
    s_cselect_b32 s26, {2*W_BYTES}, 0
    s_add_u32 s18, s18, {first_unit}
    s_mul_hi_u32 s19, s18, {-(-(1 << 32) // 28)}
    s_mul_i32 s28, s19, 28
    s_sub_u32 s18, s18, s28
    s_lshr_b32 s28, s19, 5
    s_and_b32 s19, s19, 31
    s_mul_i32 s29, s19, {32*7168}
    s_lshl_b32 s30, s18, 8
    s_add_u32 s29, s29, s30
    s_lshl_b32 s31, s17, 13
    s_add_u32 s31, s31, {lds_base}
    v_lshrrev_b32 v3, 4, v2
    v_mul_u32_u24 v3, 7168, v3
    v_and_b32 v4, 15, v2
    v_lshl_add_u32 v3, v4, 4, v3
    s_waitcnt lgkmcnt(0)
    s_cmp_eq_u32 s28, 0
    s_cselect_b32 s20, s4, s6
    s_cselect_b32 s21, s5, s7
    s_mov_b32 s23, 0x20000
    s_barrier
    """)
    for j in range(8):
        k(f"s_add_u32 m0, s31, {1024*j}\ns_add_u32 s30, s29, {4*7168*j}")
        ld = k("buffer_load_dwordx4 v3, s[20:23], s30 offen lds")
    if extra: extra()
    k(f"""
    s_add_u32 s24, s14, {WS_W1}
    s_addc_u32 s25, s15, 0
    s_mov_b32 s27, 0x20000
    v_lshrrev_b32 v3, 4, v2
    v_lshlrev_b32 v3, 3, v3
    v_bfe_u32 v4, v2, 2, 2
    v_add_u32 v3, v3, v4
    v_lshlrev_b32 v3, 8, v3
    v_and_b32 v4, 3, v2
    v_lshl_add_u32 v3, v4, 3, v3
    v_add_u32 v3, s31, v3
    v_lshlrev_b32 v4, 4, v2
    s_mul_i32 s32, s19, 14
    s_mul_i32 s33, s28, 7
    s_add_u32 s32, s32, s33
    s_lshl_b32 s33, s19, 1
    s_add_u32 s33, s33, s28
    s_add_u32 s33, s33, {12*KM}
    s_cmp_lt_u32 s19, {KM}
    s_cselect_b32 s32, s32, s33
    s_cselect_b32 s33, 1, {2*KT}
    s_lshl_b32 s18, s18, 3
    """)
    for i in range(8):
        k(f"""
        s_mul_i32 s34, s18, 9363
        s_lshr_b32 s34, s34, 16
        s_mul_i32 s35, s34, 7
        s_sub_u32 s35, s18, s35
        s_mul_i32 s35, s35, s33
        s_mul_i32 s34, s34, 448
        s_add_u32 s34, s34, s35
        s_add_u32 s34, s34, s32
        s_lshl_b32 s{48+i}, s34, 10
        s_add_u32 s18, s18, 1
        """)
    assert all((x * 9363) >> 16 == x // 7 for x in range(224))
    k.wait(vm=ld); k.stamp(1)
    rid = []
    for i in range(8):
        k(f"ds_read_b64_tr_b16 v[{8+4*i}:{9+4*i}], v3 offset:{32*i}")
        rid.append(k(f"ds_read_b64_tr_b16 v[{10+4*i}:{11+4*i}], v3 offset:{32*i + 1024}"))
    for i in range(8):
        k.wait(lg=rid[i])
        k(f"buffer_store_dwordx4 v[{8+4*i}:{11+4*i}], v4, s[24:27], s{48+i} offen {w_mod}")
    k.stamp(2); k.stamp(3); k.stamp_out(4, 48)

def gen_kv(KT, st_mod="sc1", touch=("ssm",), tc=True, nsh=1024, w_mod="sc1"):
    k = K("kv_kernel"); entry(k)
    k(f"""
    v_readfirstlane_b32 s17, v0
    s_lshr_b32 s17, s17, 6
    s_cmp_ge_u32 s17, 4
    s_cbranch_scc1 L_kv_shuf
    s_load_dwordx4 s[4:7], s[0:1], {ARG['k']}
    s_load_dwordx4 s[8:11], s[0:1], {ARG['shift']}
    s_load_dwordx2 s[14:15], s[0:1], {ARG['ws']}
    s_load_dwordx2 s[12:13], s[0:1], {ARG['q']}
    s_and_b32 s3, s2, 15
    s_lshr_b32 s16, s2, 4
    v_and_b32 v1, 7, v0
    v_bfe_u32 v2, v0, 6, 1
    v_lshl_add_u32 v1, v2, 3, v1
    s_lshl_b32 s17, s16, 4
    v_add_u32 v1, s17, v1
    v_bfe_u32 v2, v0, 3, 3
    v_lshrrev_b32 v3, 7, v0
    v_lshl_add_u32 v2, v3, 3, v2
    s_lshl_b32 s17, s3, 4
    v_add_u32 v2, s17, v2
    v_lshlrev_b32 v3, 14, v1
    v_lshl_add_u32 v3, v2, 3, v3
    v_subrev_u32 v4, 0x1800, v3
    v_subrev_u32 v5, 0x1000, v3
    v_subrev_u32 v6, 0x800, v3
    v_lshlrev_b32 v7, 5, v2
    s_mov_b32 s19, 4096
    s_mov_b32 s28, 8192
    s_mov_b32 s29, 12288
    s_waitcnt lgkmcnt(0)
    """)
    srd(k, 20, 4, MB4); srd(k, 24, 6, MB4); srd(k, 32, 8, 8192)
    KR = lambda t: 16 + 2 * t
    VR = lambda t: 32 + 2 * t
    so = ["0", "s19", "s28", "s29"]
    k("buffer_load_dwordx4 v[48:51], v7, s[32:35], 0 offen\nbuffer_load_dwordx4 v[52:55], v7, s[32:35], 0 offen offset:16")
    for i in range(3):
        k(f"buffer_load_dwordx2 v[{KR(i-3)}:{KR(i-3)+1}], v{4+i}, s[20:23], 0 offen")
    for t in range(8):
        lk = k(f"buffer_load_dwordx2 v[{KR(t)}:{KR(t)+1}], v3, s[20:23], {so[t>>1]} offen offset:{(t&1)*2048}")
    for t in range(8):
        lv = k(f"buffer_load_dwordx2 v[{VR(t)}:{VR(t)+1}], v3, s[24:27], {so[t>>1]} offen offset:{(t&1)*2048}")
    if touch:
        k("v_and_b32 v8, 127, v0\ns_lshl_b32 s17, s2, 7\nv_add_u32 v8, s17, v8\nv_lshlrev_b32 v8, 7, v8")
        k("v_readfirstlane_b32 s17, v0\ns_cmp_lt_u32 s17, 128")
        b = dict(ssm=10, q=12)
        t0 = b[touch[0]]; t1 = b[touch[-1]]
        k(f"s_cselect_b32 s36, s{t0}, s{t1}\ns_cselect_b32 s37, s{t0+1}, s{t1+1}")
        k(f"s_cselect_b32 s38, {MB4}, {MB4 if len(touch) > 1 else 0}\ns_mov_b32 s39, 0x20000")
        k("buffer_load_dword v9, v8, s[36:39], 0 offen")
    k("s_barrier")
    srd(k, 40, 14, MB4, WS_KV)
    k("v_sub_u32 v7, 255, v1\nv_lshlrev_b32 v7, 4, v7\nv_lshl_add_u32 v7, v2, 14, v7")
    k.wait(vm=lk); k.stamp(1)
    W = lambda c, j: 56 + 4 * c + j
    for c in range(4):
        for j in range(4): unpk(k, W(c, j), 48 + 2 * c + (j >> 1), j & 1)
    KS = lambda c, t: 72 + 8 * c + t
    KF = lambda t: 107 + t
    for c in range(4):
        for t in range(-3, 8): unpk(k, KF(t), KR(t) + (c >> 1), c & 1)
        for t in range(8): k(f"v_mul_f32 v{KS(c,t)}, v{W(c,3)}, v{KF(t-3)}")
        for j in (2, 1, 0):
            for t in range(8): k(f"v_fmac_f32 v{KS(c,t)}, v{W(c,j)}, v{KF(t-j)}")
    k.wait(vm=lv); k.stamp(2)
    for c in range(4):
        for t in range(8): unpk(k, KF(t), VR(t) + (c >> 1), c & 1)
        for t in range(8): k(f"v_mul_f32 v{KS(c,t)}, v{KS(c,t)}, v{KF(t)}")
        for i in range(4): k(f"v_cvt_pk_bf16_f32 v{12+4*c+i}, v{KS(c,7-2*i)}, v{KS(c,6-2*i)}")
        k(f"buffer_store_dwordx4 v[{12+4*c}:{15+4*c}], v7, s[40:43], {so[c]} offen {st_mod}")
    k.stamp(3); k.stamp_out(4, 32)
    k("s_endpgm")
    k.label("L_kv_shuf")
    k(f"s_load_dwordx4 s[4:7], s[0:1], {ARG['wg']}\ns_load_dwordx2 s[14:15], s[0:1], {ARG['ws']}\nv_and_b32 v2, 63, v0")
    def extra():
        if tc:
            k.back = False
            k("v_and_b32 v5, 255, v0")
            touch_code(k, "conv_kernel", "L_fin_kernel_end", 6, 7, v0=5, n=2)
    w1_shuffle(k, KT, 0, nsh, 0, w_mod, extra)
    finish(k)
    return (k, 120, 120), ("kv_kernel", 256, 512, 32768)

CS = 4160; XS = 4640; CH_LDS = 4 * CS + 2 * XS; CONV_LDS = 4 * CH_LDS

def gen_conv(KT, st_mod="", w_mod="sc1", touchq=True, first=1024):
    KM = 32 - KT
    k = K("conv_kernel"); entry(k)
    k(f"""
    s_load_dwordx4 s[8:11], s[0:1], {ARG['ssm']}
    s_load_dwordx2 s[14:15], s[0:1], {ARG['ws']}
    s_load_dwordx4 s[4:7], s[0:1], {ARG['wg']}
    s_load_dwordx2 s[12:13], s[0:1], {ARG['q']}
    v_lshrrev_b32 v1, 6, v0
    v_and_b32 v2, 63, v0
    v_readfirstlane_b32 s17, v1
    s_and_b32 s3, s2, 7
    s_lshl_b32 s3, s3, 5
    s_lshr_b32 s16, s2, 3
    s_add_u32 s3, s3, s16
    v_lshlrev_b32 v60, 4, v2
    s_cmp_ge_u32 s17, 4
    s_cbranch_scc1 L_conv_shuf
    s_lshl_b32 s18, s3, 2
    s_add_u32 s18, s18, s17
    s_lshl_b32 s30, s18, 12
    s_mul_i32 s31, s17, {CH_LDS}
    s_waitcnt lgkmcnt(0)
    s_add_u32 s32, s8, s30
    s_addc_u32 s33, s9, 0
    s_mov_b32 s34, 4096
    s_mov_b32 s35, 0x20000
    s_add_u32 s30, s30, {WS_KV}
    s_add_u32 s24, s14, s30
    s_addc_u32 s25, s15, 0
    s_mov_b32 s26, 4100
    s_mov_b32 s27, 0x20000
    """)
    for r in (1, 0):
        k(f"s_add_u32 m0, s31, {4*CS + r*XS}\ns_mov_b32 s30, {2 - 2*r}")
        for i in range(4):
            k(f"buffer_load_dwordx4 v60, s[24:27], s30 offen offset:{i*1024} lds")
    for cc in range(4):
        k(f"s_add_u32 m0, s31, {cc*CS}\ns_mov_b32 s30, {4*cc+4}")
        for i in range(4):
            k(f"buffer_load_dwordx4 v60, s[32:35], s30 offen offset:{i*1024} lds")
    A = lambda buf, p: 64 + buf * 64 + 4 * p
    B = lambda buf, j: 96 + buf * 64 + 4 * j
    AD = 40
    k("v_and_b32 v61, 15, v2\nv_lshrrev_b32 v62, 4, v2\nv_lshlrev_b32 v63, 2, v61\nv_lshl_add_u32 v63, v62, 4, v63")
    for w in range(4): k(f"v_subrev_u32 v{4+w}, {60-4*w}, v63")
    for w in range(4): k(f"buffer_load_dword v{A(0,0)+w}, v{4+w}, s[32:35], 0 offen")
    CNT = CONV_LDS + 32768
    k(f"""
    v_mov_b32 v48, {CNT}
    v_mov_b32 v49, 0
    ds_write_b32 v48, v49
    s_waitcnt lgkmcnt(0)
    s_barrier
    s_and_b32 s30, s18, 0xfffffffe
    s_lshl_b32 s30, s30, 1
    s_add_u32 s10, s10, s30
    s_addc_u32 s11, s11, 0
    s_load_dword s44, s[10:11], 0
    v_and_b32 v8, 3, v61
    v_mul_u32_u24 v8, {CS}, v8
    v_lshrrev_b32 v9, 2, v61
    v_add_u32 v9, v9, v62
    v_lshl_add_u32 v56, v9, 4, v8
    v_add_u32 v56, s31, v56
    v_lshrrev_b32 v8, 3, v61
    v_mul_u32_u24 v9, {XS}, v8
    v_and_b32 v10, 7, v61
    v_lshlrev_b32 v11, 6, v10
    v_sub_u32 v9, v9, v11
    v_lshl_add_u32 v9, v62, 4, v9
    v_add_u32 v9, {4*CS + 4032 - 3584}, v9
    v_add_u32 v57, s31, v9
    v_lshrrev_b32 v11, 1, v10
    v_xor_b32 v11, v11, v62
    v_lshl_add_u32 v11, v10, 2, v11
    v_lshlrev_b32 v11, 4, v11
    v_lshl_add_u32 v11, v8, 12, v11
    v_add_u32 v59, s31, v11
    v_lshrrev_b32 v8, 5, v2
    v_mul_u32_u24 v8, {XS}, v8
    v_and_b32 v9, 31, v2
    v_lshl_add_u32 v8, v9, 4, v8
    v_add_u32 v8, s31, v8
    v_mov_b32 v44, 0
    v_mov_b32 v45, 0
    v_mov_b32 v46, 0
    v_mov_b32 v47, 0
    v_mov_b32 v58, s31
    ds_write_b128 v8, v[44:47] offset:{4*CS + 4096}
    s_waitcnt lgkmcnt(0)
    s_and_b32 s30, s18, 1
    s_lshl_b32 s30, s30, 4
    s_lshr_b32 s44, s44, s30
    s_and_b32 s44, s44, 0xffff
    v_mov_b32 v9, s44
    """)
    for w in range(4):
        k(f"v_cmp_eq_u32 vcc, 0, v{4+w}\nv_cndmask_b32 v{AD+w}, 0, v9, vcc")
    k(f"s_waitcnt vmcnt(0)\nds_write_b16 v58, v44 offset:{4*CS + 4094}")
    k.stamp(1)
    Y = lambda j: 8 + 4 * j
    def reads(i):
        buf = i & 1; out = []
        for x in range(8):
            out.append(("B", x, f"ds_read_b128 v[{B(buf,x)}:{B(buf,x)+3}], v57 offset:{3584-512*x+64*i}"))
            if (i, x) != (0, 0):
                out.append(("A", x, f"ds_read_b128 v[{A(buf,x)}:{A(buf,x)+3}], v56 offset:{64*(i-1)+512*x}"))
        return out
    ids = {}
    for kind, x, txt in reads(0): ids[(0, kind, x)] = k(txt)
    for j in range(8):
        k.wait(lg=ids[(0, "B", j)])
        k(f"v_mfma_f32_16x16x32_bf16 v[{Y(j)}:{Y(j)+3}], v[{AD}:{AD+3}], v[{B(0,j)}:{B(0,j)+3}], 0")
    k("s_waitcnt lgkmcnt(0)\ns_mov_b32 s30, 4")
    for rep in range(2):
        n0 = len(k.lines)
        if rep: k.label("L_conv_loop")
        for i in range(2):
            buf = i & 1
            nxt = reads(i + 1)
            order = sorted([(p, j) for p in range(8) for j in range(8 - p)], key=lambda t: (max(t), t[0] + t[1]))
            for n, (p, j) in enumerate(order):
                k.wait(lg=max(ids.get((i, "A", p), 0), ids[(i, "B", j)]))
                jp = p + j
                k(f"v_mfma_f32_16x16x32_bf16 v[{Y(jp)}:{Y(jp)+3}], v[{A(buf,p)}:{A(buf,p)+3}], v[{B(buf,j)}:{B(buf,j)+3}], v[{Y(jp)}:{Y(jp)+3}]")
                if n % 2 == 1 and nxt:
                    kind, x, txt = nxt.pop(0)
                    ids[((i + 1) & 1, kind, x)] = k(txt)
                if i == 1 and n == 32: k("v_add_u32 v56, 128, v56\nv_add_u32 v57, 128, v57")
                if i == 1 and n == 34: k("s_sub_u32 s30, s30, 1\ns_cmp_lg_u32 s30, 0")
            assert not nxt
        if not rep: del k.lines[n0:]
    k("s_cbranch_scc1 L_conv_loop\ns_waitcnt lgkmcnt(0)")
    k.stamp(2)
    k(f"""
    v_lshrrev_b32 v4, 3, v0
    v_and_b32 v4, 3, v4
    v_xor_b32 v4, v4, v0
    v_lshlrev_b32 v4, 4, v4
    v_add_u32 v5, {2*CH_LDS}, v4
    s_lshl_b32 s30, s3, 6
    v_lshlrev_b32 v6, 14, v0
    v_add_u32 v6, s30, v6
    """)
    for j in range(8): k(f"ds_write_b128 v59, v[{Y(j)}:{Y(j)+3}] offset:{512*j}")
    srd(k, 20, 14, MB4, WS_Y)
    k("""
    v_mov_b32 v49, 1
    s_mov_b64 exec, 1
    ds_add_u32 v48, v49
    s_mov_b64 exec, -1
    """)
    k.label("L_conv_spin")
    k("""
    ds_read_b32 v49, v48
    s_waitcnt lgkmcnt(0)
    v_readfirstlane_b32 s30, v49
    s_cmp_lt_u32 s30, 4
    s_cbranch_scc1 L_conv_spin
    """)
    CV = lambda c, r: 64 + 8 * c + 4 * r
    for c in range(4):
        for r in range(2):
            k(f"ds_read_b128 v[{CV(c,r)}:{CV(c,r)+3}], v{4 + (c>>1)} offset:{(c&1)*CH_LDS + 4096*r}")
    k("s_waitcnt lgkmcnt(0)")
    for t in range(8):
        for h in range(2):
            k(f"v_cvt_pk_bf16_f32 v{128+2*t+h}, v{CV(2*h,t&1)+(t>>1)}, v{CV(2*h+1,t&1)+(t>>1)}")
        if t & 1:
            k(f"buffer_store_dwordx4 v[{128+2*t-2}:{128+2*t+1}], v6, s[20:23], 0 offen offset:{8*(t-1)} {st_mod}")
    k.stamp(3); k.stamp_out(4)
    k("s_endpgm")
    k.label("L_conv_shuf")
    def extra():
        if touchq:
            srd(k, 40, 12, MB4)
            k("v_and_b32 v5, 127, v0\ns_lshl_b32 s30, s2, 7\nv_add_u32 v5, s30, v5\nv_lshlrev_b32 v5, 7, v5")
            k("s_cmp_lt_u32 s17, 2\ns_cselect_b32 s42, s42, 0")
            k("buffer_load_dword v6, v5, s[40:43], 0 offen")
    w1_shuffle(k, KT, first, 1792 - first, CONV_LDS, w_mod, extra)
    finish(k)
    return (k, 192, 192), ("conv_kernel", 256, 512, CONV_LDS + 32768 + 16)

def gen_ln(name, mode, st_mod="sc1", tc=True):
    k = K(name); entry(k)
    k(f"""
    s_load_dwordx2 s[4:5], s[0:1], {ARG['out'] if mode == 'fin' else ARG['q']}
    s_load_dwordx2 s[6:7], s[0:1], {ARG['ws']}
    v_and_b32 v1, 7, v0
    v_lshrrev_b32 v2, 3, v0
    v_lshlrev_b32 v3, 11, v1
    v_lshl_add_u32 v3, v2, 4, v3
    v_lshlrev_b32 v4, 3, v1
    v_lshl_add_u32 v4, v2, 7, v4
    v_lshlrev_b32 v5, 4, v1
    v_lshl_add_u32 v5, v2, 8, v5
    s_lshl_b32 s3, s2, 14
    s_add_u32 s24, s3, 8192
    s_lshr_b32 s25, s2, 1
    s_lshl_b32 s25, s25, 15
    s_and_b32 s26, s2, 1
    s_lshl_b32 s26, s26, 7
    s_add_u32 s25, s25, s26
    s_add_u32 s26, s25, 16384
    s_waitcnt lgkmcnt(0)
    """)
    fs = ["s25", "s26"]
    srd(k, 16, 6, MB4, WS_XR)
    if mode == "first":
        srd(k, 8, 4, MB4)
        for i in range(2): lx = k(f"buffer_load_dwordx4 v[{8+4*i}:{11+4*i}], v3, s[8:11], s3 offen offset:{1024*i}")
    else:
        srd(k, 28, 6, MB4, WS_P0); srd(k, 32, 6, MB4, WS_P1)
        for i in range(2):
            k(f"buffer_load_dwordx4 v[{80+4*i}:{83+4*i}], v5, s[28:31], {fs[i]} offen")
            lp = k(f"buffer_load_dwordx4 v[{88+4*i}:{91+4*i}], v5, s[32:35], {fs[i]} offen")
        for i in range(2): lx = k(f"buffer_load_dwordx4 v[{8+4*i}:{11+4*i}], v5, s[16:19], {fs[i]} offen")
    if mode != "fin":
        srd(k, 12, 6, MB4, WS_Y)
        for i in range(2):
            for h in range(2):
                ly = k(f"buffer_load_dwordx2 v[{16+4*i+2*h}:{17+4*i+2*h}], v4, s[12:15], {'s24' if i else 's3'} offen offset:{64*h}")
        if tc:
            k.back = mode == "mid"
            touch_code(k, "g1a_kernel", "L_g1a_kernel_end", 96, 97)
        srd(k, 20, 6, MB4, WS_XN)
        k("""
        v_lshrrev_b32 v6, 6, v0
        v_lshlrev_b32 v6, 3, v6
        v_lshl_add_u32 v6, v1, 6, v6
        v_bfe_u32 v7, v0, 4, 1
        v_lshl_add_u32 v6, v7, 2, v6
        v_lshlrev_b32 v7, 6, v1
        """)
    else:
        srd(k, 8, 4, MB4)
    X = lambda e: 24 + e
    Yv = lambda e: 40 + e
    def unpack(dst, src):
        for e in range(16): unpk(k, dst(e), src + e // 2, e & 1)
    def stats(rnd):
        k(f"v_pk_add_f32 v[56:57], v[{X(0)}:{X(1)}], v[{X(2)}:{X(3)}]")
        k(f"v_pk_mul_f32 v[58:59], v[{X(0)}:{X(1)}], v[{X(0)}:{X(1)}]")
        for e in range(2, 16, 2):
            if e > 2: k(f"v_pk_add_f32 v[56:57], v[56:57], v[{X(e)}:{X(e+1)}]")
            k(f"v_pk_fma_f32 v[58:59], v[{X(e)}:{X(e+1)}], v[{X(e)}:{X(e+1)}], v[58:59]")
        k(f"""
        v_add_f32 v56, v56, v57
        v_add_f32 v58, v58, v59
        v_permlane16_swap_b32 v56, v58
        v_add_f32 v56, v56, v58
        v_add_f32_dpp v56, v56, v56 row_ror:8 row_mask:0xf bank_mask:0xf
        v_mov_b32 v57, v56
        v_permlane32_swap_b32 v56, v57
        v_add_f32 v56, v56, v57
        ds_write_b32 v6, v56 offset:{512*rnd}
        s_waitcnt lgkmcnt(0)
        s_barrier
        """)
        for i in range(4): k(f"ds_read_b128 v[{64+4*i}:{67+4*i}], v7 offset:{512*rnd+16*i}")
        k("s_waitcnt lgkmcnt(0)")
        for i in range(4): k(f"v_pk_add_f32 v[{64+4*i}:{65+4*i}], v[{64+4*i}:{65+4*i}], v[{66+4*i}:{67+4*i}]")
        k(f"""
        v_pk_add_f32 v[64:65], v[64:65], v[68:69]
        v_pk_add_f32 v[72:73], v[72:73], v[76:77]
        v_pk_add_f32 v[64:65], v[64:65], v[72:73]
        v_mul_f32 v64, {f32bits(1/1024):#x}, v64
        v_mul_f32 v65, {f32bits(1/1024):#x}, v65
        v_fma_f32 v65, -v64, v64, v65
        v_max_f32 v65, 0, v65
        v_cvt_pk_bf16_f32 v66, v64, v65
        v_lshlrev_b32 v64, 16, v66
        v_and_b32 v65, 0xffff0000, v66
        v_add_f32 v65, {f32bits(1e-5):#x}, v65
        v_cvt_pk_bf16_f32 v65, v65, v65
        v_lshlrev_b32 v65, 16, v65
        v_sqrt_f32 v65, v65
        v_cvt_pk_bf16_f32 v65, v65, v65
        v_lshlrev_b32 v65, 16, v65
        v_rcp_f32 v60, v65
        v_mov_b32 v61, v60
        v_mul_f32_e64 v62, -v64, v60
        v_mov_b32 v63, v62
        """)
    if mode != "first":
        k.wait(vm=lp)
        unpack(X, 80); unpack(Yv, 88)
        for e in range(0, 16, 2):
            k(f"v_pk_add_f32 v[{X(e)}:{X(e+1)}], v[{X(e)}:{X(e+1)}], v[{Yv(e)}:{Yv(e+1)}]")
        k.wait(vm=lx)
        unpack(Yv, 8)
        for e in range(0, 16, 2):
            k(f"v_pk_add_f32 v[{X(e)}:{X(e+1)}], v[{X(e)}:{X(e+1)}], v[{Yv(e)}:{Yv(e+1)}]")
            k(f"v_cvt_pk_bf16_f32 v{8+e//2}, v{X(e)}, v{X(e+1)}")
    k.wait(vm=lx); k.stamp(1)
    if mode == "fin":
        for i in range(2): k(f"buffer_store_dwordx4 v[{8+4*i}:{11+4*i}], v3, s[8:11], s3 offen offset:{1024*i} {st_mod}")
        k.stamp(2)
    else:
        unpack(X, 8)
        stats(0)
        k.wait(vm=ly); k.stamp(2)
        unpack(Yv, 16)
        for e in range(0, 16, 2):
            k(f"v_pk_fma_f32 v[64:65], v[{X(e)}:{X(e+1)}], v[60:61], v[62:63]")
            k(f"v_pk_fma_f32 v[{X(e)}:{X(e+1)}], v[64:65], v[{Yv(e)}:{Yv(e+1)}], v[{X(e)}:{X(e+1)}]")
            k(f"v_cvt_pk_bf16_f32 v{8+e//2}, v{X(e)}, v{X(e+1)}")
        for i in range(2): k(f"buffer_store_dwordx4 v[{8+4*i}:{11+4*i}], v5, s[16:19], {fs[i]} offen {st_mod}")
        unpack(X, 8)
        stats(1)
        for e in range(0, 16, 2):
            k(f"v_pk_fma_f32 v[{X(e)}:{X(e+1)}], v[{X(e)}:{X(e+1)}], v[60:61], v[62:63]")
            k(f"v_cvt_pk_bf16_f32 v{16+e//2}, v{X(e)}, v{X(e+1)}")
        for i in range(2): k(f"buffer_store_dwordx4 v[{16+4*i}:{19+4*i}], v5, s[20:23], {fs[i]} offen {st_mod}")
    k.stamp(3); k.stamp_out(4, 32)
    finish(k)
    return (k, 104, 104), (name, 256, 512, 1024)

def ablate(k, abl):
    out = []; seen = False
    for l in k.lines:
        s = l.strip()
        if s == "s_barrier":
            if "nobar" in abl and seen: continue
            seen = True
        if "nomfma" in abl and s.startswith("v_mfma"): continue
        if "nods" in abl and s.startswith("ds_read"): continue
        if "novm" in abl and seen and s.startswith("buffer_load"): continue
        if "novm" in abl and seen and s.startswith("s_waitcnt vmcnt") and "vmcnt(0)" not in s:
            l = l.replace(s.split()[1] + " ", "") if "lgkm" in s else "    s_nop 0"
        out.append(l)
    k.lines = out

def gen_gemm(name, kind, KT=14, NS=10, RW=8, la_bar=5, la=32, rate=0.7, st_mod="sc1", quiet=40, abl="", xm=4, tc=True):
    G1 = kind == 1
    shuf = G1
    k = K(name)
    if G1:
        k("s_movk_i32 s62, 896")
        k.label("L_g1_body")
    entry(k)
    NT = 4 if G1 else 2
    NU = 32 if G1 else 56
    NG = 14 if G1 else 8
    RING = KT if G1 else 14
    AW = lambda i: 4 * (i % RW)
    AT = lambda u, t: 4 * RW + 4 * ((u % RING) * NT + t)
    nacc = NG * NT * 4
    VD, VTOK, VST, VC2 = nacc, nacc + 1, nacc + 2, nacc + 3
    VR = nacc + 4
    VS = nacc + 7
    TMP = nacc + 12
    NTILE = 32 if G1 else 16
    tstride = 32768 if G1 else TBH
    k(f"""
    s_load_dwordx2 s[8:9], s[0:1], {ARG['ws']}
    s_load_dwordx2 s[4:5], s[0:1], {ARG['wd']}
    v_lshrrev_b32 v1, 6, v0
    v_and_b32 v2, 63, v0
    v_readfirstlane_b32 s17, v1
    s_and_b32 s3, s2, 7
    s_lshr_b32 s16, s2, 3
    """)
    if G1:
        k(f"""
        s_and_b32 s18, s3, {8 // xm - 1}
        s_mul_i32 s18, s18, {xm}
        s_and_b32 s19, s16, {xm - 1}
        s_add_u32 s18, s18, s19
        s_lshr_b32 s19, s3, {lg(8 // xm)}
        s_mul_i32 s19, s19, {32 // xm}
        s_lshr_b32 s16, s16, {lg(xm)}
        s_add_u32 s19, s19, s16
        s_lshl_b32 s30, s18, 4
        s_lshl_b32 s16, s17, 2
        s_add_u32 s30, s30, s16
        s_lshl_b32 s34, s30, 15
        """)
    else:
        k(f"""
        s_lshr_b32 s18, s3, 1
        s_lshl_b32 s18, s18, 2
        s_and_b32 s19, s16, 3
        s_add_u32 s18, s18, s19
        s_and_b32 s28, s3, 1
        s_lshl_b32 s19, s28, 3
        s_lshr_b32 s29, s16, 2
        s_add_u32 s19, s19, s29
        s_lshl_b32 s30, s18, 3
        s_lshl_b32 s16, s17, 1
        s_add_u32 s30, s30, s16
        s_mul_i32 s34, s30, {TBH}
        s_mul_i32 s16, s28, {56*1024}
        s_add_u32 s34, s34, s16
        """)
    k(f"""
    s_mul_i32 s33, s19, {448*1024}
    s_lshl_b32 s31, s17, 12
    s_add_u32 s33, s33, s31
    v_lshlrev_b32 v{VR}, 4, v2
    v_add_u32 v{VD}, s33, v{VR}
    v_add_u32 v{VTOK}, s34, v{VR}
    s_waitcnt lgkmcnt(0)
    """)
    srd(k, 20, 8, NTILE * 448 * 1024, WS_W1 if G1 else WS_W2)
    if G1: srd(k, 24, 8, MB4, WS_XN)
    else: srd(k, 24, 8, H_BYTES, WS_H)
    tok_base = [None] * NT
    st = {"s": None}
    def dma(s, i):
        pre_ = []
        if st["s"] != s:
            pre_ = [f"s_add_u32 m0, s31, {(s % NS) * 16384}", f"s_mov_b32 s36, {s * 16384}"]; st["s"] = s
        return pre_ + [f"buffer_load_dwordx4 v{VD}, s[20:23], s36 offen offset:{1024*i} lds"]
    def tok(u, t):
        off = u * 1024; pre_ = []
        if tok_base[t] is None or off - tok_base[t] > 4095:
            tok_base[t] = off & ~4095
            pre_ = [f"s_mov_b32 s{40+t}, {t * tstride + tok_base[t]}"]
        return pre_ + [f"buffer_load_dwordx4 a[{AT(u,t)}:{AT(u,t)+3}], v{VTOK}, s[24:27], s{40+t} offen offset:{off - tok_base[t]}"]

    KM = NU - KT if G1 else NU
    groups = [(u, g) for u in range(KM) for g in range(NG)]
    tail_start = len(groups)
    if G1:
        for b in range(7):
            for u in range(KM, NU): groups += [(u, b), (u, 7 + b)]
    GPB = 2 * KT
    NGR = len(groups); assert NGR == 448
    first_use = {}; last_use = {}
    for i, (u, g) in enumerate(groups):
        first_use.setdefault(u, i); last_use[u] = i
    bars = {16 * s - la_bar: s for s in range(1, 28)}
    items = [(16 * s - la_bar, "W", s, i) for s in range(28) for i in range(4)]
    items += [(first_use[u], "T", u, t) for u in range(NU) for t in range(NT)]
    items.sort(key=lambda x: x[0])
    def earliest(it):
        if it[1] == "W": return 0 if it[2] < NS else 16 * (it[2] - NS + 2) - la_bar
        return 0 if it[2] < RING else last_use[it[2] - RING] + 1
    nxt_t = 1e9; sched = []
    for it in reversed(items):
        nxt_t = min(it[0] - la, nxt_t - 1.0 / rate)
        sched.append((max(nxt_t, earliest(it) or -1e9),) + it[1:])
    items = sorted(reversed(sched), key=lambda x: x[0])
    if G1:
        last_t = max(x[0] for x in items if x[1] == "T"); prev = last_t
        for n_, it in enumerate(items):
            if it[0] > last_t:
                prev = max(prev + 2.0, earliest(it)); items[n_] = (min(it[0], prev),) + it[1:]
    w_id = {}; t_id = {}
    def lines(it):
        return dma(it[2], it[3]) if it[1] == "W" else tok(it[2], it[3])
    def record(it, i):
        if it[1] == "W": w_id[it[2]] = i
        else: t_id[(it[2], it[3])] = i
    while items and items[0][0] < 0:
        it = items.pop(0); record(it, k("\n".join(lines(it))))
    k(f"v_add_u32 v{VR+1}, 0x10000, v{VR}\nv_add_u32 v{VR+2}, 0x20000, v{VR}\nv_mov_b32 v{VS+4}, v0")
    c1 = -2 * math.sqrt(2 / math.pi) * math.log2(math.e)
    if G1:
        srd(k, 12, 8, H_BYTES, WS_H)
        k(f"""
        s_mul_i32 s35, s30, {TBH}
        s_mul_i32 s16, s19, {7*512}
        s_add_u32 s44, s35, s16
        s_add_u32 s45, s44, {2*TBH}
        v_lshrrev_b32 v5, 5, v2
        v_and_b32 v6, 31, v2
        v_lshlrev_b32 v6, 4, v6
        v_mul_u32_u24 v7, {TBH}, v5
        v_add_u32 v{VST}, v7, v6
        v_mov_b32 v{VC2}, {f32bits(c1*0.044715):#x}
        """)
    else:
        k(f"""
        s_mul_i32 s16, s28, {WS_P1 - WS_P0}
        s_add_u32 s16, s16, {WS_P0}
        s_add_u32 s12, s8, s16
        s_addc_u32 s13, s9, 0
        s_mov_b32 s14, {MB4}
        s_mov_b32 s15, 0x20000
        s_lshl_b32 s44, s30, 15
        s_lshl_b32 s16, s29, 12
        s_add_u32 s44, s44, s16
        s_add_u32 s45, s44, 32768
        """)
    if shuf:
        k(f"""
        s_lshl_b32 s46, s2, 2
        s_add_u32 s46, s46, s17
        s_lshr_b32 s47, s46, 3
        s_and_b32 s48, s46, 7
        s_cmp_lt_u32 s46, s62
        s_cselect_b32 s54, {W_BYTES}, 0
        s_cselect_b32 s58, {W_BYTES}, 0
        s_mov_b32 s52, s4
        s_mov_b32 s53, s5
        s_mov_b32 s55, 0x20000
        s_add_u32 s56, s8, {WS_W2}
        s_addc_u32 s57, s9, 0
        s_mov_b32 s59, 0x20000
        s_lshl_b32 s49, s47, 16
        s_lshl_b32 s50, s48, 8
        s_add_u32 s49, s49, s50
        s_cmp_ge_u32 s47, 56
        s_cselect_b32 s50, {8*448 - 56*8}, 0
        s_mul_i32 s51, s48, 448
        s_add_u32 s50, s50, s51
        s_lshl_b32 s51, s47, 3
        s_add_u32 s50, s50, s51
        s_lshl_b32 s50, s50, 10
        s_add_u32 s51, s50, 4096
        v_lshrrev_b32 v3, 4, v2
        v_and_b32 v4, 15, v2
        v_lshlrev_b32 v4, 4, v4
        v_lshl_add_u32 v{VS}, v3, 11, v4
        v_lshrrev_b32 v3, 5, v2
        v_lshlrev_b32 v3, 4, v3
        v_bfe_u32 v4, v2, 2, 3
        v_add_u32 v3, v3, v4
        v_lshlrev_b32 v3, 8, v3
        v_and_b32 v4, 3, v2
        v_lshl_add_u32 v3, v4, 4, v3
        s_lshl_b32 s60, s17, 13
        """)
    acc = lambda g, t: (g * NT + t) * 4
    def rd(i):
        off = ((i // 16) % NS) * 16384 + (i % 16) * 1024
        return f"ds_read_b128 a[{AW(i)}:{AW(i)+3}], v{VR + off // 65536} offset:{off % 65536}"
    def gelu4(G, U, P):
        T = [TMP + e for e in range(4)]
        o = [f"v_mul_f32 v{T[e]}, v{G+e}, v{G+e}" for e in range(4)]
        o += [f"v_fmaak_f32 v{T[e]}, v{VC2}, v{T[e]}, {f32bits(c1):#x}" for e in range(4)]
        o += [f"v_mul_f32 v{T[e]}, v{T[e]}, v{G+e}" for e in range(4)]
        for e in range(4): o += [f"v_exp_f32 v{T[e]}, v{T[e]}", f"v_mul_f32 v{U+e}, v{U+e}, v{G+e}"]
        o += [f"v_add_f32 v{T[e]}, 1.0, v{T[e]}" for e in range(4)]
        o += [f"v_rcp_f32 v{T[e]}, v{T[e]}" for e in range(4)]
        o += [f"v_mul_f32 v{U+e}, v{U+e}, v{T[e]}" for e in range(4)]
        o += [f"v_cvt_pk_bf16_f32 v{P}, v{U}, v{U+1}", f"v_cvt_pk_bf16_f32 v{P+1}, v{U+2}, v{U+3}"]
        return o
    def epilogue(b):
        o = []
        for t in range(2):
            a = acc(b, 2 * t)
            o += gelu4(a, acc(7 + b, 2 * t), a) + gelu4(acc(b, 2 * t + 1), acc(7 + b, 2 * t + 1), a + 2)
            o += [f"v_permlane32_swap_b32 v{a}, v{a+2}", f"v_permlane32_swap_b32 v{a+1}, v{a+3}"]
            o.append(f"buffer_store_dwordx4 v[{a}:{a+3}], v{VST}, s[12:15], s{44+t} offen offset:{512*b} {st_mod}")
        return o
    cost = lambda s: 2 if s.startswith(("v_exp", "v_rcp")) else 1

    if shuf:
        free = [s % NS for s in range(28, 30)]
        assert free[1] == free[0] + 1
        k(f"s_add_u32 s60, s60, {free[0] * 16384}\nv_add_u32 v{VS+1}, s60, v3")
        shuf_at = 16 * (29 - NS + 2) - la_bar
    k.stamp(1)
    k.wait(vm=w_id[0]); k("s_barrier")
    k.stamp(2)
    published = 0; r_id = {}; rp = 0
    while rp < RW - 2:
        r_id[rp] = k(rd(rp)); rp += 1
    touch_at = 300
    credit = 0.0; seen = set(); epi = []; epi_rate = 0.0; epi_credit = 0.0
    q = []
    held = []
    shuf_state = 0; quiet_end = None; sh_ld = None
    for i, (u, g) in enumerate(groups):
        if i == tail_start or (not G1 and i == 224): k.stamp(3)
        if i in bars:
            pub = bars[i]
            assert not any(it[1] == "W" and it[2] <= pub for it in items)
            while any(c is not None and c[0] == "V" and c[1][1] == "W" and c[1][2] <= pub for _, c in q):
                t_, c = q.pop(0); id_ = k(t_)
                if c: (record(c[1], id_) if c[0] == "V" else r_id.__setitem__(c[1], id_))
            k.wait(vm=w_id[pub]); k("s_barrier"); published = pub
        n = 0
        while rp < NGR and rp <= i + RW - 2 and rp // 16 <= published and n < 2:
            q.append((rd(rp), ("R", rp))); rp += 1; n += 1
        if items and items[0][0] <= i:
            it = items.pop(0); ls = lines(it)
            q += [(x, None) for x in ls[:-1]] + [(ls[-1], ("V", it))]
        if tc and i == touch_at:
            n0 = len(k.lines); k.back = False
            touch_code(k, "g2_kernel" if G1 else "ln2_kernel", "L_fin_kernel_end", VS + 2, VS + 3, v0=VS + 4)
        if shuf and shuf_state == 0 and not items and i >= shuf_at:
            for j in range(8):
                q.append((f"s_add_u32 m0, s60, {1024*j}", None))
                q.append((f"s_add_u32 s61, s49, {8192*j}", None))
                q.append((f"buffer_load_dwordx4 v{VS}, s[52:55], s61 offen lds", ("S",)))
            shuf_state = 1; quiet_end = i + quiet
        if shuf_state == 1 and i >= quiet_end:
            q += [(x, None) for x in held]; held = []
            shuf_state = 2
        if G1 and i >= tail_start + GPB and (i - tail_start) % GPB == 0:
            assert not epi, len(epi)
            epi = epilogue((i - tail_start) // GPB - 1)
            epi_rate = sum(map(cost, epi)) / (GPB * NT - 6); epi_credit = -3 * epi_rate
        for t in range(NT):
            while i not in r_id or (u, t) not in t_id:
                t_, c = q.pop(0); id_ = k(t_)
                if c and c[0] == "V": record(c[1], id_)
                elif c and c[0] == "R": r_id[c[1]] = id_
                elif c: sh_ld = id_
            n0 = len(k.lines)
            k.wait(vm=t_id[(u, t)], lg=r_id[i])
            a = acc(g, t)
            c = f"v[{a}:{a+3}]" if (g, t) in seen else "0"
            seen.add((g, t))
            k(f"v_mfma_f32_16x16x32_bf16 v[{a}:{a+3}], a[{AW(i)}:{AW(i)+3}], a[{AT(u,t)}:{AT(u,t)+3}], {c}")
            budget = 2
            nq = 1 if len(q) <= (NT - t) + 2 else 2
            for _ in range(nq):
                if q:
                    t_, c = q.pop(0); id_ = k(t_); budget -= 1
                    if c and c[0] == "V": record(c[1], id_)
                    elif c and c[0] == "R": r_id[c[1]] = id_
                    elif c: sh_ld = id_
            epi_credit += epi_rate
            while epi and epi_credit >= cost(epi[0]) - 1e-9 and (budget >= cost(epi[0]) or epi_credit >= 3):
                x = epi.pop(0); epi_credit -= cost(x); budget -= cost(x)
                if x.startswith("buffer_store") and shuf_state == 1: held.append(x)
                else: k(x)
    assert not items and not epi and not q and not held, (len(items), len(epi), len(q), len(held))
    k.stamp(4)
    if shuf:
        assert shuf_state == 2
        k.wait(vm=sh_ld)
        rid = []
        for wb in range(8):
            off = (wb >> 1) * 64 + (wb & 1) * 8
            k(f"ds_read_b64_tr_b16 a[{4*wb}:{4*wb+1}], v{VS+1} offset:{off}")
            rid.append(k(f"ds_read_b64_tr_b16 a[{4*wb+2}:{4*wb+3}], v{VS+1} offset:{off + 2048}"))
        tail_ins = epilogue(6)
        for x in tail_ins[:12]: k(x)
        for wb in range(8):
            k.wait(lg=rid[wb])
            k(f"buffer_store_dwordx4 a[{4*wb}:{4*wb+3}], v{VR}, s[56:59], s{50 + wb//4} offen offset:{1024*(wb&3)} {st_mod}")
        for x in tail_ins[12:]: k(x)
    else:
        for p in range(4):
            for t in range(2):
                a = acc(2 * p, t); b = acc(2 * p + 1, t)
                k(f"""
                v_cvt_pk_bf16_f32 v{a}, v{a}, v{a+1}
                v_cvt_pk_bf16_f32 v{a+1}, v{a+2}, v{a+3}
                v_cvt_pk_bf16_f32 v{a+2}, v{b}, v{b+1}
                v_cvt_pk_bf16_f32 v{a+3}, v{b+2}, v{b+3}
                buffer_store_dwordx4 v[{a}:{a+3}], v{VR}, s[12:15], s{44+t} offen offset:{1024*p} {st_mod}
                """)
    k.stamp_out(5, TMP)
    ablate(k, abl)
    finish(k)
    nv = -(-(TMP + 12) // 8) * 8
    na = 4 * RW + 4 * RING * NT
    assert nv <= 256 and na <= 256
    return (k, nv + na, nv), (name, 256, 256, NS * 16384)

HEADER = open("interleave_layers__ssm_conv_h3__glu_gated_geglu__prompt.s.ref").read().split("; Override launch")[0]

def build(path, g1={}, g2={}, conv={}, ln={}, kv={}, stamps=False, only=None, order=None, empties=0):
    STAMPS[0] = stamps
    KT = g1.get("KT", 14)
    g1a = gen_gemm("g1a_kernel", 1, **g1)
    kb = K("g1b_kernel"); kb("s_mov_b32 s62, 0\ns_branch L_g1_body")
    g1b = ((kb,) + g1a[0][1:], ("g1b_kernel",) + g1a[1][1:])
    g2k = gen_gemm("g2_kernel", 2, **g2)
    seq = [gen_kv(KT, **kv), gen_conv(KT, first=kv.get('nsh', 1024), **conv), gen_ln("ln1_kernel", "first", **ln), g1a, g2k,
           gen_ln("ln2_kernel", "mid", **ln), g1b, g2k, gen_ln("fin_kernel", "fin", **ln)]
    ks = [seq[i][0] for i in (0, 1, 2, 6, 3, 4, 5, 8)]
    if stamps == 2:
        k2 = K("g2b_kernel"); k2("s_branch L_g2_body")
        g2k[0][0].lines.insert(0, "L_g2_body:")
        seq[7] = ((k2,) + g2k[0][1:], ("g2b_kernel",) + g2k[1][1:]); ks.insert(3, seq[7][0])
        for i_, (kk, _) in enumerate(seq): kk[0].lines.insert(0, f"    s_mov_b32 s71, {i_}")
    if only: seq = seq[:only]
    if order: seq = [seq[i] for i in order]
    if empties:
        ke = K("nop_kernel"); ke("s_endpgm")
        ks.append((ke, 8, 8)); seq += [(None, ("nop_kernel", 256, 256, 0))] * empties
    txt = module(HEADER, [l for _, l in seq], ks)
    txt = "\n".join(l.strip() if l.startswith("    ") else l for l in txt.split("\n"))
    open(path, "w").write(txt)
    return {kk[0].name: (len(kk[0].lines), kk[0].padded) for kk in ks}

if __name__ == "__main__":
    print(build("v2.s"))
    build("v2s.s", stamps=True)
```

```python
import re

TRANS = ("v_exp_f32", "v_log_f32", "v_rcp_f32", "v_rsq_f32", "v_sqrt_f32", "v_sin_f32", "v_cos_f32")

def _regs(tok):
    tok = tok.strip()
    tok = re.sub(r"^-", "", tok)
    m = re.match(r"^abs\((.*)\)$", tok)
    if m: tok = m.group(1)
    tok = tok.strip("|")
    m = re.match(r"^([vas])(\d+)$", tok)
    if m: return {(m.group(1), int(m.group(2)))}
    m = re.match(r"^([vas])\[(\d+):(\d+)\]$", tok)
    if m: return {(m.group(1), i) for i in range(int(m.group(2)), int(m.group(3)) + 1)}
    if tok in ("vcc", "vcc_lo", "vcc_hi"): return {("s", "vcc")}
    if tok in ("exec", "exec_lo", "exec_hi"): return {("s", "exec")}
    if tok == "m0": return {("s", "m0")}
    return set()

class Ins:
    def __init__(self, text):
        self.text = text
        t = text.split(";")[0].strip()
        parts = t.split(None, 1)
        self.op = parts[0]
        rest = parts[1] if len(parts) > 1 else ""
        toks = [x.strip() for x in rest.split(",")]
        mods = []
        if toks:
            last = toks[-1].split()
            if last:
                toks[-1] = last[0]; mods = last[1:]
        self.mods = mods
        op = self.op
        self.mfma = op.startswith("v_mfma")
        self.valu = op.startswith("v_") and not self.mfma
        self.trans = any(op.startswith(x) for x in TRANS)
        self.vmem = op.startswith("buffer_") or op.startswith("global_")
        self.ds = op.startswith("ds_")
        self.salu = op.startswith("s_")
        self.dpp = "_dpp" in op or any(m.startswith(("row_", "quad_perm", "wave_")) for m in mods)
        self.perm = op.startswith("v_permlane")
        self.rdlane = op.startswith(("v_readlane", "v_readfirstlane"))
        self.lds_dma = self.vmem and ("lds" in mods or "_lds_" in op)
        R = [_regs(x) for x in toks]
        w = set(); r = set()
        self.srcC = set(); self.srcAB = set(); self.data = set()
        if self.mfma:
            w = R[0]; self.srcAB = R[1] | R[2]; self.srcC = R[3]; r = self.srcAB | self.srcC
            self.passes = 8 if "32x32" in op else 4
        elif self.valu:
            if self.perm and "swap" in op:
                w = R[0] | R[1]; r = R[0] | R[1]
            elif op.startswith(("v_add_co", "v_sub_co", "v_addc_co", "v_subb_co", "v_subrev_co")):
                w = R[0] | R[1]; r = set().union(*R[2:])
            elif op == "v_nop":
                pass
            else:
                w = R[0]; r = set().union(*R[1:]) if len(R) > 1 else set()
                if op.startswith(("v_fmac", "v_pk_fmac", "v_dot2c")) or self.dpp: r |= R[0]
                if op.startswith("v_cndmask") and len(R) == 3: r |= {("s", "vcc")}
        elif self.vmem:
            if "load" in op and not self.lds_dma:
                w = R[0]; r = set().union(*R[1:])
            else:
                r = set().union(*R)
                if "store" in op:
                    self.data = R[0] if op.startswith("buffer_") else R[1]
            if self.lds_dma: r |= {("s", "m0")}
        elif self.ds:
            if "read" in op or "permute" in op or "swizzle" in op:
                w = R[0]; r = set().union(*R[1:])
            else:
                r = set().union(*R)
        elif self.salu:
            if op.startswith(("s_cmp", "s_waitcnt", "s_barrier", "s_nop", "s_branch", "s_cbranch", "s_endpgm", "s_setprio", "s_sleep")):
                r = set().union(*R) if R else set()
            else:
                w = R[0]; r = set().union(*R[1:]) if len(R) > 1 else set()
                if "saveexec" in op: w = w | {("s", "exec")}
        self.w = w; self.r = r
        self.wide_store = self.vmem and "store" in op and op.endswith(("x3", "x4"))
        self.states = 1
        if op == "s_nop": self.states = int(toks[0], 0) + 1

def _need(p, c):
    n = 0
    vec = lambda s: {x for x in s if x[0] in "va"}
    sc = lambda s: {x for x in s if x[0] == "s"}
    if p.valu:
        pv = vec(p.w); ps = sc(p.w)
        if c.mfma and pv & c.r: n = max(n, 2)
        if c.rdlane and pv & c.r: n = max(n, 1)
        if (c.dpp or c.perm) and pv & c.r: n = max(n, 2)
        if p.trans and c.valu and not c.trans and pv & c.r: n = max(n, 1)
        if p.trans and (c.mfma or c.vmem or c.ds) and pv & c.r: n = max(n, 1)
        if ps:
            if c.valu and ps & c.r: n = max(n, 4 if c.rdlane else 2)
            if c.vmem and ps & c.r: n = max(n, 5)
            if c.salu and ps & c.r: n = max(n, 1)
    if p.mfma:
        big = p.passes == 8
        if c.mfma:
            if p.w & c.srcAB: n = max(n, 12 if big else 8)
            if p.w & c.srcC and not (p.w == c.srcC and p.passes == c.passes): n = max(n, 10 if big else 6)
            if p.w & c.w and not (p.w == c.srcC): n = max(n, 12 if big else 8)
        elif c.valu or c.vmem or c.ds:
            if p.w & (c.r | c.w): n = max(n, 12 if big else 8)
            if c.valu and p.srcC & c.w: n = max(n, 7 if big else 3)
    if p.salu and ("s", "m0") in p.w and c.lds_dma: n = max(n, 1)
    if p.wide_store and (c.valu or c.mfma) and p.data & c.w: n = max(n, 2)
    return n

def pad_hazards(lines):
    out = []; win = []; added = 0
    for l in lines:
        s = l.strip()
        if not s or s.endswith(":") or s.startswith((";", ".")):
            out.append(l); continue
        c = Ins(s)
        dist = 0; short = 0
        for p in reversed(win):
            short = max(short, _need(p, c) - dist)
            dist += p.states
            if dist >= 12: break
        if short > 0:
            nop = Ins(f"s_nop {short - 1}")
            out.append(f"    s_nop {short - 1}"); win.append(nop); added += 1
        out.append(l); win.append(c)
        if len(win) > 16: win = win[-16:]
    return out, added

STAMPS = [False]
DBG_OFF = [36]

class K:
    def __init__(self, name):
        self.name = name; self.lines = []; self.nl = 0
        self.nvm = 0; self.nlg = 0; self.vm_done = 0; self.lg_done = 0
    def __call__(self, s):
        last = None
        for l in s.strip("\n").split("\n"):
            l = l.strip()
            if not l: continue
            self.lines.append("    " + l)
            op = l.split()[0]
            if op.startswith(("buffer_", "global_")):
                self.nvm += 1; last = self.nvm
            elif op.startswith("ds_"):
                self.nlg += 1; last = self.nlg
            elif op == "s_waitcnt":
                m = re.search(r"vmcnt\((\d+)\)", l)
                if m: self.vm_done = max(self.vm_done, self.nvm - int(m.group(1)))
                m = re.search(r"lgkmcnt\((\d+)\)", l)
                if m: self.lg_done = max(self.lg_done, self.nlg - int(m.group(1)))
        return last
    def wait(self, vm=None, lg=None):
        parts = []
        if vm is not None and vm > self.vm_done:
            parts.append(f"vmcnt({min(62, self.nvm - vm)})")
        if lg is not None and lg > self.lg_done:
            parts.append(f"lgkmcnt({min(14, self.nlg - lg)})")
        if parts: self("s_waitcnt " + " ".join(parts))
    def stamp(self, i):
        if STAMPS[0]:
            self.lines.append(f"    s_memrealtime s[{72+2*i}:{73+2*i}]")
            if i == 0:
                self.lines.append("    s_memtime s[88:89]")
                self.lines.append("    s_mov_b32 s92, s0"); self.lines.append("    s_mov_b32 s93, s1")
                self.lines.append("    s_mov_b32 s94, s2"); self.lines.append("    v_readfirstlane_b32 s95, v0")
    def stamp_out(self, n, v=0):
        if not STAMPS[0]: return
        L = self.lines
        if STAMPS[0] == 2:
            self.nl += 1
            lab = f"L_{self.name}_dbg{self.nl}"
            for t in f"""s_waitcnt vmcnt(0)
            s_memrealtime s[86:87]
            s_memtime s[90:91]
            s_load_dwordx2 s[4:5], s[92:93], 88
            s_waitcnt lgkmcnt(0)
            s_lshr_b32 s95, s95, 6
            s_or_b32 s95, s95, s94
            s_cmp_lg_u32 s95, 0
            s_cbranch_scc1 {lab}
            s_mov_b32 s6, s71
            s_sub_u32 s7, 8, s6
            s_lshl_b32 s7, s7, 9
            s_add_u32 s8, s4, s7
            s_addc_u32 s9, s5, 0
            s_mov_b32 s10, 64
            s_mov_b32 s11, 0x20000
            s_sub_u32 s90, s90, s88
            s_sub_u32 s86, s86, s72
            s_lshl_b32 s90, s90, 12
            s_or_b32 s90, s90, s86
            s_lshl_b32 s6, s6, 2
            v_mov_b32 v{v}, s6
            v_mov_b32 v{v+1}, s72
            v_mov_b32 v{v+2}, s90
            s_mov_b64 exec, 1
            buffer_store_dword v{v+1}, v{v}, s[8:11], 0 offen
            buffer_store_dword v{v+2}, v{v}, s[8:11], 0 offen offset:{DBG_OFF[0]}""".split("\n"):
                L.append("    " + t.strip())
            L.append(lab + ":")
            return
        for t in f"""s_waitcnt vmcnt(0)
        s_memrealtime s[{72+2*n}:{73+2*n}]
        s_memtime s[90:91]
        s_load_dwordx4 s[4:7], s[92:93], 88
        s_waitcnt lgkmcnt(0)
        s_lshr_b32 s4, s4, 9
        s_and_b32 s4, s4, 15
        s_lshl_b32 s4, s4, 18
        s_lshl_b32 s5, s94, 10
        s_add_u32 s4, s4, s5
        s_and_b32 s95, s95, 0x3c0
        s_add_u32 s4, s4, s95
        s_add_u32 s8, s6, 0x8000000
        s_addc_u32 s9, s7, 0
        s_mov_b32 s10, 0x400000
        s_mov_b32 s11, 0x20000
        s_sub_u32 s90, s90, s88
        v_mov_b32 v{v+8}, s4
        s_getreg_b32 s5, hwreg(HW_REG_XCC_ID)""".split("\n"):
            L.append("    " + t.strip())
        for i in range(6):
            L.append(f"    v_mov_b32 v{v+i}, s{72+2*min(i,n)}")
        L.append(f"    v_mov_b32 v{v+6}, s5")
        L.append(f"    v_mov_b32 v{v+7}, s90")
        L.append("    s_mov_b64 exec, 1")
        L.append(f"    buffer_store_dwordx4 v[{v}:{v+3}], v{v+8}, s[8:11], 0 offen")
        L.append(f"    buffer_store_dwordx4 v[{v+4}:{v+7}], v{v+8}, s[8:11], 0 offen offset:16")
    def label(self, n):
        self.lines.append(n + ":")
    def text(self):
        lines, self.padded = pad_hazards(self.lines)
        return (f".globl {self.name}\n.p2align 8\n.type {self.name},@function\n{self.name}:\n"
                + "\n".join(lines) + "\n")

def desc(name, vgpr, accum, sgpr=102):
    return f""".p2align 6
.amdhsa_kernel {name}
  .amdhsa_next_free_vgpr {vgpr}
  .amdhsa_next_free_sgpr {sgpr}
  .amdhsa_accum_offset {accum}
  .amdhsa_group_segment_fixed_size 0
  .amdhsa_kernarg_size 104
  .amdhsa_user_sgpr_count 2
  .amdhsa_user_sgpr_kernarg_segment_ptr 1
  .amdhsa_system_sgpr_workgroup_id_x 1
  .amdhsa_float_denorm_mode_32 3
.end_amdhsa_kernel
"""

def module(header, launches, kernels):
    s = header
    for n, g, b, l in launches:
        s += f"; @launch kernel={n} grid=({g},1,1) block=({b},1,1) lds={l}\n"
    s += '.amdgcn_target "amdgcn-amd-amdhsa--gfx950"\n.text\n'
    for k, _, _ in kernels:
        s += k.text()
    s += '.section .rodata,"a"\n'
    for k, v, a in kernels:
        s += desc(k.name, v, a)
    return s
```

```python
import math, struct, sys
from asmlib import *

MB4 = 0x400000
def set_ws(base=0, reuse=True):
    global WS_Y, WS_XN, WS_XR, WS_P0, WS_P1, WS_KV, WS_H, WS_W1, WS_W2
    WS_Y, WS_XN, WS_KV, WS_XR = base, base + 0x400000, base + 0x800000, base + 0xC01000
    WS_H, WS_W1, WS_W2 = base + 0x1100000, base + 0x1F00000, base + 0x2D00000
    global WS_FLAG
    WS_FLAG = base + 0x3C00000
    WS_P0, WS_P1 = (WS_XN, WS_KV) if reuse else (base + 0x3400000, base + 0x3800000)
set_ws()
H_BYTES = 2048 * 3584 * 2
W_BYTES = 1024 * 3584 * 2
TBH = 224 * 512
ARG = dict(q=0, k=8, v=16, shift=24, ssm=32, D=40, wg=56, wu=64, wd=72, out=80, dbg=88, ws=96)
lg = lambda x: x.bit_length() - 1
f32bits = lambda x: struct.unpack("<I", struct.pack("<f", x))[0]

def srd(k, d, base, nbytes, off=0):
    if off: k(f"s_add_u32 s{d}, s{base}, {off:#x}\ns_addc_u32 s{d+1}, s{base+1}, 0")
    else: k(f"s_mov_b32 s{d}, s{base}\ns_mov_b32 s{d+1}, s{base+1}")
    k(f"s_mov_b32 s{d+2}, {nbytes:#x}\ns_mov_b32 s{d+3}, 0x20000")

def entry(k, n=256):
    k(f"s_cmp_ge_u32 s2, {n}\ns_cbranch_scc1 L_{k.name}_end")
    k.stamp(0)

def finish(k):
    k.label(f"L_{k.name}_end")
    k("s_endpgm")

def touch_code(k, first, last, vaddr, vdst, sb=64, v0=0, n=1, step=32768):
    k.nl += 1
    here = f"L_{k.name}_pc{k.nl}"
    k(f"s_getpc_b64 s[{sb}:{sb+1}]")
    k.label(here)
    k(f"""
    s_add_u32 s{sb}, s{sb}, {first}-{here}
    s_addc_u32 s{sb+1}, s{sb+1}, {"-1" if k.back else "0"}
    s_mov_b32 s{sb+2}, {last}-{first}
    s_mov_b32 s{sb+3}, 0x20000
    v_lshlrev_b32 v{vaddr}, 7, v{v0}
    """)
    for i in range(n):
        if i: k(f"v_add_u32 v{vaddr}, {step}, v{vaddr}")
        k(f"buffer_load_dword v{vdst}, v{vaddr}, s[{sb}:{sb+3}], 0 offen")

def unpk(k, dst, src, hi):
    k(f"v_and_b32 v{dst}, 0xffff0000, v{src}" if hi else f"v_lshlrev_b32 v{dst}, 16, v{src}")

def w1_shuffle(k, KT, lds_base, w_mod, extra=None):
    KM = 32 - KT
    k(f"""
    s_sub_u32 s17, s17, 4
    s_mul_i32 s16, s2, 7
    s_add_u32 s16, s16, s17
    s_lshl_b32 s31, s17, 13
    s_add_u32 s31, s31, {lds_base}
    v_lshrrev_b32 v3, 4, v2
    v_mul_u32_u24 v3, 7168, v3
    v_and_b32 v4, 15, v2
    v_lshl_add_u32 v3, v4, 4, v3
    s_cmp_ge_u32 s2, 128
    s_cselect_b32 s28, 1, 0
    s_waitcnt lgkmcnt(0)
    s_cselect_b32 s20, s6, s4
    s_cselect_b32 s21, s7, s5
    s_mov_b32 s22, {W_BYTES}
    s_mov_b32 s23, 0x20000
    s_add_u32 s24, s14, {WS_W1}
    s_addc_u32 s25, s15, 0
    s_mov_b32 s26, {2*W_BYTES}
    s_mov_b32 s27, 0x20000
    s_barrier
    """)
    ld = []
    for r in range(2):
        if r: k(f"s_cmp_eq_u32 s17, 3\ns_cbranch_scc1 L_{k.name}_one\ns_add_u32 s16, s16, 4")
        k(f"""
        s_mul_hi_u32 s19, s16, {-(-(1 << 32) // 28)}
        s_mul_i32 s30, s19, 28
        s_sub_u32 s{38+r}, s16, s30
        s_and_b32 s{36+r}, s19, 31
        s_mul_i32 s29, s{36+r}, {32*7168}
        s_lshl_b32 s30, s{38+r}, 8
        s_add_u32 s29, s29, s30
        """)
        for j in range(8):
            k(f"s_add_u32 m0, s31, {1024*j + 32768*r}\ns_add_u32 s30, s29, {4*7168*j}")
            x = k("buffer_load_dwordx4 v3, s[20:23], s30 offen lds")
        ld.append(x)
    k.label(f"L_{k.name}_one")
    k(f"""
    v_lshrrev_b32 v3, 4, v2
    v_lshlrev_b32 v3, 3, v3
    v_bfe_u32 v4, v2, 2, 2
    v_add_u32 v3, v3, v4
    v_lshlrev_b32 v3, 8, v3
    v_and_b32 v4, 3, v2
    v_lshl_add_u32 v3, v4, 3, v3
    v_add_u32 v3, s31, v3
    v_lshlrev_b32 v4, 4, v2
    """)
    assert all((x * 9363) >> 16 == x // 7 for x in range(224))
    for r in range(2):
        if r: k(f"s_cmp_eq_u32 s17, 3\ns_cbranch_scc1 L_{k.name}_two")
        k(f"""
        s_mul_i32 s32, s{36+r}, 14
        s_mul_i32 s33, s28, 7
        s_add_u32 s32, s32, s33
        s_lshl_b32 s33, s{36+r}, 1
        s_add_u32 s33, s33, s28
        s_add_u32 s33, s33, {12*KM}
        s_cmp_lt_u32 s{36+r}, {KM}
        s_cselect_b32 s32, s32, s33
        s_cselect_b32 s33, 1, {2*KT}
        s_lshl_b32 s18, s{38+r}, 3
        """)
        for i in range(8):
            k(f"""
            s_mul_i32 s34, s18, 9363
            s_lshr_b32 s34, s34, 16
            s_mul_i32 s35, s34, 7
            s_sub_u32 s35, s18, s35
            s_mul_i32 s35, s35, s33
            s_mul_i32 s34, s34, 448
            s_add_u32 s34, s34, s35
            s_add_u32 s34, s34, s32
            s_lshl_b32 s{48+i}, s34, 10
            s_add_u32 s18, s18, 1
            """)
        if r == 0:
            k(f"s_cmp_eq_u32 s17, 3\ns_cbranch_scc0 L_{k.name}_w8\ns_waitcnt vmcnt(0)")
            k.label(f"L_{k.name}_w8")
        k("s_waitcnt vmcnt(8)")
        k.stamp(1 + r)
        rid = []
        for i in range(8):
            f = 8 + 32 * r + 4 * i
            k(f"ds_read_b64_tr_b16 v[{f}:{f+1}], v3 offset:{32*i + 32768*r}")
            rid.append(k(f"ds_read_b64_tr_b16 v[{f+2}:{f+3}], v3 offset:{32*i + 1024 + 32768*r}"))
        for i in range(8):
            f = 8 + 32 * r + 4 * i
            k.wait(lg=rid[i])
            k(f"buffer_store_dwordx4 v[{f}:{f+3}], v4, s[24:27], s{48+i} offen {w_mod}")
    k.label(f"L_{k.name}_two")
    if extra: extra()
    k.stamp(3); k.stamp_out(4, 80)

def gen_kv(st_mod="sc1", touch=(), tc=True):
    k = K("kv_kernel"); entry(k)
    k(f"""
    s_load_dwordx4 s[4:7], s[0:1], {ARG['k']}
    s_load_dwordx4 s[8:11], s[0:1], {ARG['shift']}
    s_load_dwordx2 s[14:15], s[0:1], {ARG['ws']}
    s_load_dwordx2 s[12:13], s[0:1], {ARG['q']}
    s_and_b32 s3, s2, 15
    s_lshr_b32 s16, s2, 4
    v_and_b32 v1, 7, v0
    v_bfe_u32 v2, v0, 6, 1
    v_lshl_add_u32 v1, v2, 3, v1
    s_lshl_b32 s17, s16, 4
    v_add_u32 v1, s17, v1
    v_bfe_u32 v2, v0, 3, 3
    v_lshrrev_b32 v3, 7, v0
    v_lshl_add_u32 v2, v3, 3, v2
    s_lshl_b32 s17, s3, 4
    v_add_u32 v2, s17, v2
    v_lshlrev_b32 v3, 14, v1
    v_lshl_add_u32 v3, v2, 3, v3
    v_subrev_u32 v4, 0x1800, v3
    v_subrev_u32 v5, 0x1000, v3
    v_subrev_u32 v6, 0x800, v3
    v_lshlrev_b32 v7, 5, v2
    s_mov_b32 s19, 4096
    s_mov_b32 s28, 8192
    s_mov_b32 s29, 12288
    s_waitcnt lgkmcnt(0)
    """)
    srd(k, 20, 4, MB4); srd(k, 24, 6, MB4); srd(k, 32, 8, 8192)
    KR = lambda t: 16 + 2 * t
    VR = lambda t: 32 + 2 * t
    so = ["0", "s19", "s28", "s29"]
    k("buffer_load_dwordx4 v[48:51], v7, s[32:35], 0 offen\nbuffer_load_dwordx4 v[52:55], v7, s[32:35], 0 offen offset:16")
    for i in range(3):
        k(f"buffer_load_dwordx2 v[{KR(i-3)}:{KR(i-3)+1}], v{4+i}, s[20:23], 0 offen")
    for t in range(8):
        lk = k(f"buffer_load_dwordx2 v[{KR(t)}:{KR(t)+1}], v3, s[20:23], {so[t>>1]} offen offset:{(t&1)*2048}")
    for t in range(8):
        lv = k(f"buffer_load_dwordx2 v[{VR(t)}:{VR(t)+1}], v3, s[24:27], {so[t>>1]} offen offset:{(t&1)*2048}")
    if touch:
        k("v_and_b32 v8, 127, v0\ns_lshl_b32 s17, s2, 7\nv_add_u32 v8, s17, v8\nv_lshlrev_b32 v8, 7, v8")
        k("v_readfirstlane_b32 s17, v0\ns_cmp_lt_u32 s17, 128")
        b = dict(ssm=10, q=12)
        t0 = b[touch[0]]; t1 = b[touch[-1]]
        k(f"s_cselect_b32 s36, s{t0}, s{t1}\ns_cselect_b32 s37, s{t0+1}, s{t1+1}")
        k(f"s_cselect_b32 s38, {MB4}, {MB4 if len(touch) > 1 else 0}\ns_mov_b32 s39, 0x20000")
        k("buffer_load_dword v9, v8, s[36:39], 0 offen")
    if tc:
        k.back = False
        touch_code(k, "conv_kernel", "L_ln1_kernel_end", 116, 117)
    srd(k, 44, 14, 16384, WS_FLAG)
    k("""
    s_lshl_b32 s17, s2, 6
    v_lshlrev_b32 v8, 2, v0
    v_mov_b32 v9, 0
    v_cmp_gt_u32 vcc, 16, v0
    s_and_saveexec_b64 s[48:49], vcc
    s_cbranch_execz L_kv_noflag
    buffer_store_dword v9, v8, s[44:47], s17 offen sc1
    """)
    k.label("L_kv_noflag")
    k("s_mov_b64 exec, s[48:49]")
    k.nvm -= 1
    srd(k, 40, 14, MB4, WS_KV)
    k("v_sub_u32 v7, 255, v1\nv_lshlrev_b32 v7, 4, v7\nv_lshl_add_u32 v7, v2, 14, v7")
    k.wait(vm=lk); k.stamp(1)
    W = lambda c, j: 56 + 4 * c + j
    for c in range(4):
        for j in range(4): unpk(k, W(c, j), 48 + 2 * c + (j >> 1), j & 1)
    KS = lambda c, t: 72 + 8 * c + t
    KF = lambda t: 107 + t
    for c in range(4):
        for t in range(-3, 8): unpk(k, KF(t), KR(t) + (c >> 1), c & 1)
        for t in range(8): k(f"v_mul_f32 v{KS(c,t)}, v{W(c,3)}, v{KF(t-3)}")
        for j in (2, 1, 0):
            for t in range(8): k(f"v_fmac_f32 v{KS(c,t)}, v{W(c,j)}, v{KF(t-j)}")
    k.wait(vm=lv); k.stamp(2)
    for c in range(4):
        for t in range(8): unpk(k, KF(t), VR(t) + (c >> 1), c & 1)
        for t in range(8): k(f"v_mul_f32 v{KS(c,t)}, v{KS(c,t)}, v{KF(t)}")
        for i in range(4): k(f"v_cvt_pk_bf16_f32 v{12+4*c+i}, v{KS(c,7-2*i)}, v{KS(c,6-2*i)}")
        k(f"buffer_store_dwordx4 v[{12+4*c}:{15+4*c}], v7, s[40:43], {so[c]} offen {st_mod}")
    k.stamp(3); k.stamp_out(4, 32)
    finish(k)
    return (k, 120, 120), ("kv_kernel", 256, 256, 0)

CS = 4160; XS = 4640; CH_LDS = 4 * CS + 2 * XS; CONV_LDS = 4 * CH_LDS

def gen_conv(KT, st_mod="", w_mod="sc1", tc=True):
    KM = 32 - KT
    k = K("conv_kernel"); entry(k)
    k(f"""
    s_load_dwordx4 s[8:11], s[0:1], {ARG['ssm']}
    s_load_dwordx2 s[14:15], s[0:1], {ARG['ws']}
    s_load_dwordx4 s[4:7], s[0:1], {ARG['wg']}
    s_load_dwordx2 s[12:13], s[0:1], {ARG['q']}
    v_lshrrev_b32 v1, 6, v0
    v_and_b32 v2, 63, v0
    v_readfirstlane_b32 s17, v1
    s_and_b32 s3, s2, 7
    s_lshl_b32 s3, s3, 5
    s_lshr_b32 s16, s2, 3
    s_add_u32 s3, s3, s16
    v_lshlrev_b32 v60, 4, v2
    s_cmp_ge_u32 s17, 4
    s_cbranch_scc1 L_conv_shuf
    s_lshl_b32 s18, s3, 2
    s_add_u32 s18, s18, s17
    s_lshl_b32 s30, s18, 12
    s_mul_i32 s31, s17, {CH_LDS}
    s_waitcnt lgkmcnt(0)
    s_add_u32 s32, s8, s30
    s_addc_u32 s33, s9, 0
    s_mov_b32 s34, 4096
    s_mov_b32 s35, 0x20000
    s_add_u32 s30, s30, {WS_KV}
    s_add_u32 s24, s14, s30
    s_addc_u32 s25, s15, 0
    s_mov_b32 s26, 4100
    s_mov_b32 s27, 0x20000
    """)
    for r in (1, 0):
        k(f"s_add_u32 m0, s31, {4*CS + r*XS}\ns_mov_b32 s30, {2 - 2*r}")
        for i in range(4):
            k(f"buffer_load_dwordx4 v60, s[24:27], s30 offen offset:{i*1024} lds")
    for cc in range(4):
        k(f"s_add_u32 m0, s31, {cc*CS}\ns_mov_b32 s30, {4*cc+4}")
        for i in range(4):
            k(f"buffer_load_dwordx4 v60, s[32:35], s30 offen offset:{i*1024} lds")
    A = lambda buf, p: 64 + buf * 64 + 4 * p
    B = lambda buf, j: 96 + buf * 64 + 4 * j
    AD = 40
    k("v_and_b32 v61, 15, v2\nv_lshrrev_b32 v62, 4, v2\nv_lshlrev_b32 v63, 2, v61\nv_lshl_add_u32 v63, v62, 4, v63")
    for w in range(4): k(f"v_subrev_u32 v{4+w}, {60-4*w}, v63")
    for w in range(4): k(f"buffer_load_dword v{A(0,0)+w}, v{4+w}, s[32:35], 0 offen")
    CNT = CONV_LDS + 57344
    k(f"""
    v_mov_b32 v48, {CNT}
    v_mov_b32 v49, 0
    ds_write_b32 v48, v49
    s_waitcnt lgkmcnt(0)
    s_barrier
    s_and_b32 s30, s18, 0xfffffffe
    s_lshl_b32 s30, s30, 1
    s_add_u32 s10, s10, s30
    s_addc_u32 s11, s11, 0
    s_load_dword s44, s[10:11], 0
    v_and_b32 v8, 3, v61
    v_mul_u32_u24 v8, {CS}, v8
    v_lshrrev_b32 v9, 2, v61
    v_add_u32 v9, v9, v62
    v_lshl_add_u32 v56, v9, 4, v8
    v_add_u32 v56, s31, v56
    v_lshrrev_b32 v8, 3, v61
    v_mul_u32_u24 v9, {XS}, v8
    v_and_b32 v10, 7, v61
    v_lshlrev_b32 v11, 6, v10
    v_sub_u32 v9, v9, v11
    v_lshl_add_u32 v9, v62, 4, v9
    v_add_u32 v9, {4*CS + 4032 - 3584}, v9
    v_add_u32 v57, s31, v9
    v_lshrrev_b32 v11, 1, v10
    v_xor_b32 v11, v11, v62
    v_lshl_add_u32 v11, v10, 2, v11
    v_lshlrev_b32 v11, 4, v11
    v_lshl_add_u32 v11, v8, 12, v11
    v_add_u32 v59, s31, v11
    v_lshrrev_b32 v8, 5, v2
    v_mul_u32_u24 v8, {XS}, v8
    v_and_b32 v9, 31, v2
    v_lshl_add_u32 v8, v9, 4, v8
    v_add_u32 v8, s31, v8
    v_mov_b32 v44, 0
    v_mov_b32 v45, 0
    v_mov_b32 v46, 0
    v_mov_b32 v47, 0
    v_mov_b32 v58, s31
    ds_write_b128 v8, v[44:47] offset:{4*CS + 4096}
    s_waitcnt lgkmcnt(0)
    s_and_b32 s30, s18, 1
    s_lshl_b32 s30, s30, 4
    s_lshr_b32 s44, s44, s30
    s_and_b32 s44, s44, 0xffff
    v_mov_b32 v9, s44
    """)
    for w in range(4):
        k(f"v_cmp_eq_u32 vcc, 0, v{4+w}\nv_cndmask_b32 v{AD+w}, 0, v9, vcc")
    k(f"s_waitcnt vmcnt(0)\nds_write_b16 v58, v44 offset:{4*CS + 4094}")
    k.stamp(1)
    Y = lambda j: 8 + 4 * j
    def reads(i):
        buf = i & 1; out = []
        for x in range(8):
            out.append(("B", x, f"ds_read_b128 v[{B(buf,x)}:{B(buf,x)+3}], v57 offset:{3584-512*x+64*i}"))
            if (i, x) != (0, 0):
                out.append(("A", x, f"ds_read_b128 v[{A(buf,x)}:{A(buf,x)+3}], v56 offset:{64*(i-1)+512*x}"))
        return out
    ids = {}
    for kind, x, txt in reads(0): ids[(0, kind, x)] = k(txt)
    for j in range(8):
        k.wait(lg=ids[(0, "B", j)])
        k(f"v_mfma_f32_16x16x32_bf16 v[{Y(j)}:{Y(j)+3}], v[{AD}:{AD+3}], v[{B(0,j)}:{B(0,j)+3}], 0")
    k("s_waitcnt lgkmcnt(0)\ns_mov_b32 s30, 4")
    for rep in range(2):
        n0 = len(k.lines)
        if rep: k.label("L_conv_loop")
        for i in range(2):
            buf = i & 1
            nxt = reads(i + 1)
            order = sorted([(p, j) for p in range(8) for j in range(8 - p)], key=lambda t: (max(t), t[0] + t[1]))
            for n, (p, j) in enumerate(order):
                k.wait(lg=max(ids.get((i, "A", p), 0), ids[(i, "B", j)]))
                jp = p + j
                k(f"v_mfma_f32_16x16x32_bf16 v[{Y(jp)}:{Y(jp)+3}], v[{A(buf,p)}:{A(buf,p)+3}], v[{B(buf,j)}:{B(buf,j)+3}], v[{Y(jp)}:{Y(jp)+3}]")
                if n % 2 == 1 and nxt:
                    kind, x, txt = nxt.pop(0)
                    ids[((i + 1) & 1, kind, x)] = k(txt)
                if i == 1 and n == 32: k("v_add_u32 v56, 128, v56\nv_add_u32 v57, 128, v57")
                if i == 1 and n == 34: k("s_sub_u32 s30, s30, 1\ns_cmp_lg_u32 s30, 0")
            assert not nxt
        if not rep: del k.lines[n0:]
    k("s_cbranch_scc1 L_conv_loop\ns_waitcnt lgkmcnt(0)")
    k.stamp(2)
    k(f"""
    v_lshrrev_b32 v4, 3, v0
    v_and_b32 v4, 3, v4
    v_xor_b32 v4, v4, v0
    v_lshlrev_b32 v4, 4, v4
    v_add_u32 v5, {2*CH_LDS}, v4
    s_lshl_b32 s30, s3, 6
    v_lshlrev_b32 v6, 14, v0
    v_add_u32 v6, s30, v6
    """)
    for j in range(8): k(f"ds_write_b128 v59, v[{Y(j)}:{Y(j)+3}] offset:{512*j}")
    srd(k, 20, 14, MB4, WS_Y)
    k("""
    v_mov_b32 v49, 1
    s_mov_b64 exec, 1
    ds_add_u32 v48, v49
    s_mov_b64 exec, -1
    """)
    k.label("L_conv_spin")
    k("""
    ds_read_b32 v49, v48
    s_waitcnt lgkmcnt(0)
    v_readfirstlane_b32 s30, v49
    s_cmp_lt_u32 s30, 4
    s_cbranch_scc1 L_conv_spin
    """)
    CV = lambda c, r: 64 + 8 * c + 4 * r
    for c in range(4):
        for r in range(2):
            k(f"ds_read_b128 v[{CV(c,r)}:{CV(c,r)+3}], v{4 + (c>>1)} offset:{(c&1)*CH_LDS + 4096*r}")
    k("s_waitcnt lgkmcnt(0)")
    for t in range(8):
        for h in range(2):
            k(f"v_cvt_pk_bf16_f32 v{128+2*t+h}, v{CV(2*h,t&1)+(t>>1)}, v{CV(2*h+1,t&1)+(t>>1)}")
        if t & 1:
            k(f"buffer_store_dwordx4 v[{128+2*t-2}:{128+2*t+1}], v6, s[20:23], 0 offen offset:{8*(t-1)} {st_mod}")
    k.stamp(3); k.stamp_out(4)
    k("s_endpgm")
    k.label("L_conv_shuf")
    def extra():
        if tc:
            k.back = False
            k("v_and_b32 v5, 255, v0")
            touch_code(k, "ln1_kernel", "L_fin_kernel_end", 6, 7, v0=5, n=2)
    w1_shuffle(k, KT, CONV_LDS, w_mod, extra)
    finish(k)
    return (k, 192, 192), ("conv_kernel", 256, 512, CONV_LDS + 57344 + 16)

def gen_ln(name, mode, st_mod="sc1", tc=True):
    k = K(name); entry(k)
    k(f"""
    s_load_dwordx2 s[4:5], s[0:1], {ARG['out'] if mode == 'fin' else ARG['q']}
    s_load_dwordx2 s[6:7], s[0:1], {ARG['ws']}
    v_and_b32 v1, 7, v0
    v_lshrrev_b32 v2, 3, v0
    v_lshlrev_b32 v3, 11, v1
    v_lshl_add_u32 v3, v2, 4, v3
    v_lshlrev_b32 v4, 3, v1
    v_lshl_add_u32 v4, v2, 7, v4
    v_lshlrev_b32 v5, 4, v1
    v_lshl_add_u32 v5, v2, 8, v5
    s_lshl_b32 s3, s2, 14
    s_add_u32 s24, s3, 8192
    s_lshr_b32 s25, s2, 1
    s_lshl_b32 s25, s25, 15
    s_and_b32 s26, s2, 1
    s_lshl_b32 s26, s26, 7
    s_add_u32 s25, s25, s26
    s_add_u32 s26, s25, 16384
    s_waitcnt lgkmcnt(0)
    """)
    fs = ["s25", "s26"]
    srd(k, 16, 6, MB4, WS_XR)
    if mode == "first":
        srd(k, 8, 4, MB4)
        for i in range(2): lx = k(f"buffer_load_dwordx4 v[{8+4*i}:{11+4*i}], v3, s[8:11], s3 offen offset:{1024*i}")
    else:
        srd(k, 28, 6, MB4, WS_P0); srd(k, 32, 6, MB4, WS_P1)
        for i in range(2):
            k(f"buffer_load_dwordx4 v[{80+4*i}:{83+4*i}], v5, s[28:31], {fs[i]} offen")
            lp = k(f"buffer_load_dwordx4 v[{88+4*i}:{91+4*i}], v5, s[32:35], {fs[i]} offen")
        for i in range(2): lx = k(f"buffer_load_dwordx4 v[{8+4*i}:{11+4*i}], v5, s[16:19], {fs[i]} offen")
    if mode != "fin":
        srd(k, 12, 6, MB4, WS_Y)
        for i in range(2):
            for h in range(2):
                ly = k(f"buffer_load_dwordx2 v[{16+4*i+2*h}:{17+4*i+2*h}], v4, s[12:15], {'s24' if i else 's3'} offen offset:{64*h}")
        if tc:
            k.back = mode == "mid"
            touch_code(k, "g1a_kernel", "L_g1a_kernel_end", 96, 97)
        srd(k, 20, 6, MB4, WS_XN)
        k("""
        v_lshrrev_b32 v6, 6, v0
        v_lshlrev_b32 v6, 3, v6
        v_lshl_add_u32 v6, v1, 6, v6
        v_bfe_u32 v7, v0, 4, 1
        v_lshl_add_u32 v6, v7, 2, v6
        v_lshlrev_b32 v7, 6, v1
        """)
    else:
        srd(k, 8, 4, MB4)
    X = lambda e: 24 + e
    Yv = lambda e: 40 + e
    def unpack(dst, src):
        for e in range(16): unpk(k, dst(e), src + e // 2, e & 1)
    def stats(rnd):
        k(f"v_pk_add_f32 v[56:57], v[{X(0)}:{X(1)}], v[{X(2)}:{X(3)}]")
        k(f"v_pk_mul_f32 v[58:59], v[{X(0)}:{X(1)}], v[{X(0)}:{X(1)}]")
        for e in range(2, 16, 2):
            if e > 2: k(f"v_pk_add_f32 v[56:57], v[56:57], v[{X(e)}:{X(e+1)}]")
            k(f"v_pk_fma_f32 v[58:59], v[{X(e)}:{X(e+1)}], v[{X(e)}:{X(e+1)}], v[58:59]")
        k(f"""
        v_add_f32 v56, v56, v57
        v_add_f32 v58, v58, v59
        v_permlane16_swap_b32 v56, v58
        v_add_f32 v56, v56, v58
        v_add_f32_dpp v56, v56, v56 row_ror:8 row_mask:0xf bank_mask:0xf
        v_mov_b32 v57, v56
        v_permlane32_swap_b32 v56, v57
        v_add_f32 v56, v56, v57
        ds_write_b32 v6, v56 offset:{512*rnd}
        s_waitcnt lgkmcnt(0)
        s_barrier
        """)
        for i in range(4): k(f"ds_read_b128 v[{64+4*i}:{67+4*i}], v7 offset:{512*rnd+16*i}")
        k("s_waitcnt lgkmcnt(0)")
        for i in range(4): k(f"v_pk_add_f32 v[{64+4*i}:{65+4*i}], v[{64+4*i}:{65+4*i}], v[{66+4*i}:{67+4*i}]")
        k(f"""
        v_pk_add_f32 v[64:65], v[64:65], v[68:69]
        v_pk_add_f32 v[72:73], v[72:73], v[76:77]
        v_pk_add_f32 v[64:65], v[64:65], v[72:73]
        v_mul_f32 v64, {f32bits(1/1024):#x}, v64
        v_mul_f32 v65, {f32bits(1/1024):#x}, v65
        v_fma_f32 v65, -v64, v64, v65
        v_max_f32 v65, 0, v65
        v_cvt_pk_bf16_f32 v66, v64, v65
        v_lshlrev_b32 v64, 16, v66
        v_and_b32 v65, 0xffff0000, v66
        v_add_f32 v65, {f32bits(1e-5):#x}, v65
        v_cvt_pk_bf16_f32 v65, v65, v65
        v_lshlrev_b32 v65, 16, v65
        v_sqrt_f32 v65, v65
        v_cvt_pk_bf16_f32 v65, v65, v65
        v_lshlrev_b32 v65, 16, v65
        v_rcp_f32 v60, v65
        v_mov_b32 v61, v60
        v_mul_f32_e64 v62, -v64, v60
        v_mov_b32 v63, v62
        """)
    if mode != "first":
        k.wait(vm=lp)
        unpack(X, 80); unpack(Yv, 88)
        for e in range(0, 16, 2):
            k(f"v_pk_add_f32 v[{X(e)}:{X(e+1)}], v[{X(e)}:{X(e+1)}], v[{Yv(e)}:{Yv(e+1)}]")
        k.wait(vm=lx)
        unpack(Yv, 8)
        for e in range(0, 16, 2):
            k(f"v_pk_add_f32 v[{X(e)}:{X(e+1)}], v[{X(e)}:{X(e+1)}], v[{Yv(e)}:{Yv(e+1)}]")
            k(f"v_cvt_pk_bf16_f32 v{8+e//2}, v{X(e)}, v{X(e+1)}")
    k.wait(vm=lx); k.stamp(1)
    if mode == "fin":
        for i in range(2): k(f"buffer_store_dwordx4 v[{8+4*i}:{11+4*i}], v3, s[8:11], s3 offen offset:{1024*i} {st_mod}")
        k.stamp(2)
    else:
        unpack(X, 8)
        stats(0)
        k.wait(vm=ly); k.stamp(2)
        unpack(Yv, 16)
        for e in range(0, 16, 2):
            k(f"v_pk_fma_f32 v[64:65], v[{X(e)}:{X(e+1)}], v[60:61], v[62:63]")
            k(f"v_pk_fma_f32 v[{X(e)}:{X(e+1)}], v[64:65], v[{Yv(e)}:{Yv(e+1)}], v[{X(e)}:{X(e+1)}]")
            k(f"v_cvt_pk_bf16_f32 v{8+e//2}, v{X(e)}, v{X(e+1)}")
        for i in range(2): k(f"buffer_store_dwordx4 v[{8+4*i}:{11+4*i}], v5, s[16:19], {fs[i]} offen {st_mod}")
        unpack(X, 8)
        stats(1)
        for e in range(0, 16, 2):
            k(f"v_pk_fma_f32 v[{X(e)}:{X(e+1)}], v[{X(e)}:{X(e+1)}], v[60:61], v[62:63]")
            k(f"v_cvt_pk_bf16_f32 v{16+e//2}, v{X(e)}, v{X(e+1)}")
        for i in range(2): k(f"buffer_store_dwordx4 v[{16+4*i}:{19+4*i}], v5, s[20:23], {fs[i]} offen {st_mod}")
    k.stamp(3); k.stamp_out(4, 32)
    finish(k)
    return (k, 104, 104), (name, 256, 512, 1024)

def flag_set(k, sflag, soff, v):
    k.nl += 1; lab = f"L_{k.name}_fs{k.nl}"
    k(f"""
    s_waitcnt vmcnt(0)
    s_barrier
    s_cmp_lg_u32 s17, 0
    s_cbranch_scc1 {lab}
    v_mov_b32 v{v}, 1
    v_mov_b32 v{v+1}, 0
    s_mov_b64 exec, 1
    buffer_store_dword v{v}, v{v+1}, s[{sflag}:{sflag+3}], s{soff} offen sc1
    s_mov_b64 exec, -1
    """)
    k.label(lab)

def flag_wait(k, sflag, soff, n, v, vlane, stmp):
    k.nl += 1; lab = f"L_{k.name}_fw{k.nl}"
    k(f"""
    s_cmp_lg_u32 s17, 0
    s_cbranch_scc1 {lab}_done
    v_and_b32 v{v+1}, {n - 1}, v{vlane}
    v_lshlrev_b32 v{v+1}, 2, v{v+1}
    s_mov_b32 s{stmp}, 0x40000
    """)
    k.label(lab)
    k(f"""
    buffer_load_dword v{v}, v{v+1}, s[{sflag}:{sflag+3}], s{soff} offen sc1
    s_sub_u32 s{stmp}, s{stmp}, 1
    s_cbranch_scc1 {lab}_done
    s_waitcnt vmcnt(0)
    v_cmp_eq_u32 vcc, 0, v{v}
    s_cbranch_vccnz {lab}
    """)
    k.label(lab + "_done")
    k("s_waitcnt vmcnt(0)\ns_barrier")

class LN4:
    def __init__(self, k, b, sb, vtid, srow, sws):
        self.k, self.b, self.sb, self.vtid, self.srow, self.sws = k, b, sb, vtid, srow, sws
        self.A = b; self.XP = b + 8; self.YP = b + 24; self.P0 = b + 40; self.P1 = b + 56
        self.X = b + 72; self.Y = b + 104; self.T = b + 136; self.end = b + 160
    def setup(self):
        k, A, sb, t = self.k, self.A, self.sb, self.vtid
        k(f"""
        v_and_b32 v{A+5}, 7, v{t}
        v_lshrrev_b32 v{A+6}, 3, v{t}
        v_lshlrev_b32 v{A}, 11, v{A+5}
        v_lshl_add_u32 v{A}, v{A+6}, 4, v{A}
        v_lshlrev_b32 v{A+1}, 3, v{A+5}
        v_lshl_add_u32 v{A+1}, v{A+6}, 7, v{A+1}
        v_lshlrev_b32 v{A+2}, 4, v{A+5}
        v_lshl_add_u32 v{A+2}, v{A+6}, 8, v{A+2}
        v_lshrrev_b32 v{A+3}, 6, v{t}
        v_lshlrev_b32 v{A+3}, 3, v{A+3}
        v_lshl_add_u32 v{A+3}, v{A+5}, 5, v{A+3}
        v_bfe_u32 v{A+4}, v{t}, 4, 1
        v_lshl_add_u32 v{A+3}, v{A+4}, 2, v{A+3}
        v_lshlrev_b32 v{A+4}, 5, v{A+5}
        s_lshl_b32 s{sb}, s{self.srow}, 14
        s_lshr_b32 s{sb+4}, s{self.srow}, 1
        s_lshl_b32 s{sb+4}, s{sb+4}, 15
        s_and_b32 s{sb+5}, s{self.srow}, 1
        s_lshl_b32 s{sb+5}, s{sb+5}, 7
        s_add_u32 s{sb+4}, s{sb+4}, s{sb+5}
        """)
        for i in range(1, 4):
            k(f"s_add_u32 s{sb+i}, s{sb}, {4096*i}\ns_add_u32 s{sb+4+i}, s{sb+4}, {8192*i}")
    def frag_io(self, op, reg, off, mod=""):
        k, sb = self.k, self.sb
        srd(k, sb + 8, self.sws, MB4, off)
        for i in range(4):
            x = k(f"buffer_{op}_dwordx4 v[{reg+4*i}:{reg+4*i+3}], v{self.A+2}, s[{sb+8}:{sb+11}], s{sb+4+i} offen {mod}")
        return x
    def row_io(self, op, reg, sptr, mod=""):
        k, sb = self.k, self.sb
        srd(k, sb + 8, sptr, MB4)
        for i in range(4):
            x = k(f"buffer_{op}_dwordx4 v[{reg+4*i}:{reg+4*i+3}], v{self.A}, s[{sb+8}:{sb+11}], s{sb} offen offset:{512*i} {mod}")
        return x
    def load_y(self, mod=""):
        k, sb = self.k, self.sb
        srd(k, sb + 8, self.sws, MB4, WS_Y)
        for i in range(4):
            for h in range(2):
                r = self.YP + 4 * i + 2 * h
                x = k(f"buffer_load_dwordx2 v[{r}:{r+1}], v{self.A+1}, s[{sb+8}:{sb+11}], s{sb+i} offen offset:{64*h} {mod}")
        return x
    def unpack(self, dst, src):
        for e in range(32): unpk(self.k, dst + e, src + e // 2, e & 1)
    def add_partials(self):
        k, X, T = self.k, self.X, self.T
        for e in range(0, 32, 2):
            unpk(k, T, self.P0 + e // 2, 0); unpk(k, T + 1, self.P0 + e // 2, 1)
            unpk(k, T + 2, self.P1 + e // 2, 0); unpk(k, T + 3, self.P1 + e // 2, 1)
            k(f"v_pk_add_f32 v[{T}:{T+1}], v[{T}:{T+1}], v[{T+2}:{T+3}]")
            k(f"v_pk_add_f32 v[{X+e}:{X+e+1}], v[{X+e}:{X+e+1}], v[{T}:{T+1}]")
            k(f"v_cvt_pk_bf16_f32 v{self.XP+e//2}, v{X+e}, v{X+e+1}")
    def stats(self, lds):
        k, X, T, A = self.k, self.X, self.T, self.A
        k(f"v_pk_add_f32 v[{T}:{T+1}], v[{X}:{X+1}], v[{X+2}:{X+3}]")
        k(f"v_pk_mul_f32 v[{T+2}:{T+3}], v[{X}:{X+1}], v[{X}:{X+1}]")
        for e in range(2, 32, 2):
            if e > 2: k(f"v_pk_add_f32 v[{T}:{T+1}], v[{T}:{T+1}], v[{X+e}:{X+e+1}]")
            k(f"v_pk_fma_f32 v[{T+2}:{T+3}], v[{X+e}:{X+e+1}], v[{X+e}:{X+e+1}], v[{T+2}:{T+3}]")
        R = T + 8
        k(f"""
        v_add_f32 v{T}, v{T}, v{T+1}
        v_add_f32 v{T+2}, v{T+2}, v{T+3}
        v_permlane16_swap_b32 v{T}, v{T+2}
        v_add_f32 v{T}, v{T}, v{T+2}
        v_add_f32_dpp v{T}, v{T}, v{T} row_ror:8 row_mask:0xf bank_mask:0xf
        v_mov_b32 v{T+1}, v{T}
        v_permlane32_swap_b32 v{T}, v{T+1}
        v_add_f32 v{T}, v{T}, v{T+1}
        ds_write_b32 v{A+3}, v{T} offset:{lds}
        s_waitcnt lgkmcnt(0)
        s_barrier
        ds_read_b128 v[{R}:{R+3}], v{A+4} offset:{lds}
        ds_read_b128 v[{R+4}:{R+7}], v{A+4} offset:{lds+16}
        s_waitcnt lgkmcnt(0)
        v_pk_add_f32 v[{R}:{R+1}], v[{R}:{R+1}], v[{R+2}:{R+3}]
        v_pk_add_f32 v[{R+4}:{R+5}], v[{R+4}:{R+5}], v[{R+6}:{R+7}]
        v_pk_add_f32 v[{R}:{R+1}], v[{R}:{R+1}], v[{R+4}:{R+5}]
        v_mul_f32 v{R}, {f32bits(1/1024):#x}, v{R}
        v_mul_f32 v{R+1}, {f32bits(1/1024):#x}, v{R+1}
        v_fma_f32 v{R+1}, -v{R}, v{R}, v{R+1}
        v_max_f32 v{R+1}, 0, v{R+1}
        v_cvt_pk_bf16_f32 v{R+2}, v{R}, v{R+1}
        v_lshlrev_b32 v{R}, 16, v{R+2}
        v_and_b32 v{R+1}, 0xffff0000, v{R+2}
        v_add_f32 v{R+1}, {f32bits(1e-5):#x}, v{R+1}
        v_cvt_pk_bf16_f32 v{R+1}, v{R+1}, v{R+1}
        v_lshlrev_b32 v{R+1}, 16, v{R+1}
        v_sqrt_f32 v{R+1}, v{R+1}
        v_cvt_pk_bf16_f32 v{R+1}, v{R+1}, v{R+1}
        v_lshlrev_b32 v{R+1}, 16, v{R+1}
        v_rcp_f32 v{T+4}, v{R+1}
        v_mov_b32 v{T+5}, v{T+4}
        v_mul_f32_e64 v{T+6}, -v{R}, v{T+4}
        v_mov_b32 v{T+7}, v{T+6}
        """)
    def gate(self):
        k, X, Y, T = self.k, self.X, self.Y, self.T
        for e in range(0, 32, 2):
            k(f"v_pk_fma_f32 v[{T}:{T+1}], v[{X+e}:{X+e+1}], v[{T+4}:{T+5}], v[{T+6}:{T+7}]")
            k(f"v_pk_fma_f32 v[{X+e}:{X+e+1}], v[{T}:{T+1}], v[{Y+e}:{Y+e+1}], v[{X+e}:{X+e+1}]")
            k(f"v_cvt_pk_bf16_f32 v{self.XP+e//2}, v{X+e}, v{X+e+1}")
    def norm(self, dst):
        k, X, T = self.k, self.X, self.T
        for e in range(0, 32, 2):
            k(f"v_pk_fma_f32 v[{X+e}:{X+e+1}], v[{X+e}:{X+e+1}], v[{T+4}:{T+5}], v[{T+6}:{T+7}]")
            k(f"v_cvt_pk_bf16_f32 v{dst+e//2}, v{X+e}, v{X+e+1}")

def ablate(k, abl):
    out = []; seen = False
    for l in k.lines:
        s = l.strip()
        if s == "s_barrier":
            if "nobar" in abl and seen: continue
            seen = True
        if "nomfma" in abl and s.startswith("v_mfma"): continue
        if "nods" in abl and s.startswith("ds_read"): continue
        if "novm" in abl and seen and s.startswith("buffer_load"): continue
        if "novm" in abl and seen and s.startswith("s_waitcnt vmcnt") and "vmcnt(0)" not in s:
            l = l.replace(s.split()[1] + " ", "") if "lgkm" in s else "    s_nop 0"
        out.append(l)
    k.lines = out

def gen_gemm(name, kind, KT=14, NS=10, RW=8, la_bar=5, la=32, rate=0.7, st_mod="sc1", quiet=40, abl="", xm=4, tc=True, wgran=2, pk=False, own_touch=110, fuse=False):
    G1 = kind == 1
    shuf = G1
    k = K(name)
    if G1:
        k("s_movk_i32 s62, 896")
        k.label("L_g1_body")
    elif fuse:
        k("s_mov_b32 s62, 0")
        k.label("L_g2_body")
    entry(k)
    NT = 4 if G1 else 2
    NU = 32 if G1 else 56
    NG = 14 if G1 else 8
    RING = KT if G1 else 14
    AW = lambda i: 4 * (i % RW)
    AT = lambda u, t: 4 * RW + 4 * ((u % RING) * NT + t)
    nacc = NG * NT * 4
    VD, VTOK, VST, VC2 = nacc, nacc + 1, nacc + 2, nacc + 3
    VR = nacc + 4
    VS = nacc + 7
    TMP = nacc + 12
    NTILE = 32 if G1 else 16
    tstride = 32768 if G1 else TBH
    k(f"""
    s_load_dwordx2 s[8:9], s[0:1], {ARG['ws']}
    s_load_dwordx4 s[4:7], s[0:1], {ARG['wd']}
    v_lshrrev_b32 v1, 6, v0
    v_and_b32 v2, 63, v0
    v_readfirstlane_b32 s17, v1
    s_and_b32 s3, s2, 7
    s_lshr_b32 s16, s2, 3
    """)
    if G1:
        k(f"""
        s_and_b32 s18, s3, {8 // xm - 1}
        s_mul_i32 s18, s18, {xm}
        s_and_b32 s19, s16, {xm - 1}
        s_add_u32 s18, s18, s19
        s_lshr_b32 s19, s3, {lg(8 // xm)}
        s_mul_i32 s19, s19, {32 // xm}
        s_lshr_b32 s16, s16, {lg(xm)}
        s_add_u32 s19, s19, s16
        s_lshl_b32 s30, s18, 4
        s_lshl_b32 s16, s17, 2
        s_add_u32 s30, s30, s16
        s_lshl_b32 s34, s30, 15
        """)
    else:
        k(f"""
        s_lshr_b32 s18, s3, 1
        s_lshl_b32 s18, s18, 2
        s_and_b32 s19, s16, 3
        s_add_u32 s18, s18, s19
        s_and_b32 s28, s3, 1
        s_lshl_b32 s19, s28, 3
        s_lshr_b32 s29, s16, 2
        s_add_u32 s19, s19, s29
        s_lshl_b32 s30, s18, 3
        s_lshl_b32 s16, s17, 1
        s_add_u32 s30, s30, s16
        s_mul_i32 s34, s30, {TBH}
        s_mul_i32 s16, s28, {56*1024}
        s_add_u32 s34, s34, s16
        """)
    k(f"""
    s_mul_i32 s33, s19, {448*1024}
    s_lshl_b32 s31, s17, 12
    s_add_u32 s33, s33, s31
    v_lshlrev_b32 v{VR}, 4, v2
    v_add_u32 v{VD}, s33, v{VR}
    v_add_u32 v{VTOK}, s34, v{VR}
    s_waitcnt lgkmcnt(0)
    """)
    srd(k, 20, 8, NTILE * 448 * 1024, WS_W1 if G1 else WS_W2)
    if G1: srd(k, 24, 8, MB4, WS_XN)
    else: srd(k, 24, 8, H_BYTES, WS_H)
    tok_base = [None] * NT
    st = {"s": None}
    def dma(s, i):
        pre_ = []
        if st["s"] != s:
            pre_ = [f"s_add_u32 m0, s31, {(s % NS) * 16384}", f"s_mov_b32 s36, {s * 16384}"]; st["s"] = s
        return pre_ + [f"buffer_load_dwordx4 v{VD}, s[20:23], s36 offen offset:{1024*i} lds"]
    def tok(u, t):
        off = u * 1024; pre_ = []
        if tok_base[t] is None or off - tok_base[t] > 4095:
            tok_base[t] = off & ~4095
            pre_ = [f"s_mov_b32 s{40+t}, {t * tstride + tok_base[t]}"]
        return pre_ + [f"buffer_load_dwordx4 a[{AT(u,t)}:{AT(u,t)+3}], v{VTOK}, s[24:27], s{40+t} offen offset:{off - tok_base[t]}"]

    KM = NU - KT if G1 else NU
    groups = [(u, g) for u in range(KM) for g in range(NG)]
    tail_start = len(groups)
    if G1:
        for b in range(7):
            for u in range(KM, NU): groups += [(u, b), (u, 7 + b)]
    GPB = 2 * KT
    NGR = len(groups); assert NGR == 448
    first_use = {}; last_use = {}
    for i, (u, g) in enumerate(groups):
        first_use.setdefault(u, i); last_use[u] = i
    bars = {16 * s - la_bar: s for s in range(1, 28)}
    items = [(16 * s - la_bar, "W", s, i) for s in range(28) for i in range(4)]
    items += [(first_use[u], "T", u, t) for u in range(NU) for t in range(NT)]
    items.sort(key=lambda x: x[0])
    def earliest(it):
        if it[1] == "W": return 0 if it[2] < NS else 16 * (it[2] - NS + 2) - la_bar
        return 0 if it[2] < RING else last_use[it[2] - RING] + 1
    nxt_t = 1e9; sched = []
    for it in reversed(items):
        nxt_t = min(it[0] - la, nxt_t - 1.0 / rate)
        sched.append((max(nxt_t, earliest(it) or -1e9),) + it[1:])
    items = sorted(reversed(sched), key=lambda x: x[0])
    if G1:
        last_t = max(x[0] for x in items if x[1] == "T"); prev = last_t
        for n_, it in enumerate(items):
            if it[0] > last_t:
                prev = max(prev + 2.0, earliest(it)); items[n_] = (min(it[0], prev),) + it[1:]
    w_id = {}; t_id = {}
    def lines(it):
        return dma(it[2], it[3]) if it[1] == "W" else tok(it[2], it[3])
    def record(it, i):
        if it[1] == "W": w_id[it[2]] = i
        else: t_id[(it[2], it[3])] = i
    while items and items[0][0] < 0:
        it = items.pop(0); record(it, k("\n".join(lines(it))))
    k(f"v_add_u32 v{VR+1}, 0x10000, v{VR}\nv_add_u32 v{VR+2}, 0x20000, v{VR}\nv_mov_b32 v{VS+4}, v0")
    c1 = -2 * math.sqrt(2 / math.pi) * math.log2(math.e)
    if G1:
        srd(k, 12, 8, H_BYTES, WS_H)
        k(f"""
        s_mul_i32 s35, s30, {TBH}
        s_mul_i32 s16, s19, {7*512}
        s_add_u32 s44, s35, s16
        s_add_u32 s45, s44, {2*TBH}
        v_lshrrev_b32 v5, 5, v2
        v_and_b32 v6, 31, v2
        v_lshlrev_b32 v6, 4, v6
        v_mul_u32_u24 v7, {TBH}, v5
        v_add_u32 v{VST}, v7, v6
        v_mov_b32 v{VC2}, {f32bits(c1*0.044715):#x}
        v_mov_b32 v{TMP+4}, v{VC2}
        v_mov_b32 v{TMP+5}, v{VC2}
        v_mov_b32 v{TMP+6}, {f32bits(c1):#x}
        v_mov_b32 v{TMP+7}, v{TMP+6}
        """)
    else:
        k(f"""
        s_mul_i32 s16, s28, {WS_P1 - WS_P0}
        s_add_u32 s16, s16, {WS_P0}
        s_add_u32 s12, s8, s16
        s_addc_u32 s13, s9, 0
        s_mov_b32 s14, {MB4}
        s_mov_b32 s15, 0x20000
        s_lshl_b32 s44, s30, 15
        s_lshl_b32 s16, s29, 12
        s_add_u32 s44, s44, s16
        s_add_u32 s45, s44, 32768
        """)
    if shuf:
        k(f"""
        s_lshl_b32 s46, s2, 2
        s_add_u32 s46, s46, s17
        s_lshr_b32 s47, s46, 3
        s_and_b32 s48, s46, 7
        s_cmp_lt_u32 s46, s62
        s_cselect_b32 s54, {W_BYTES}, 0
        s_cselect_b32 s58, {W_BYTES}, 0
        s_mov_b32 s52, s4
        s_mov_b32 s53, s5
        s_mov_b32 s55, 0x20000
        s_add_u32 s56, s8, {WS_W2}
        s_addc_u32 s57, s9, 0
        s_mov_b32 s59, 0x20000
        s_lshl_b32 s49, s47, 16
        s_lshl_b32 s50, s48, 8
        s_add_u32 s49, s49, s50
        s_cmp_ge_u32 s47, 56
        s_cselect_b32 s50, {8*448 - 56*8}, 0
        s_mul_i32 s51, s48, 448
        s_add_u32 s50, s50, s51
        s_lshl_b32 s51, s47, 3
        s_add_u32 s50, s50, s51
        s_lshl_b32 s50, s50, 10
        s_add_u32 s51, s50, 4096
        v_lshrrev_b32 v3, 4, v2
        v_and_b32 v4, 15, v2
        v_lshlrev_b32 v4, 4, v4
        v_lshl_add_u32 v{VS}, v3, 11, v4
        v_lshrrev_b32 v3, 5, v2
        v_lshlrev_b32 v3, 4, v3
        v_bfe_u32 v4, v2, 2, 3
        v_add_u32 v3, v3, v4
        v_lshlrev_b32 v3, 8, v3
        v_and_b32 v4, 3, v2
        v_lshl_add_u32 v3, v4, 4, v3
        s_lshl_b32 s60, s17, 13
        """)
    acc = lambda g, t: (g * NT + t) * 4
    def rd(i):
        off = ((i // 16) % NS) * 16384 + (i % 16) * 1024
        return f"ds_read_b128 a[{AW(i)}:{AW(i)+3}], v{VR + off // 65536} offset:{off % 65536}"
    def gelu4(G, U, P):
        T = [TMP + e for e in range(4)]
        o = [f"v_mul_f32 v{T[e]}, v{G+e}, v{G+e}" for e in range(4)]
        o += [f"v_fmaak_f32 v{T[e]}, v{VC2}, v{T[e]}, {f32bits(c1):#x}" for e in range(4)]
        o += [f"v_mul_f32 v{T[e]}, v{T[e]}, v{G+e}" for e in range(4)]
        for e in range(4): o += [f"v_exp_f32 v{T[e]}, v{T[e]}", f"v_mul_f32 v{U+e}, v{U+e}, v{G+e}"]
        o += [f"v_add_f32 v{T[e]}, 1.0, v{T[e]}" for e in range(4)]
        o += [f"v_rcp_f32 v{T[e]}, v{T[e]}" for e in range(4)]
        o += [f"v_mul_f32 v{U+e}, v{U+e}, v{T[e]}" for e in range(4)]
        o += [f"v_cvt_pk_bf16_f32 v{P}, v{U}, v{U+1}", f"v_cvt_pk_bf16_f32 v{P+1}, v{U+2}, v{U+3}"]
        return o
    def gelu4pk(G, U, P):
        T = TMP
        o = [f"v_pk_mul_f32 v[{T+e}:{T+e+1}], v[{G+e}:{G+e+1}], v[{G+e}:{G+e+1}]" for e in (0, 2)]
        o += [f"v_pk_fma_f32 v[{T+e}:{T+e+1}], v[{T+e}:{T+e+1}], v[{TMP+4}:{TMP+5}], v[{TMP+6}:{TMP+7}]" for e in (0, 2)]
        o += [f"v_pk_mul_f32 v[{T+e}:{T+e+1}], v[{T+e}:{T+e+1}], v[{G+e}:{G+e+1}]" for e in (0, 2)]
        for e in (0, 2):
            o += [f"v_exp_f32 v{T+e}, v{T+e}", f"v_exp_f32 v{T+e+1}, v{T+e+1}", f"v_pk_mul_f32 v[{U+e}:{U+e+1}], v[{U+e}:{U+e+1}], v[{G+e}:{G+e+1}]"]
        o += [f"v_pk_add_f32 v[{T+e}:{T+e+1}], v[{T+e}:{T+e+1}], 1.0 op_sel_hi:[1,0]" for e in (0, 2)]
        o += [f"v_rcp_f32 v{T+e}, v{T+e}" for e in range(4)]
        o += [f"v_pk_mul_f32 v[{U+e}:{U+e+1}], v[{U+e}:{U+e+1}], v[{T+e}:{T+e+1}]" for e in (0, 2)]
        o += [f"v_cvt_pk_bf16_f32 v{P}, v{U}, v{U+1}", f"v_cvt_pk_bf16_f32 v{P+1}, v{U+2}, v{U+3}"]
        return o
    gelu_s = gelu4
    def epilogue(b):
        o = []
        gelu4 = gelu4pk if (pk or b == 6) else gelu_s
        for t in range(2):
            a = acc(b, 2 * t)
            o += gelu4(a, acc(7 + b, 2 * t), a) + gelu4(acc(b, 2 * t + 1), acc(7 + b, 2 * t + 1), a + 2)
            o += [f"v_permlane32_swap_b32 v{a}, v{a+2}", f"v_permlane32_swap_b32 v{a+1}, v{a+3}"]
            o.append(f"buffer_store_dwordx4 v[{a}:{a+3}], v{VST}, s[12:15], s{44+t} offen offset:{512*b} {st_mod}")
        return o
    cost = lambda s: 2 if s.startswith(("v_exp", "v_rcp")) else 1

    if shuf:
        free = [s % NS for s in range(28, 30)]
        assert free[1] == free[0] + 1
        k(f"s_add_u32 s60, s60, {free[0] * 16384}\nv_add_u32 v{VS+1}, s60, v3")
        shuf_at = 16 * (29 - NS + 2) - la_bar
    k.stamp(1)
    k.wait(vm=w_id[0]); k("s_barrier")
    k.stamp(2)
    published = 0; r_id = {}; rp = 0
    while rp < RW - 2:
        r_id[rp] = k(rd(rp)); rp += 1
    touch_at = 300
    credit = 0.0; seen = set(); epi = []; epi_rate = 0.0; epi_credit = 0.0
    q = []
    held = []
    shuf_state = 0; quiet_end = None; sh_ld = None
    for i, (u, g) in enumerate(groups):
        if i == tail_start or (not G1 and i == 224): k.stamp(3)
        if i in bars:
            pub = bars[i]
            assert not any(it[1] == "W" and it[2] <= pub for it in items)
            while any(c is not None and c[0] == "V" and c[1][1] == "W" and c[1][2] <= pub for _, c in q):
                t_, c = q.pop(0); id_ = k(t_)
                if c: (record(c[1], id_) if c[0] == "V" else r_id.__setitem__(c[1], id_))
            k.wait(vm=w_id[pub]); k("s_barrier"); published = pub
        n = 0
        while rp < NGR and rp <= i + RW - 2 and rp // 16 <= published and n < 2:
            q.append((rd(rp), ("R", rp))); rp += 1; n += 1
        if items and items[0][0] <= i:
            it = items.pop(0); ls = lines(it)
            q += [(x, None) for x in ls[:-1]] + [(ls[-1], ("V", it))]
        if tc and G1 and i == own_touch:
            k.back = False
            touch_code(k, "L_g1_half", "L_g1a_kernel_end", VS + 2, VS + 3, v0=VS + 4)
        if G1 and i == 200: k.label("L_g1_half")
        if tc and i == touch_at:
            n0 = len(k.lines); k.back = False
            touch_code(k, "g2_kernel" if G1 else "ln2_kernel", "L_fin_kernel_end", VS + 2, VS + 3, v0=VS + 4)
        if shuf and shuf_state == 0 and not items and i >= shuf_at:
            for j in range(8):
                q.append((f"s_add_u32 m0, s60, {1024*j}", None))
                q.append((f"s_add_u32 s61, s49, {8192*j}", None))
                q.append((f"buffer_load_dwordx4 v{VS}, s[52:55], s61 offen lds", ("S",)))
            shuf_state = 1; quiet_end = i + quiet
        if shuf_state == 1 and i >= quiet_end:
            q += [(x, None) for x in held]; held = []
            shuf_state = 2
        if G1 and i >= tail_start + GPB and (i - tail_start) % GPB == 0:
            assert not epi, len(epi)
            epi = epilogue((i - tail_start) // GPB - 1)
            epi_rate = sum(map(cost, epi)) / (GPB * NT - 6); epi_credit = -3 * epi_rate
        for t in range(NT):
            while i not in r_id or (u, t) not in t_id:
                t_, c = q.pop(0); id_ = k(t_)
                if c and c[0] == "V": record(c[1], id_)
                elif c and c[0] == "R": r_id[c[1]] = id_
                elif c: sh_ld = id_
            lgw = r_id[i]
            if lgw > k.lg_done:
                for j in range(1, wgran):
                    if i + j in r_id and k.nlg - r_id[i + j] >= 2: lgw = r_id[i + j]
            vmw = t_id[(u, t)]
            if vmw > k.vm_done and i > 28 and (u, NT - 1) in t_id: vmw = t_id[(u, NT - 1)]
            k.wait(vm=vmw, lg=lgw)
            a = acc(g, t)
            c = f"v[{a}:{a+3}]" if (g, t) in seen else "0"
            seen.add((g, t))
            k(f"v_mfma_f32_16x16x32_bf16 v[{a}:{a+3}], a[{AW(i)}:{AW(i)+3}], a[{AT(u,t)}:{AT(u,t)+3}], {c}")
            budget = 2
            nq = 1 if len(q) <= (NT - t) + 2 else 2
            for _ in range(nq):
                if q:
                    t_, c = q.pop(0); id_ = k(t_); budget -= 1
                    if c and c[0] == "V": record(c[1], id_)
                    elif c and c[0] == "R": r_id[c[1]] = id_
                    elif c: sh_ld = id_
            epi_credit += epi_rate
            while epi and epi_credit >= cost(epi[0]) - 1e-9 and (budget >= cost(epi[0]) or epi_credit >= 3):
                x = epi.pop(0); epi_credit -= cost(x); budget -= cost(x)
                if x.startswith("buffer_store") and shuf_state == 1: held.append(x)
                else: k(x)
    assert not items and not epi and not q and not held, (len(items), len(epi), len(q), len(held))
    k.stamp(4)
    if shuf:
        assert shuf_state == 2
        k("s_cmp_eq_u32 s54, 0\ns_cbranch_scc1 L_g1_noshuf")
        k.wait(vm=sh_ld)
        rid = []
        for wb in range(8):
            off = (wb >> 1) * 64 + (wb & 1) * 8
            k(f"ds_read_b64_tr_b16 a[{4*wb}:{4*wb+1}], v{VS+1} offset:{off}")
            rid.append(k(f"ds_read_b64_tr_b16 a[{4*wb+2}:{4*wb+3}], v{VS+1} offset:{off + 2048}"))
        for wb in range(8):
            k.wait(lg=rid[wb])
            k(f"buffer_store_dwordx4 a[{4*wb}:{4*wb+3}], v{VR}, s[56:59], s{50 + wb//4} offen offset:{1024*(wb&3)} {st_mod}")
        k.label("L_g1_noshuf")
        k("s_nop 4")
        for x in epilogue(6): k(x)
    else:
        if fuse:
            ln = LN4(k, TMP + 4, 48, VS + 4, 46, 8)
        for p in range(4):
            for t in range(2):
                a = acc(2 * p, t); b = acc(2 * p + 1, t)
                k(f"""
                v_cvt_pk_bf16_f32 v{a}, v{a}, v{a+1}
                v_cvt_pk_bf16_f32 v{a+1}, v{a+2}, v{a+3}
                v_cvt_pk_bf16_f32 v{a+2}, v{b}, v{b+1}
                v_cvt_pk_bf16_f32 v{a+3}, v{b+2}, v{b+3}
                buffer_store_dwordx4 v[{a}:{a+3}], v{VR}, s[12:15], s{44+t} offen offset:{1024*p} {st_mod}
                """)
    top = TMP + 12
    if fuse and not G1:
        srd(k, 36, 8, 16384, WS_FLAG)
        k("s_lshl_b32 s40, s62, 11\ns_lshl_b32 s41, s18, 7\ns_add_u32 s40, s40, s41\ns_lshl_b32 s41, s19, 2\ns_add_u32 s41, s41, s40")
        k("s_lshl_b32 s46, s18, 4\ns_add_u32 s46, s46, s19")
        ln.setup()
        flag_set(k, 36, 41, TMP)
        k.stamp(1)
        ln.frag_io("load", ln.XP, WS_XR)
        k("s_cmp_lg_u32 s62, 0\ns_cbranch_scc1 L_g2_noy")
        ln.load_y()
        k.label("L_g2_noy")
        flag_wait(k, 36, 40, 16, TMP, VS + 4, 42)
        k.stamp(2)
        ln.frag_io("load", ln.P0, WS_P0, "sc1"); ln.frag_io("load", ln.P1, WS_P1, "sc1")
        ln.unpack(ln.X, ln.XP); ln.unpack(ln.Y, ln.YP)
        k("s_waitcnt vmcnt(0)")
        k.stamp(3)
        ln.add_partials()
        k("s_cmp_eq_u32 s62, 0\ns_cbranch_scc1 L_g2_mid")
        ln.row_io("store", ln.XP, 6, st_mod)
        k("s_branch L_g2_out")
        k.label("L_g2_mid")
        if tc:
            k.back = True
            touch_code(k, "g1a_kernel", "L_g1a_kernel_end", TMP, TMP + 1, v0=VS + 4)
        ln.unpack(ln.X, ln.XP)
        ln.stats(0); ln.gate()
        ln.frag_io("store", ln.XP, WS_XR, st_mod)
        ln.unpack(ln.X, ln.XP)
        ln.stats(256); ln.norm(ln.P0)
        ln.frag_io("store", ln.P0, WS_XN, st_mod)
        k.label("L_g2_out")
        top = ln.end
    k.stamp_out(5, TMP)
    ablate(k, abl)
    finish(k)
    nv = -(-top // 8) * 8
    na = 4 * RW + 4 * RING * NT
    assert nv <= 256 and na <= 256
    return (k, nv + na, nv), (name, 256, 256, NS * 16384)

HEADER = open("interleave_layers__ssm_conv_h3__glu_gated_geglu__prompt.s.ref").read().split("; Override launch")[0]

def build(path, g1={}, g2={}, conv={}, ln={}, kv={}, stamps=False, only=None, order=None, empties=0, ws={}):
    STAMPS[0] = stamps
    set_ws(**ws)
    KT = g1.get("KT", 14)
    g1a = gen_gemm("g1a_kernel", 1, **g1)
    kb = K("g1b_kernel"); kb("s_mov_b32 s62, 0\ns_branch L_g1_body")
    g1b = ((kb,) + g1a[0][1:], ("g1b_kernel",) + g1a[1][1:])
    g2k = gen_gemm("g2_kernel", 2, **g2)
    seq = [gen_kv(**kv), gen_conv(KT, **conv), gen_ln("ln1_kernel", "first", **ln), g1a, g2k,
           gen_ln("ln2_kernel", "mid", **ln), g1b, g2k, gen_ln("fin_kernel", "fin", **ln)]
    ks = [seq[i][0] for i in (0, 1, 2, 6, 3, 4, 5, 8)]
    if g2.get("fuse"):
        k2 = K("g2b_kernel"); k2("s_mov_b32 s62, 1\ns_branch L_g2_body")
        g2b = ((k2,) + g2k[0][1:], ("g2b_kernel",) + g2k[1][1:])
        ks.insert(3, g2b[0])
        seq = seq[:5] + [g1b, g2b]
    if stamps == 2:
        k2 = K("g2b_kernel"); k2("s_branch L_g2_body")
        g2k[0][0].lines.insert(0, "L_g2_body:")
        seq[7] = ((k2,) + g2k[0][1:], ("g2b_kernel",) + g2k[1][1:]); ks.insert(3, seq[7][0])
        for i_, (kk, _) in enumerate(seq): kk[0].lines.insert(0, f"    s_mov_b32 s71, {i_}")
    if only: seq = seq[:only]
    if order: seq = [seq[i] for i in order]
    if empties:
        ke = K("nop_kernel"); ke("s_endpgm")
        ks.append((ke, 8, 8)); seq += [(None, ("nop_kernel", 256, 256, 0))] * empties
    txt = module(HEADER, [l for _, l in seq], ks)
    txt = "\n".join(l.strip() if l.startswith("    ") else l for l in txt.split("\n"))
    open(path, "w").write(txt)
    return {kk[0].name: (len(kk[0].lines), kk[0].padded) for kk in ks}

if __name__ == "__main__":
    print(build("v2.s"))
    build("v2s.s", stamps=True)
```

```python
from v2 import *
G1 = dict(quiet=10); G2 = dict(la=32, rate=0.55)
build("o_0.s", g1=G1, g2=G2)
build("o_1.s", g1=G1, g2=dict(G2, fuse=True))
build("o_2.s", g1=G1, g2=G2, order=[0,1,2,0,1,2,3,4,5,6,7,8])
build("o_3.s", g1=G1, g2=G2, order=[0,1,2,3,3,4,4,5,6,7,8], ws=dict(reuse=False))
build("o_4.s", g1=dict(quiet=40), g2=G2, kv=dict(touch=("ssm","q")))
```

```python
from v2 import *
G1 = dict(quiet=10); G2 = dict(la=32, rate=0.55)
print(build("f_0.s", g1=G1, g2=G2, stamps=True))
print(build("f_1.s", g1=G1, g2=dict(G2, fuse=True), stamps=True))
build("o_0.s", g1=G1, g2=G2)
build("o_1.s", g1=G1, g2=dict(G2, fuse=True))
```

```python
import math, struct, sys
import asmlib
from asmlib import *

MB4 = 0x400000
WS_TOTAL = 0x10000000
WS_Y, WS_KV = 0x0, 0x400000
WS_XN = 0x900000
WS_P = 0x1100000
WS_H = 0x2100000
H_STRIDE = 0xE00000
WS_W1, WS_W2, WS_FLAG = 0x3D00000, 0x4B00000, 0x5200000
F_W2, F_PF, F_H, F_XN = 0x1000, 0x2000, 0x4000, 0x8000
H_BYTES = 2048 * 3584 * 2
W_BYTES = 1024 * 3584 * 2
TBH = 224 * 512
ARG = dict(q=0, k=8, v=16, shift=24, ssm=32, D=40, wg=56, wu=64, wd=72, out=80, dbg=88, ws=96)
lg = lambda x: x.bit_length() - 1
f32bits = lambda x: struct.unpack("<I", struct.pack("<f", x))[0]
SPIN = 0x20000

def srd(k, d, base, nbytes, off=0):
    if off: k(f"s_add_u32 s{d}, s{base}, {off:#x}\ns_addc_u32 s{d+1}, s{base+1}, 0")
    else: k(f"s_mov_b32 s{d}, s{base}\ns_mov_b32 s{d+1}, s{base+1}")
    k(f"s_mov_b32 s{d+2}, {nbytes:#x}\ns_mov_b32 s{d+3}, 0x20000")

def unpk(k, dst, src, hi):
    k(f"v_and_b32 v{dst}, 0xffff0000, v{src}" if hi else f"v_lshlrev_b32 v{dst}, 16, v{src}")

def touch_code(k, first, last, vaddr, vdst, sb, v0=0, n=1, step=32768):
    k.nl += 1
    here = f"L_{k.name}_pc{k.nl}"
    k(f"s_getpc_b64 s[{sb}:{sb+1}]")
    k.label(here)
    k(f"""
    s_add_u32 s{sb}, s{sb}, {first}-{here}
    s_addc_u32 s{sb+1}, s{sb+1}, 0
    s_mov_b32 s{sb+2}, {last}-{first}
    s_mov_b32 s{sb+3}, 0x20000
    v_lshlrev_b32 v{vaddr}, 7, v{v0}
    """)
    for i in range(n):
        if i: k(f"v_add_u32 v{vaddr}, {step}, v{vaddr}")
        k(f"buffer_load_dword v{vdst}, v{vaddr}, s[{sb}:{sb+3}], 0 offen")

def gen_kv():
    k = K("kv_kernel")
    k("s_cmp_ge_u32 s2, 256\ns_cbranch_scc1 L_kv_kernel_end")
    k.stamp(0)
    k(f"""
    s_load_dwordx4 s[4:7], s[0:1], {ARG['k']}
    s_load_dwordx2 s[8:9], s[0:1], {ARG['shift']}
    s_load_dwordx2 s[14:15], s[0:1], {ARG['ws']}
    s_and_b32 s3, s2, 15
    s_lshr_b32 s16, s2, 4
    v_and_b32 v1, 7, v0
    v_bfe_u32 v2, v0, 6, 1
    v_lshl_add_u32 v1, v2, 3, v1
    s_lshl_b32 s17, s16, 4
    v_add_u32 v1, s17, v1
    v_bfe_u32 v2, v0, 3, 3
    v_lshrrev_b32 v3, 7, v0
    v_lshl_add_u32 v2, v3, 3, v2
    s_lshl_b32 s17, s3, 4
    v_add_u32 v2, s17, v2
    v_lshlrev_b32 v3, 14, v1
    v_lshl_add_u32 v3, v2, 3, v3
    v_subrev_u32 v4, 0x1800, v3
    v_subrev_u32 v5, 0x1000, v3
    v_subrev_u32 v6, 0x800, v3
    v_lshlrev_b32 v7, 5, v2
    s_mov_b32 s19, 4096
    s_mov_b32 s28, 8192
    s_mov_b32 s29, 12288
    v_mov_b32 v116, -1
    v_mov_b32 v117, -1
    v_mov_b32 v118, -1
    v_mov_b32 v119, -1
    v_lshlrev_b32 v8, 4, v0
    s_lshl_b32 s17, s2, 14
    v_add_u32 v8, s17, v8
    v_and_b32 v9, 63, v0
    v_lshlrev_b32 v9, 2, v9
    v_mov_b32 v115, 0
    s_lshl_b32 s18, s2, 8
    s_waitcnt lgkmcnt(0)
    """)
    srd(k, 20, 4, MB4); srd(k, 24, 6, MB4); srd(k, 32, 8, 8192)
    KR = lambda t: 16 + 2 * t
    VR = lambda t: 32 + 2 * t
    so = ["0", "s19", "s28", "s29"]
    k("buffer_load_dwordx4 v[48:51], v7, s[32:35], 0 offen\nbuffer_load_dwordx4 v[52:55], v7, s[32:35], 0 offen offset:16")
    for i in range(3):
        k(f"buffer_load_dwordx2 v[{KR(i-3)}:{KR(i-3)+1}], v{4+i}, s[20:23], 0 offen")
    for t in range(8):
        lk = k(f"buffer_load_dwordx2 v[{KR(t)}:{KR(t)+1}], v3, s[20:23], {so[t>>1]} offen offset:{(t&1)*2048}")
    for t in range(8):
        lv = k(f"buffer_load_dwordx2 v[{VR(t)}:{VR(t)+1}], v3, s[24:27], {so[t>>1]} offen offset:{(t&1)*2048}")
    srd(k, 36, 14, MB4, WS_Y); srd(k, 44, 14, 65536, WS_FLAG)
    for i in range(4): k(f"buffer_store_dwordx4 v[116:119], v8, s[36:39], {so[i]} offen sc1")
    k("buffer_store_dword v115, v9, s[44:47], s18 offen sc1")
    touch_code(k, "mega_kernel", "L_mega_kernel_end", 120, 121, 48, n=2)
    srd(k, 40, 14, MB4, WS_KV)
    k("v_sub_u32 v7, 255, v1\nv_lshlrev_b32 v7, 4, v7\nv_lshl_add_u32 v7, v2, 14, v7")
    k.wait(vm=lk); k.stamp(1)
    W = lambda c, j: 56 + 4 * c + j
    for c in range(4):
        for j in range(4): unpk(k, W(c, j), 48 + 2 * c + (j >> 1), j & 1)
    KS = lambda c, t: 72 + 8 * c + t
    KF = lambda t: 107 + t
    for c in range(4):
        for t in range(-3, 8): unpk(k, KF(t), KR(t) + (c >> 1), c & 1)
        for t in range(8): k(f"v_mul_f32 v{KS(c,t)}, v{W(c,3)}, v{KF(t-3)}")
        for j in (2, 1, 0):
            for t in range(8): k(f"v_fmac_f32 v{KS(c,t)}, v{W(c,j)}, v{KF(t-j)}")
    k.wait(vm=lv); k.stamp(2)
    for c in range(4):
        for t in range(8): unpk(k, KF(t), VR(t) + (c >> 1), c & 1)
        for t in range(8): k(f"v_mul_f32 v{KS(c,t)}, v{KS(c,t)}, v{KF(t)}")
        for i in range(4): k(f"v_cvt_pk_bf16_f32 v{12+4*c+i}, v{KS(c,7-2*i)}, v{KS(c,6-2*i)}")
        k(f"buffer_store_dwordx4 v[{12+4*c}:{15+4*c}], v7, s[40:43], {so[c]} offen sc1")
    k.stamp(3); k.stamp_out(4, 32)
    k.label("L_kv_kernel_end"); k("s_endpgm")
    return (k, 128, 128), ("kv_kernel", 256, 256, 0)

CS = 4160; XS = 4640; CH_LDS = 4 * CS + 2 * XS; CONV_LDS = 4 * CH_LDS
NS = 8; RW = 8
LDS_Y, LDS_XR, LDS_ST = 131072, 147456, 131072 - 512
S_LAY, S_WAVE, S_WS = 3, 17, 8
SW = "s[20:23]"; SD = "s[24:27]"; SX = "s[28:31]"
(S_M0, S_W1, S_W2, S_XN, S_HL, S_HS, S_PS, S_ROWF, S_ROWY, S_FH_P, S_FH_C, S_FW2_P, S_FW2_C, S_FPF_P, S_FPF_C,
 S_FXN_P, S_FXN_C, S_SHA, S_SHB, S_SHD, S_HS6) = range(36, 57)
S_DMA, S_SP, S_T = 57, 58, 10
S_A, S_B, S_C, S_D = 14, 15, 16, 18
VR, VD, VST, VC2, VF, VTID, VS0, VS1, VROW, VP, VF16 = 224, 226, 227, 228, 229, 230, 231, 232, 233, 234, 235
TMP = 236
VSTAMP = 255

def gen_mega(KT=14, la_bar=5, la1=128, rate1=0.175, la2=64, rate2=0.275, wgran=2, pre_a=3, pre_b=2, rep=4, nap=2, abl=""):
    k = K("mega_kernel")
    diag = asmlib.STAMPS[0]
    def stamp(i):
        if diag:
            k(f"s_memrealtime s[64:65]\ns_waitcnt lgkmcnt(0)\nv_writelane_b32 v{VSTAMP}, s64, {i}")
    slow = []
    def poll_load(soff, width=1):
        if width == 1:
            va = VF if soff in (S_FW2_C, S_FPF_C) else VF16
            return f"buffer_load_dword v{VP}, v{va}, {SW}, s{soff} offen sc1"
        return f"buffer_load_dwordx4 v[{TMP}:{TMP+3}], v{VR}, {SW}, s{soff} offen sc1"
    def poll_test(n, width=1):
        o = []
        if width == 4:
            o += [f"v_min_u32 v{VP}, v{TMP}, v{TMP+1}", f"v_min3_u32 v{VP}, v{VP}, v{TMP+2}, v{TMP+3}"]
        o.append(f"v_cmp_eq_u32 vcc, 0, v{VP}")
        if n <= 32: o.append(f"s_and_b32 s{S_A}, vcc_lo, {(1 << n) - 1:#x}")
        elif n < 64: o += [f"s_and_b32 s{S_A}, vcc_hi, {(1 << (n - 32)) - 1:#x}", f"s_or_b32 s{S_A}, s{S_A}, vcc_lo"]
        else: o.append(f"s_or_b32 s{S_A}, vcc_lo, vcc_hi")
        return o
    def poll_check(ld, soff, n, width=1):
        k.nl += 1; lab = f"L_poll{k.nl}"
        k.wait(vm=ld)
        k("\n".join(poll_test(n, width)) + f"\ns_cbranch_scc1 {lab}")
        k.label(lab + "_ok")
        slow.append((lab, [f"s_mov_b32 s{S_SP}, {SPIN}"], [f"s_sleep {nap}", poll_load(soff, width), f"s_sub_u32 s{S_SP}, s{S_SP}, 1", f"s_cbranch_scc1 {lab}_out",
                    "s_waitcnt vmcnt(0)"] + poll_test(n, width)))
    def flag_store(soff):
        return f"buffer_store_dword v{VC2}, off, {SW}, s{soff} sc1"

    c1 = -2 * math.sqrt(2 / math.pi) * math.log2(math.e)
    k("s_cmp_ge_u32 s2, 256\ns_cbranch_scc1 L_mega_kernel_end")
    k(f"""
    s_load_dwordx4 s[4:7], s[0:1], {ARG['ssm']}
    s_load_dwordx2 s[8:9], s[0:1], {ARG['ws']}
    s_load_dwordx4 s[12:15], s[0:1], {ARG['wg']}
    s_load_dwordx2 s[10:11], s[0:1], {ARG['q']}
    s_mov_b32 s{S_LAY}, 0
    v_mov_b32 v{VTID}, v0
    v_lshrrev_b32 v1, 6, v0
    v_and_b32 v2, 63, v0
    v_readfirstlane_b32 s17, v1
    s_and_b32 s59, s2, 7
    s_lshr_b32 s60, s2, 3
    s_lshl_b32 s61, s59, 5
    s_add_u32 s61, s61, s60
    v_lshlrev_b32 v{VR}, 4, v2
    s_lshl_b32 s18, s61, 2
    s_add_u32 s18, s18, s17
    s_lshl_b32 s16, s18, 12
    s_mul_i32 s62, s17, {CH_LDS}
    """)
    if diag: k(f"v_mov_b32 v{VSTAMP}, 0")
    k("s_waitcnt lgkmcnt(0)")
    stamp(0)
    k(f"""
    s_add_u32 s32, s4, s16
    s_addc_u32 s33, s5, 0
    s_mov_b32 s34, 4096
    s_mov_b32 s35, 0x20000
    s_add_u32 s16, s16, {WS_KV}
    s_add_u32 s24, s8, s16
    s_addc_u32 s25, s9, 0
    s_mov_b32 s26, 4100
    s_mov_b32 s27, 0x20000
    """)
    for r in (1, 0):
        k(f"s_add_u32 m0, s62, {4*CS + r*XS}\ns_mov_b32 s16, {2 - 2*r}")
        for i in range(4): k(f"buffer_load_dwordx4 v{VR}, s[24:27], s16 offen offset:{i*1024} lds")
    for cc in range(4):
        k(f"s_add_u32 m0, s62, {cc*CS}\ns_mov_b32 s16, {4*cc+4}")
        for i in range(4): k(f"buffer_load_dwordx4 v{VR}, s[32:35], s16 offen offset:{i*1024} lds")
    A = lambda buf, p: 64 + buf * 64 + 4 * p
    B = lambda buf, j: 96 + buf * 64 + 4 * j
    AD = 40
    k("v_and_b32 v61, 15, v2\nv_lshrrev_b32 v62, 4, v2\nv_lshlrev_b32 v63, 2, v61\nv_lshl_add_u32 v63, v62, 4, v63")
    for w in range(4): k(f"v_subrev_u32 v{4+w}, {60-4*w}, v63")
    for w in range(4): conv_ld = k(f"buffer_load_dword v{A(0,0)+w}, v{4+w}, s[32:35], 0 offen")
    k(f"""
    s_and_b32 s16, s18, 0xfffffffe
    s_lshl_b32 s16, s16, 1
    s_add_u32 s6, s6, s16
    s_addc_u32 s7, s7, 0
    s_load_dword s63, s[6:7], 0
    s_load_dwordx4 s[4:7], s[0:1], {ARG['wd']}
    s_lshr_b32 s32, s59, 1
    s_lshl_b32 s32, s32, 2
    s_and_b32 s33, s60, 3
    s_add_u32 s32, s32, s33
    s_and_b32 s33, s59, 1
    s_lshr_b32 s34, s60, 2
    s_lshl_b32 s35, s33, 3
    s_add_u32 s35, s35, s34
    s_lshl_b32 s19, s32, 4
    s_add_u32 s19, s19, s35
    s_lshl_b32 s{S_ROWY}, s19, 14
    v_and_b32 v8, 7, v0
    v_lshrrev_b32 v9, 3, v0
    v_lshlrev_b32 v10, 11, v8
    v_lshl_add_u32 v10, v9, 4, v10
    v_lshlrev_b32 v{VROW}, 4, v8
    v_lshl_add_u32 v{VROW}, v9, 8, v{VROW}
    """)
    QP = 192
    srd(k, 24, 10, MB4)
    for i in range(4): q_ld = k(f"buffer_load_dwordx4 v[{QP+4*i}:{QP+4*i+3}], v10, s[24:27], s{S_ROWY} offen offset:{512*i}")
    KM = 32 - KT
    k(f"""
    s_cmp_ge_u32 s2, 128
    s_cselect_b32 s24, s14, s12
    s_cselect_b32 s25, s15, s13
    s_cselect_b32 s16, 1, 0
    s_mov_b32 s26, {W_BYTES}
    s_mov_b32 s27, 0x20000
    v_lshrrev_b32 v11, 4, v2
    v_mul_u32_u24 v12, 7168, v11
    v_lshl_add_u32 v12, v61, 4, v12
    s_mul_i32 s10, s2, 7
    s_add_u32 s10, s10, s17
    s_lshl_b32 s11, s17, 13
    s_add_u32 s11, s11, {CONV_LDS}
    """)
    srd(k, 20, 8, WS_TOTAL); srd(k, 28, 8, WS_TOTAL)
    w_ld = []
    for r in range(2):
        if r: k("s_add_u32 s10, s10, 4\ns_cmp_eq_u32 s17, 3\ns_cselect_b32 s26, 0, s26\ns_cselect_b32 s30, 0, s30")
        k(f"""
        s_mul_hi_u32 s12, s10, {-(-(1 << 32) // 28)}
        s_mul_i32 s13, s12, 28
        s_sub_u32 s{47+2*r}, s10, s13
        s_and_b32 s{48+2*r}, s12, 31
        s_mul_i32 s13, s{48+2*r}, {32*7168}
        s_lshl_b32 s12, s{47+2*r}, 8
        s_add_u32 s13, s13, s12
        """)
        for j in range(8):
            k(f"s_add_u32 m0, s11, {1024*j + 32768*r}\ns_add_u32 s12, s13, {4*7168*j}")
            x = k("buffer_load_dwordx4 v12, s[24:27], s12 offen lds")
        w_ld.append(x)
    k(f"""
    v_and_b32 v8, 3, v61
    v_mul_u32_u24 v8, {CS}, v8
    v_lshrrev_b32 v9, 2, v61
    v_add_u32 v9, v9, v62
    v_lshl_add_u32 v56, v9, 4, v8
    v_add_u32 v56, s62, v56
    v_lshrrev_b32 v8, 3, v61
    v_mul_u32_u24 v9, {XS}, v8
    v_and_b32 v10, 7, v61
    v_lshlrev_b32 v13, 6, v10
    v_sub_u32 v9, v9, v13
    v_lshl_add_u32 v9, v62, 4, v9
    v_add_u32 v9, {4*CS + 4032 - 3584}, v9
    v_add_u32 v57, s62, v9
    v_lshrrev_b32 v13, 1, v10
    v_xor_b32 v13, v13, v62
    v_lshl_add_u32 v13, v10, 2, v13
    v_lshlrev_b32 v13, 4, v13
    v_lshl_add_u32 v13, v8, 12, v13
    v_add_u32 v59, s62, v13
    v_lshrrev_b32 v8, 5, v2
    v_mul_u32_u24 v8, {XS}, v8
    v_and_b32 v9, 31, v2
    v_lshl_add_u32 v8, v9, 4, v8
    v_add_u32 v8, s62, v8
    v_mov_b32 v44, 0
    v_mov_b32 v45, 0
    v_mov_b32 v46, 0
    v_mov_b32 v47, 0
    v_mov_b32 v58, s62
    ds_write_b128 v8, v[44:47] offset:{4*CS + 4096}
    v_lshlrev_b32 v55, 3, v11
    v_bfe_u32 v9, v2, 2, 2
    v_add_u32 v55, v55, v9
    v_lshlrev_b32 v55, 8, v55
    v_and_b32 v9, 3, v2
    v_lshl_add_u32 v55, v9, 3, v55
    v_add_u32 v55, s11, v55
    s_waitcnt lgkmcnt(0)
    s_and_b32 s12, s18, 1
    s_lshl_b32 s12, s12, 4
    s_lshr_b32 s63, s63, s12
    s_and_b32 s63, s63, 0xffff
    v_mov_b32 v9, s63
    """)
    for w in range(4): k(f"v_cmp_eq_u32 vcc, 0, v{4+w}\nv_cndmask_b32 v{AD+w}, 0, v9, vcc")
    def w1_dest(r):
        return f"""s_mul_i32 s12, s{48+2*r}, 14
        s_mul_i32 s13, s16, 7
        s_add_u32 s12, s12, s13
        s_lshl_b32 s13, s{48+2*r}, 1
        s_add_u32 s13, s13, s16
        s_add_u32 s13, s13, {12*KM}
        s_cmp_lt_u32 s{48+2*r}, {KM}
        s_cselect_b32 s12, s12, s13
        s_cselect_b32 s13, 1, {2*KT}
        s_add_u32 s12, s12, {WS_W1 >> 10}
        s_lshl_b32 s18, s{47+2*r}, 3""".split("\n")
    def w1_off(dst):
        return f"""s_mul_i32 s14, s18, 9363
        s_lshr_b32 s14, s14, 16
        s_mul_i32 s15, s14, 7
        s_sub_u32 s15, s18, s15
        s_mul_i32 s15, s15, s13
        s_mul_i32 s14, s14, 448
        s_add_u32 s14, s14, s15
        s_add_u32 s14, s14, s12
        s_lshl_b32 s{dst}, s14, 10
        s_add_u32 s18, s18, 1""".split("\n")
    assert all((x * 9363) >> 16 == x // 7 for x in range(224))
    OFFS = [[36 + i for i in range(8)], [51, 52, 53, 54, 55, 56, 57, 46]]
    assert S_ROWY not in OFFS[0] + OFFS[1]
    for r in range(2):
        for x in w1_dest(r): k(x)
        for i in range(8):
            for x in w1_off(OFFS[r][i]): k(x)
    k.wait(vm=conv_ld)
    k(f"ds_write_b16 v58, v44 offset:{4*CS + 4094}")
    stamp(1)
    Y = lambda j: 8 + 4 * j
    def reads(i):
        buf = i & 1; out = []
        for x in range(8):
            out.append(("B", x, f"ds_read_b128 v[{B(buf,x)}:{B(buf,x)+3}], v57 offset:{3584-512*x+64*i}"))
            if (i, x) != (0, 0):
                out.append(("A", x, f"ds_read_b128 v[{A(buf,x)}:{A(buf,x)+3}], v56 offset:{64*(i-1)+512*x}"))
        return out
    ids = {}
    for kind, x, txt in reads(0): ids[(0, kind, x)] = k(txt)
    for j in range(8):
        k.wait(lg=ids[(0, "B", j)])
        k(f"v_mfma_f32_16x16x32_bf16 v[{Y(j)}:{Y(j)+3}], v[{AD}:{AD+3}], v[{B(0,j)}:{B(0,j)+3}], 0")
    side = {i: [] for i in range(8)}
    for r in range(2):
        st_ = 3 + 2 * r
        side[st_].append(("w", r))
        for i in range(8):
            f = 32 * r + 4 * i
            side[st_] += [("r", None, f"ds_read_b64_tr_b16 a[{f}:{f+1}], v55 offset:{32*i + 32768*r}"),
                          ("r", (r, i), f"ds_read_b64_tr_b16 a[{f+2}:{f+3}], v55 offset:{32*i + 1024 + 32768*r}")]
            side[st_ + 1].append(("s", (r, i), f"buffer_store_dwordx4 a[{f}:{f+3}], v{VR}, {SX if r else SW}, s{OFFS[r][i]} offen sc1"))
    sid = {}
    for i in range(8):
        buf = i & 1
        nxt = reads(i + 1) if i < 7 else []
        order = sorted([(p, j) for p in range(8) for j in range(8 - p)], key=lambda t: (max(t), t[0] + t[1]))
        sd = side[i]
        for n, (p, j) in enumerate(order):
            k.wait(lg=max(ids.get((i, "A", p), 0), ids[(i, "B", j)]))
            jp = p + j
            k(f"v_mfma_f32_16x16x32_bf16 v[{Y(jp)}:{Y(jp)+3}], v[{A(buf,p)}:{A(buf,p)+3}], v[{B(buf,j)}:{B(buf,j)+3}], v[{Y(jp)}:{Y(jp)+3}]")
            if n % 2 == 1 and nxt:
                kind, x, txt = nxt.pop(0); ids[(i + 1, kind, x)] = k(txt)
            if n % 2 == 0 and sd and (sd[0][0] != "s" or n % 4 == 0):
                it = sd.pop(0)
                if it[0] == "w":
                    k.wait(vm=w_ld[it[1]])
                elif it[0] == "r":
                    x = k(it[2])
                    if it[1]: sid[it[1]] = x
                else:
                    k.wait(lg=sid[it[1]]); k(it[2])
        assert not nxt and not sd
    stamp(2)
    for j in range(8): k(f"ds_write_b128 v59, v[{Y(j)}:{Y(j)+3}] offset:{512*j}")
    k(f"""
    v_lshrrev_b32 v4, 2, v0
    v_bfe_u32 v5, v4, 3, 2
    v_xor_b32 v5, v5, v4
    v_lshlrev_b32 v5, 4, v5
    v_and_b32 v6, 3, v0
    v_lshl_add_u32 v5, v6, 2, v5
    v_lshlrev_b32 v6, 4, v6
    v_lshl_add_u32 v6, v4, 14, v6
    s_lshl_b32 s12, s61, 6
    s_add_u32 s12, s12, {WS_Y}
    """)
    for c in range(1, 4): k(f"v_add_u32 v{40+c}, {c*CH_LDS}, v5")
    k("v_mov_b32 v40, v5\ns_waitcnt vmcnt(0) lgkmcnt(0)\ns_barrier")
    rid = {}
    for i in range(4):
        for c in range(4):
            rid[i] = k(f"ds_read2st64_b32 v[{64+8*i+2*c}:{65+8*i+2*c}], v{40+c} offset0:{4*i} offset1:{16+4*i}")
    for i in range(4):
        k.wait(lg=rid[i])
        for par in range(2):
            for h in range(2):
                k(f"v_cvt_pk_bf16_f32 v{96+4*i+2*par+h}, v{64+8*i+4*h+par}, v{64+8*i+4*h+2+par}")
        k(f"buffer_store_dwordx4 v[{96+4*i}:{99+4*i}], v6, {SW}, s12 offen sc1")
        if i < 3: k("s_add_u32 s12, s12, 0x100000")
    stamp(3)

    k(f"""
    s_and_b32 s12, s59, 1
    s_lshl_b32 s12, s12, 2
    s_and_b32 s13, s60, 3
    s_add_u32 s12, s12, s13
    s_lshr_b32 s13, s59, 1
    s_lshl_b32 s13, s13, 3
    s_lshr_b32 s14, s60, 2
    s_add_u32 s13, s13, s14
    s_lshl_b32 s{S_M0}, s17, 12
    s_mul_i32 s{S_W1}, s13, {448*1024}
    s_add_u32 s{S_W1}, s{S_W1}, {WS_W1}
    s_mul_i32 s{S_W2}, s35, {448*1024}
    s_add_u32 s{S_W2}, s{S_W2}, {WS_W2}
    s_lshl_b32 s14, s12, 2
    s_add_u32 s14, s14, s17
    s_lshl_b32 s{S_XN}, s14, 17
    s_add_u32 s{S_XN}, s{S_XN}, {WS_XN}
    s_lshl_b32 s{S_FXN_C}, s14, 7
    s_lshr_b32 s15, s59, 1
    s_and_b32 s15, s15, {rep - 1}
    s_lshl_b32 s15, s15, 12
    s_add_u32 s{S_FXN_C}, s{S_FXN_C}, s15
    s_add_u32 s{S_FXN_C}, s{S_FXN_C}, {WS_FLAG + F_XN}
    s_lshr_b32 s{S_FXN_P}, s19, 3
    s_lshl_b32 s{S_FXN_P}, s{S_FXN_P}, 7
    s_and_b32 s15, s19, 7
    s_lshl_b32 s15, s15, 2
    s_add_u32 s{S_FXN_P}, s{S_FXN_P}, s15
    s_lshl_b32 s15, s17, 12
    s_add_u32 s{S_FXN_P}, s{S_FXN_P}, s15
    s_add_u32 s{S_FXN_P}, s{S_FXN_P}, {WS_FLAG + F_XN}
    s_lshl_b32 s{S_FH_P}, s14, 7
    s_lshl_b32 s15, s13, 2
    s_add_u32 s{S_FH_P}, s{S_FH_P}, s15
    s_add_u32 s{S_FH_P}, s{S_FH_P}, {WS_FLAG + F_H}
    s_mul_i32 s{S_HS}, s14, {4*TBH}
    s_add_u32 s{S_HS}, s{S_HS}, {WS_H}
    s_lshr_b32 s15, s13, 4
    s_mul_i32 s15, s15, {56*1024}
    s_add_u32 s{S_HS}, s{S_HS}, s15
    s_and_b32 s15, s13, 15
    s_lshl_b32 s16, s15, 9
    s_add_u32 s{S_HS6}, s{S_HS}, s16
    s_add_u32 s{S_HS6}, s{S_HS6}, {48*1024}
    s_lshl_b32 s16, s15, 10
    s_add_u32 s{S_HS}, s{S_HS}, s16
    s_lshl_b32 s14, s32, 2
    s_add_u32 s14, s14, s17
    s_mul_i32 s{S_HL}, s14, {2*TBH}
    s_mul_i32 s15, s33, {56*1024}
    s_add_u32 s{S_HL}, s{S_HL}, s15
    s_add_u32 s{S_HL}, s{S_HL}, {WS_H}
    s_lshr_b32 s15, s14, 1
    s_lshl_b32 s{S_FH_C}, s15, 7
    s_lshl_b32 s15, s33, 6
    s_add_u32 s{S_FH_C}, s{S_FH_C}, s15
    s_add_u32 s{S_FH_C}, s{S_FH_C}, {WS_FLAG + F_H}
    s_lshl_b32 s{S_PS}, s14, 16
    s_lshl_b32 s15, s34, 12
    s_add_u32 s{S_PS}, s{S_PS}, s15
    s_lshl_b32 s15, s33, 22
    s_add_u32 s{S_PS}, s{S_PS}, s15
    s_add_u32 s{S_PS}, s{S_PS}, {WS_P}
    s_lshr_b32 s{S_ROWF}, s19, 1
    s_lshl_b32 s{S_ROWF}, s{S_ROWF}, 15
    s_and_b32 s15, s19, 1
    s_lshl_b32 s15, s15, 7
    s_add_u32 s{S_ROWF}, s{S_ROWF}, s15
    s_lshl_b32 s{S_FPF_C}, s32, 8
    s_add_u32 s{S_FPF_C}, s{S_FPF_C}, {WS_FLAG + F_PF}
    s_lshl_b32 s15, s35, 2
    s_add_u32 s15, s15, s17
    s_lshl_b32 s15, s15, 2
    s_add_u32 s{S_FPF_P}, s{S_FPF_C}, s15
    s_lshl_b32 s{S_FW2_C}, s35, 8
    s_add_u32 s{S_FW2_C}, s{S_FW2_C}, {WS_FLAG + F_W2}
    """)
    k(f"""
    s_lshl_b32 s12, s2, 2
    s_add_u32 s12, s12, s17
    s_cmp_lt_u32 s12, 896
    s_cselect_b32 s26, {W_BYTES}, 0
    s_cselect_b32 s30, {WS_TOTAL}, 0
    s_mov_b32 s24, s4
    s_mov_b32 s25, s5
    s_lshr_b32 s13, s12, 3
    s_and_b32 s12, s12, 7
    s_cmp_ge_u32 s13, 56
    s_cselect_b32 s14, 1, 0
    s_cselect_b32 s15, 56, 0
    s_sub_u32 s13, s13, s15
    s_lshl_b32 s15, s14, 3
    s_add_u32 s15, s15, s12
    s_lshl_b32 s{S_FW2_P}, s15, 8
    s_lshl_b32 s16, s13, 2
    s_add_u32 s{S_FW2_P}, s{S_FW2_P}, s16
    s_add_u32 s{S_FW2_P}, s{S_FW2_P}, {WS_FLAG + F_W2}
    s_mul_i32 s{S_SHD}, s15, {448*1024}
    s_lshl_b32 s16, s13, 13
    s_add_u32 s{S_SHD}, s{S_SHD}, s16
    s_add_u32 s{S_SHD}, s{S_SHD}, {WS_W2}
    s_and_b32 s15, s13, 15
    s_mul_i32 s15, s15, 112
    s_lshr_b32 s16, s13, 4
    s_lshl_b32 s16, s16, 5
    s_add_u32 s15, s15, s16
    s_sub_u32 s16, s13, 48
    s_mul_i32 s16, s16, 224
    s_add_u32 s16, s16, 96
    s_cmp_ge_u32 s13, 48
    s_cselect_b32 s15, s16, s15
    s_cselect_b32 s16, 112, 16
    s_mul_i32 s14, s14, 1792
    s_add_u32 s15, s15, s14
    s_add_u32 s16, s16, s15
    s_lshl_b32 s12, s12, 8
    s_lshl_b32 s{S_SHA}, s15, 11
    s_add_u32 s{S_SHA}, s{S_SHA}, s12
    s_lshl_b32 s{S_SHB}, s16, 11
    s_add_u32 s{S_SHB}, s{S_SHB}, s12
    v_add_u32 v{VR+1}, 0x10000, v{VR}
    v_add_u32 v{VD}, s{S_M0}, v{VR}
    v_lshrrev_b32 v5, 5, v2
    v_and_b32 v6, 31, v2
    v_lshlrev_b32 v6, 4, v6
    v_mul_u32_u24 v7, {TBH}, v5
    v_add_u32 v{VST}, v7, v6
    v_mov_b32 v{VC2}, {f32bits(c1*0.044715):#x}
    v_lshlrev_b32 v{VF}, 2, v2
    v_and_b32 v{VF16}, 60, v{VF}
    v_lshrrev_b32 v3, 4, v2
    v_and_b32 v4, 15, v2
    v_lshlrev_b32 v4, 4, v4
    v_lshl_add_u32 v{VS0}, v3, 11, v4
    v_bfe_u32 v4, v2, 2, 3
    v_lshlrev_b32 v4, 8, v4
    v_lshl_add_u32 v4, v5, 14, v4
    v_and_b32 v3, 3, v2
    v_lshl_add_u32 v4, v3, 4, v4
    v_add_u32 v{VS1}, s{S_M0}, v4
    """)

    XP, YP, P0, P1, X, Yf, T, AY, AS0, AS1, AL, AO = 8, 24, 40, 56, 72, 104, 136, 0, 1, 2, 3, 4
    def row_addr():
        k(f"""
        v_and_b32 v6, 7, v{VTID}
        v_lshrrev_b32 v7, 3, v{VTID}
        v_lshlrev_b32 v{AY}, 3, v6
        v_lshl_add_u32 v{AY}, v7, 7, v{AY}
        v_lshlrev_b32 v{AO}, 11, v6
        v_lshl_add_u32 v{AO}, v7, 4, v{AO}
        v_lshrrev_b32 v{AS0}, 6, v{VTID}
        v_lshlrev_b32 v{AS0}, 3, v{AS0}
        v_lshl_add_u32 v{AS0}, v6, 5, v{AS0}
        v_bfe_u32 v7, v{VTID}, 4, 1
        v_lshl_add_u32 v{AS0}, v7, 2, v{AS0}
        v_add_u32 v{AS0}, {LDS_ST}, v{AS0}
        v_lshlrev_b32 v{AS1}, 5, v6
        v_add_u32 v{AS1}, {LDS_ST}, v{AS1}
        v_lshlrev_b32 v{AL}, 4, v{VTID}
        v_add_u32 v{AL}, {LDS_Y}, v{AL}
        """)
    def unpack(dst, src):
        for e in range(32): unpk(k, dst + e, src + e // 2, e & 1)
    def stats(off):
        k(f"v_pk_add_f32 v[{T}:{T+1}], v[{X}:{X+1}], v[{X+2}:{X+3}]")
        k(f"v_pk_mul_f32 v[{T+2}:{T+3}], v[{X}:{X+1}], v[{X}:{X+1}]")
        for e in range(2, 32, 2):
            if e > 2: k(f"v_pk_add_f32 v[{T}:{T+1}], v[{T}:{T+1}], v[{X+e}:{X+e+1}]")
            k(f"v_pk_fma_f32 v[{T+2}:{T+3}], v[{X+e}:{X+e+1}], v[{X+e}:{X+e+1}], v[{T+2}:{T+3}]")
        R = T + 8
        k(f"""
        v_add_f32 v{T}, v{T}, v{T+1}
        v_add_f32 v{T+2}, v{T+2}, v{T+3}
        v_permlane16_swap_b32 v{T}, v{T+2}
        v_add_f32 v{T}, v{T}, v{T+2}
        v_add_f32_dpp v{T}, v{T}, v{T} row_ror:8 row_mask:0xf bank_mask:0xf
        v_mov_b32 v{T+1}, v{T}
        v_permlane32_swap_b32 v{T}, v{T+1}
        v_add_f32 v{T}, v{T}, v{T+1}
        ds_write_b32 v{AS0}, v{T} offset:{off}
        s_waitcnt lgkmcnt(0)
        s_barrier
        ds_read_b128 v[{R}:{R+3}], v{AS1} offset:{off}
        ds_read_b128 v[{R+4}:{R+7}], v{AS1} offset:{off+16}
        s_waitcnt lgkmcnt(0)
        v_pk_add_f32 v[{R}:{R+1}], v[{R}:{R+1}], v[{R+2}:{R+3}]
        v_pk_add_f32 v[{R+4}:{R+5}], v[{R+4}:{R+5}], v[{R+6}:{R+7}]
        v_pk_add_f32 v[{R}:{R+1}], v[{R}:{R+1}], v[{R+4}:{R+5}]
        v_mul_f32 v{R}, {f32bits(1/1024):#x}, v{R}
        v_mul_f32 v{R+1}, {f32bits(1/1024):#x}, v{R+1}
        v_fma_f32 v{R+1}, -v{R}, v{R}, v{R+1}
        v_max_f32 v{R+1}, 0, v{R+1}
        v_cvt_pk_bf16_f32 v{R+2}, v{R}, v{R+1}
        v_lshlrev_b32 v{R}, 16, v{R+2}
        v_and_b32 v{R+1}, 0xffff0000, v{R+2}
        v_add_f32 v{R+1}, {f32bits(1e-5):#x}, v{R+1}
        v_cvt_pk_bf16_f32 v{R+1}, v{R+1}, v{R+1}
        v_lshlrev_b32 v{R+1}, 16, v{R+1}
        v_sqrt_f32 v{R+1}, v{R+1}
        v_cvt_pk_bf16_f32 v{R+1}, v{R+1}, v{R+1}
        v_lshlrev_b32 v{R+1}, 16, v{R+1}
        v_rcp_f32 v{T+4}, v{R+1}
        v_mov_b32 v{T+5}, v{T+4}
        v_mul_f32_e64 v{T+6}, -v{R}, v{T+4}
        v_mov_b32 v{T+7}, v{T+6}
        """)
    def sentinel_loop(name, loads, first, n, between=None):
        k(f"s_mov_b32 s{S_SP}, {SPIN}")
        loads()
        if between: between()
        k(f"s_branch {name}_chk")
        k.label(name)
        loads()
        k.label(name + "_chk")
        k(f"s_waitcnt vmcnt(0)\nv_max_u32 v{T+16}, v{first}, v{first+1}")
        for i in range(2, n, 2): k(f"v_max3_u32 v{T+16}, v{T+16}, v{first+i}, v{first+i+1}")
        k(f"v_cmp_eq_u32 vcc, -1, v{T+16}\ns_sub_u32 s{S_SP}, s{S_SP}, 1\ns_cbranch_scc1 {name}_out\ns_cbranch_vccnz {name}")
        k.label(name + "_out")

    row_addr()
    unpack(X, QP)
    stats(0)
    def y_loads():
        for i in range(4):
            k(f"s_add_u32 s{S_A}, s{S_ROWY}, {WS_Y + 4096*i}")
            for h in range(2):
                r = YP + 4 * i + 2 * h
                k(f"buffer_load_dwordx2 v[{r}:{r+1}], v{AY}, {SW}, s{S_A} offen offset:{64*h} sc1")
    sentinel_loop("L_ypoll", y_loads, YP, 16)
    stamp(4)
    k("s_barrier")
    for i in range(4): k(f"ds_write_b128 v{AL}, v[{YP+4*i}:{YP+4*i+3}] offset:{4096*i}")
    unpack(Yf, YP)

    k.label("L_layer")
    k.nvm = k.vm_done = 0; k.nlg = k.lg_done = 0
    ring = [("W1", s) for s in range(28)]
    SH_POS = 17
    ring[SH_POS:SH_POS] = [("SH", 0), ("SH", 1)]
    assert SH_POS % NS + 1 < NS
    ring += [("W2", s) for s in range(28)]
    st = {"s": None}
    def dma(idx, i):
        kind, s = ring[idx]; pre_ = []
        if kind == "SH":
            st["s"] = None
            return [f"s_add_u32 m0, s{S_M0}, {(idx % NS) * 16384 + 1024 * i}", f"s_add_u32 s{S_DMA}, s{S_SHB if s else S_SHA}, {8192 * i}",
                    f"buffer_load_dwordx4 v{VS0}, {SD}, s{S_DMA} offen lds"]
        if st["s"] != idx:
            pre_ = [f"s_add_u32 m0, s{S_M0}, {(idx % NS) * 16384}", f"s_add_u32 s{S_DMA}, s{S_W1 if kind == 'W1' else S_W2}, {s * 16384}"]
            st["s"] = idx
        return pre_ + [f"buffer_load_dwordx4 v{VD}, {SW}, s{S_DMA} offen offset:{1024*i} lds"]
    w_id = {}; t_id = {}
    def pre_stage(idx):
        for i in range(4): w_id[idx] = k("\n".join(dma(idx, i)))
    for idx in range(pre_a): pre_stage(idx)
    for e in range(0, 32, 2):
        k(f"v_pk_fma_f32 v[{T}:{T+1}], v[{X+e}:{X+e+1}], v[{T+4}:{T+5}], v[{T+6}:{T+7}]")
        k(f"v_pk_fma_f32 v[{X+e}:{X+e+1}], v[{T}:{T+1}], v[{Yf+e}:{Yf+e+1}], v[{X+e}:{X+e+1}]")
        k(f"v_cvt_pk_bf16_f32 v{XP+e//2}, v{X+e}, v{X+e+1}")
    for i in range(4): k(f"ds_write_b128 v{AL}, v[{XP+4*i}:{XP+4*i+3}] offset:{16384 + 4096*i}")
    unpack(X, XP)
    stats(256)
    k(f"s_lshl_b32 s{S_B}, s{S_LAY}, 22\ns_add_u32 s{S_B}, s{S_B}, s{S_ROWF}")
    for e in range(0, 32, 2):
        k(f"v_pk_fma_f32 v[{X+e}:{X+e+1}], v[{X+e}:{X+e+1}], v[{T+4}:{T+5}], v[{T+6}:{T+7}]")
        k(f"v_cvt_pk_bf16_f32 v{P0+e//2}, v{X+e}, v{X+e+1}")
        if e % 8 == 6:
            i = e // 8
            k(f"s_add_u32 s{S_A}, s{S_B}, {WS_XN + 8192*i}")
            k(f"buffer_store_dwordx4 v[{P0+4*i}:{P0+4*i+3}], v{VROW}, {SW}, s{S_A} offen sc1")
    stamp(5)
    k("s_waitcnt vmcnt(0)\ns_barrier")
    if rep < 4: k(f"s_cmp_ge_u32 s17, {rep}\ns_cbranch_scc1 L_nofx")
    k(flag_store(S_FXN_P))
    if rep < 4:
        k.label("L_nofx"); k.nvm -= 1
    fx = k(poll_load(S_FXN_C))
    for idx in range(pre_a, pre_a + pre_b): pre_stage(idx)
    k(f"v_mov_b32 v{TMP+4}, v{VC2}\nv_mov_b32 v{TMP+5}, v{VC2}\nv_mov_b32 v{TMP+6}, {f32bits(c1):#x}\nv_mov_b32 v{TMP+7}, v{TMP+6}")
    poll_check(fx, S_FXN_C, 8)
    stamp(6)

    groups = [(1, u, g) for u in range(KM) for g in range(14)]
    tail_start = len(groups)
    for b in range(7):
        for u in range(KM, 32): groups += [(1, u, b), (1, u, 7 + b)]
    G2S = len(groups)
    groups += [(2, u, g) for u in range(56) for g in range(8)]
    NGR = len(groups); GPB = 2 * KT
    NTk = {1: 4, 2: 2}
    tm = [0]
    for kd, _, _ in groups: tm.append(tm[-1] + NTk[kd])
    real = [i for i, r_ in enumerate(ring) if r_[0] != "SH"]
    stage_of = lambda i: real[i // 16]
    bars = {16 * n - la_bar: real[n] for n in range(1, 56)}
    bar_list = sorted(bars)
    first_use = {}; last_use = {}
    for i, (kd, u, g) in enumerate(groups):
        first_use.setdefault((kd, u), i); last_use[(kd, u)] = i
    def slot(kd, u, t):
        return (u % KT) * 4 + t if kd == 1 else (4 * (KM % KT) + 2 * u + t) % (4 * KT)
    AT = lambda kd, u, t: 4 * RW + 4 * slot(kd, u, t)
    AW = lambda i: 4 * (i % RW)
    acc = lambda kd, g, t: (g * NTk[kd] + t) * 4
    tok_base = {}
    def tok(kd, u, t):
        off = u * 1024; pre_ = []
        if tok_base.get(t, (None, 0))[0] != kd or off - tok_base[t][1] > 4095:
            tok_base[t] = (kd, off & ~4095)
            pre_ = [f"s_add_u32 s{S_T+t}, s{S_XN if kd == 1 else S_HL}, {t * (32768 if kd == 1 else TBH) + tok_base[t][1]}"]
        a = AT(kd, u, t)
        return pre_ + [f"buffer_load_dwordx4 a[{a}:{a+3}], v{VR}, {SW}, s{S_T+t} offen offset:{off - tok_base[t][1]}"]
    P_SHR = tail_start + 6
    P_SH_END = tail_start + GPB - 2
    P_PF = tail_start + GPB + 4
    P_FA = tail_start + 5 * GPB + 10
    P_PW2 = tail_start + 3 * GPB
    P_PA = tail_start + 6 * GPB - 4
    P_FB = G2S + 70
    P_PB = G2S + 150
    P_PPF = G2S + 330
    CHK = {1: 10, 2: 24}
    def done_bar(idx):
        if ring[idx][0] == "SH": return P_SH_END
        last = 16 * real.index(idx) + 15
        return next(p for p in bar_list if p > last)
    def earliest(it):
        if it[1] == "W":
            idx = it[2]
            e = done_bar(idx - NS) if idx >= NS else -1
            if ring[idx][0] == "W2": e = max(e, P_PW2 + CHK[1] + 1)
            return e
        kd, u = it[2]
        if kd == 1: return -1 if u < KT else last_use[(1, u - KT)] + 1
        e = last_use[(1, KM + u // 2)] + 1 if u < 2 * KT else last_use[(2, u - 2 * KT)] + 1
        return max(e, P_PA + CHK[1] + 1 if u < 32 else P_PB + CHK[2] + 1)
    items = []
    for idx in range(pre_a + pre_b, len(ring)):
        d = tm[P_SHR] - 100 if ring[idx][0] == "SH" else tm[16 * real.index(idx) - la_bar]
        items += [(d, "W", idx, i) for i in range(4)]
    for (kd, u), fu in first_use.items():
        items += [(tm[fu], "T", (kd, u), t) for t in range(NTk[kd])]
    items.sort(key=lambda x: x[0])
    nxt_t = 1e9; sched = []
    for it in reversed(items):
        late = it[0] >= tm[G2S]
        nxt_t = min(it[0] - (la2 if late else la1), nxt_t - 1.0 / (rate2 if nxt_t > tm[G2S] else rate1))
        e = earliest(it)
        sched.append((max(nxt_t, tm[e] if e >= 0 else -1e9),) + it[1:])
    sched.reverse()
    last_tok = max(x[0] for x in sched if x[1] == "T" and x[2][0] == 1)
    prev = last_tok
    for n_, it in enumerate(sched):
        if it[1] == "W" and it[0] > last_tok and prev < tm[G2S] - 8:
            prev = max(prev + 8, tm[earliest(it)]); sched[n_] = (min(it[0], prev),) + it[1:]
    wq = [x for x in sched if x[1] == "W"]
    wq.sort(key=lambda x: (x[2], x[3]))
    run = 1e9
    for n_ in range(len(wq) - 1, -1, -1):
        e = earliest(wq[n_]); run = min(run, wq[n_][0])
        wq[n_] = (max(run, tm[e] if e >= 0 else -1e9),) + wq[n_][1:]
    items = sorted(wq + [x for x in sched if x[1] == "T"], key=lambda x: x[0])
    def lines(it):
        return dma(it[2], it[3]) if it[1] == "W" else tok(it[2][0], it[2][1], it[3])
    def record(it, i):
        if it[1] == "W": w_id[it[2]] = i
        else: t_id[(it[2], it[3])] = i
    while items and items[0][0] < 0:
        it = items.pop(0); record(it, k("\n".join(lines(it))))
    def rd(i):
        off = (stage_of(i) % NS) * 16384 + (i % 16) * 1024
        return f"ds_read_b128 a[{AW(i)}:{AW(i)+3}], v{VR + off // 65536} offset:{off % 65536}"
    def gelu4(G, U, P):
        Tm = [TMP + e for e in range(4)]
        o = [f"v_mul_f32 v{Tm[e]}, v{G+e}, v{G+e}" for e in range(4)]
        o += [f"v_fmaak_f32 v{Tm[e]}, v{VC2}, v{Tm[e]}, {f32bits(c1):#x}" for e in range(4)]
        o += [f"v_mul_f32 v{Tm[e]}, v{Tm[e]}, v{G+e}" for e in range(4)]
        for e in range(4): o += [f"v_exp_f32 v{Tm[e]}, v{Tm[e]}", f"v_mul_f32 v{U+e}, v{U+e}, v{G+e}"]
        o += [f"v_add_f32 v{Tm[e]}, 1.0, v{Tm[e]}" for e in range(4)]
        o += [f"v_rcp_f32 v{Tm[e]}, v{Tm[e]}" for e in range(4)]
        o += [f"v_mul_f32 v{U+e}, v{U+e}, v{Tm[e]}" for e in range(4)]
        o += [f"v_cvt_pk_bf16_f32 v{P}, v{U}, v{U+1}", f"v_cvt_pk_bf16_f32 v{P+1}, v{U+2}, v{U+3}"]
        return o
    def epilogue(b):
        o = []
        for t in range(2):
            a = acc(1, b, 2 * t)
            o += gelu4(a, acc(1, 7 + b, 2 * t), a) + gelu4(acc(1, b, 2 * t + 1), acc(1, 7 + b, 2 * t + 1), a + 2)
            base, c = (S_HS6, 0) if b == 6 else (S_HS, (b >> 1) * 16384 + (b & 1) * 512)
            o += [f"s_add_u32 s{S_C}, s{base}, {c + 2 * TBH * t}",
                  f"v_permlane32_swap_b32 v{a}, v{a+2}", f"v_permlane32_swap_b32 v{a+1}, v{a+3}"]
            o.append(f"buffer_store_dwordx4 v[{a}:{a+3}], v{VST}, {SW}, s{S_C} offen sc1")
        return o
    cost = lambda s: 2 if s.startswith(("v_exp", "v_rcp")) else 1

    published = 0; r_id = {}; rp = 0
    while rp < RW - 2:
        r_id[rp] = k(rd(rp)); rp += 1
    seen = set(); epi = []; epi_rate = 0.0; epi_credit = 0.0; q = []
    last_st = {"h": None, "sh": None, "pf": None}; pend = {}; named = {}
    def emit_q():
        t_, c = q.pop(0)
        if c and c[0] == "L": k.wait(lg=named[c[1]])
        if c and c[0] == "Wv": k.wait(vm=w_id[c[1]])
        id_ = k(t_)
        if not c: return
        if c[0] == "V": record(c[1], id_)
        elif c[0] == "R": r_id[c[1]] = id_
        elif c[0] == "N": named[c[1]] = id_
        elif c[0] == "L": last_st["sh"] = id_
        elif c[0] == "PF": last_st["pf"] = id_
    for i, (kd, u, g) in enumerate(groups):
        NT = NTk[kd]
        if i == tail_start: stamp(7)
        if i == G2S: stamp(8)
        if i in bars:
            pub = bars[i]
            assert not any(it[1] == "W" and it[2] <= pub and ring[it[2]][0] != "SH" for it in items), (i, pub)
            while any(c and c[0] == "V" and c[1][1] == "W" and c[1][2] <= pub for _, c in q): emit_q()
            k.wait(vm=w_id[pub]); k("s_barrier"); published = pub
        n = 0
        while rp < NGR and rp <= i + RW - 2 and stage_of(rp) <= published and n < 2:
            q.append((rd(rp), ("R", rp))); rp += 1; n += 1
        if items and items[0][0] <= tm[i]:
            it = items.pop(0); ls = lines(it)
            q += [(x, None) for x in ls[:-1]] + [(ls[-1], ("V", it))]
        if P_SHR <= i < P_SHR + 16 and (i - P_SHR) % 4 == 0:
            assert not any(it[1] == "W" and ring[it[2]][0] == "SH" for it in items)
            p = (i - P_SHR) // 4
            base = (SH_POS % NS) * 16384
            for h in range(2):
                f = TMP + 8 + 4 * h; off = base + p * 64 + h * 8
                q.append((f"ds_read_b64_tr_b16 v[{f}:{f+1}], v{VS1} offset:{off}", ("Wv", SH_POS + 1)))
                q.append((f"ds_read_b64_tr_b16 v[{f+2}:{f+3}], v{VS1} offset:{off + 2048}", ("N", (p, h))))
        if P_SHR + 2 <= i < P_SHR + 18 and (i - P_SHR) % 4 == 2:
            p = (i - P_SHR) // 4
            q.append((f"s_add_u32 s{S_D}, s{S_SHD}, {2048 * p}", None))
            for h in range(2):
                f = TMP + 8 + 4 * h
                q.append((f"buffer_store_dwordx4 v[{f}:{f+3}], v{VR}, {SX}, s{S_D} offen offset:{1024*h} sc1", ("L", (p, h))))
        if i == P_PF - 2:
            q += [(f"v_mov_b32 v{TMP+8+e}, -1", None) for e in range(4)]
            q += [(f"s_lshl_b32 s{S_B}, s{S_LAY}, 23", None), (f"s_add_u32 s{S_B}, s{S_B}, s{S_ROWF}", None)]
        if P_PF <= i < P_PF + 24 and (i - P_PF) % 3 == 0:
            j = (i - P_PF) // 3
            q.append((f"s_add_u32 s{S_D}, s{S_B}, {WS_P + (j >> 2) * MB4 + (j & 3) * 8192}", None))
            q.append((f"buffer_store_dwordx4 v[{TMP+8}:{TMP+11}], v{VROW}, {SW}, s{S_D} offen sc1", ("PF",)))
        if i == P_SH_END + 12:
            k.wait(vm=last_st["sh"]); k(f"buffer_store_dword v{VC2}, off, {SX}, s{S_FW2_P} sc1")
        if i == P_PF + 44:
            k.wait(vm=last_st["pf"]); k(flag_store(S_FPF_P))
        if i == P_FA:
            k.wait(vm=named["h3"]); k(flag_store(S_FH_P))
        if i == P_FB:
            assert not epi
            k.wait(vm=last_st["h"]); k(f"s_add_u32 s{S_D}, s{S_FH_P}, 0x1000"); k(flag_store(S_D))
        for pos, soff, n_, pre_ in ((P_PW2, S_FW2_C, 56, None), (P_PA, S_FH_C, 16, None), (P_PB, S_B, 16, f"s_add_u32 s{S_B}, s{S_FH_C}, 0x1000"), (P_PPF, S_FPF_C, 64, None)):
            if i == pos:
                if pre_: k(pre_)
                pend[pos] = k(poll_load(soff))
            if i == pos + CHK[kd] and pos in pend:
                z = 12 + 2 * [P_PW2, P_PA, P_PB, P_PPF].index(pos)
                stamp(z); poll_check(pend.pop(pos), soff, n_); stamp(z + 1)
        if tail_start + GPB <= i <= G2S and (i - tail_start) % GPB == 0:
            assert not epi, len(epi)
            b = (i - tail_start) // GPB - 1
            if b == 4: named["h3"] = last_st["h"]
            epi = epilogue(b)
            span = GPB * 4 - 6 if b < 6 else 120
            epi_rate = sum(map(cost, epi)) / span; epi_credit = -3 * epi_rate
        for t in range(NT):
            while i not in r_id or ((kd, u), t) not in t_id: emit_q()
            lgw = r_id[i]
            if lgw > k.lg_done:
                for j in range(1, wgran):
                    if i + j in r_id and k.nlg - r_id[i + j] >= 2: lgw = r_id[i + j]
            vmw = t_id[((kd, u), t)]
            if vmw > k.vm_done and i > 28 and ((kd, u), NT - 1) in t_id: vmw = t_id[((kd, u), NT - 1)]
            k.wait(vm=vmw, lg=lgw)
            a = acc(kd, g, t)
            c = f"v[{a}:{a+3}]" if (kd, g, t) in seen else "0"
            seen.add((kd, g, t))
            at = AT(kd, u, t)
            k(f"v_mfma_f32_16x16x32_bf16 v[{a}:{a+3}], a[{AW(i)}:{AW(i)+3}], a[{at}:{at+3}], {c}")
            budget = 2
            for _ in range(1 if len(q) <= (NT - t) + 2 else 2):
                if q: emit_q(); budget -= 1
            epi_credit += epi_rate
            while epi and epi_credit >= cost(epi[0]) - 1e-9 and (budget >= cost(epi[0]) or epi_credit >= 3):
                x = epi.pop(0); epi_credit -= cost(x); budget -= cost(x)
                id_ = k(x)
                if x.startswith("buffer_store"): last_st["h"] = id_
    assert not items and not epi and not q and not pend
    stamp(9)
    k(f"s_add_u32 s{S_D}, s{S_PS}, 32768")
    for p in range(4):
        for t in range(2):
            a = acc(2, 2 * p, t); b = acc(2, 2 * p + 1, t)
            k(f"""
            v_cvt_pk_bf16_f32 v{a}, v{a}, v{a+1}
            v_cvt_pk_bf16_f32 v{a+1}, v{a+2}, v{a+3}
            v_cvt_pk_bf16_f32 v{a+2}, v{b}, v{b+1}
            v_cvt_pk_bf16_f32 v{a+3}, v{b+2}, v{b+3}
            buffer_store_dwordx4 v[{a}:{a+3}], v{VR}, {SW}, s{S_D if t else S_PS} offen offset:{1024*p} sc1
            """)
    PP = 160
    k(f"s_lshl_b32 s{S_B}, s{S_LAY}, 23\ns_add_u32 s{S_B}, s{S_B}, s{S_ROWF}")
    def p_loads():
        for j in range(8):
            k(f"s_add_u32 s{S_A}, s{S_B}, {WS_P + (j >> 2) * MB4 + (j & 3) * 8192}")
            k(f"buffer_load_dwordx4 v[{PP+4*j}:{PP+4*j+3}], v{VROW}, {SW}, s{S_A} offen sc1")
    def between():
        row_addr()
        for i in range(4): k(f"ds_read_b128 v[{XP+4*i}:{XP+4*i+3}], v{AL} offset:{16384 + 4096*i}")
        for i in range(4): k(f"ds_read_b128 v[{YP+4*i}:{YP+4*i+3}], v{AL} offset:{4096*i}")
        k("s_waitcnt lgkmcnt(0)\ns_barrier")
        unpack(X, XP); unpack(Yf, YP)
    sentinel_loop("L_ppoll", p_loads, PP, 32, between)
    stamp(10)
    for e in range(0, 32, 2):
        unpk(k, T, PP + e // 2, 0); unpk(k, T + 1, PP + e // 2, 1)
        unpk(k, T + 2, PP + 16 + e // 2, 0); unpk(k, T + 3, PP + 16 + e // 2, 1)
        k(f"v_pk_add_f32 v[{T}:{T+1}], v[{T}:{T+1}], v[{T+2}:{T+3}]")
        k(f"v_pk_add_f32 v[{X+e}:{X+e+1}], v[{X+e}:{X+e+1}], v[{T}:{T+1}]")
        k(f"v_cvt_pk_bf16_f32 v{XP+e//2}, v{X+e}, v{X+e+1}")
    k(f"s_cmp_lg_u32 s{S_LAY}, 0\ns_cbranch_scc1 L_final")
    unpack(X, XP)
    stats(0)
    stamp(11)
    if diag: k(f"v_mov_b32 v{VSTAMP-1}, v{VSTAMP}")
    k(f"""
    s_mov_b32 s{S_LAY}, 1
    s_mov_b32 s26, 0
    s_mov_b32 s30, 0
    s_add_u32 s{S_XN}, s{S_XN}, {MB4}
    s_add_u32 s{S_HL}, s{S_HL}, {H_STRIDE}
    s_add_u32 s{S_HS}, s{S_HS}, {H_STRIDE}
    s_add_u32 s{S_HS6}, s{S_HS6}, {H_STRIDE}
    s_add_u32 s{S_PS}, s{S_PS}, {2*MB4}
    s_add_u32 s{S_FH_P}, s{S_FH_P}, 0x2000
    s_add_u32 s{S_FH_C}, s{S_FH_C}, 0x2000
    s_add_u32 s{S_FPF_P}, s{S_FPF_P}, 0x1000
    s_add_u32 s{S_FPF_C}, s{S_FPF_C}, 0x1000
    s_add_u32 s{S_FXN_P}, s{S_FXN_P}, 0x4000
    s_add_u32 s{S_FXN_C}, s{S_FXN_C}, 0x4000
    s_branch L_layer
    """)
    k.label("L_final")
    srd(k, 32, 6, MB4)
    for i in range(4): k(f"buffer_store_dwordx4 v[{XP+4*i}:{XP+4*i+3}], v{AO}, s[32:35], s{S_ROWY} offen offset:{512*i}")
    if diag:
        k("s_waitcnt vmcnt(0)"); stamp(11)
        k(f"s_lshl_b32 s12, s2, 10\ns_lshl_b32 s13, s17, 8\ns_add_u32 s12, s12, s13\ns_add_u32 s12, s12, 0x8100000")
        k(f"s_mov_b64 exec, 0xffffffff\nbuffer_store_dword v{VSTAMP-1}, v{VF}, {SW}, s12 offen\nbuffer_store_dword v{VSTAMP}, v{VF}, {SW}, s12 offen offset:128")
    k("s_endpgm")
    for lab, pre_, body in slow:
        k.label(lab); k("\n".join(pre_))
        k.label(lab + "_l"); k("\n".join(body)); k(f"s_cbranch_scc1 {lab}_l")
        k.label(lab + "_out"); k(f"s_waitcnt vmcnt(0)\ns_branch {lab}_ok")
    k.label("L_mega_kernel_end"); k("s_endpgm")
    return (k, 512, 256), ("mega_kernel", 256, 256, 163840)

HEADER = open("interleave_layers__ssm_conv_h3__glu_gated_geglu__prompt.s.ref").read().split("; Override launch")[0]

def build(path, stamps=False, **kw):
    asmlib.STAMPS[0] = stamps
    seq = [gen_kv(), gen_mega(**kw)]
    txt = module(HEADER, [l for _, l in seq], [kk for kk, _ in seq])
    txt = "\n".join(l.strip() if l.startswith("    ") else l for l in txt.split("\n"))
    open(path, "w").write(txt)
    return {kk[0].name: (len(kk[0].lines), kk[0].padded) for kk, _ in seq}

if __name__ == "__main__":
    print(build("v3.s")); build("v3s.s", stamps=True)
```

```python
import math, struct, sys
import asmlib
from asmlib import *

MB4 = 0x400000
WS_TOTAL = 0x10000000
WS_Y, WS_KV = 0x0, 0x400000
WS_XN = 0x900000
WS_P = 0x5400000
WS_H = 0x1200000
H_STRIDE = 0x1000000
WS_W1, WS_W2, WS_FLAG = 0x3200000, 0x4200000, 0x5200000
WS_PL = 0x9000000
F_PE = 0x80000
W1T, W2T = 448, 448
F_W1, F_W2, F_PF, F_H, F_XN, F_KV, F_ARM, F_EPOCH = 0x0, 0x1000, 0x2000, 0x20000, 0x8000, 0x100000, 0x11000, 0x12000
H_BYTES = 2048 * 3584 * 2
W_BYTES = 1024 * 3584 * 2
TBH = 224 * 512
ARG = dict(q=0, k=8, v=16, shift=24, ssm=32, D=40, wg=56, wu=64, wd=72, out=80, dbg=88, ws=96)
lg = lambda x: x.bit_length() - 1
f32bits = lambda x: struct.unpack("<I", struct.pack("<f", x))[0]
SPIN = 0x20000

def srd(k, d, base, nbytes, off=0):
    if off: k(f"s_add_u32 s{d}, s{base}, {off:#x}\ns_addc_u32 s{d+1}, s{base+1}, 0")
    else: k(f"s_mov_b32 s{d}, s{base}\ns_mov_b32 s{d+1}, s{base+1}")
    k(f"s_mov_b32 s{d+2}, {nbytes:#x}\ns_mov_b32 s{d+3}, 0x20000")

def unpk(k, dst, src, hi):
    k(f"v_and_b32 v{dst}, 0xffff0000, v{src}" if hi else f"v_lshlrev_b32 v{dst}, 16, v{src}")

def touch_code(k, first, last, vaddr, vdst, sb, v0=0, n=1, step=32768):
    k.nl += 1
    here = f"L_{k.name}_pc{k.nl}"
    k(f"s_getpc_b64 s[{sb}:{sb+1}]")
    k.label(here)
    k(f"""
    s_add_u32 s{sb}, s{sb}, {first}-{here}
    s_addc_u32 s{sb+1}, s{sb+1}, 0
    s_mov_b32 s{sb+2}, {last}-{first}
    s_mov_b32 s{sb+3}, 0x20000
    v_lshlrev_b32 v{vaddr}, 7, v{v0}
    """)
    for i in range(n):
        if i: k(f"v_add_u32 v{vaddr}, {step}, v{vaddr}")
        k(f"buffer_load_dword v{vdst}, v{vaddr}, s[{sb}:{sb+3}], 0 offen")

CS = 4160; XS = 4640; CH_LDS = 4 * CS + 2 * XS; CONV_LDS = 4 * CH_LDS
NS = 8; RW = 8
LDS_Y, LDS_XR, LDS_ST = 131072, 147456, 131072 - 512
S_LAY, S_WAVE, S_WS = 3, 17, 8
SW = "s[20:23]"; SD = "s[24:27]"; SX = "s[28:31]"
(S_M0, S_W1, S_W2, S_XN, S_HL, S_HS, S_PS, S_ROWF, S_ROWY, S_FH_P, S_FH_C, S_FW2_P, S_FW2_C, S_FPF_P, S_FPF_C,
 S_FXN_P, S_FXN_C, S_SHA, S_SHB, S_SHD, S_HS6) = range(36, 57)
S_FW1_C = 19
S_PL, S_ROWL, S_TAG16, S_MSK = 56, 88, 89, 90
S_N = 68
S_DMA, S_SP, S_T = 57, 58, 10
S_A, S_B, S_C, S_D, S_E = 14, 15, 16, 18, 59
VR, VD, VST, VC2, VF, VTID, VS0, VS1, VROW, VP, VF16 = 224, 226, 227, 228, 229, 230, 231, 232, 233, 234, 235
TMP = 236
VTAG = 253
VSTAMP = 255

def gen_mega(KT=14, la_bar=5, la1=200, rate1=0.175, la2=96, rate2=0.225, wgran=2, rep=4, nap=3, q_step=0, sh_step=4, ct=True, pnap=2, ph_back=(90, 100, 100, 90), b2=3, fl_lag=48, thr=9999, chk=10, pf_step=4, pf_at=44, pe_back=6, sent=True, tw=0, tw0=96, tw_step=8, pe_lag=32, rmax=0.2, rmax2=0.25, w1_step=1, w1s=2, E=3, e_late=True, KT2=12, abl=""):
    k = K("interleave_layers__ssm_conv_h3__glu_gated_geglu__prompt_kernel")
    diag = asmlib.STAMPS[0]
    def stamp(i):
        if diag:
            k(f"s_memrealtime s[64:65]\ns_memtime s[66:67]\ns_waitcnt lgkmcnt(0)\nv_writelane_b32 v{VSTAMP}, s64, {i}\nv_writelane_b32 v{VSTAMP}, s66, {32 + i}")
    slow = []
    def poll_load(soff, width=1):
        if width == "arm": return f"buffer_load_dwordx4 v[{TMP}:{TMP+3}], v{VR}, {SW}, s{soff} offen sc1"
        va = VF if soff in (S_FW1_C, S_FW2_C) else TMP + 13 if soff in (S_FPF_C, S_FKV) else VF16
        return f"buffer_load_dword v{VP}, v{va}, {SW}, s{soff} offen sc1"
    def poll_test(n, width, soff):
        if n == "arm":
            o = [f"v_xor_b32 v{TMP+i}, v{TMP+i}, v{VTAG}" for i in range(4)]
            o += [f"v_or3_b32 v{VP}, v{TMP}, v{TMP+1}, v{TMP+2}", f"v_or_b32 v{VP}, v{VP}, v{TMP+3}", f"v_cmp_ne_u32 vcc, 0, v{VP}"]
            n = 64
        else: o = [f"v_cmp_ne_u32 vcc, v{VTAG}, v{VP}"]
        if n == "w1": o += [f"s_or_b32 s{S_A}, vcc_lo, vcc_hi", f"s_and_b32 s{S_A}, s{S_A}, {(1 << (2 * KT)) - 1:#x}"]
        elif n <= 32: o.append(f"s_and_b32 s{S_A}, vcc_lo, {(1 << n) - 1:#x}")
        elif n < 64: o += [f"s_and_b32 s{S_A}, vcc_hi, {(1 << (n - 32)) - 1:#x}", f"s_or_b32 s{S_A}, s{S_A}, vcc_lo"]
        else: o.append(f"s_or_b32 s{S_A}, vcc_lo, vcc_hi")
        return o
    def poll_check(ld, soff, n, width=1):
        k.nl += 1; lab = f"L_poll{k.nl}"
        k.wait(vm=ld)
        k("\n".join(poll_test(n, width, soff)) + f"\ns_cbranch_scc1 {lab}")
        k.label(lab + "_ok")
        slow.append((lab, [f"s_mov_b32 s{S_SP}, {SPIN}"], [f"s_sleep {nap}", poll_load(soff, n if n == "arm" else width), f"s_sub_u32 s{S_SP}, s{S_SP}, 1", f"s_cbranch_scc1 {lab}_out",
                    "s_waitcnt vmcnt(0)"] + poll_test(n, width, soff)))
    def flag_store(soff):
        if soff in (S_FPF_P, 78):
            return f"s_mov_b32 exec_hi, 0\nbuffer_store_dword v{VTAG}, v{VF16}, {SW}, s{soff} offen sc1\ns_mov_b32 exec_hi, -1"
        return f"s_mov_b64 exec, 1\nbuffer_store_dword v{VTAG}, off, {SW}, s{soff} sc1\ns_mov_b64 exec, -1"

    c1 = -2 * math.sqrt(2 / math.pi) * math.log2(math.e)
    k("s_cmp_ge_u32 s2, 256\ns_cbranch_scc1 L_end")
    S_FKV = 69
    k(f"""
    s_load_dwordx4 s[72:75], s[0:1], {ARG['k']}
    s_load_dwordx2 s[8:9], s[0:1], {ARG['ws']}
    s_load_dwordx2 s[76:77], s[0:1], {ARG['shift']}
    s_load_dwordx4 s[4:7], s[0:1], {ARG['ssm']}
    s_load_dwordx4 s[12:15], s[0:1], {ARG['wg']}
    s_load_dwordx2 s[10:11], s[0:1], {ARG['q']}
    s_and_b32 s59, s2, 7
    s_lshr_b32 s60, s2, 3
    s_lshl_b32 s16, s60, 4
    v_and_b32 v3, 15, v0
    v_add_u32 v3, s16, v3
    """)
    touch_code(k, "L_body", "L_end", 4, 51, 80, v0=3)
    k.label("L_body")
    k(f"""
    s_mov_b32 s{S_LAY}, 0
    v_mov_b32 v{VTID}, v0
    v_lshrrev_b32 v1, 6, v0
    v_and_b32 v2, 63, v0
    v_readfirstlane_b32 s17, v1
    s_lshl_b32 s61, s59, 5
    s_add_u32 s61, s61, s60
    v_lshlrev_b32 v{VR}, 4, v2
    s_and_b32 s16, s61, 15
    s_lshl_b32 s16, s16, 4
    v_and_b32 v48, 7, v0
    v_bfe_u32 v49, v0, 6, 1
    v_lshl_add_u32 v48, v49, 3, v48
    v_add_u32 v48, s16, v48
    s_and_b32 s16, s61, 0xf0
    v_bfe_u32 v49, v0, 3, 3
    v_lshrrev_b32 v3, 7, v0
    v_lshl_add_u32 v49, v3, 3, v49
    v_add_u32 v49, s16, v49
    v_lshlrev_b32 v3, 14, v48
    v_lshl_add_u32 v3, v49, 3, v3
    v_subrev_u32 v8, 0x1800, v3
    v_subrev_u32 v9, 0x1000, v3
    v_subrev_u32 v10, 0x800, v3
    v_lshlrev_b32 v7, 5, v49
    s_mov_b32 s84, 4096
    s_mov_b32 s85, 8192
    s_mov_b32 s86, 12288
    s_lshl_b32 s18, s61, 2
    s_add_u32 s18, s18, s17
    s_mul_i32 s62, s17, {CH_LDS}
    """)
    if diag: k(f"v_mov_b32 v{VSTAMP}, 0")
    k("s_waitcnt lgkmcnt(0)")
    k(f"s_add_u32 s70, s8, {WS_FLAG + F_EPOCH}\ns_addc_u32 s71, s9, 0\ns_load_dword s87, s[70:71], 0")
    srd(k, 24, 72, MB4); srd(k, 28, 74, MB4); srd(k, 32, 76, 8192)
    KR = lambda t: 74 + 2 * t
    VV = lambda t: 90 + 2 * t
    so = ["0", "s84", "s85", "s86"]
    for i in range(3): k(f"buffer_load_dwordx2 v[{KR(i-3)}:{KR(i-3)+1}], v{8+i}, s[24:27], 0 offen")
    for t in range(8): k(f"buffer_load_dwordx2 v[{KR(t)}:{KR(t)+1}], v3, s[24:27], {so[t>>1]} offen offset:{(t&1)*2048}")
    k("buffer_load_dwordx4 v[108:111], v7, s[32:35], 0 offen")
    lk = k("buffer_load_dwordx4 v[112:115], v7, s[32:35], 0 offen offset:16")
    for t in range(8): lv = k(f"buffer_load_dwordx2 v[{VV(t)}:{VV(t)+1}], v3, s[28:31], {so[t>>1]} offen offset:{(t&1)*2048}")
    stamp(0)
    srd(k, 20, 8, WS_TOTAL); srd(k, 28, 8, WS_TOTAL)
    k(f"""
    s_lshl_b32 s16, s18, 12
    s_add_u32 s32, s4, s16
    s_addc_u32 s33, s5, 0
    s_mov_b32 s34, 4096
    s_mov_b32 s35, 0x20000
    s_add_u32 s16, s16, {WS_KV}
    s_add_u32 s88, s8, s16
    s_addc_u32 s89, s9, 0
    s_mov_b32 s90, 4100
    s_mov_b32 s91, 0x20000
    """)
    for cc in range(4):
        k(f"s_add_u32 m0, s62, {cc*CS}\ns_mov_b32 s16, {4*cc+4}")
        for i in range(4): k(f"buffer_load_dwordx4 v{VR}, s[32:35], s16 offen offset:{i*1024} lds")
    k(f"v_sub_u32 v50, 255, v48\nv_lshlrev_b32 v50, 4, v50\nv_lshl_add_u32 v50, v49, 14, v50\nv_add_u32 v50, {WS_KV}, v50")
    k.wait(vm=lk)
    W = lambda c, j: 116 + 4 * c + j
    for c in range(4):
        for j in range(4): unpk(k, W(c, j), 108 + 2 * c + (j >> 1), j & 1)
    KS = lambda c, t: 132 + 8 * c + t
    KF = lambda t: 167 + t
    for c in range(4):
        for t in range(-3, 8): unpk(k, KF(t), KR(t) + (c >> 1), c & 1)
        for t in range(8): k(f"v_mul_f32 v{KS(c,t)}, v{W(c,3)}, v{KF(t-3)}")
        for j in (2, 1, 0):
            for t in range(8): k(f"v_fmac_f32 v{KS(c,t)}, v{W(c,j)}, v{KF(t-j)}")
    k.wait(vm=lv)
    for c in range(4):
        for t in range(8): unpk(k, KF(t), VV(t) + (c >> 1), c & 1)
        for t in range(8): k(f"v_mul_f32 v{KS(c,t)}, v{KS(c,t)}, v{KF(t)}")
        for i in range(4): k(f"v_cvt_pk_bf16_f32 v{176+4*c+i}, v{KS(c,7-2*i)}, v{KS(c,6-2*i)}")
        k(f"buffer_store_dwordx4 v[{176+4*c}:{179+4*c}], v50, {SW}, {so[c]} offen sc1")
    stamp(26)
    kv_st = k.nvm
    k(f"""
    s_lshr_b32 s{S_FKV}, s61, 4
    s_lshl_b32 s{S_FKV}, s{S_FKV}, 11
    s_add_u32 s{S_FKV}, s{S_FKV}, {WS_FLAG + F_KV}
    s_lshl_b32 s78, s61, 7
    s_add_u32 s78, s78, {WS_FLAG + F_KV}
    v_and_b32 v{TMP+13}, 15, v2
    v_lshlrev_b32 v{TMP+13}, 7, v{TMP+13}
    v_and_b32 v{VF16}, 31, v2
    v_lshlrev_b32 v{VF16}, 2, v{VF16}
    s_waitcnt lgkmcnt(0)
    s_mul_i32 s{S_N}, s87, 0x9e3779b1
    s_add_u32 s{S_N}, s{S_N}, 0x7f4a7c15
    s_add_u32 s16, s{S_N}, 1
    v_mov_b32 v{VTAG}, s16
    s_waitcnt vmcnt(0)
    s_barrier
    s_cmp_lg_u32 s17, 0
    s_cbranch_scc1 L_nokvf
    """)
    k(flag_store(78)); k.nvm -= 1
    k.label("L_nokvf")
    A = lambda buf, p: 64 + buf * 64 + 4 * p
    B = lambda buf, j: 96 + buf * 64 + 4 * j
    AD = 40
    k("v_and_b32 v61, 15, v2\nv_lshrrev_b32 v62, 4, v2\nv_lshlrev_b32 v63, 2, v61\nv_lshl_add_u32 v63, v62, 4, v63")
    for w in range(4): k(f"v_subrev_u32 v{4+w}, {60-4*w}, v63")
    for w in range(4): k(f"buffer_load_dword v{A(0,0)+w}, v{4+w}, s[32:35], 0 offen")
    k(f"""
    s_and_b32 s16, s18, 0xfffffffe
    s_lshl_b32 s16, s16, 1
    s_add_u32 s6, s6, s16
    s_addc_u32 s7, s7, 0
    s_load_dword s63, s[6:7], 0
    s_load_dwordx4 s[4:7], s[0:1], {ARG['wd']}
    s_lshr_b32 s32, s59, 1
    s_lshl_b32 s32, s32, 2
    s_and_b32 s33, s60, 3
    s_add_u32 s32, s32, s33
    s_and_b32 s33, s59, 1
    s_lshr_b32 s34, s60, 2
    s_lshl_b32 s35, s33, 3
    s_add_u32 s35, s35, s34
    s_lshl_b32 s19, s32, 4
    s_add_u32 s19, s19, s35
    s_lshl_b32 s{S_ROWY}, s19, 14
    s_lshr_b32 s45, s19, 1
    s_lshl_b32 s45, s45, 15
    s_and_b32 s16, s19, 1
    s_lshl_b32 s16, s16, 7
    s_add_u32 s45, s45, s16
    v_and_b32 v8, 7, v0
    v_lshrrev_b32 v9, 3, v0
    v_lshlrev_b32 v12, 4, v8
    v_lshl_add_u32 v12, v9, 8, v12
    v_and_b32 v13, 3, v9
    v_lshrrev_b32 v9, 2, v9
    v_lshl_add_u32 v9, v9, 4, v13
    v_lshlrev_b32 v10, 11, v8
    v_lshl_add_u32 v10, v9, 4, v10
    v_lshlrev_b32 v{VROW}, 4, v8
    v_lshl_add_u32 v{VROW}, v9, 8, v{VROW}
    v_mov_b32 v44, -1
    v_mov_b32 v45, -1
    v_mov_b32 v46, -1
    v_mov_b32 v47, -1
    v_lshlrev_b32 v8, 4, v0
    """)
    for i in range(4):
        k(f"s_add_u32 s16, s{S_ROWY}, {WS_Y + 4096*i}\nbuffer_store_dwordx4 v[44:47], v8, {SW}, s16 offen sc1")
    assert 4 * E <= 32
    for L in range(2):
        k(f"s_add_u32 s16, s45, {WS_XN + L*MB4}\nbuffer_store_dwordx4 v[44:47], v12, {SW}, s16 offen sc1")
    QP = 192
    k("v_mov_b32 v53, v10")
    srd(k, 92, 10, MB4)
    KM = 32 - KT
    NU0, NU1 = 56 * KM, 56 * KT
    assert NU0 <= 1024 and NU1 <= 1024 and 2 * KT <= 32
    k(f"""
    v_lshrrev_b32 v11, 4, v2
    v_mul_u32_u24 v54, 7168, v11
    v_lshl_add_u32 v54, v61, 4, v54
    s_lshl_b32 s10, s2, 2
    s_add_u32 s10, s10, s17
    s_lshl_b32 s11, s17, 13
    s_add_u32 s11, s11, {CONV_LDS}
    s_mul_hi_u32 s48, s10, {-(-(1 << 32) // 28)}
    s_mul_i32 s47, s48, 28
    s_sub_u32 s47, s10, s47
    s_and_b32 s16, s48, 1
    s_lshr_b32 s48, s48, 1
    s_cmp_eq_u32 s16, 0
    s_cselect_b32 s24, s12, s14
    s_cselect_b32 s25, s13, s15
    s_mov_b32 s27, 0x20000
    s_mul_i32 s49, s48, {32*7168}
    s_lshl_b32 s12, s47, 8
    s_add_u32 s49, s49, s12
    """)
    def w_enable(n):
        return [f"s_cmp_lt_u32 s10, {n}", f"s_cselect_b32 s26, {W_BYTES}, 0", f"s_cselect_b32 s30, {WS_TOTAL}, 0"]
    def w_load(r, j):
        return [f"s_add_u32 m0, s11, {1024*j - r*(CONV_LDS - 32768)}", f"s_add_u32 s12, s49, {4*7168*j + r*KM*32*7168}", "buffer_load_dwordx4 v54, s[24:27], s12 offen lds"]
    for x in w_enable(NU0): k(x)
    k(f"""
    v_and_b32 v8, 3, v61
    v_mul_u32_u24 v8, {CS}, v8
    v_lshrrev_b32 v9, 2, v61
    v_add_u32 v9, v9, v62
    v_lshl_add_u32 v56, v9, 4, v8
    v_add_u32 v56, s62, v56
    v_lshrrev_b32 v8, 3, v61
    v_mul_u32_u24 v9, {XS}, v8
    v_and_b32 v10, 7, v61
    v_lshlrev_b32 v13, 6, v10
    v_sub_u32 v9, v9, v13
    v_lshl_add_u32 v9, v62, 4, v9
    v_add_u32 v9, {4*CS + 4032 - 3584}, v9
    v_add_u32 v57, s62, v9
    v_lshrrev_b32 v13, 1, v10
    v_xor_b32 v13, v13, v62
    v_lshl_add_u32 v13, v10, 2, v13
    v_lshlrev_b32 v13, 4, v13
    v_lshl_add_u32 v13, v8, 12, v13
    v_add_u32 v59, s62, v13
    v_lshrrev_b32 v8, 5, v2
    v_mul_u32_u24 v8, {XS}, v8
    v_and_b32 v9, 31, v2
    v_lshl_add_u32 v8, v9, 4, v8
    v_add_u32 v8, s62, v8
    v_mov_b32 v44, 0
    v_mov_b32 v45, 0
    v_mov_b32 v46, 0
    v_mov_b32 v47, 0
    v_mov_b32 v58, s62
    ds_write_b128 v8, v[44:47] offset:{4*CS + 4096}
    v_lshlrev_b32 v55, 3, v11
    v_bfe_u32 v9, v2, 2, 2
    v_add_u32 v55, v55, v9
    v_lshlrev_b32 v55, 8, v55
    v_and_b32 v9, 3, v2
    v_lshl_add_u32 v55, v9, 3, v55
    v_add_u32 v55, s11, v55
    s_waitcnt lgkmcnt(0)
    s_and_b32 s12, s18, 1
    s_lshl_b32 s12, s12, 4
    s_lshr_b32 s63, s63, s12
    s_and_b32 s63, s63, 0xffff
    v_mov_b32 v9, s63
    """)
    for w in range(4): k(f"v_cmp_eq_u32 vcc, 0, v{4+w}\nv_cndmask_b32 v{AD+w}, 0, v9, vcc")
    assert all((x * 9363) >> 16 == x // 7 for x in range(224))
    OFFS = [[36 + i for i in range(8)], [70 + i for i in range(8)]]
    k(f"""
    s_mul_i32 s12, s48, 14
    s_mul_i32 s13, s16, 7
    s_add_u32 s12, s12, s13
    s_add_u32 s12, s12, {WS_W1 >> 10}
    s_lshl_b32 s13, s48, 1
    s_add_u32 s13, s13, s16
    s_lshl_b32 s50, s13, 2
    s_lshl_b32 s14, s47, 7
    s_add_u32 s50, s50, s14
    s_add_u32 s50, s50, {WS_FLAG + F_W1}
    s_add_u32 s13, s13, {14*KM + (WS_W1 >> 10)}
    s_lshl_b32 s18, s47, 3
    """)
    for i in range(8):
        k(f"""
        s_mul_i32 s14, s18, 9363
        s_lshr_b32 s14, s14, 16
        s_mul_i32 s15, s14, 7
        s_sub_u32 s15, s18, s15
        s_mul_i32 s14, s14, {W1T}
        s_add_u32 s58, s14, s15
        s_add_u32 s58, s58, s12
        s_lshl_b32 s{OFFS[0][i]}, s58, 10
        s_mul_i32 s15, s15, {2*KT}
        s_add_u32 s14, s14, s15
        s_add_u32 s14, s14, s13
        s_lshl_b32 s{OFFS[1][i]}, s14, 10
        s_add_u32 s18, s18, 1
        """)
    k("s_cmp_lg_u32 s17, 0\ns_cbranch_scc1 L_nokvp")
    x = k(poll_load(S_FKV))
    poll_check(x, S_FKV, 16)
    k.label("L_nokvp")
    k(f"s_waitcnt vmcnt(0)\ns_barrier\ns_lshl_b32 s16, s2, 2\ns_add_u32 s16, s16, {WS_FLAG + F_ARM}\ns_cmp_lg_u32 s17, 1\ns_cbranch_scc1 L_noarm")
    k(flag_store(16)); k.nvm -= 1
    k.label("L_noarm")
    stamp(27)
    for r in (1, 0):
        k(f"s_add_u32 m0, s62, {4*CS + r*XS}\ns_mov_b32 s16, {2 - 2*r}")
        for i in range(4): conv_ld = k(f"buffer_load_dwordx4 v{VR}, s[88:91], s16 offen offset:{i*1024} lds")
    for j in range(8): w_ld0 = k("\n".join(w_load(0, j)))
    k.wait(vm=conv_ld)
    k(f"ds_write_b16 v58, v44 offset:{4*CS + 4094}")
    stamp(1)
    Y = lambda j: 8 + 4 * j
    def reads(i):
        buf = i & 1; out = []
        for x in range(8):
            out.append(("B", x, f"ds_read_b128 v[{B(buf,x)}:{B(buf,x)+3}], v57 offset:{3584-512*x+64*i}"))
            if (i, x) != (0, 0):
                out.append(("A", x, f"ds_read_b128 v[{A(buf,x)}:{A(buf,x)+3}], v56 offset:{64*(i-1)+512*x}"))
        return out
    ids = {}
    for kind, x, txt in reads(0): ids[(0, kind, x)] = k(txt)
    for j in range(8):
        k.wait(lg=ids[(0, "B", j)])
        k(f"v_mfma_f32_16x16x32_bf16 v[{Y(j)}:{Y(j)+3}], v[{AD}:{AD+3}], v[{B(0,j)}:{B(0,j)+3}], 0")
    side = {i: [] for i in range(8)}
    def sh_reads(r):
        o = []
        for i in range(8):
            f = 224 * r + 4 * i
            o += [("r", None, f"ds_read_b64_tr_b16 a[{f}:{f+1}], v55 offset:{32*i}"), ("r", (r, i), f"ds_read_b64_tr_b16 a[{f+2}:{f+3}], v55 offset:{32*i + 1024}")]
        return o
    def sh_stores(r):
        return [("s", (r, i), f"buffer_store_dwordx4 a[{224*r+4*i}:{224*r+4*i+3}], v{VR}, {SX}, s{OFFS[r][i]} offen sc1") for i in range(8)]
    side[q_step] += [("v", "q", f"buffer_load_dwordx4 v[{QP+4*i}:{QP+4*i+3}], v53, s[92:95], s{S_ROWY} offen offset:{64*i}") for i in range(4)]
    side[sh_step - 1] += [("v", "arm", f"s_mov_b32 s79, {WS_FLAG + F_ARM}\n" + poll_load(79, "arm"))]
    side[sh_step] += [("w", 0)] + sh_reads(0)
    side[sh_step + 1] += sh_stores(0)
    sid = {}
    for i in range(8):
        buf = i & 1
        nxt = reads(i + 1) if i < 7 else []
        order = sorted([(p, j) for p in range(8) for j in range(8 - p)], key=lambda t: (max(t), t[0] + t[1]))
        sd = side[i]
        for n, (p, j) in enumerate(order):
            k.wait(lg=max(ids.get((i, "A", p), 0), ids[(i, "B", j)]))
            jp = p + j
            k(f"v_mfma_f32_16x16x32_bf16 v[{Y(jp)}:{Y(jp)+3}], v[{A(buf,p)}:{A(buf,p)+3}], v[{B(buf,j)}:{B(buf,j)+3}], v[{Y(jp)}:{Y(jp)+3}]")
            if n % 2 == 1 and nxt:
                kind, x, txt = nxt.pop(0); ids[(i + 1, kind, x)] = k(txt)
            if n % 2 == 0 and sd and (sd[0][0] not in "sv" or n % 4 == 0):
                it = sd.pop(0)
                if it[0] == "w": k.wait(vm=w_ld0)
                elif it[0] == "s":
                    k.wait(lg=sid[it[1]]); sid["st0"] = k(it[2])
                else:
                    x = k(it[2])
                    if it[1]: sid[it[1]] = x
        assert not nxt and not sd
    stamp(2)
    for j in range(8): k(f"ds_write_b128 v59, v[{Y(j)}:{Y(j)+3}] offset:{512*j}")
    k(f"""
    v_lshrrev_b32 v4, 2, v0
    v_bfe_u32 v5, v4, 3, 2
    v_xor_b32 v5, v5, v4
    v_lshlrev_b32 v5, 4, v5
    v_and_b32 v6, 3, v0
    v_lshl_add_u32 v5, v6, 2, v5
    v_lshlrev_b32 v6, 4, v6
    v_lshl_add_u32 v6, v4, 14, v6
    s_lshl_b32 s12, s61, 6
    s_add_u32 s12, s12, {WS_Y}
    """)
    for c in range(1, 4): k(f"v_add_u32 v{40+c}, {c*CH_LDS}, v5")
    k("v_mov_b32 v40, v5")
    poll_check(sid["arm"], 79, "arm")
    k.wait(vm=sid["st0"], lg=k.nlg); k("s_barrier")
    rid = {}
    for i in range(4):
        for c in range(4):
            rid[i] = k(f"ds_read2st64_b32 v[{64+8*i+2*c}:{65+8*i+2*c}], v{40+c} offset0:{4*i} offset1:{16+4*i}")
    for i in range(4):
        k.wait(lg=rid[i])
        for par in range(2):
            for h in range(2):
                k(f"v_cvt_pk_bf16_f32 v{96+4*i+2*par+h}, v{64+8*i+4*h+par}, v{64+8*i+4*h+2+par}")
        k(f"buffer_store_dwordx4 v[{96+4*i}:{99+4*i}], v6, {SW}, s12 offen sc1")
        if i < 3: k("s_add_u32 s12, s12, 0x100000")
    stamp(3)
    k("s_barrier")
    for x in w_enable(NU1): k(x)
    for j in range(8): k("\n".join(w_load(1, j)))
    k(f"s_mov_b32 s62, s50\ns_mov_b32 s63, s30\nv_subrev_u32 v{TMP+12}, {CONV_LDS - 32768}, v55")

    KM2 = 56 - KT2
    k(f"""
    s_lshl_b32 s{S_M0}, s17, 12
    s_lshr_b32 s13, s59, 1
    s_lshl_b32 s12, s13, 3
    s_add_u32 s12, s12, s34
    s_lshl_b32 s14, s33, 2
    s_and_b32 s15, s60, 3
    s_add_u32 s14, s14, s15
    s_lshl_b32 s14, s14, 2
    s_add_u32 s14, s14, s17
    s_lshl_b32 s16, s32, 2
    s_add_u32 s16, s16, s17
    s_mul_i32 s{S_W1}, s12, {W1T*1024}
    s_add_u32 s{S_W1}, s{S_W1}, {WS_W1}
    s_mul_i32 s{S_W2}, s35, {W2T*1024}
    s_add_u32 s{S_W2}, s{S_W2}, {WS_W2}
    s_and_b32 s15, s16, 15
    s_lshl_b32 s15, s15, 13
    s_add_u32 s91, s{S_W2}, s15
    s_lshl_b32 s{S_XN}, s14, 17
    s_add_u32 s{S_XN}, s{S_XN}, {WS_XN}
    s_lshl_b32 s{S_PS}, s16, 14
    s_lshl_b32 s15, s34, 10
    s_add_u32 s{S_PS}, s{S_PS}, s15
    s_lshl_b32 s15, s33, 22
    s_add_u32 s{S_PS}, s{S_PS}, s15
    s_add_u32 s{S_PS}, s{S_PS}, {WS_P}
    s_lshr_b32 s{S_ROWL}, s19, 1
    s_lshl_b32 s{S_ROWF}, s{S_ROWL}, 15
    s_lshl_b32 s{S_ROWL}, s{S_ROWL}, 13
    s_and_b32 s15, s19, 1
    s_lshl_b32 s15, s15, 7
    s_add_u32 s{S_ROWL}, s{S_ROWL}, s15
    s_add_u32 s{S_ROWF}, s{S_ROWF}, s15
    s_lshl_b32 s{S_FXN_C}, s14, 7
    s_lshl_b32 s15, s13, 12
    s_add_u32 s{S_FXN_C}, s{S_FXN_C}, s15
    s_add_u32 s{S_FXN_C}, s{S_FXN_C}, {WS_FLAG + F_XN}
    s_lshr_b32 s{S_FXN_P}, s19, 3
    s_lshl_b32 s{S_FXN_P}, s{S_FXN_P}, 7
    s_lshl_b32 s15, s34, 2
    s_add_u32 s{S_FXN_P}, s{S_FXN_P}, s15
    s_add_u32 s{S_FXN_P}, s{S_FXN_P}, s{S_M0}
    s_add_u32 s{S_FXN_P}, s{S_FXN_P}, {WS_FLAG + F_XN}
    s_lshr_b32 s{S_FPF_C}, s19, 2
    s_lshl_b32 s{S_FPF_C}, s{S_FPF_C}, 11
    s_add_u32 s{S_FPF_C}, s{S_FPF_C}, {WS_FLAG + F_PE}
    s_lshl_b32 s{S_FPF_P}, s16, 11
    s_lshl_b32 s15, s35, 7
    s_add_u32 s{S_FPF_P}, s{S_FPF_P}, s15
    s_add_u32 s{S_FPF_P}, s{S_FPF_P}, {WS_FLAG + F_PE}
    s_lshl_b32 s{S_FH_P}, s14, 8
    s_lshr_b32 s15, s12, 4
    s_lshl_b32 s15, s15, 7
    s_add_u32 s{S_FH_P}, s{S_FH_P}, s15
    s_and_b32 s15, s12, 15
    s_lshl_b32 s15, s15, 2
    s_add_u32 s{S_FH_P}, s{S_FH_P}, s15
    s_add_u32 s{S_FH_P}, s{S_FH_P}, {WS_FLAG + F_H}
    s_lshr_b32 s{S_FH_C}, s16, 1
    s_lshl_b32 s{S_FH_C}, s{S_FH_C}, 8
    s_lshl_b32 s15, s33, 7
    s_add_u32 s{S_FH_C}, s{S_FH_C}, s15
    s_add_u32 s{S_FH_C}, s{S_FH_C}, {WS_FLAG + F_H}
    s_mul_i32 s{S_HL}, s16, {2*TBH}
    s_mul_i32 s15, s33, {56*1024}
    s_add_u32 s{S_HL}, s{S_HL}, s15
    s_add_u32 s{S_HL}, s{S_HL}, {WS_H}
    s_mul_i32 s{S_HS}, s14, {4*TBH}
    s_lshr_b32 s15, s12, 4
    s_mul_i32 s15, s15, {56*1024}
    s_add_u32 s{S_HS}, s{S_HS}, s15
    s_and_b32 s15, s12, 15
    s_lshl_b32 s15, s15, 9
    s_add_u32 s{S_HS}, s{S_HS}, s15
    s_add_u32 s{S_HS}, s{S_HS}, {WS_H}
    s_lshl_b32 s{S_FW2_C}, s35, 8
    s_add_u32 s{S_FW2_C}, s{S_FW2_C}, {WS_FLAG + F_W2}
    s_mul_i32 s15, s12, 7
    s_lshr_b32 s15, s15, 3
    s_min_u32 s15, s15, 26
    s_lshl_b32 s15, s15, 7
    s_add_u32 s{S_FW1_C}, s15, {WS_FLAG + F_W1}
    """)
    k(f"""
    s_lshl_b32 s12, s2, 2
    s_add_u32 s12, s12, s17
    s_cmp_lt_u32 s12, 896
    s_cselect_b32 s26, {W_BYTES}, 0
    s_cselect_b32 s61, {WS_TOTAL}, 0
    s_mov_b32 s24, s4
    s_mov_b32 s25, s5
    s_lshr_b32 s13, s12, 3
    s_and_b32 s12, s12, 7
    s_cmp_ge_u32 s13, 56
    s_cselect_b32 s14, 1, 0
    s_cselect_b32 s15, 56, 0
    s_sub_u32 s13, s13, s15
    s_lshl_b32 s15, s14, 3
    s_add_u32 s15, s15, s12
    s_lshl_b32 s{S_FW2_P}, s15, 8
    s_lshl_b32 s16, s13, 2
    s_add_u32 s{S_FW2_P}, s{S_FW2_P}, s16
    s_add_u32 s{S_FW2_P}, s{S_FW2_P}, {WS_FLAG + F_W2}
    s_mul_i32 s{S_SHD}, s15, {W2T*1024}
    s_lshl_b32 s16, s13, 13
    s_lshl_b32 s60, s13, 11
    s_add_u32 s60, s60, {KM2 * 6 * 1024}
    s_cmp_lt_u32 s13, {KM2}
    s_cselect_b32 s16, s16, s60
    s_cselect_b32 s60, 1, {KT2}
    s_lshl_b32 s60, s60, 11
    s_add_u32 s{S_SHD}, s{S_SHD}, s16
    s_add_u32 s{S_SHD}, s{S_SHD}, {WS_W2}
    s_and_b32 s15, s13, 7
    s_mul_i32 s15, s15, 224
    s_lshr_b32 s16, s13, 3
    s_lshl_b32 s16, s16, 4
    s_add_u32 s15, s15, s16
    s_mul_i32 s14, s14, 1792
    s_add_u32 s15, s15, s14
    s_add_u32 s16, s15, 112
    s_lshl_b32 s12, s12, 8
    s_lshl_b32 s{S_SHA}, s15, 11
    s_add_u32 s{S_SHA}, s{S_SHA}, s12
    s_lshl_b32 s{S_SHB}, s16, 11
    s_add_u32 s{S_SHB}, s{S_SHB}, s12
    v_add_u32 v{VR+1}, 0x10000, v{VR}
    v_add_u32 v{VD}, s{S_M0}, v{VR}
    v_lshrrev_b32 v5, 5, v2
    v_and_b32 v6, 31, v2
    v_lshlrev_b32 v6, 4, v6
    v_mul_u32_u24 v7, {TBH}, v5
    v_add_u32 v{VST}, v7, v6
    v_mov_b32 v{VC2}, {f32bits(c1*0.044715):#x}
    v_lshlrev_b32 v{VF}, 2, v2
    v_lshrrev_b32 v3, 4, v2
    v_and_b32 v4, 15, v2
    v_lshlrev_b32 v4, 4, v4
    v_lshl_add_u32 v{VS0}, v3, 11, v4
    v_bfe_u32 v4, v2, 2, 3
    v_lshlrev_b32 v4, 8, v4
    v_lshl_add_u32 v4, v5, 14, v4
    v_and_b32 v3, 3, v2
    v_lshl_add_u32 v4, v3, 4, v4
    v_add_u32 v{VS1}, s{S_M0}, v4
    """)

    XP, YP, P0, P1, X, Yf, T, AY, AS0, AS1, AL, AO = 8, 24, 40, 56, 72, 104, 136, 0, 1, 2, 3, 4
    def row_addr():
        k(f"""
        v_and_b32 v6, 7, v{VTID}
        v_bfe_u32 v5, v{VTID}, 3, 2
        v_lshrrev_b32 v7, 5, v{VTID}
        v_lshl_add_u32 v7, v7, 4, v5
        v_lshlrev_b32 v{AY}, 3, v6
        v_lshl_add_u32 v{AY}, v7, 7, v{AY}
        v_lshlrev_b32 v{AO}, 11, v6
        v_lshl_add_u32 v{AO}, v7, 4, v{AO}
        v_lshrrev_b32 v{AS0}, 6, v{VTID}
        v_lshlrev_b32 v{AS0}, 3, v{AS0}
        v_lshl_add_u32 v{AS0}, v6, 5, v{AS0}
        v_bfe_u32 v7, v{VTID}, 4, 1
        v_lshl_add_u32 v{AS0}, v7, 2, v{AS0}
        v_add_u32 v{AS0}, {LDS_ST}, v{AS0}
        v_lshlrev_b32 v{AS1}, 5, v6
        v_add_u32 v{AS1}, {LDS_ST}, v{AS1}
        v_lshlrev_b32 v{AL}, 4, v{VTID}
        v_add_u32 v{AL}, {LDS_Y}, v{AL}
        """)
    def unpack(dst, src):
        for e in range(32): unpk(k, dst + e, src + e // 2, e & 1)
    def stats(off):
        k(f"v_pk_add_f32 v[{T}:{T+1}], v[{X}:{X+1}], v[{X+2}:{X+3}]")
        k(f"v_pk_mul_f32 v[{T+2}:{T+3}], v[{X}:{X+1}], v[{X}:{X+1}]")
        for e in range(2, 32, 2):
            if e > 2: k(f"v_pk_add_f32 v[{T}:{T+1}], v[{T}:{T+1}], v[{X+e}:{X+e+1}]")
            k(f"v_pk_fma_f32 v[{T+2}:{T+3}], v[{X+e}:{X+e+1}], v[{X+e}:{X+e+1}], v[{T+2}:{T+3}]")
        R = T + 8
        k(f"""
        v_add_f32 v{T}, v{T}, v{T+1}
        v_add_f32 v{T+2}, v{T+2}, v{T+3}
        v_permlane16_swap_b32 v{T}, v{T+2}
        v_add_f32 v{T}, v{T}, v{T+2}
        v_add_f32_dpp v{T}, v{T}, v{T} row_ror:8 row_mask:0xf bank_mask:0xf
        v_mov_b32 v{T+1}, v{T}
        v_permlane32_swap_b32 v{T}, v{T+1}
        v_add_f32 v{T}, v{T}, v{T+1}
        ds_write_b32 v{AS0}, v{T} offset:{off}
        s_waitcnt lgkmcnt(0)
        s_barrier
        ds_read_b128 v[{R}:{R+3}], v{AS1} offset:{off}
        ds_read_b128 v[{R+4}:{R+7}], v{AS1} offset:{off+16}
        s_waitcnt lgkmcnt(0)
        v_pk_add_f32 v[{R}:{R+1}], v[{R}:{R+1}], v[{R+2}:{R+3}]
        v_pk_add_f32 v[{R+4}:{R+5}], v[{R+4}:{R+5}], v[{R+6}:{R+7}]
        v_pk_add_f32 v[{R}:{R+1}], v[{R}:{R+1}], v[{R+4}:{R+5}]
        v_mul_f32 v{R}, {f32bits(1/1024):#x}, v{R}
        v_mul_f32 v{R+1}, {f32bits(1/1024):#x}, v{R+1}
        v_fma_f32 v{R+1}, -v{R}, v{R}, v{R+1}
        v_max_f32 v{R+1}, 0, v{R+1}
        v_cvt_pk_bf16_f32 v{R+2}, v{R}, v{R+1}
        v_lshlrev_b32 v{R}, 16, v{R+2}
        v_and_b32 v{R+1}, 0xffff0000, v{R+2}
        v_add_f32 v{R+1}, {f32bits(1e-5):#x}, v{R+1}
        v_cvt_pk_bf16_f32 v{R+1}, v{R+1}, v{R+1}
        v_lshlrev_b32 v{R+1}, 16, v{R+1}
        v_sqrt_f32 v{R+1}, v{R+1}
        v_cvt_pk_bf16_f32 v{R+1}, v{R+1}, v{R+1}
        v_lshlrev_b32 v{R+1}, 16, v{R+1}
        v_rcp_f32 v{T+4}, v{R+1}
        v_mov_b32 v{T+5}, v{T+4}
        v_mul_f32_e64 v{T+6}, -v{R}, v{T+4}
        v_mov_b32 v{T+7}, v{T+6}
        """)
    def sentinel_loop(name, loads, regs, between=None, skip_first=False, tagged=False):
        k(f"s_mov_b32 s{S_SP}, {SPIN}")
        regs = list(regs)
        if not skip_first: loads()
        if between: between()
        k(f"s_branch {name}_chk")
        k.label(name)
        if pnap: k(f"s_sleep {pnap}")
        loads()
        k.label(name + "_chk")
        if tagged:
            k(f"s_waitcnt vmcnt(0)\nv_or3_b32 v{T+16}, v{regs[0]}, v{regs[1]}, v{TMP+8}\nv_bitop3_b32 v{T+17}, v{regs[0]}, v{regs[1]}, v{TMP+8} bitop3:0x80")
            for i in range(2, len(regs), 2):
                k(f"v_or3_b32 v{T+16}, v{T+16}, v{regs[i]}, v{regs[i+1]}\nv_bitop3_b32 v{T+17}, v{T+17}, v{regs[i]}, v{regs[i+1]} bitop3:0x80")
            k(f"v_xor_b32 v{T+16}, v{T+16}, v{T+17}\nv_lshlrev_b32 v{T+16}, 16, v{T+16}\nv_cmp_ne_u32 vcc, 0, v{T+16}")
        else:
            k(f"s_waitcnt vmcnt(0)\nv_max_u32 v{T+16}, v{regs[0]}, v{regs[1]}")
            for i in range(2, len(regs), 2): k(f"v_max3_u32 v{T+16}, v{T+16}, v{regs[i]}, v{regs[i+1]}")
            k(f"v_cmp_eq_u32 vcc, -1, v{T+16}")
        k(f"s_sub_u32 s{S_SP}, s{S_SP}, 1\ns_cbranch_scc1 {name}_out\ns_cbranch_vccnz {name}")
        k.label(name + "_out")

    row_addr()
    k.wait(vm=sid["q"])
    unpack(X, QP)
    stats(0)
    def y_loads():
        assert WS_Y == 0
        for i in range(4):
            for h in range(2):
                r = YP + 4 * i + 2 * h
                k(f"buffer_load_dwordx2 v[{r}:{r+1}], v{AY}, {SW}, s{S_ROWY} offen offset:{512*i + 64*h} sc1")
    sentinel_loop("L_ypoll", y_loads, range(YP, YP + 16))
    stamp(4)
    for it in sh_reads(1): k(it[2].replace("v55", f"v{TMP+12}"))
    for i in range(4): k(f"ds_write_b128 v{AL}, v[{YP+4*i}:{YP+4*i+3}] offset:{4096*i}")
    unpack(Yf, YP)
    k("s_waitcnt lgkmcnt(0)\ns_barrier")
    def raw_stage(sidx):
        k(f"s_add_u32 m0, s{S_M0}, {sidx * 16384}\ns_add_u32 s{S_DMA}, s{S_W1}, {sidx * 16384}")
        for i in range(4): k(f"buffer_load_dwordx4 v{VD}, {SW}, s{S_DMA} offen offset:{1024*i} lds")
    raw_stage(0); raw_stage(1)

    k.label("L_layer")
    k.nvm = k.vm_done = 0; k.nlg = k.lg_done = 0
    ring = [("W1", s) for s in range(28)]
    SH_POS = 17
    ring[SH_POS:SH_POS] = [("SH", 0), ("SH", 1)]
    assert SH_POS % NS + 1 < NS
    ring += [("W2", s) for s in range(28)]
    NREAL = len(ring)
    st = {"s": None}
    def dma(idx, i):
        kind, s = ring[idx]; pre_ = []
        if kind == "SH":
            st["s"] = None
            return [f"s_add_u32 m0, s{S_M0}, {(idx % NS) * 16384 + 1024 * i}", f"s_add_u32 s{S_DMA}, s{S_SHB if s else S_SHA}, {8192 * i}",
                    f"buffer_load_dwordx4 v{VS0}, {SD}, s{S_DMA} offen lds"]
        if st["s"] != idx:
            pre_ = [f"s_add_u32 m0, s{S_M0}, {(idx % NS) * 16384}", f"s_add_u32 s{S_DMA}, s{S_W2 if kind == 'W2' else S_W1}, {s * 16384}"]
            st["s"] = idx
        return pre_ + [f"buffer_load_dwordx4 v{VD}, {'s[88:91]' if kind == 'NX' else SW}, s{S_DMA} offen offset:{1024*i} lds"]
    w_id = {}; t_id = {}
    def pre_stage(idx):
        for i in range(4): w_id[idx] = k("\n".join(dma(idx, i)))
    pre_stage(2); pre_stage(3); w_id[0] = w_id[1] = 0
    for e in range(0, 32, 2):
        k(f"v_pk_fma_f32 v[{T}:{T+1}], v[{X+e}:{X+e+1}], v[{T+4}:{T+5}], v[{T+6}:{T+7}]")
        k(f"v_pk_fma_f32 v[{X+e}:{X+e+1}], v[{T}:{T+1}], v[{Yf+e}:{Yf+e+1}], v[{X+e}:{X+e+1}]")
        k(f"v_cvt_pk_bf16_f32 v{XP+e//2}, v{X+e}, v{X+e+1}")
    for i in range(4): k(f"ds_write_b128 v{AL}, v[{XP+4*i}:{XP+4*i+3}] offset:{16384 + 4096*i}")
    unpack(X, XP)
    stats(256)
    k(f"s_lshl_b32 s{S_B}, s{S_LAY}, 22\ns_add_u32 s{S_B}, s{S_B}, s{S_ROWF}\ns_add_u32 s{S_B}, s{S_B}, {WS_XN}")
    for e in range(0, 32, 2):
        k(f"v_pk_fma_f32 v[{X+e}:{X+e+1}], v[{X+e}:{X+e+1}], v[{T+4}:{T+5}], v[{T+6}:{T+7}]")
        k(f"v_cvt_pk_bf16_f32 v{P0+e//2}, v{X+e}, v{X+e+1}")
        if e % 8 == 6:
            i = e // 8
            k(f"buffer_store_dwordx4 v[{P0+4*i}:{P0+4*i+3}], v{VROW}, {SW}, s{S_B} offen offset:{1024*i} sc1")
    stamp(5)
    xn_st = k.nvm
    ET = 160
    for t in range(4): k(f"s_add_u32 s{S_T+t}, s{S_XN}, {t*32768}")
    def e_loads():
        for u in range(E):
            for t in range(4):
                r = ET + 16 * u + 4 * t
                k(f"buffer_load_dwordx4 v[{r}:{r+3}], v{VR}, {SW}, s{S_T+t} offen offset:{1024*u} sc1")
    def e_between():
        k.wait(vm=xn_st); k("s_barrier")
        k(flag_store(S_FXN_P))
    if e_late:
        e_between(); sentinel_loop("L_epoll", e_loads, range(ET, ET + 16 * E))
    else: sentinel_loop("L_epoll", e_loads, range(ET, ET + 16 * E), e_between)
    k(f"s_cmp_lg_u32 s{S_LAY}, 0\ns_cbranch_scc1 L_have")
    n0 = k.nvm
    for sidx in (4, 5, 6): raw_stage(sidx)
    k.nvm = n0
    k.label("L_have")
    for sidx in (4, 5, 6): w_id[sidx] = n0 + 1
    st["s"] = None
    for r in range(16 * E): k(f"v_accvgpr_write_b32 a{4*RW + r}, v{ET + r}")
    stamp(6)

    groups = [(1, u, g) for u in range(KM) for g in range(14)]
    tail_start = len(groups)
    for b in range(7):
        for u in range(KM, 32): groups += [(1, u, b), (1, u, 7 + b)]
    G2S = len(groups)
    groups += [(2, u, g) for u in range(KM2) for g in range(8)]
    T2S = len(groups)
    for p in range(4):
        for u in range(KM2, 56): groups += [(2, u, 2 * p), (2, u, 2 * p + 1)]
    NGR = len(groups); GPB = 2 * KT
    NTk = {1: 4, 2: 2}
    tm = [0]
    for kd, _, _ in groups: tm.append(tm[-1] + NTk[kd])
    real = [i for i, r_ in enumerate(ring) if r_[0] in ("W1", "W2")]
    stage_of = lambda i: real[i // 16]
    bars = {16 * n - la_bar: real[n] for n in range(4, 56)}
    bar_list = sorted(bars)
    first_use = {}; last_use = {}
    for i, (kd, u, g) in enumerate(groups):
        first_use.setdefault((kd, u), i); last_use[(kd, u)] = i
    def slot(kd, u, t):
        return (u % KT) * 4 + t if kd == 1 else (4 * (KM % KT) + 2 * u + t) % (4 * KT)
    AT = lambda kd, u, t: 4 * RW + 4 * slot(kd, u, t)
    AW = lambda i: 4 * (i % RW)
    acc = lambda kd, g, t: (g * NTk[kd] + t) * 4
    tok_base = {t: (1, 0) for t in range(4)}
    for u in range(E):
        for t in range(4): t_id[((1, u), t)] = 0
    def tok(kd, u, t):
        off = u * 1024; pre_ = []
        if tok_base.get(t, (None, 0))[0] != kd or off - tok_base[t][1] > 4095:
            tok_base[t] = (kd, off & ~4095)
            pre_ = [f"s_add_u32 s{S_T+t}, s{S_XN if kd == 1 else S_HL}, {t * (32768 if kd == 1 else TBH) + tok_base[t][1]}"]
        a = AT(kd, u, t)
        return pre_ + [f"buffer_load_dwordx4 a[{a}:{a+3}], v{VR}, {SW}, s{S_T+t} offen offset:{off - tok_base[t][1]}"]
    PH_B = [1, 3, 4, 5, 6]; PH_U = [0, 16, 32, 40, 48]
    P_SHR = tail_start + 6
    P_SH_END = tail_start + GPB - 2
    P_PX = 0
    P_PF = tail_start + pf_at
    P_W1S = w1s
    P_PW1 = 170
    P_PW2 = tail_start + 3 * GPB
    P_PH = [tail_start + 6 * GPB - 4 - chk] + [first_use[(2, u_)] - pb for u_, pb in zip(PH_U[1:], ph_back)]
    P_PPF = P_PH[4] + 2 * chk + 4
    allp = sorted(P_PH + [P_PPF]); assert all(b_ - a_ > 2 * chk for a_, b_ in zip(allp, allp[1:])), allp
    CHK = {1: chk, 2: 2 * chk}
    CT_LAB = [150, 290, 370, 445, 590, 800]
    CT_AT = [4, 180, 300, 380, 470, 640]
    assert P_PPF > 660
    def done_bar(idx):
        if ring[idx][0] == "SH": return P_SH_END
        last = 16 * real.index(idx) + 15
        return next(p for p in bar_list if p > last)
    def earliest(it):
        if it[1] == "W":
            idx = it[2]
            e = done_bar(idx - NS) if idx >= NS else -1
            if ring[idx][0] == "W2": e = max(e, P_PW2 + CHK[1] + 1)
            if ring[idx][0] == "W1" and 16 * ring[idx][1] + 15 >= tail_start: e = max(e, P_PW1 + CHK[1] + 1)
            return e
        kd, u = it[2]
        if kd == 1 and u in (KT - 2, KT - 1): return P_W1S + 30
        if kd == 1: return P_PX + CHK[1] + 1 if u < KT else last_use[(1, u - KT)] + 1
        e = last_use[(1, KM + u // 2)] + 1 if u < 2 * KT else last_use[(2, u - 2 * KT)] + 1
        return max(e, P_PH[max(j for j in range(5) if PH_U[j] <= u)] + CHK[2 if u >= 16 else 1] + 1)
    items = []
    for idx in range(7, NREAL):
        d = tm[P_SHR] - 100 if ring[idx][0] == "SH" else tm[16 * real.index(idx) - la_bar]
        items += [(d, "W", idx, i) for i in range(4)]
    for (kd, u), fu in first_use.items():
        if kd == 1 and u < E: continue
        items += [(tm[fu], "T", (kd, u), t) for t in range(NTk[kd])]
    items.sort(key=lambda x: x[0])
    nxt_t = 1e9; sched = []
    for it in reversed(items):
        late = it[0] >= tm[G2S]
        nxt_t = min(it[0] - (la2 if late else la1), nxt_t - 1.0 / (rate2 if nxt_t > tm[G2S] else rate1))
        e = earliest(it)
        sched.append((max(nxt_t, tm[e] if e >= 0 else -1e9),) + it[1:])
    sched.reverse()
    last_tok = max(x[0] for x in sched if x[1] == "T" and x[2][0] == 1)
    prev = last_tok
    for n_, it in enumerate(sched):
        if it[1] == "W" and it[0] > last_tok and prev < tm[G2S] - 8:
            prev = max(prev + 8, tm[earliest(it)]); sched[n_] = (min(it[0], prev),) + it[1:]
    wq = [x for x in sched if x[1] == "W"]
    wq.sort(key=lambda x: (x[2], x[3]))
    run = 1e9
    for n_ in range(len(wq) - 1, -1, -1):
        e = earliest(wq[n_]); run = min(run, wq[n_][0])
        wq[n_] = (max(run, tm[e] if e >= 0 else -1e9),) + wq[n_][1:]
    prev = max(x[0] for x in sched)
    for idx in range(NREAL, len(ring)):
        for i in range(4 if ring[idx][0] == "NX" else 0):
            prev = max(prev + 6, tm[done_bar(idx - NS)]); wq.append((prev, "W", idx, i))
    items = sorted(wq + [x for x in sched if x[1] == "T"], key=lambda x: x[0])
    prev = -1e9; slackv = []
    for n_, it in enumerate(items):
        if it[0] >= 0:
            prev = max(it[0], prev + 1.0 / (rmax if prev < tm[G2S] else rmax2)); items[n_] = (prev,) + it[1:]
        if it[1] == "T": slackv.append((tm[first_use[it[2]]] - items[n_][0], it[2]))
    MINSL = sorted(slackv)[:3]
    def lines(it):
        return dma(it[2], it[3]) if it[1] == "W" else tok(it[2][0], it[2][1], it[3])
    def record(it, i):
        if it[1] == "W": w_id[it[2]] = i
        else: t_id[(it[2], it[3])] = i
    while items and items[0][0] < 0:
        it = items.pop(0); record(it, k("\n".join(lines(it))))
    def rd(i):
        off = (stage_of(i) % NS) * 16384 + (i % 16) * 1024
        return f"ds_read_b128 a[{AW(i)}:{AW(i)+3}], v{VR + off // 65536} offset:{off % 65536}"
    def gelu4(G, U, P, tb):
        Tm = [tb + e for e in range(4)]
        o = [f"v_mul_f32 v{Tm[e]}, v{G+e}, v{G+e}" for e in range(4)]
        o += [f"v_fmaak_f32 v{Tm[e]}, v{VC2}, v{Tm[e]}, {f32bits(c1):#x}" for e in range(4)]
        o += [f"v_mul_f32 v{Tm[e]}, v{Tm[e]}, v{G+e}" for e in range(4)]
        for e in range(4): o += [f"v_exp_f32 v{Tm[e]}, v{Tm[e]}", f"v_mul_f32 v{U+e}, v{U+e}, v{G+e}"]
        o += [f"v_add_f32 v{Tm[e]}, 1.0, v{Tm[e]}" for e in range(4)]
        o += [f"v_rcp_f32 v{Tm[e]}, v{Tm[e]}" for e in range(4)]
        o += [f"v_mul_f32 v{U+e}, v{U+e}, v{Tm[e]}" for e in range(4)]
        o += [f"v_cvt_pk_bf16_f32 v{P}, v{U}, v{U+1}", f"v_cvt_pk_bf16_f32 v{P+1}, v{U+2}, v{U+3}"]
        return o
    def epilogue(b, t):
        a = acc(1, b, 2 * t); tb = TMP + 4 * t; sr = (S_C, S_E)[t]
        o = gelu4(a, acc(1, 7 + b, 2 * t), a, tb) + gelu4(acc(1, b, 2 * t + 1), acc(1, 7 + b, 2 * t + 1), a + 2, tb)
        o += [f"s_add_u32 s{sr}, s{S_HS}, {8192 * b + 2 * TBH * t}",
              f"v_permlane32_swap_b32 v{a}, v{a+2}", f"v_permlane32_swap_b32 v{a+1}, v{a+3}",
              f"buffer_store_dwordx4 v[{a}:{a+3}], v{VST}, {SW}, s{sr} offen sc1"]
        return [(x, b) for x in o]
    def p_store(p):
        o = []
        for t in range(2 if p >= 0 else 0):
            a = acc(2, 2 * p, t); b = acc(2, 2 * p + 1, t)
            o += [f"v_cvt_pk_bf16_f32 v{a}, v{a}, v{a+1}", f"v_cvt_pk_bf16_f32 v{a+1}, v{a+2}, v{a+3}",
                  f"v_cvt_pk_bf16_f32 v{a+2}, v{b}, v{b+1}", f"v_cvt_pk_bf16_f32 v{a+3}, v{b+2}, v{b+3}",
                  f"s_add_u32 s{S_C}, s{S_PS}, {8192 * t + p * 0x100000}",
                  f"buffer_store_dwordx4 v[{a}:{a+3}], v{VR}, {SW}, s{S_C} offen sc1"]
        return o
    cost = lambda s: 2 if s.startswith(("v_exp", "v_rcp", "v_permlane", "buffer_")) else 1

    published = 3; r_id = {}; rp = 0; FL_AT = []; PE_AT = []; ready_b = -1; ready_at = 0
    while rp < RW - 2:
        r_id[rp] = k(rd(rp)); rp += 1
    seen = set(); epi = [[], []]; q = []; hold = 0; hst = {}; fl_due = {}; fl_next = 0; turn = 0
    last_st = {"h": None, "sh": None, "pf": None}; pend = {}; named = {}
    def emit_q():
        t_, c = q.pop(0)
        if c and c[0] == "L": k.wait(lg=named[c[1]])
        if c and c[0] == "Wv": k.wait(vm=w_id[c[1]])
        id_ = k(t_)
        if not c: return
        if c[0] == "V": record(c[1], id_)
        elif c[0] == "R": r_id[c[1]] = id_
        elif c[0] == "N": named[c[1]] = id_
        elif c[0] == "L": last_st["sh"] = id_
        elif c[0] in ("PF", "PG"): last_st["pf"] = id_
    for i, (kd, u, g) in enumerate(groups):
        NT = NTk[kd]
        if i == tail_start: stamp(7)
        if i == G2S: stamp(8); G2L = len(k.lines)
        if i == T2S and diag == 5: stamp(18)
        if i in bars:
            pub = bars[i]
            assert not any(it[1] == "W" and it[2] <= pub and ring[it[2]][0] != "SH" for it in items), (i, pub)
            while any(c and c[0] == "V" and c[1][1] == "W" and c[1][2] <= pub for _, c in q): emit_q()
            k.wait(vm=w_id[pub]); k("s_barrier"); published = pub
        n = 0
        while rp < NGR and rp <= i + RW - 2 and stage_of(rp) <= published and n < 2:
            q.append((rd(rp), ("R", rp))); rp += 1; n += 1
        if items and items[0][0] <= tm[i]:
            it = items.pop(0); ls = lines(it)
            q += [(x, None) for x in ls[:-1]] + [(ls[-1], ("V", it))]
        if P_SHR <= i < P_SHR + 16 and (i - P_SHR) % 4 == 0:
            assert not any(it[1] == "W" and ring[it[2]][0] == "SH" for it in items)
            p = (i - P_SHR) // 4
            base = (SH_POS % NS) * 16384
            for h in range(2):
                f = TMP + 8 + 4 * h; off = base + p * 64 + h * 8
                q.append((f"ds_read_b64_tr_b16 v[{f}:{f+1}], v{VS1} offset:{off}", ("Wv", SH_POS + 1)))
                q.append((f"ds_read_b64_tr_b16 v[{f+2}:{f+3}], v{VS1} offset:{off + 2048}", ("N", (p, h))))
        if P_SHR + 2 <= i < P_SHR + 18 and (i - P_SHR) % 4 == 2:
            p = (i - P_SHR) // 4
            q.append((f"s_add_u32 s{S_D}, s{S_D}, s60" if p else f"s_mov_b32 s{S_D}, s{S_SHD}", None))
            for h in range(2):
                f = TMP + 8 + 4 * h
                q.append((f"buffer_store_dwordx4 v[{f}:{f+3}], v{VR}, {SX}, s{S_D} offen offset:{1024*h} sc1", ("L", (p, h))))
        if P_W1S <= i < P_W1S + 8 * w1_step and (i - P_W1S) % w1_step == 0:
            q.append((sh_stores(1)[(i - P_W1S) // w1_step][2], ("PF",)))
        if i == P_W1S + 40:
            k.wait(vm=last_st["pf"]); k(f"s_mov_b64 exec, 1\nbuffer_store_dword v{VTAG}, off, {SX}, s62 sc1\ns_mov_b64 exec, -1\ns_mov_b32 s30, s61")
        if ct and i in CT_AT:
            j = CT_AT.index(i)
            q += [(f"v_lshlrev_b32 v{TMP+13}, 3, v{VR}", None), (f"s_mov_b32 s{S_SP}, L_ct{j}-L_body", None),
                  (f"buffer_load_dword v{TMP+14}, v{TMP+13}, s[80:83], s{S_SP} offen", None)]
        if i in CT_LAB: k.label(f"L_ct{CT_LAB.index(i)}")
        if i == P_SH_END + 12:
            k.wait(vm=last_st["sh"]); k(f"s_mov_b64 exec, 1\nbuffer_store_dword v{VTAG}, off, {SX}, s{S_FW2_P} sc1\ns_mov_b64 exec, -1")
        PFR, PFS = (TMP, S_C) if pf_at < GPB else (TMP + 8, S_D)
        if i == P_PF: q += [(f"v_mov_b32 v{PFR+e}, -1", None) for e in range(4)]
        arm = list(range(0 if sent else 4, 8))
        if P_PF <= i < P_PF + len(arm) * pf_step and (i - P_PF) % pf_step == 0:
            t = arm[(i - P_PF) // pf_step]
            q += [(f"s_add_u32 s{PFS}, s{S_PS}, {8192 * (t & 1) + (t >> 1) * 0x100000}", None),
                  (f"buffer_store_dwordx4 v[{PFR}:{PFR+3}], v{VR}, {SW}, s{PFS} offen sc1", ("PF" if PFR == TMP else "PG",))]
        TW_AT = P_PW2 + chk + 4
        if TW_AT <= i < TW_AT + tw * tw_step and (i - TW_AT) % tw_step == 0:
            j = (i - TW_AT) // tw_step
            q += [(f"v_lshlrev_b32 v{TMP+13}, 3, v{VR}", None), (f"s_add_u32 s{S_SP}, s91, {tw0 * 1024 + j * 131072}", None),
                  (f"buffer_load_dword v{TMP+14}, v{TMP+13}, {SW}, s{S_SP} offen", None)]
        if sent and i == P_PF + 8 * pf_step + 30: named["pe"] = (0, last_st["pf"])
        if sent and i == P_PPF - 8: q += [(f"v_and_b32 v{TMP+13}, 60, v{VF}", None), (f"v_lshlrev_b32 v{TMP+13}, 5, v{TMP+13}", None)]
        if not sent and i == NGR - pe_back - 8:
            q += [(f"v_and_b32 v{TMP+13}, 60, v{VF}", None), (f"v_lshlrev_b32 v{TMP+13}, 5, v{TMP+13}", None)]
        if not sent and i == NGR - pe_back: q.append((poll_load(S_FPF_C), ("N", "pe_ld")))
        if "pe" in named and tm[i] >= named["pe"][0]:
            k.wait(vm=named.pop("pe")[1])
            k(flag_store(S_FPF_P)); k(f"s_add_u32 s{S_FPF_P}, s{S_FPF_P}, 0x20000")
            PE_AT.append(i)
        if fl_next in fl_due and tm[i] >= fl_due[fl_next][0]:
            if diag == 4: stamp(12 + 2 * fl_next)
            k.wait(vm=fl_due[fl_next][1])
            if diag == 4: stamp(13 + 2 * fl_next)
            k(flag_store(S_FH_P)); k(f"s_add_u32 s{S_FH_P}, s{S_FH_P}, 0x4000")
            FL_AT.append(i); fl_next += 1
        polls = [(P_PW1, S_FW1_C, "w1", 1), (P_PW2, S_FW2_C, 56, 1)] + [(P_PH[j], S_FH_C, 16, j + 1) for j in range(4)] + [(P_PPF if sent else -100, S_FPF_C, 16, 1), (P_PX, S_FXN_C, 8, 1), (P_PH[4], S_FH_C, 16, 5)]
        for z, (pos, soff, n_, lvl) in enumerate(polls):
            if i == pos: pend[pos] = k(poll_load(soff))
            if i == pos + CHK[kd] and pos in pend:
                if z >= 7: z += 1
                if diag == 3: stamp(12 + 2 * z)
                poll_check(pend.pop(pos), soff, n_, lvl)
                if soff == S_FH_C: k(f"s_add_u32 s{S_FH_C}, s{S_FH_C}, 0x4000")
                if diag == 3: stamp(13 + 2 * z)
        if tail_start + GPB <= i <= G2S and (i - tail_start) % GPB == 0:
            b = (i - tail_start) // GPB - 1
            assert not any(c_ and c_[0] == "PF" for _, c_ in q)
            if not epi[0] and not epi[1]: hold = 4
            for t in range(2): epi[t] += epilogue(b, t)
            ready_b = b; ready_at = tm[i] + 4
        if i > T2S and (i - T2S) % (2 * KT2) == 4:
            assert fl_next == 5 and not epi[0]
            pp_ = (i - T2S) // (2 * KT2) - 1
            epi[0] += [(x, 100 + pp_) for x in p_store(pp_)]
        if i == G2S: assert all(x[1] >= 4 for c_ in epi for x in c_)
        def waits(i, kd, u, t):
            if i not in r_id or ((kd, u), t) not in t_id: return None
            lgw = r_id[i]
            if lgw > k.lg_done:
                for j in range(1, wgran):
                    if i + j in r_id and k.nlg - r_id[i + j] >= 2: lgw = r_id[i + j]
            vmw = t_id[((kd, u), t)]
            if vmw > k.vm_done and i > 28 and ((kd, u), NTk[kd] - 1) in t_id: vmw = t_id[((kd, u), NTk[kd] - 1)]
            return vmw, lgw
        for t in range(NT):
            while waits(i, kd, u, t) is None: emit_q()
            vmw, lgw = waits(i, kd, u, t)
            k.wait(vm=vmw, lg=lgw)
            a = acc(kd, g, t)
            c = f"v[{a}:{a+3}]" if (kd, g, t) in seen else "0"
            seen.add((kd, g, t))
            at = AT(kd, u, t)
            k(f"v_mfma_f32_16x16x32_bf16 v[{a}:{a+3}], a[{AW(i)}:{AW(i)+3}], a[{at}:{at+3}], {c}")
            budget = 2 if kd == 1 else b2
            if len(epi[0]) + len(epi[1]) > thr and (tm[i] + t) % 2 == 0: budget += 1
            if t + 1 < NT: nw = waits(i, kd, u, t + 1)
            elif i + 1 < NGR:
                nw = waits(i + 1, groups[i + 1][0], groups[i + 1][1], 0)
                if i + 1 in bars: budget -= 1
            else: nw = (0, 0)
            if nw is None or nw[0] > k.vm_done or nw[1] > k.lg_done: budget -= 1
            used = 0
            while q and used < 2:
                mem = q[0][0].startswith(("ds_", "buffer_"))
                c_ = cost(q[0][0])
                if (mem and used) or (c_ > budget and not (len(q) > 5 and used == 0)): break
                if used and len(q) <= NT - t: break
                emit_q(); budget -= c_; used += 1
            while budget > 0:
                ok = [c_ for c_ in (turn, 1 - turn) if epi[c_] and cost(epi[c_][0][0]) <= budget
                      and not (epi[c_][0][1] == ready_b and tm[i] + t < ready_at)]
                if not ok: break
                big = [c_ for c_ in ok if cost(epi[c_][0][0]) == 2]
                c_ = big[0] if big else ok[0]
                if abs(len(epi[c_]) - len(epi[1 - c_])) > 24 and len(epi[c_]) < len(epi[1 - c_]):
                    if 1 - c_ in ok: c_ = 1 - c_
                    else: break
                x, b = epi[c_].pop(0); budget -= cost(x); turn = 1 - c_
                id_ = k(x)
                if b == 101 and not epi[0] and not sent: named["pe"] = (tm[i] + t + pe_lag, id_)
                if x.startswith("buffer_store") and b < 7:
                    hst[(b, c_)] = id_
                    if b in PH_B and (b, 0) in hst and (b, 1) in hst:
                        fl_due[PH_B.index(b)] = (tm[i] + t + fl_lag, id_)
    while epi[0] and epi[0][0][1] == 102: k(epi[0].pop(0)[0])
    assert len(PE_AT) == 1
    assert not items and not epi[0] and not epi[1] and not q and not pend and fl_next == 5
    assert all(tm[f] + 60 < tm[p] for f, p in zip(FL_AT, P_PH)), (FL_AT, P_PH)
    k.info = dict(pe=(PE_AT, NGR), minsl=[(int(a_), b_) for a_, b_ in MINSL], flags=FL_AT, polls=P_PH, slack=[tm[p] - tm[f] for f, p in zip(FL_AT, P_PH)])
    if abl:
        keep = []
        for l in k.lines[G2L:]:
            x = l.strip()
            if "T" in abl and x.startswith("buffer_load_dwordx4 a["): continue
            if "W" in abl and x.endswith(" lds"): continue
            if "D" in abl and x.startswith("ds_read_b128"): continue
            if "B" in abl and x == "s_barrier": continue
            if "V" in abl and x.startswith(("v_mul", "v_fmaak", "v_exp", "v_rcp", "v_add_f32")): continue
            keep.append(l)
        k.lines[G2L:] = keep
    stamp(9)
    PP = 160
    for x in p_store(3): k(x)
    if not sent:
        pe_ld = named["pe_ld"]
        k(flag_store(S_FPF_P)); k(f"s_add_u32 s{S_FPF_P}, s{S_FPF_P}, 0x20000")
    VRL = TMP + 15
    k(f"s_lshl_b32 s{S_B}, s{S_LAY}, 23\ns_add_u32 s{S_B}, s{S_B}, s{S_ROWL}")
    k(f"v_lshrrev_b32 v{TMP+14}, 12, v{VROW}\nv_and_b32 v{VRL}, 0x3ff, v{VROW}\nv_lshl_add_u32 v{VRL}, v{TMP+14}, 10, v{VRL}")
    def p_loads(which):
        def f():
            for i in which:
                for j in range(2):
                    r = PP + 8 * i + 4 * j
                    k(f"s_add_u32 s{S_C}, s{S_B}, {WS_P + j*MB4 + i*0x100000}")
                    x = k(f"buffer_load_dwordx4 v[{r}:{r+3}], v{VRL}, {SW}, s{S_C} offen sc1")
            return x
        return f
    def add_p(which):
        for i in which:
            for e in range(8 * i, 8 * i + 8, 2):
                for j in range(2):
                    r = PP + 8 * i + 4 * j + (e % 8) // 2
                    unpk(k, T + 2 * j, r, 0); unpk(k, T + 2 * j + 1, r, 1)
                k(f"v_pk_add_f32 v[{T}:{T+1}], v[{T}:{T+1}], v[{T+2}:{T+3}]")
                k(f"v_pk_add_f32 v[{X+e}:{X+e+1}], v[{X+e}:{X+e+1}], v[{T}:{T+1}]")
                k(f"v_cvt_pk_bf16_f32 v{XP+e//2}, v{X+e}, v{X+e+1}")
                unpk(k, X + e, XP + e // 2, 0); unpk(k, X + e + 1, XP + e // 2, 1)
    if not sent:
        if diag == 5: stamp(12)
        poll_check(pe_ld, S_FPF_C, 16)
        if diag == 5: stamp(13)
        e_ld = p_loads((0, 1))()
        k(f"s_add_u32 s{S_FPF_C}, s{S_FPF_C}, 0x20000")
        row_addr()
        for i in range(4): k(f"ds_read_b128 v[{XP+4*i}:{XP+4*i+3}], v{AL} offset:{16384 + 4096*i}")
        for i in range(4): k(f"ds_read_b128 v[{YP+4*i}:{YP+4*i+3}], v{AL} offset:{4096*i}")
        pl_ld = k(poll_load(S_FPF_C))
        k("s_waitcnt lgkmcnt(0)")
        unpack(X, XP)
        if diag == 5: stamp(14)
        poll_check(pl_ld, S_FPF_C, 16)
        if diag == 5: stamp(15)
        k(f"s_add_u32 s{S_FPF_C}, s{S_FPF_C}, 0x20000")
        def mid():
            k("s_barrier")
            add_p((0, 1)); unpack(Yf, YP)
            if diag == 5: stamp(16)
        sentinel_loop("L_ppoll", p_loads((2, 3)), range(PP + 16, PP + 32), mid)
    else:
        if diag == 5: stamp(12); stamp(13)
        k(f"s_add_u32 s{S_FPF_C}, s{S_FPF_C}, 0x20000")
        def first():
            row_addr()
            for i in range(4): k(f"ds_read_b128 v[{XP+4*i}:{XP+4*i+3}], v{AL} offset:{16384 + 4096*i}")
            for i in range(4): k(f"ds_read_b128 v[{YP+4*i}:{YP+4*i+3}], v{AL} offset:{4096*i}")
            k("s_waitcnt lgkmcnt(0)\ns_barrier")
            unpack(X, XP); unpack(Yf, YP)
            if diag == 5: stamp(14)
        p_loads((0, 1, 2))()
        first()
        sentinel_loop("L_ppoll", p_loads((3,)), range(PP + 24, PP + 32))
        if diag == 5: stamp(15)
        sentinel_loop("L_ppoll2", p_loads((0, 1, 2)), range(PP, PP + 24), skip_first=True)
        if diag == 5: stamp(16)
    stamp(10)
    k(f"s_cmp_lg_u32 s{S_LAY}, 0\ns_cbranch_scc1 L_final")
    n0 = len(k.lines)
    add_p((0, 1, 2, 3) if sent else (2, 3))
    stats(0)
    body = k.lines[n0:]; del k.lines[n0:]
    for sidx in (0, 1, 4, 5, 6): raw_stage(sidx)
    dm = k.lines[n0:]; del k.lines[n0:]
    step = min(len(body) - 30, 150) // len(dm)
    for n_, l in enumerate(body):
        if n_ % step == 0 and dm: k.lines.append(dm.pop(0))
        k.lines.append(l)
    assert not dm
    stamp(11)
    if diag: k(f"v_mov_b32 v{VSTAMP-1}, v{VSTAMP}")
    k(f"""
    s_mov_b32 s{S_LAY}, 1
    s_mov_b32 s26, 0
    s_mov_b32 s30, 0
    s_mov_b32 s61, 0
    s_add_u32 s{S_XN}, s{S_XN}, {MB4}
    s_add_u32 s{S_HL}, s{S_HL}, {H_STRIDE}
    s_add_u32 s{S_HS}, s{S_HS}, {H_STRIDE}
    s_add_u32 s{S_PS}, s{S_PS}, {2*MB4}
    s_add_u32 s{S_FXN_P}, s{S_FXN_P}, 0x4000
    s_add_u32 s{S_FXN_C}, s{S_FXN_C}, 0x4000
    s_branch L_layer
    """)
    k.label("L_final")
    add_p((0, 1, 2, 3) if sent else (2, 3))
    k(f"s_or_b32 s16, s2, s17\ns_cbranch_scc1 L_noepoch\ns_add_u32 s87, s87, 1\nv_mov_b32 v{VP}, s87\ns_mov_b32 s16, {WS_FLAG + F_EPOCH}")
    k(f"s_mov_b64 exec, 1\nbuffer_store_dword v{VP}, off, {SW}, s16 sc1\ns_mov_b64 exec, -1")
    k.label("L_noepoch")
    srd(k, 32, 6, MB4)
    for i in range(4): k(f"buffer_store_dwordx4 v[{XP+4*i}:{XP+4*i+3}], v{AO}, s[32:35], s{S_ROWY} offen offset:{64*i}")
    if diag:
        k("s_waitcnt vmcnt(0)"); stamp(11)
        k(f"s_lshl_b32 s12, s2, 11\ns_lshl_b32 s13, s17, 9\ns_add_u32 s12, s12, s13\ns_add_u32 s12, s12, 0x8100000")
        k(f"buffer_store_dword v{VSTAMP-1}, v{VF}, {SW}, s12 offen\nbuffer_store_dword v{VSTAMP}, v{VF}, {SW}, s12 offen offset:256")
    k("s_endpgm")
    for lab, pre_, body in slow:
        k.label(lab); k("\n".join(pre_))
        k.label(lab + "_l"); k("\n".join(body)); k(f"s_cbranch_scc1 {lab}_l")
        k.label(lab + "_out"); k(f"s_waitcnt vmcnt(0)\ns_branch {lab}_ok")
    k.label("L_end"); k("s_endpgm")
    return (k, 512, 256), (k.name, 256, 256, 163840)

HEADER = open("interleave_layers__ssm_conv_h3__glu_gated_geglu__prompt.s.ref").read().split("; Override launch")[0]

def build(path, stamps=False, as_list=True, hpad=0, wpad=0, **kw):
    global TBH, W1T, W2T
    TBH = 224 * 512 + hpad; W1T = 448 + wpad; W2T = 448 + wpad
    asmlib.STAMPS[0] = stamps
    kk, l = gen_mega(**kw)
    txt = module(HEADER, [l], [kk])
    if not as_list: txt = txt.replace(f"; @launch kernel={l[0]} ", "; @launch ")
    txt = "\n".join(x.strip() if x.startswith("    ") else x for x in txt.split("\n"))
    open(path, "w").write(txt)
    return len(kk[0].lines), kk[0].padded, kk[0].info

if __name__ == "__main__":
    print(build("v6.s")); build("v6s.s", stamps=True); build("v6f.s", stamps=3)
```

```python
import math, struct, sys
import asmlib
from asmlib import *

MB4 = 0x400000
WS_TOTAL = 0x10000000
WS_Y, WS_KV = 0x0, 0x400000
WS_XN = 0x900000
WS_P = 0x5400000
WS_H = 0x1200000
H_STRIDE = 0x1000000
WS_W1, WS_W2, WS_FLAG = 0x3200000, 0x4200000, 0x5200000
WS_PL = 0x9000000
F_W0 = 0x14000
F_PE = 0x80000
W1T, W2T = 448, 448
F_W1, F_W2, F_PF, F_H, F_XN, F_KV, F_ARM, F_EPOCH = 0x0, 0x1000, 0x2000, 0x20000, 0x8000, 0x100000, 0x11000, 0x12000
H_BYTES = 2048 * 3584 * 2
W_BYTES = 1024 * 3584 * 2
TBH = 224 * 512
ARG = dict(q=0, k=8, v=16, shift=24, ssm=32, D=40, wg=56, wu=64, wd=72, out=80, dbg=88, ws=96)
lg = lambda x: x.bit_length() - 1
f32bits = lambda x: struct.unpack("<I", struct.pack("<f", x))[0]
SPIN = 0x20000

def srd(k, d, base, nbytes, off=0):
    if off: k(f"s_add_u32 s{d}, s{base}, {off:#x}\ns_addc_u32 s{d+1}, s{base+1}, 0")
    else: k(f"s_mov_b32 s{d}, s{base}\ns_mov_b32 s{d+1}, s{base+1}")
    k(f"s_mov_b32 s{d+2}, {nbytes:#x}\ns_mov_b32 s{d+3}, 0x20000")

def unpk(k, dst, src, hi):
    k(f"v_and_b32 v{dst}, 0xffff0000, v{src}" if hi else f"v_lshlrev_b32 v{dst}, 16, v{src}")

def touch_code(k, first, last, vaddr, vdst, sb, v0=0, n=1, step=32768):
    k.nl += 1
    here = f"L_{k.name}_pc{k.nl}"
    k(f"s_getpc_b64 s[{sb}:{sb+1}]")
    k.label(here)
    k(f"""
    s_add_u32 s{sb}, s{sb}, {first}-{here}
    s_addc_u32 s{sb+1}, s{sb+1}, 0
    s_mov_b32 s{sb+2}, {last}-{first}
    s_mov_b32 s{sb+3}, 0x20000
    v_lshlrev_b32 v{vaddr}, 7, v{v0}
    """)
    for i in range(n):
        if i: k(f"v_add_u32 v{vaddr}, {step}, v{vaddr}")
        k(f"buffer_load_dword v{vdst}, v{vaddr}, s[{sb}:{sb+3}], 0 offen")

CS = 4160; XS = 4640; CH_LDS = 4 * CS + 2 * XS; CONV_LDS = 4 * CH_LDS
NS = 8; RW = 8
LDS_Y, LDS_XR, LDS_ST = 131072, 147456, 131072 - 512
S_LAY, S_WAVE, S_WS = 3, 17, 8
SW = "s[20:23]"; SD = "s[24:27]"; SX = "s[28:31]"
(S_M0, S_W1, S_W2, S_XN, S_HL, S_HS, S_PS, S_ROWF, S_ROWY, S_FH_P, S_FH_C, S_FW2_P, S_FW2_C, S_FPF_P, S_FPF_C,
 S_FXN_P, S_FXN_C, S_SHA, S_SHB, S_SHD, S_HS6) = range(36, 57)
S_FW1_C = 19
S_PL, S_ROWL, S_TAG16, S_MSK = 56, 88, 89, 90
S_N = 68
S_DMA, S_SP, S_T = 57, 58, 10
S_A, S_B, S_C, S_D, S_E = 14, 15, 16, 18, 59
VR, VD, VST, VC2, VF, VTID, VS0, VS1, VROW, VP, VF16 = 224, 226, 227, 228, 229, 230, 231, 232, 233, 234, 235
TMP = 236
VTAG = 253
VSTAMP = 255

def gen_mega(KT=14, la_bar=5, la1=200, rate1=0.175, la2=96, rate2=0.225, wgran=2, rep=4, nap=3, q_step=2, r1_step=3, arm_step=2, npre=3, w0_at=2, now=0, wnt='', ct=True, pnap=2, ph_back=(90, 100, 100, 90), b2=3, fl_lag=48, thr=9999, chk=10, pf_step=4, pf_at=44, pe_back=6, sent=True, park=8, free_at=(335, 368, 402, 434), ph0=392, tw=0, tw0=96, tw_step=8, pe_lag=32, rmax=0.2, rmax2=0.25, w1_step=1, w1s=2, E=3, e_late=True, KT2=12, abl=""):
    k = K("interleave_layers__ssm_conv_h3__glu_gated_geglu__prompt_kernel")
    diag = asmlib.STAMPS[0]
    def stamp(i):
        if diag:
            k(f"s_memrealtime s[64:65]\ns_memtime s[66:67]\ns_waitcnt lgkmcnt(0)\nv_writelane_b32 v{VSTAMP}, s64, {i}\nv_writelane_b32 v{VSTAMP}, s66, {32 + i}")
    slow = []
    def poll_load(soff, width=1):
        if width == "w0": return f"buffer_load_dwordx2 v[{TMP}:{TMP+1}], v{TMP+13}, {SW}, s{soff} offen sc1"
        if width == "arm": return f"buffer_load_dwordx4 v[{TMP}:{TMP+3}], v{VR}, {SW}, s{soff} offen sc1"
        va = VF if soff in (S_FW1_C, S_FW2_C) else TMP + 13 if soff in (S_FPF_C, S_FKV) else VF16
        return f"buffer_load_dword v{VP}, v{va}, {SW}, s{soff} offen sc1"
    def poll_test(n, width, soff):
        if n == "w0":
            return [f"v_xor_b32 v{TMP}, v{TMP}, v{VTAG}", f"v_xor_b32 v{TMP+1}, v{TMP+1}, v{VTAG}", f"v_or_b32 v{VP}, v{TMP}, v{TMP+1}",
                    f"v_cmp_ne_u32 vcc, 0, v{VP}", f"s_or_b32 s{S_A}, vcc_lo, vcc_hi", f"s_and_b32 s{S_A}, s{S_A}, {(1 << (32 - KT)) - 1:#x}"]
        if n == "arm":
            o = [f"v_xor_b32 v{TMP+i}, v{TMP+i}, v{VTAG}" for i in range(4)]
            o += [f"v_or3_b32 v{VP}, v{TMP}, v{TMP+1}, v{TMP+2}", f"v_or_b32 v{VP}, v{VP}, v{TMP+3}", f"v_cmp_ne_u32 vcc, 0, v{VP}"]
            n = 64
        else: o = [f"v_cmp_ne_u32 vcc, v{VTAG}, v{VP}"]
        if n == "w1": o += [f"s_or_b32 s{S_A}, vcc_lo, vcc_hi", f"s_and_b32 s{S_A}, s{S_A}, {(1 << (2 * KT)) - 1:#x}"]
        elif n <= 32: o.append(f"s_and_b32 s{S_A}, vcc_lo, {(1 << n) - 1:#x}")
        elif n < 64: o += [f"s_and_b32 s{S_A}, vcc_hi, {(1 << (n - 32)) - 1:#x}", f"s_or_b32 s{S_A}, s{S_A}, vcc_lo"]
        else: o.append(f"s_or_b32 s{S_A}, vcc_lo, vcc_hi")
        return o
    def poll_check(ld, soff, n, width=1):
        k.nl += 1; lab = f"L_poll{k.nl}"
        k.wait(vm=ld)
        k("\n".join(poll_test(n, width, soff)) + f"\ns_cbranch_scc1 {lab}")
        k.label(lab + "_ok")
        slow.append((lab, [f"s_mov_b32 s{S_SP}, {SPIN}"], [f"s_sleep {nap}", poll_load(soff, n if n in ("arm", "w0") else width), f"s_sub_u32 s{S_SP}, s{S_SP}, 1", f"s_cbranch_scc1 {lab}_out",
                    "s_waitcnt vmcnt(0)"] + poll_test(n, width, soff)))
    def flag_store(soff):
        if soff in (S_FPF_P, 78):
            return f"s_mov_b32 exec_hi, 0\nbuffer_store_dword v{VTAG}, v{VF16}, {SW}, s{soff} offen sc1\ns_mov_b32 exec_hi, -1"
        return f"s_mov_b64 exec, 1\nbuffer_store_dword v{VTAG}, off, {SW}, s{soff} sc1\ns_mov_b64 exec, -1"

    c1 = -2 * math.sqrt(2 / math.pi) * math.log2(math.e)
    k("s_cmp_ge_u32 s2, 256\ns_cbranch_scc1 L_end")
    S_FKV = 69
    k(f"""
    s_load_dwordx4 s[72:75], s[0:1], {ARG['k']}
    s_load_dwordx2 s[8:9], s[0:1], {ARG['ws']}
    s_load_dwordx2 s[76:77], s[0:1], {ARG['shift']}
    s_load_dwordx4 s[4:7], s[0:1], {ARG['ssm']}
    s_load_dwordx4 s[12:15], s[0:1], {ARG['wg']}
    s_load_dwordx2 s[10:11], s[0:1], {ARG['q']}
    s_and_b32 s59, s2, 7
    s_lshr_b32 s60, s2, 3
    s_lshl_b32 s16, s60, 4
    v_and_b32 v3, 15, v0
    v_add_u32 v3, s16, v3
    """)
    touch_code(k, "L_body", "L_end", 4, 51, 80, v0=3)
    k.label("L_body")
    k(f"""
    s_mov_b32 s{S_LAY}, 0
    v_mov_b32 v{VTID}, v0
    v_lshrrev_b32 v1, 6, v0
    v_and_b32 v2, 63, v0
    v_readfirstlane_b32 s17, v1
    s_lshl_b32 s61, s59, 5
    s_add_u32 s61, s61, s60
    v_lshlrev_b32 v{VR}, 4, v2
    s_and_b32 s16, s61, 15
    s_lshl_b32 s16, s16, 4
    v_and_b32 v48, 7, v0
    v_bfe_u32 v49, v0, 6, 1
    v_lshl_add_u32 v48, v49, 3, v48
    v_add_u32 v48, s16, v48
    s_and_b32 s16, s61, 0xf0
    v_bfe_u32 v49, v0, 3, 3
    v_lshrrev_b32 v3, 7, v0
    v_lshl_add_u32 v49, v3, 3, v49
    v_add_u32 v49, s16, v49
    v_lshlrev_b32 v3, 14, v48
    v_lshl_add_u32 v3, v49, 3, v3
    v_subrev_u32 v8, 0x1800, v3
    v_subrev_u32 v9, 0x1000, v3
    v_subrev_u32 v10, 0x800, v3
    v_lshlrev_b32 v7, 5, v49
    s_mov_b32 s84, 4096
    s_mov_b32 s85, 8192
    s_mov_b32 s86, 12288
    s_lshl_b32 s18, s61, 2
    s_add_u32 s18, s18, s17
    s_mul_i32 s62, s17, {CH_LDS}
    """)
    if diag: k(f"v_mov_b32 v{VSTAMP}, 0")
    k("s_waitcnt lgkmcnt(0)")
    k(f"s_add_u32 s70, s8, {WS_FLAG + F_EPOCH}\ns_addc_u32 s71, s9, 0\ns_load_dword s87, s[70:71], 0")
    srd(k, 24, 72, MB4); srd(k, 28, 74, MB4); srd(k, 32, 76, 8192)
    KR = lambda t: 74 + 2 * t
    VV = lambda t: 90 + 2 * t
    so = ["0", "s84", "s85", "s86"]
    for i in range(3): k(f"buffer_load_dwordx2 v[{KR(i-3)}:{KR(i-3)+1}], v{8+i}, s[24:27], 0 offen")
    for t in range(8): k(f"buffer_load_dwordx2 v[{KR(t)}:{KR(t)+1}], v3, s[24:27], {so[t>>1]} offen offset:{(t&1)*2048}")
    k("buffer_load_dwordx4 v[108:111], v7, s[32:35], 0 offen")
    lk = k("buffer_load_dwordx4 v[112:115], v7, s[32:35], 0 offen offset:16")
    for t in range(8): lv = k(f"buffer_load_dwordx2 v[{VV(t)}:{VV(t)+1}], v3, s[28:31], {so[t>>1]} offen offset:{(t&1)*2048}")
    stamp(0)
    srd(k, 20, 8, WS_TOTAL); srd(k, 28, 8, WS_TOTAL)
    k(f"""
    s_lshl_b32 s16, s18, 12
    s_add_u32 s32, s4, s16
    s_addc_u32 s33, s5, 0
    s_mov_b32 s34, 4096
    s_mov_b32 s35, 0x20000
    s_add_u32 s16, s16, {WS_KV}
    s_add_u32 s88, s8, s16
    s_addc_u32 s89, s9, 0
    s_mov_b32 s90, 4096
    s_mov_b32 s91, 0x20000
    """)
    HR = 192
    for i in range(4):
        for h in range(2): k(f"buffer_load_dwordx4 v[{HR+8*i+4*h}:{HR+8*i+4*h+3}], v{VR}, s[32:35], 0 offen offset:{i*1024 + 16*h}")
    k(f"v_sub_u32 v50, 255, v48\nv_lshlrev_b32 v50, 4, v50\nv_lshl_add_u32 v50, v49, 14, v50\nv_add_u32 v50, {WS_KV}, v50")
    srd(k, 92, 10, MB4)
    KM = 32 - KT
    NU0, NU1 = 56 * KM, 56 * KT
    assert NU0 <= 1024 and NU1 <= 1024 and 2 * KT <= 32
    k(f"""
    v_lshrrev_b32 v11, 4, v2
    v_mul_u32_u24 v54, 7168, v11
    v_and_b32 v12, 15, v2
    v_lshl_add_u32 v54, v12, 4, v54
    s_lshl_b32 s10, s2, 2
    s_add_u32 s10, s10, s17
    s_lshl_b32 s11, s17, 13
    s_add_u32 s11, s11, {CONV_LDS}
    s_mul_hi_u32 s48, s10, {-(-(1 << 32) // 28)}
    s_mul_i32 s47, s48, 28
    s_sub_u32 s47, s10, s47
    s_and_b32 s52, s48, 1
    s_lshr_b32 s48, s48, 1
    s_cmp_eq_u32 s52, 0
    s_cselect_b32 s24, s12, s14
    s_cselect_b32 s25, s13, s15
    s_mov_b32 s27, 0x20000
    s_mul_i32 s49, s48, {32*7168}
    s_lshl_b32 s12, s47, 8
    s_add_u32 s49, s49, s12
    """)
    def w_enable(n):
        return [f"s_cmp_lt_u32 s10, {n}", f"s_cselect_b32 s26, {0 if now & (1 if n == NU0 else 2) else W_BYTES}, 0", f"s_cselect_b32 s30, {WS_TOTAL}, 0"]
    def w_load(r, j):
        return [f"s_add_u32 m0, s11, {1024*j}", f"s_add_u32 s12, s49, {4*7168*j + r*KM*32*7168}", f"buffer_load_dwordx4 v54, s[24:27], s12 offen {wnt} lds"]
    for x in w_enable(NU0): k(x)
    def w0_issue():
        for j in range(8): k("\n".join(w_load(0, j)))
    if w0_at == 0: w0_issue()
    k.wait(vm=lk)
    W = lambda c, j: 116 + 4 * c + j
    for c in range(4):
        for j in range(4): unpk(k, W(c, j), 108 + 2 * c + (j >> 1), j & 1)
    KS = lambda c, t: 132 + 8 * c + t
    KF = lambda t: 167 + t
    for c in range(4):
        for t in range(-3, 8): unpk(k, KF(t), KR(t) + (c >> 1), c & 1)
        for t in range(8): k(f"v_mul_f32 v{KS(c,t)}, v{W(c,3)}, v{KF(t-3)}")
        for j in (2, 1, 0):
            for t in range(8): k(f"v_fmac_f32 v{KS(c,t)}, v{W(c,j)}, v{KF(t-j)}")
    if w0_at == 1: w0_issue()
    k.wait(vm=lv)
    for c in range(4):
        for t in range(8): unpk(k, KF(t), VV(t) + (c >> 1), c & 1)
        for t in range(8): k(f"v_mul_f32 v{KS(c,t)}, v{KS(c,t)}, v{KF(t)}")
        for i in range(4): k(f"v_cvt_pk_bf16_f32 v{176+4*c+i}, v{KS(c,7-2*i)}, v{KS(c,6-2*i)}")
        k(f"buffer_store_dwordx4 v[{176+4*c}:{179+4*c}], v50, {SW}, {so[c]} offen sc1")
    stamp(26)
    kv_st = k.nvm
    if w0_at == 2: w0_issue()
    k(f"""
    s_lshr_b32 s{S_FKV}, s61, 4
    s_lshl_b32 s{S_FKV}, s{S_FKV}, 11
    s_add_u32 s{S_FKV}, s{S_FKV}, {WS_FLAG + F_KV}
    s_lshl_b32 s78, s61, 7
    s_add_u32 s78, s78, {WS_FLAG + F_KV}
    v_and_b32 v{TMP+13}, 15, v2
    v_lshlrev_b32 v{TMP+13}, 7, v{TMP+13}
    v_and_b32 v{VF16}, 31, v2
    v_lshlrev_b32 v{VF16}, 2, v{VF16}
    s_waitcnt lgkmcnt(0)
    s_mul_i32 s{S_N}, s87, 0x9e3779b1
    s_add_u32 s{S_N}, s{S_N}, 0x7f4a7c15
    s_add_u32 s16, s{S_N}, 1
    v_mov_b32 v{VTAG}, s16
    s_waitcnt vmcnt({8 if w0_at == 2 else 0})
    s_barrier
    s_cmp_lg_u32 s17, 0
    s_cbranch_scc1 L_nokvf
    """)
    k(flag_store(78)); k.nvm -= 1
    k.label("L_nokvf")
    k(f"v_add_u32 v60, s62, v{VR}")
    for i in range(4):
        r = HR + 8 * i; t = 72 + 8 * i
        for e in range(6): k(f"v_mov_b32 v{t+e}, v{r+1+e}")
        for cc, src in enumerate((t, r + 2, t + 2, r + 4)):
            k(f"ds_write_b128 v60, v[{src}:{src+3}] offset:{cc*CS + i*1024}")
    A = lambda buf, p: 64 + buf * 64 + 4 * p
    B = lambda buf, j: 96 + buf * 64 + 4 * j
    AD = 40
    k("v_and_b32 v61, 15, v2\nv_lshrrev_b32 v62, 4, v2\nv_lshlrev_b32 v63, 2, v61\nv_lshl_add_u32 v63, v62, 4, v63")
    for w in range(4): k(f"v_subrev_u32 v{4+w}, {60-4*w}, v63")
    for w in range(4): k(f"buffer_load_dword v{A(0,0)+w}, v{4+w}, s[32:35], 0 offen")
    k(f"""
    s_and_b32 s16, s18, 0xfffffffe
    s_lshl_b32 s16, s16, 1
    s_add_u32 s6, s6, s16
    s_addc_u32 s7, s7, 0
    s_load_dword s63, s[6:7], 0
    s_load_dwordx4 s[4:7], s[0:1], {ARG['wd']}
    s_lshr_b32 s32, s59, 1
    s_lshl_b32 s32, s32, 2
    s_and_b32 s33, s60, 3
    s_add_u32 s32, s32, s33
    s_and_b32 s33, s59, 1
    s_lshr_b32 s34, s60, 2
    s_lshl_b32 s35, s33, 3
    s_add_u32 s35, s35, s34
    s_lshl_b32 s19, s32, 4
    s_add_u32 s19, s19, s35
    s_lshl_b32 s{S_ROWY}, s19, 14
    s_lshr_b32 s45, s19, 1
    s_lshl_b32 s45, s45, 15
    s_and_b32 s16, s19, 1
    s_lshl_b32 s16, s16, 7
    s_add_u32 s45, s45, s16
    v_and_b32 v8, 7, v0
    v_lshrrev_b32 v9, 3, v0
    v_lshlrev_b32 v12, 4, v8
    v_lshl_add_u32 v12, v9, 8, v12
    v_and_b32 v13, 3, v9
    v_lshrrev_b32 v9, 2, v9
    v_lshl_add_u32 v9, v9, 4, v13
    v_lshlrev_b32 v10, 11, v8
    v_lshl_add_u32 v10, v9, 4, v10
    v_lshlrev_b32 v{VROW}, 4, v8
    v_lshl_add_u32 v{VROW}, v9, 8, v{VROW}
    v_mov_b32 v44, -1
    v_mov_b32 v45, -1
    v_mov_b32 v46, -1
    v_mov_b32 v47, -1
    v_lshlrev_b32 v8, 4, v0
    """)
    for i in range(4):
        k(f"s_add_u32 s16, s{S_ROWY}, {WS_Y + 4096*i}\nbuffer_store_dwordx4 v[44:47], v8, {SW}, s16 offen sc1")
    assert 4 * E <= 32
    for L in range(2):
        k(f"s_add_u32 s16, s45, {WS_XN + L*MB4}\nbuffer_store_dwordx4 v[44:47], v12, {SW}, s16 offen sc1")
    QP = 192
    k("v_mov_b32 v53, v10")
    k(f"""
    v_and_b32 v8, 3, v61
    v_mul_u32_u24 v8, {CS}, v8
    v_lshrrev_b32 v9, 2, v61
    v_add_u32 v9, v9, v62
    v_lshl_add_u32 v56, v9, 4, v8
    v_add_u32 v56, s62, v56
    v_lshrrev_b32 v8, 3, v61
    v_mul_u32_u24 v9, {XS}, v8
    v_and_b32 v10, 7, v61
    v_lshlrev_b32 v13, 6, v10
    v_sub_u32 v9, v9, v13
    v_lshl_add_u32 v9, v62, 4, v9
    v_add_u32 v9, {4*CS + 4032 - 3584}, v9
    v_add_u32 v57, s62, v9
    v_lshrrev_b32 v13, 1, v10
    v_xor_b32 v13, v13, v62
    v_lshl_add_u32 v13, v10, 2, v13
    v_lshlrev_b32 v13, 4, v13
    v_lshl_add_u32 v13, v8, 12, v13
    v_add_u32 v59, s62, v13
    v_lshrrev_b32 v8, 5, v2
    v_mul_u32_u24 v8, {XS}, v8
    v_and_b32 v9, 31, v2
    v_lshl_add_u32 v8, v9, 4, v8
    v_add_u32 v8, s62, v8
    v_mov_b32 v44, 0
    v_mov_b32 v45, 0
    v_mov_b32 v46, 0
    v_mov_b32 v47, 0
    v_mov_b32 v58, s62
    ds_write_b128 v8, v[44:47] offset:{4*CS + 4096}
    v_lshlrev_b32 v55, 3, v11
    v_bfe_u32 v9, v2, 2, 2
    v_add_u32 v55, v55, v9
    v_lshlrev_b32 v55, 8, v55
    v_and_b32 v9, 3, v2
    v_lshl_add_u32 v55, v9, 3, v55
    v_add_u32 v55, s11, v55
    s_waitcnt lgkmcnt(0)
    s_and_b32 s12, s18, 1
    s_lshl_b32 s12, s12, 4
    s_lshr_b32 s63, s63, s12
    s_and_b32 s63, s63, 0xffff
    v_mov_b32 v9, s63
    """)
    for w in range(4): k(f"v_cmp_eq_u32 vcc, 0, v{4+w}\nv_cndmask_b32 v{AD+w}, 0, v9, vcc")
    assert all((x * 9363) >> 16 == x // 7 for x in range(224))
    OFFS = [[36 + i for i in range(8)], [70 + i for i in range(8)]]
    k(f"""
    s_mul_i32 s12, s48, 14
    s_mul_i32 s13, s52, 7
    s_add_u32 s12, s12, s13
    s_add_u32 s12, s12, {WS_W1 >> 10}
    s_lshl_b32 s13, s48, 1
    s_add_u32 s13, s13, s52
    s_lshl_b32 s50, s13, 2
    s_lshl_b32 s14, s47, 7
    s_add_u32 s50, s50, s14
    s_add_u32 s50, s50, {WS_FLAG + F_W1}
    s_add_u32 s13, s13, {14*KM + (WS_W1 >> 10)}
    s_lshl_b32 s18, s47, 3
    """)
    for i in range(8):
        k(f"""
        s_mul_i32 s14, s18, 9363
        s_lshr_b32 s14, s14, 16
        s_mul_i32 s15, s14, 7
        s_sub_u32 s15, s18, s15
        s_mul_i32 s14, s14, {W1T}
        s_add_u32 s58, s14, s15
        s_add_u32 s58, s58, s12
        s_lshl_b32 s{OFFS[0][i]}, s58, 10
        s_mul_i32 s15, s15, {2*KT}
        s_add_u32 s14, s14, s15
        s_add_u32 s14, s14, s13
        s_lshl_b32 s{OFFS[1][i]}, s14, 10
        s_add_u32 s18, s18, 1
        """)
    k("s_cmp_lg_u32 s17, 0\ns_cbranch_scc1 L_nokvp")
    x = k(poll_load(S_FKV))
    poll_check(x, S_FKV, 16)
    k.label("L_nokvp")
    k(f"s_waitcnt vmcnt(0)\ns_barrier\ns_lshl_b32 s16, s2, 2\ns_add_u32 s16, s16, {WS_FLAG + F_ARM}\ns_cmp_lg_u32 s17, 1\ns_cbranch_scc1 L_noarm")
    k(flag_store(16)); k.nvm -= 1
    k.label("L_noarm")
    stamp(27)
    xl = []
    for i in range(4):
        k(f"buffer_load_dwordx4 v[{128+8*i}:{131+8*i}], v{VR}, s[88:91], 0 offen offset:{i*1024}")
        xl.append(k(f"buffer_load_dword v{132+8*i}, v{VR}, s[88:91], 0 offen offset:{i*1024 + 16}"))
    if w0_at == 3: side0 = [("v", "w0", "\n".join(w_load(0, j))) for j in range(8)]
    for i in range(4):
        r = 128 + 8 * i; t = 160 + 4 * i
        k.wait(vm=xl[i])
        k(f"ds_write_b128 v60, v[{r}:{r+3}] offset:{4*CS + XS + i*1024}")
        for e in range(4): k(f"v_alignbit_b32 v{t+e}, v{r+e+1}, v{r+e}, 16")
        k(f"ds_write_b128 v60, v[{t}:{t+3}] offset:{4*CS + i*1024}")
    stamp(1)
    Y = lambda j: 8 + 4 * j
    def reads(i):
        buf = i & 1; out = []
        for x in range(8):
            out.append(("B", x, f"ds_read_b128 v[{B(buf,x)}:{B(buf,x)+3}], v57 offset:{3584-512*x+64*i}"))
            if (i, x) != (0, 0):
                out.append(("A", x, f"ds_read_b128 v[{A(buf,x)}:{A(buf,x)+3}], v56 offset:{64*(i-1)+512*x}"))
        return out
    ids = {}
    for kind, x, txt in reads(0): ids[(0, kind, x)] = k(txt)
    for j in range(8):
        k.wait(lg=ids[(0, "B", j)])
        k(f"v_mfma_f32_16x16x32_bf16 v[{Y(j)}:{Y(j)+3}], v[{AD}:{AD+3}], v[{B(0,j)}:{B(0,j)+3}], 0")
    side = {i: [] for i in range(8)}
    def sh_reads(r):
        o = []
        for i in range(8):
            f = 224 * r + 4 * i
            o += [("r", None, f"ds_read_b64_tr_b16 a[{f}:{f+1}], v55 offset:{32*i}"), ("r", (r, i), f"ds_read_b64_tr_b16 a[{f+2}:{f+3}], v55 offset:{32*i + 1024}")]
        return o
    def sh_stores(r):
        return [("s", (r, i), f"buffer_store_dwordx4 a[{224*r+4*i}:{224*r+4*i+3}], v{VR}, {SX}, s{OFFS[r][i]} offen sc1") for i in range(8)]
    side[q_step] += [("v", "q", f"buffer_load_dwordx4 v[{QP+4*i}:{QP+4*i+3}], v53, s[92:95], s{S_ROWY} offen offset:{64*i}") for i in range(4)]
    side[0] += sh_reads(0)
    side[1] += sh_stores(0)
    side[arm_step] += [("v", "arm", f"s_mov_b32 s79, {WS_FLAG + F_ARM}\n" + poll_load(79, "arm"))]
    side[r1_step] += [("x", None, "\n".join(w_enable(NU1)))] + [("v", "w1", "\n".join(w_load(1, j))) for j in range(8)]
    sid = {}
    for i in range(8):
        buf = i & 1
        nxt = reads(i + 1) if i < 7 else []
        order = sorted([(p, j) for p in range(8) for j in range(8 - p)], key=lambda t: (max(t), t[0] + t[1]))
        sd = side[i]
        for n, (p, j) in enumerate(order):
            k.wait(lg=max(ids.get((i, "A", p), 0), ids[(i, "B", j)]))
            jp = p + j
            k(f"v_mfma_f32_16x16x32_bf16 v[{Y(jp)}:{Y(jp)+3}], v[{A(buf,p)}:{A(buf,p)+3}], v[{B(buf,j)}:{B(buf,j)+3}], v[{Y(jp)}:{Y(jp)+3}]")
            if n % 2 == 1 and nxt:
                kind, x, txt = nxt.pop(0); ids[(i + 1, kind, x)] = k(txt)
            if n % 2 == 0 and sd and (sd[0][0] not in "sv" or n % 4 == 0):
                it = sd.pop(0)
                if it[0] == "w": k.wait(vm=w_ld0)
                elif it[0] == "s":
                    k.wait(lg=sid[it[1]]); sid["st0"] = k(it[2])
                else:
                    x = k(it[2])
                    if it[1]: sid[it[1]] = x
        assert not nxt and not sd
    stamp(2)
    for j in range(8): k(f"ds_write_b128 v59, v[{Y(j)}:{Y(j)+3}] offset:{512*j}")
    k(f"""
    v_lshrrev_b32 v4, 2, v0
    v_bfe_u32 v5, v4, 3, 2
    v_xor_b32 v5, v5, v4
    v_lshlrev_b32 v5, 4, v5
    v_and_b32 v6, 3, v0
    v_lshl_add_u32 v5, v6, 2, v5
    v_lshlrev_b32 v6, 4, v6
    v_lshl_add_u32 v6, v4, 14, v6
    s_lshl_b32 s12, s61, 6
    s_add_u32 s12, s12, {WS_Y}
    """)
    for c in range(1, 4): k(f"v_add_u32 v{40+c}, {c*CH_LDS}, v5")
    k("v_mov_b32 v40, v5")
    poll_check(sid["arm"], 79, "arm")
    k.wait(vm=sid["st0"], lg=k.nlg); k("s_barrier")
    rid = {}
    for i in range(4):
        for c in range(4):
            rid[i] = k(f"ds_read2st64_b32 v[{64+8*i+2*c}:{65+8*i+2*c}], v{40+c} offset0:{4*i} offset1:{16+4*i}")
    for i in range(4):
        k.wait(lg=rid[i])
        for par in range(2):
            for h in range(2):
                k(f"v_cvt_pk_bf16_f32 v{96+4*i+2*par+h}, v{64+8*i+4*h+par}, v{64+8*i+4*h+2+par}")
        k(f"buffer_store_dwordx4 v[{96+4*i}:{99+4*i}], v6, {SW}, s12 offen sc1")
        if i < 3: k("s_add_u32 s12, s12, 0x100000")
    stamp(3)
    k.wait(vm=sid["w1"])
    for it in sh_reads(1):
        x = k(it[2])
        if it[1]: sid[it[1]] = x
    for it in sh_stores(1):
        k.wait(lg=sid[it[1]]); k(it[2])
    k("s_mov_b32 s62, s50\ns_mov_b32 s63, s30")

    KM2 = 56 - KT2
    k(f"""
    s_lshl_b32 s{S_M0}, s17, 12
    s_lshr_b32 s13, s59, 1
    s_lshl_b32 s12, s13, 3
    s_add_u32 s12, s12, s34
    s_lshl_b32 s14, s33, 2
    s_and_b32 s15, s60, 3
    s_add_u32 s14, s14, s15
    s_lshl_b32 s14, s14, 2
    s_add_u32 s14, s14, s17
    s_lshl_b32 s16, s32, 2
    s_add_u32 s16, s16, s17
    s_mul_i32 s{S_W1}, s12, {W1T*1024}
    s_add_u32 s{S_W1}, s{S_W1}, {WS_W1}
    s_mul_i32 s{S_W2}, s35, {W2T*1024}
    s_add_u32 s{S_W2}, s{S_W2}, {WS_W2}
    s_and_b32 s15, s16, 15
    s_lshl_b32 s15, s15, 13
    s_add_u32 s91, s{S_W2}, s15
    s_lshl_b32 s{S_XN}, s14, 17
    s_add_u32 s{S_XN}, s{S_XN}, {WS_XN}
    s_lshl_b32 s{S_PS}, s16, 14
    s_lshl_b32 s15, s34, 10
    s_add_u32 s{S_PS}, s{S_PS}, s15
    s_lshl_b32 s15, s33, 22
    s_add_u32 s{S_PS}, s{S_PS}, s15
    s_add_u32 s{S_PS}, s{S_PS}, {WS_P}
    s_lshr_b32 s{S_ROWL}, s19, 1
    s_lshl_b32 s{S_ROWF}, s{S_ROWL}, 15
    s_lshl_b32 s{S_ROWL}, s{S_ROWL}, 13
    s_and_b32 s15, s19, 1
    s_lshl_b32 s15, s15, 7
    s_add_u32 s{S_ROWL}, s{S_ROWL}, s15
    s_add_u32 s{S_ROWF}, s{S_ROWF}, s15
    s_lshl_b32 s{S_FXN_C}, s14, 7
    s_lshl_b32 s15, s13, 12
    s_add_u32 s{S_FXN_C}, s{S_FXN_C}, s15
    s_add_u32 s{S_FXN_C}, s{S_FXN_C}, {WS_FLAG + F_XN}
    s_lshr_b32 s{S_FXN_P}, s19, 3
    s_lshl_b32 s{S_FXN_P}, s{S_FXN_P}, 7
    s_lshl_b32 s15, s34, 2
    s_add_u32 s{S_FXN_P}, s{S_FXN_P}, s15
    s_add_u32 s{S_FXN_P}, s{S_FXN_P}, s{S_M0}
    s_add_u32 s{S_FXN_P}, s{S_FXN_P}, {WS_FLAG + F_XN}
    s_lshr_b32 s{S_FPF_C}, s19, 2
    s_lshl_b32 s{S_FPF_C}, s{S_FPF_C}, 11
    s_add_u32 s{S_FPF_C}, s{S_FPF_C}, {WS_FLAG + F_PE}
    s_lshl_b32 s{S_FPF_P}, s16, 11
    s_lshl_b32 s15, s35, 7
    s_add_u32 s{S_FPF_P}, s{S_FPF_P}, s15
    s_add_u32 s{S_FPF_P}, s{S_FPF_P}, {WS_FLAG + F_PE}
    s_lshl_b32 s{S_FH_P}, s14, 8
    s_lshr_b32 s15, s12, 4
    s_lshl_b32 s15, s15, 7
    s_add_u32 s{S_FH_P}, s{S_FH_P}, s15
    s_and_b32 s15, s12, 15
    s_lshl_b32 s15, s15, 2
    s_add_u32 s{S_FH_P}, s{S_FH_P}, s15
    s_add_u32 s{S_FH_P}, s{S_FH_P}, {WS_FLAG + F_H}
    s_lshr_b32 s{S_FH_C}, s16, 1
    s_lshl_b32 s{S_FH_C}, s{S_FH_C}, 8
    s_lshl_b32 s15, s33, 7
    s_add_u32 s{S_FH_C}, s{S_FH_C}, s15
    s_add_u32 s{S_FH_C}, s{S_FH_C}, {WS_FLAG + F_H}
    s_mul_i32 s{S_HL}, s16, {2*TBH}
    s_mul_i32 s15, s33, {56*1024}
    s_add_u32 s{S_HL}, s{S_HL}, s15
    s_add_u32 s{S_HL}, s{S_HL}, {WS_H}
    s_mul_i32 s{S_HS}, s14, {4*TBH}
    s_lshr_b32 s15, s12, 4
    s_mul_i32 s15, s15, {56*1024}
    s_add_u32 s{S_HS}, s{S_HS}, s15
    s_and_b32 s15, s12, 15
    s_lshl_b32 s15, s15, 9
    s_add_u32 s{S_HS}, s{S_HS}, s15
    s_add_u32 s{S_HS}, s{S_HS}, {WS_H}
    s_lshl_b32 s{S_FW2_C}, s35, 8
    s_add_u32 s{S_FW2_C}, s{S_FW2_C}, {WS_FLAG + F_W2}
    s_mul_i32 s15, s12, 7
    s_lshr_b32 s15, s15, 3
    s_min_u32 s15, s15, 26
    s_lshl_b32 s15, s15, 7
    s_add_u32 s{S_FW1_C}, s15, {WS_FLAG + F_W1}
    """)
    k(f"""
    s_lshl_b32 s12, s2, 2
    s_add_u32 s12, s12, s17
    s_cmp_lt_u32 s12, 896
    s_cselect_b32 s26, {W_BYTES}, 0
    s_cselect_b32 s30, {WS_TOTAL}, 0
    s_mov_b32 s24, s4
    s_mov_b32 s25, s5
    s_lshr_b32 s13, s12, 3
    s_and_b32 s12, s12, 7
    s_cmp_ge_u32 s13, 56
    s_cselect_b32 s14, 1, 0
    s_cselect_b32 s15, 56, 0
    s_sub_u32 s13, s13, s15
    s_lshl_b32 s15, s14, 3
    s_add_u32 s15, s15, s12
    s_lshl_b32 s{S_FW2_P}, s15, 8
    s_lshl_b32 s16, s13, 2
    s_add_u32 s{S_FW2_P}, s{S_FW2_P}, s16
    s_add_u32 s{S_FW2_P}, s{S_FW2_P}, {WS_FLAG + F_W2}
    s_mul_i32 s{S_SHD}, s15, {W2T*1024}
    s_lshl_b32 s16, s13, 13
    s_lshl_b32 s60, s13, 11
    s_add_u32 s60, s60, {KM2 * 6 * 1024}
    s_cmp_lt_u32 s13, {KM2}
    s_cselect_b32 s16, s16, s60
    s_cselect_b32 s60, 1, {KT2}
    s_lshl_b32 s60, s60, 11
    s_add_u32 s{S_SHD}, s{S_SHD}, s16
    s_add_u32 s{S_SHD}, s{S_SHD}, {WS_W2}
    s_and_b32 s15, s13, 7
    s_mul_i32 s15, s15, 224
    s_lshr_b32 s16, s13, 3
    s_lshl_b32 s16, s16, 4
    s_add_u32 s15, s15, s16
    s_mul_i32 s14, s14, 1792
    s_add_u32 s15, s15, s14
    s_add_u32 s16, s15, 112
    s_lshl_b32 s12, s12, 8
    s_lshl_b32 s{S_SHA}, s15, 11
    s_add_u32 s{S_SHA}, s{S_SHA}, s12
    s_lshl_b32 s{S_SHB}, s16, 11
    s_add_u32 s{S_SHB}, s{S_SHB}, s12
    v_add_u32 v{VR+1}, 0x10000, v{VR}
    v_add_u32 v{VD}, s{S_M0}, v{VR}
    v_lshrrev_b32 v5, 5, v2
    v_and_b32 v6, 31, v2
    v_lshlrev_b32 v6, 4, v6
    v_mul_u32_u24 v7, {TBH}, v5
    v_add_u32 v{VST}, v7, v6
    v_mov_b32 v{VC2}, {f32bits(c1*0.044715):#x}
    v_lshlrev_b32 v{VF}, 2, v2
    v_lshrrev_b32 v3, 4, v2
    v_and_b32 v4, 15, v2
    v_lshlrev_b32 v4, 4, v4
    v_lshl_add_u32 v{VS0}, v3, 11, v4
    v_bfe_u32 v4, v2, 2, 3
    v_lshlrev_b32 v4, 8, v4
    v_lshl_add_u32 v4, v5, 14, v4
    v_and_b32 v3, 3, v2
    v_lshl_add_u32 v4, v3, 4, v4
    v_add_u32 v{VS1}, s{S_M0}, v4
    """)

    XP, YP, P0, P1, X, Yf, T, AY, AS0, AS1, AL, AO = 8, 24, 40, 56, 72, 104, 136, 0, 1, 2, 3, 4
    def row_addr():
        k(f"""
        v_and_b32 v6, 7, v{VTID}
        v_bfe_u32 v5, v{VTID}, 3, 2
        v_lshrrev_b32 v7, 5, v{VTID}
        v_lshl_add_u32 v7, v7, 4, v5
        v_lshlrev_b32 v{AY}, 3, v6
        v_lshl_add_u32 v{AY}, v7, 7, v{AY}
        v_lshlrev_b32 v{AO}, 11, v6
        v_lshl_add_u32 v{AO}, v7, 4, v{AO}
        v_lshrrev_b32 v{AS0}, 6, v{VTID}
        v_lshlrev_b32 v{AS0}, 3, v{AS0}
        v_lshl_add_u32 v{AS0}, v6, 5, v{AS0}
        v_bfe_u32 v7, v{VTID}, 4, 1
        v_lshl_add_u32 v{AS0}, v7, 2, v{AS0}
        v_add_u32 v{AS0}, {LDS_ST}, v{AS0}
        v_lshlrev_b32 v{AS1}, 5, v6
        v_add_u32 v{AS1}, {LDS_ST}, v{AS1}
        v_lshlrev_b32 v{AL}, 4, v{VTID}
        v_add_u32 v{AL}, {LDS_Y}, v{AL}
        """)
    def unpack(dst, src):
        for e in range(32): unpk(k, dst + e, src + e // 2, e & 1)
    def stats(off):
        k(f"v_pk_add_f32 v[{T}:{T+1}], v[{X}:{X+1}], v[{X+2}:{X+3}]")
        k(f"v_pk_mul_f32 v[{T+2}:{T+3}], v[{X}:{X+1}], v[{X}:{X+1}]")
        for e in range(2, 32, 2):
            if e > 2: k(f"v_pk_add_f32 v[{T}:{T+1}], v[{T}:{T+1}], v[{X+e}:{X+e+1}]")
            k(f"v_pk_fma_f32 v[{T+2}:{T+3}], v[{X+e}:{X+e+1}], v[{X+e}:{X+e+1}], v[{T+2}:{T+3}]")
        R = T + 8
        k(f"""
        v_add_f32 v{T}, v{T}, v{T+1}
        v_add_f32 v{T+2}, v{T+2}, v{T+3}
        v_permlane16_swap_b32 v{T}, v{T+2}
        v_add_f32 v{T}, v{T}, v{T+2}
        v_add_f32_dpp v{T}, v{T}, v{T} row_ror:8 row_mask:0xf bank_mask:0xf
        v_mov_b32 v{T+1}, v{T}
        v_permlane32_swap_b32 v{T}, v{T+1}
        v_add_f32 v{T}, v{T}, v{T+1}
        ds_write_b32 v{AS0}, v{T} offset:{off}
        s_waitcnt lgkmcnt(0)
        s_barrier
        ds_read_b128 v[{R}:{R+3}], v{AS1} offset:{off}
        ds_read_b128 v[{R+4}:{R+7}], v{AS1} offset:{off+16}
        s_waitcnt lgkmcnt(0)
        v_pk_add_f32 v[{R}:{R+1}], v[{R}:{R+1}], v[{R+2}:{R+3}]
        v_pk_add_f32 v[{R+4}:{R+5}], v[{R+4}:{R+5}], v[{R+6}:{R+7}]
        v_pk_add_f32 v[{R}:{R+1}], v[{R}:{R+1}], v[{R+4}:{R+5}]
        v_mul_f32 v{R}, {f32bits(1/1024):#x}, v{R}
        v_mul_f32 v{R+1}, {f32bits(1/1024):#x}, v{R+1}
        v_fma_f32 v{R+1}, -v{R}, v{R}, v{R+1}
        v_max_f32 v{R+1}, 0, v{R+1}
        v_cvt_pk_bf16_f32 v{R+2}, v{R}, v{R+1}
        v_lshlrev_b32 v{R}, 16, v{R+2}
        v_and_b32 v{R+1}, 0xffff0000, v{R+2}
        v_add_f32 v{R+1}, {f32bits(1e-5):#x}, v{R+1}
        v_cvt_pk_bf16_f32 v{R+1}, v{R+1}, v{R+1}
        v_lshlrev_b32 v{R+1}, 16, v{R+1}
        v_sqrt_f32 v{R+1}, v{R+1}
        v_cvt_pk_bf16_f32 v{R+1}, v{R+1}, v{R+1}
        v_lshlrev_b32 v{R+1}, 16, v{R+1}
        v_rcp_f32 v{T+4}, v{R+1}
        v_mov_b32 v{T+5}, v{T+4}
        v_mul_f32_e64 v{T+6}, -v{R}, v{T+4}
        v_mov_b32 v{T+7}, v{T+6}
        """)
    def sentinel_loop(name, loads, regs, between=None, skip_first=False, tagged=False):
        k(f"s_mov_b32 s{S_SP}, {SPIN}")
        regs = list(regs)
        if not skip_first: loads()
        if between: between()
        k(f"s_branch {name}_chk")
        k.label(name)
        if pnap: k(f"s_sleep {pnap}")
        loads()
        k.label(name + "_chk")
        if tagged:
            k(f"s_waitcnt vmcnt(0)\nv_or3_b32 v{T+16}, v{regs[0]}, v{regs[1]}, v{TMP+8}\nv_bitop3_b32 v{T+17}, v{regs[0]}, v{regs[1]}, v{TMP+8} bitop3:0x80")
            for i in range(2, len(regs), 2):
                k(f"v_or3_b32 v{T+16}, v{T+16}, v{regs[i]}, v{regs[i+1]}\nv_bitop3_b32 v{T+17}, v{T+17}, v{regs[i]}, v{regs[i+1]} bitop3:0x80")
            k(f"v_xor_b32 v{T+16}, v{T+16}, v{T+17}\nv_lshlrev_b32 v{T+16}, 16, v{T+16}\nv_cmp_ne_u32 vcc, 0, v{T+16}")
        else:
            k(f"s_waitcnt vmcnt(0)\nv_max_u32 v{T+16}, v{regs[0]}, v{regs[1]}")
            for i in range(2, len(regs), 2): k(f"v_max3_u32 v{T+16}, v{T+16}, v{regs[i]}, v{regs[i+1]}")
            k(f"v_cmp_eq_u32 vcc, -1, v{T+16}")
        k(f"s_sub_u32 s{S_SP}, s{S_SP}, 1\ns_cbranch_scc1 {name}_out\ns_cbranch_vccnz {name}")
        k.label(name + "_out")

    row_addr()
    k.wait(vm=sid["q"])
    unpack(X, QP)
    k("s_barrier")
    stats(0)
    def y_loads():
        assert WS_Y == 0
        for i in range(4):
            for h in range(2):
                r = YP + 4 * i + 2 * h
                k(f"buffer_load_dwordx2 v[{r}:{r+1}], v{AY}, {SW}, s{S_ROWY} offen offset:{512*i + 64*h} sc1")
    sentinel_loop("L_ypoll", y_loads, range(YP, YP + 16))
    stamp(4)
    def raw_stage(sidx):
        k(f"s_add_u32 m0, s{S_M0}, {sidx * 16384}\ns_add_u32 s{S_DMA}, s{S_W1}, {sidx * 16384}")
        for i in range(4): k(f"buffer_load_dwordx4 v{VD}, {SW}, s{S_DMA} offen offset:{1024*i} lds")
    def weave(body_fn, stages, span):
        n0 = len(k.lines); body_fn()
        body = k.lines[n0:]; del k.lines[n0:]
        for sidx in stages: raw_stage(sidx)
        dm = k.lines[n0:]; del k.lines[n0:]
        step = max(1, min(len(body), span) // len(dm))
        for n_, l in enumerate(body):
            if n_ % step == 0 and dm: k.lines.append(dm.pop(0))
            k.lines.append(l)
        k.lines += dm
    k("s_cmp_eq_u32 s63, 0\ns_cbranch_scc1 L_now1"); k(flag_store(62)); k.label("L_now1")
    k("s_barrier")
    def y_keep():
        unpack(Yf, YP)
        for i in range(4): k(f"ds_write_b128 v{AL}, v[{YP+4*i}:{YP+4*i+3}] offset:{4096*i}")
    weave(y_keep, range(npre), 36)

    k.label("L_layer")
    k.nvm = k.vm_done = 0; k.nlg = k.lg_done = 0
    ring = [("W1", s) for s in range(28)]
    S1_POS = 0
    SH_POS = 17
    ring[SH_POS:SH_POS] = [("SH", 0), ("SH", 1)]
    assert SH_POS % NS + 1 < 4 and S1_POS % NS + 1 < 4
    ring += [("W2", s) for s in range(28)]
    NREAL = len(ring)
    st = {"s": None}
    def dma(idx, i):
        kind, s = ring[idx]; pre_ = []
        if kind == "S1":
            st["s"] = None
            return [f"s_add_u32 m0, s{S_M0}, {(idx % NS) * 16384 + 1024 * i}", f"s_add_u32 s{S_DMA}, s63, {4 * 7168 * (4 * s + i)}",
                    f"buffer_load_dwordx4 v{TMP+4}, s[92:95], s{S_DMA} offen lds"]
        if kind == "SH":
            st["s"] = None
            return [f"s_add_u32 m0, s{S_M0}, {(idx % NS) * 16384 + 1024 * i}", f"s_add_u32 s{S_DMA}, s{S_SHB if s else S_SHA}, {8192 * i}",
                    f"buffer_load_dwordx4 v{VS0}, {SD}, s{S_DMA} offen lds"]
        if st["s"] != idx:
            pre_ = [f"s_add_u32 m0, s{S_M0}, {(idx % NS) * 16384}", f"s_add_u32 s{S_DMA}, s{S_W2 if kind == 'W2' else S_W1}, {s * 16384}"]
            st["s"] = idx
        return pre_ + [f"buffer_load_dwordx4 v{VD}, {'s[88:91]' if kind == 'NX' else SW}, s{S_DMA} offen offset:{1024*i} lds"]
    w_id = {}; t_id = {}
    def pre_stage(idx):
        for i in range(4): w_id[idx] = k("\n".join(dma(idx, i)))
    for idx in range(4): w_id[idx] = 0
    for e in range(0, 32, 2):
        k(f"v_pk_fma_f32 v[{T}:{T+1}], v[{X+e}:{X+e+1}], v[{T+4}:{T+5}], v[{T+6}:{T+7}]")
        k(f"v_pk_fma_f32 v[{X+e}:{X+e+1}], v[{T}:{T+1}], v[{Yf+e}:{Yf+e+1}], v[{X+e}:{X+e+1}]")
        k(f"v_cvt_pk_bf16_f32 v{XP+e//2}, v{X+e}, v{X+e+1}")
    for i in range(4): k(f"ds_write_b128 v{AL}, v[{XP+4*i}:{XP+4*i+3}] offset:{16384 + 4096*i}")
    unpack(X, XP)
    stats(256)
    k(f"s_lshl_b32 s{S_B}, s{S_LAY}, 22\ns_add_u32 s{S_B}, s{S_B}, s{S_ROWF}\ns_add_u32 s{S_B}, s{S_B}, {WS_XN}")
    for e in range(0, 32, 2):
        k(f"v_pk_fma_f32 v[{X+e}:{X+e+1}], v[{X+e}:{X+e+1}], v[{T+4}:{T+5}], v[{T+6}:{T+7}]")
        k(f"v_cvt_pk_bf16_f32 v{P0+e//2}, v{X+e}, v{X+e+1}")
        if e % 8 == 6:
            i = e // 8
            k(f"buffer_store_dwordx4 v[{P0+4*i}:{P0+4*i+3}], v{VROW}, {SW}, s{S_B} offen offset:{1024*i} sc1")
    stamp(5)
    xn_st = k.nvm
    ET = 160
    for t in range(4): k(f"s_add_u32 s{S_T+t}, s{S_XN}, {t*32768}")
    def e_loads():
        for u in range(E):
            for t in range(4):
                r = ET + 16 * u + 4 * t
                k(f"buffer_load_dwordx4 v[{r}:{r+3}], v{VR}, {SW}, s{S_T+t} offen offset:{1024*u} sc1")
    def e_between():
        k.wait(vm=xn_st); k("s_barrier")
        k(flag_store(S_FXN_P))
    if e_late:
        e_between(); sentinel_loop("L_epoll", e_loads, range(ET, ET + 16 * E))
    else: sentinel_loop("L_epoll", e_loads, range(ET, ET + 16 * E), e_between)
    k(f"s_cmp_lg_u32 s{S_LAY}, 0\ns_cbranch_scc1 L_have")
    n0 = k.nvm
    for sidx in range(npre, 7): raw_stage(sidx)
    k.nvm = n0
    k.label("L_have")
    for sidx in range(npre, 7): w_id[sidx] = n0 + 1
    st["s"] = None
    for r in range(16 * E): k(f"v_accvgpr_write_b32 a{4*RW + r}, v{ET + r}")
    stamp(6)

    groups = [(1, u, g) for u in range(KM) for g in range(14)]
    tail_start = len(groups)
    for b in range(7):
        for u in range(KM, 32): groups += [(1, u, b), (1, u, 7 + b)]
    G2S = len(groups)
    groups += [(2, u, g) for u in range(KM2) for g in range(8)]
    T2S = len(groups)
    for p in range(4):
        for u in range(KM2, 56): groups += [(2, u, 2 * p), (2, u, 2 * p + 1)]
    NGR = len(groups); GPB = 2 * KT
    NTk = {1: 4, 2: 2}
    tm = [0]
    for kd, _, _ in groups: tm.append(tm[-1] + NTk[kd])
    real = [i for i, r_ in enumerate(ring) if r_[0] in ("W1", "W2")]
    stage_of = lambda i: real[i // 16]
    bars = {16 * n - la_bar: real[n] for n in range(npre, 56)}
    bar_list = sorted(bars)
    first_use = {}; last_use = {}
    for i, (kd, u, g) in enumerate(groups):
        first_use.setdefault((kd, u), i); last_use[(kd, u)] = i
    def slot(kd, u, t):
        return (u % KT) * 4 + t if kd == 1 else (4 * (KM % KT) + 2 * u + t) % (4 * KT)
    def AT(kd, u, t):
        if kd == 2 and u < park: return f"v[{112 + 8*u + 4*t}:{115 + 8*u + 4*t}]"
        a = 4 * RW + 4 * slot(kd, u - (park if kd == 2 else 0), t)
        return f"a[{a}:{a+3}]"
    AW = lambda i: 4 * (i % RW)
    acc = lambda kd, g, t: (g * NTk[kd] + t) * 4
    tok_base = {t: (1, 0) for t in range(4)}
    for u in range(E):
        for t in range(4): t_id[((1, u), t)] = 0
    def tok(kd, u, t):
        off = u * 1024; pre_ = []
        if tok_base.get(t, (None, 0))[0] != kd or not 0 <= off - tok_base[t][1] <= 4095:
            tok_base[t] = (kd, off & ~4095)
            pre_ = [f"s_add_u32 s{S_T+t}, s{S_XN if kd == 1 else S_HL}, {t * (32768 if kd == 1 else TBH) + tok_base[t][1]}"]
        return pre_ + [f"buffer_load_dwordx4 {AT(kd, u, t)}, v{VR}, {SW}, s{S_T+t} offen offset:{off - tok_base[t][1]}"]
    PH_B = [1, 3, 4, 5, 6]; PH_U = [0, 16, 32, 40, 48]
    P_SHR = tail_start + 6
    P_SH_END = tail_start + GPB - 2
    P_PX = 0
    P_PF = tail_start + pf_at
    P_W1S = 0
    P_PW1 = 120
    P_PW2 = tail_start + 3 * GPB
    P_PH = [ph0] + [first_use[(2, u_)] - pb for u_, pb in zip(PH_U[1:], ph_back)]
    P_PPF = P_PH[4] + 2 * chk + 4
    allp = sorted(P_PH + [P_PPF]); assert all(b_ - a_ > 2 * chk for a_, b_ in zip(allp, allp[1:])), allp
    CHK = {1: chk, 2: 2 * chk}
    CT_LAB = [150, 290, 370, 445, 590, 800]
    CT_AT = [20, 190, 300, 380, 470, 640]
    assert P_PPF > 660
    FREE_AT = list(free_at)
    def done_bar(idx):
        if ring[idx][0] == "SH": return P_SH_END
        if ring[idx][0] == "S1": return P_W1S + 20
        last = 16 * real.index(idx) + 15
        return next(p for p in bar_list if p > last)
    def earliest(it):
        if it[1] == "W":
            idx = it[2]
            e = done_bar(idx - NS) if idx >= NS else -1
            if ring[idx][0] == "W2": e = max(e, P_PW2 + CHK[1] + 1)
            if ring[idx][0] == "W1" and 16 * ring[idx][1] + 15 >= tail_start: e = max(e, P_PW1 + CHK[1] + 1)
            return e
        kd, u = it[2]
        if kd == 1: return P_PX + CHK[1] + 1 if u < KT else last_use[(1, u - KT)] + 1
        v_ = u - park
        if v_ < 0: e = FREE_AT[u // 2]
        else: e = last_use[(1, KM + v_ // 2)] + 1 if v_ < 2 * KT else last_use[(2, u - 2 * KT)] + 1
        return max(e, P_PH[max(j for j in range(5) if PH_U[j] <= u)] + CHK[2 if u >= 16 else 1] + 1)
    items = []
    for idx in range(7, NREAL):
        d = tm[P_SHR] - 100 if ring[idx][0] == "SH" else tm[P_W1S] - 40 if ring[idx][0] == "S1" else tm[16 * real.index(idx) - la_bar]
        items += [(d, "W", idx, i) for i in range(4)]
    for (kd, u), fu in first_use.items():
        if kd == 1 and u < E: continue
        items += [(tm[fu], "T", (kd, u), t) for t in range(NTk[kd])]
    items.sort(key=lambda x: x[0])
    nxt_t = 1e9; sched = []
    for it in reversed(items):
        late = it[0] >= tm[G2S]
        nxt_t = min(it[0] - (la2 if late else la1), nxt_t - 1.0 / (rate2 if nxt_t > tm[G2S] else rate1))
        e = earliest(it)
        sched.append((max(nxt_t, tm[e] if e >= 0 else -1e9),) + it[1:])
    sched.reverse()
    last_tok = max(x[0] for x in sched if x[1] == "T" and x[2][0] == 1)
    prev = last_tok
    for n_, it in enumerate(sched):
        if it[1] == "W" and it[0] > last_tok and prev < tm[G2S] - 8:
            prev = max(prev + 8, tm[earliest(it)]); sched[n_] = (min(it[0], prev),) + it[1:]
    wq = [x for x in sched if x[1] == "W"]
    wq.sort(key=lambda x: (x[2], x[3]))
    run = 1e9
    for n_ in range(len(wq) - 1, -1, -1):
        e = earliest(wq[n_]); run = min(run, wq[n_][0])
        wq[n_] = (max(run, tm[e] if e >= 0 else -1e9),) + wq[n_][1:]
    prev = max(x[0] for x in sched)
    for idx in range(NREAL, len(ring)):
        for i in range(4 if ring[idx][0] == "NX" else 0):
            prev = max(prev + 6, tm[done_bar(idx - NS)]); wq.append((prev, "W", idx, i))
    items = sorted(wq + [x for x in sched if x[1] == "T"], key=lambda x: x[0])
    prev = -1e9; slackv = []
    for n_, it in enumerate(items):
        if it[0] >= 0:
            prev = max(it[0], prev + 1.0 / (rmax if prev < tm[G2S] else rmax2)); items[n_] = (prev,) + it[1:]
        if it[1] == "T": slackv.append((tm[first_use[it[2]]] - items[n_][0], it[2]))
    MINSL = sorted(slackv)[:3]
    def lines(it):
        return dma(it[2], it[3]) if it[1] == "W" else tok(it[2][0], it[2][1], it[3])
    def record(it, i):
        if it[1] == "W": w_id[it[2]] = i
        else: t_id[(it[2], it[3])] = i
    while items and items[0][0] < 0:
        it = items.pop(0); record(it, k("\n".join(lines(it))))
    def rd(i):
        off = (stage_of(i) % NS) * 16384 + (i % 16) * 1024
        return f"ds_read_b128 a[{AW(i)}:{AW(i)+3}], v{VR + off // 65536} offset:{off % 65536}"
    def gelu4(G, U, P, tb):
        Tm = [tb + e for e in range(4)]
        o = [f"v_mul_f32 v{Tm[e]}, v{G+e}, v{G+e}" for e in range(4)]
        o += [f"v_fmaak_f32 v{Tm[e]}, v{VC2}, v{Tm[e]}, {f32bits(c1):#x}" for e in range(4)]
        o += [f"v_mul_f32 v{Tm[e]}, v{Tm[e]}, v{G+e}" for e in range(4)]
        for e in range(4): o += [f"v_exp_f32 v{Tm[e]}, v{Tm[e]}", f"v_mul_f32 v{U+e}, v{U+e}, v{G+e}"]
        o += [f"v_add_f32 v{Tm[e]}, 1.0, v{Tm[e]}" for e in range(4)]
        o += [f"v_rcp_f32 v{Tm[e]}, v{Tm[e]}" for e in range(4)]
        o += [f"v_mul_f32 v{U+e}, v{U+e}, v{Tm[e]}" for e in range(4)]
        o += [f"v_cvt_pk_bf16_f32 v{P}, v{U}, v{U+1}", f"v_cvt_pk_bf16_f32 v{P+1}, v{U+2}, v{U+3}"]
        return o
    def epilogue(b, t):
        a = acc(1, b, 2 * t); tb = TMP + 4 * t; sr = (S_C, S_E)[t]
        o = gelu4(a, acc(1, 7 + b, 2 * t), a, tb) + gelu4(acc(1, b, 2 * t + 1), acc(1, 7 + b, 2 * t + 1), a + 2, tb)
        o += [f"s_add_u32 s{sr}, s{S_HS}, {8192 * b + 2 * TBH * t}",
              f"v_permlane32_swap_b32 v{a}, v{a+2}", f"v_permlane32_swap_b32 v{a+1}, v{a+3}",
              f"buffer_store_dwordx4 v[{a}:{a+3}], v{VST}, {SW}, s{sr} offen sc1"]
        return [(x, b) for x in o]
    def p_store(p):
        o = []
        for t in range(2 if p >= 0 else 0):
            a = acc(2, 2 * p, t); b = acc(2, 2 * p + 1, t)
            o += [f"v_cvt_pk_bf16_f32 v{a}, v{a}, v{a+1}", f"v_cvt_pk_bf16_f32 v{a+1}, v{a+2}, v{a+3}",
                  f"v_cvt_pk_bf16_f32 v{a+2}, v{b}, v{b+1}", f"v_cvt_pk_bf16_f32 v{a+3}, v{b+2}, v{b+3}",
                  f"s_add_u32 s{S_C}, s{S_PS}, {8192 * t + p * 0x100000}",
                  f"buffer_store_dwordx4 v[{a}:{a+3}], v{VR}, {SW}, s{S_C} offen sc1"]
        return o
    cost = lambda s: 2 if s.startswith(("v_exp", "v_rcp", "v_permlane", "buffer_")) else 1

    published = npre - 1; r_id = {}; rp = 0; FL_AT = []; PE_AT = []; ready_b = -1; ready_at = 0
    while rp < RW - 2:
        r_id[rp] = k(rd(rp)); rp += 1
    seen = set(); epi = [[], []]; q = []; hold = 0; hst = {}; fl_due = {}; fl_next = 0; turn = 0
    last_st = {"h": None, "sh": None, "pf": None}; pend = {}; named = {}
    def emit_q():
        t_, c = q.pop(0)
        if c and c[0] == "L": k.wait(lg=named[c[1]])
        if c and c[0] == "Wv": k.wait(vm=w_id[c[1]])
        id_ = k(t_)
        if not c: return
        if c[0] == "V": record(c[1], id_)
        elif c[0] == "R": r_id[c[1]] = id_
        elif c[0] == "N": named[c[1]] = id_
        elif c[0] == "L": last_st["sh"] = id_
        elif c[0] in ("PF", "PG"): last_st["pf"] = id_
    for i, (kd, u, g) in enumerate(groups):
        NT = NTk[kd]
        if i == tail_start: stamp(7)
        if i == G2S: stamp(8); G2L = len(k.lines)
        if i == T2S and diag == 5: stamp(18)
        if i in bars:
            pub = bars[i]
            assert not any(it[1] == "W" and it[2] <= pub and ring[it[2]][0] not in ("SH", "S1") for it in items), (i, pub)
            while any(c and c[0] == "V" and c[1][1] == "W" and c[1][2] <= pub for _, c in q): emit_q()
            k.wait(vm=w_id[pub]); k("s_barrier"); published = max(published, pub)
        n = 0
        while rp < NGR and rp <= i + RW - 2 and stage_of(rp) <= published and n < 2:
            q.append((rd(rp), ("R", rp))); rp += 1; n += 1
        if items and items[0][0] <= tm[i]:
            it = items.pop(0); ls = lines(it)
            if it[1] == "T" and it[2][0] == 2 and it[2][1] < park:
                assert all((it[2][1] // 2, c_) in hst for c_ in (0, 1)), (i, it)
            q += [(x, None) for x in ls[:-1]] + [(ls[-1], ("V", it))]
        if P_SHR <= i < P_SHR + 16 and (i - P_SHR) % 4 == 0:
            assert not any(it[1] == "W" and ring[it[2]][0] == "SH" for it in items)
            p = (i - P_SHR) // 4
            base = (SH_POS % NS) * 16384
            for h in range(2):
                f = TMP + 8 + 4 * h; off = base + p * 64 + h * 8
                q.append((f"ds_read_b64_tr_b16 v[{f}:{f+1}], v{VS1} offset:{off}", ("Wv", SH_POS + 1)))
                q.append((f"ds_read_b64_tr_b16 v[{f+2}:{f+3}], v{VS1} offset:{off + 2048}", ("N", (p, h))))
        if P_SHR + 2 <= i < P_SHR + 18 and (i - P_SHR) % 4 == 2:
            p = (i - P_SHR) // 4
            q.append((f"s_add_u32 s{S_D}, s{S_D}, s60" if p else f"s_mov_b32 s{S_D}, s{S_SHD}", None))
            for h in range(2):
                f = TMP + 8 + 4 * h
                q.append((f"buffer_store_dwordx4 v[{f}:{f+3}], v{VR}, {SX}, s{S_D} offen offset:{1024*h} sc1", ("L", (p, h))))
        if ct and i in CT_AT:
            j = CT_AT.index(i)
            q += [(f"v_lshlrev_b32 v{TMP+13}, 3, v{VR}", None), (f"s_mov_b32 s{S_SP}, L_ct{j}-L_body", None),
                  (f"buffer_load_dword v{TMP+14}, v{TMP+13}, s[80:83], s{S_SP} offen", None)]
        if i in CT_LAB: k.label(f"L_ct{CT_LAB.index(i)}")
        if i == P_SH_END + 12:
            k.wait(vm=last_st["sh"]); k(f"s_mov_b64 exec, 1\nbuffer_store_dword v{VTAG}, off, {SX}, s{S_FW2_P} sc1\ns_mov_b64 exec, -1")
        PFR, PFS = (TMP, S_C) if pf_at < GPB else (TMP + 8, S_D)
        if i == P_PF: q += [(f"v_mov_b32 v{PFR+e}, -1", None) for e in range(4)]
        arm = list(range(0 if sent else 4, 8))
        if P_PF <= i < P_PF + len(arm) * pf_step and (i - P_PF) % pf_step == 0:
            t = arm[(i - P_PF) // pf_step]
            q += [(f"s_add_u32 s{PFS}, s{S_PS}, {8192 * (t & 1) + (t >> 1) * 0x100000}", None),
                  (f"buffer_store_dwordx4 v[{PFR}:{PFR+3}], v{VR}, {SW}, s{PFS} offen sc1", ("PF" if PFR == TMP else "PG",))]
        TW_AT = P_PW2 + chk + 4
        if TW_AT <= i < TW_AT + tw * tw_step and (i - TW_AT) % tw_step == 0:
            j = (i - TW_AT) // tw_step
            q += [(f"v_lshlrev_b32 v{TMP+13}, 3, v{VR}", None), (f"s_add_u32 s{S_SP}, s91, {tw0 * 1024 + j * 131072}", None),
                  (f"buffer_load_dword v{TMP+14}, v{TMP+13}, {SW}, s{S_SP} offen", None)]
        if sent and i == P_PF + 8 * pf_step + 30: named["pe"] = (0, last_st["pf"])
        if sent and i == P_PPF - 8: q += [(f"v_and_b32 v{TMP+13}, 60, v{VF}", None), (f"v_lshlrev_b32 v{TMP+13}, 5, v{TMP+13}", None)]
        if not sent and i == NGR - pe_back - 8:
            q += [(f"v_and_b32 v{TMP+13}, 60, v{VF}", None), (f"v_lshlrev_b32 v{TMP+13}, 5, v{TMP+13}", None)]
        if not sent and i == NGR - pe_back: q.append((poll_load(S_FPF_C), ("N", "pe_ld")))
        if "pe" in named and tm[i] >= named["pe"][0]:
            k.wait(vm=named.pop("pe")[1])
            k(flag_store(S_FPF_P)); k(f"s_add_u32 s{S_FPF_P}, s{S_FPF_P}, 0x20000")
            PE_AT.append(i)
        if fl_next in fl_due and tm[i] >= fl_due[fl_next][0]:
            if diag == 4: stamp(12 + 2 * fl_next)
            k.wait(vm=fl_due[fl_next][1])
            if diag == 4: stamp(13 + 2 * fl_next)
            k(flag_store(S_FH_P)); k(f"s_add_u32 s{S_FH_P}, s{S_FH_P}, 0x4000")
            FL_AT.append(i); fl_next += 1
        polls = [(P_PW1, S_FW1_C, "w1", 1), (P_PW2, S_FW2_C, 56, 1)] + [(P_PH[j], S_FH_C, 16, j + 1) for j in range(4)] + [(P_PPF if sent else -100, S_FPF_C, 16, 1), (P_PX, S_FXN_C, 8, 1), (P_PH[4], S_FH_C, 16, 5)]
        for z, (pos, soff, n_, lvl) in enumerate(polls):
            if i == pos: pend[pos] = k(poll_load(soff))
            if i == pos + CHK[kd] and pos in pend:
                if z >= 7: z += 1
                if diag == 3: stamp(12 + 2 * z)
                poll_check(pend.pop(pos), soff, n_, lvl)
                if soff == S_FH_C: k(f"s_add_u32 s{S_FH_C}, s{S_FH_C}, 0x4000")
                if diag == 3: stamp(13 + 2 * z)
        if tail_start + GPB <= i <= G2S and (i - tail_start) % GPB == 0:
            b = (i - tail_start) // GPB - 1
            assert not any(c_ and c_[0] == "PF" for _, c_ in q)
            if not epi[0] and not epi[1]: hold = 4
            for t in range(2): epi[t] += epilogue(b, t)
            ready_b = b; ready_at = tm[i] + 4
        if i > T2S and (i - T2S) % (2 * KT2) == 4:
            assert fl_next == 5 and not epi[0]
            pp_ = (i - T2S) // (2 * KT2) - 1
            epi[0] += [(x, 100 + pp_) for x in p_store(pp_)]
        if i == G2S: assert all(x[1] >= 4 for c_ in epi for x in c_)
        def waits(i, kd, u, t):
            if i not in r_id or ((kd, u), t) not in t_id: return None
            lgw = r_id[i]
            if lgw > k.lg_done:
                for j in range(1, wgran):
                    if i + j in r_id and k.nlg - r_id[i + j] >= 2: lgw = r_id[i + j]
            vmw = t_id[((kd, u), t)]
            if vmw > k.vm_done and i > 28 and ((kd, u), NTk[kd] - 1) in t_id: vmw = t_id[((kd, u), NTk[kd] - 1)]
            return vmw, lgw
        for t in range(NT):
            while waits(i, kd, u, t) is None: emit_q()
            vmw, lgw = waits(i, kd, u, t)
            k.wait(vm=vmw, lg=lgw)
            a = acc(kd, g, t)
            c = f"v[{a}:{a+3}]" if (kd, g, t) in seen else "0"
            seen.add((kd, g, t))
            at = AT(kd, u, t)
            k(f"v_mfma_f32_16x16x32_bf16 v[{a}:{a+3}], a[{AW(i)}:{AW(i)+3}], {at}, {c}")
            budget = 2 if kd == 1 else b2
            if len(epi[0]) + len(epi[1]) > thr and (tm[i] + t) % 2 == 0: budget += 1
            if t + 1 < NT: nw = waits(i, kd, u, t + 1)
            elif i + 1 < NGR:
                nw = waits(i + 1, groups[i + 1][0], groups[i + 1][1], 0)
                if i + 1 in bars: budget -= 1
            else: nw = (0, 0)
            if nw is None or nw[0] > k.vm_done or nw[1] > k.lg_done: budget -= 1
            used = 0
            while q and used < 2:
                mem = q[0][0].startswith(("ds_", "buffer_"))
                c_ = cost(q[0][0])
                if (mem and used) or (c_ > budget and not (len(q) > 5 and used == 0)): break
                if used and len(q) <= NT - t: break
                emit_q(); budget -= c_; used += 1
            while budget > 0:
                ok = [c_ for c_ in (turn, 1 - turn) if epi[c_] and cost(epi[c_][0][0]) <= budget
                      and not (epi[c_][0][1] == ready_b and tm[i] + t < ready_at)]
                if not ok: break
                big = [c_ for c_ in ok if cost(epi[c_][0][0]) == 2]
                c_ = big[0] if big else ok[0]
                if abs(len(epi[c_]) - len(epi[1 - c_])) > 24 and len(epi[c_]) < len(epi[1 - c_]):
                    if 1 - c_ in ok: c_ = 1 - c_
                    else: break
                x, b = epi[c_].pop(0); budget -= cost(x); turn = 1 - c_
                id_ = k(x)
                if b == 101 and not epi[0] and not sent: named["pe"] = (tm[i] + t + pe_lag, id_)
                if x.startswith("buffer_store") and b < 7:
                    hst[(b, c_)] = id_
                    if b in PH_B and (b, 0) in hst and (b, 1) in hst:
                        fl_due[PH_B.index(b)] = (tm[i] + t + fl_lag, id_)
    while epi[0] and epi[0][0][1] == 102: k(epi[0].pop(0)[0])
    assert len(PE_AT) == 1
    assert not items and not epi[0] and not epi[1] and not q and not pend and fl_next == 5
    assert all(tm[f] + 60 < tm[p] for f, p in zip(FL_AT, P_PH)), (FL_AT, P_PH)
    k.info = dict(pe=(PE_AT, NGR), minsl=[(int(a_), b_) for a_, b_ in MINSL], flags=FL_AT, polls=P_PH, slack=[tm[p] - tm[f] for f, p in zip(FL_AT, P_PH)])
    if abl:
        keep = []
        for l in k.lines[G2L:]:
            x = l.strip()
            if "T" in abl and x.startswith("buffer_load_dwordx4 a["): continue
            if "W" in abl and x.endswith(" lds"): continue
            if "D" in abl and x.startswith("ds_read_b128"): continue
            if "B" in abl and x == "s_barrier": continue
            if "V" in abl and x.startswith(("v_mul", "v_fmaak", "v_exp", "v_rcp", "v_add_f32")): continue
            keep.append(l)
        k.lines[G2L:] = keep
    stamp(9)
    PP = 160
    for x in p_store(3): k(x)
    if not sent:
        pe_ld = named["pe_ld"]
        k(flag_store(S_FPF_P)); k(f"s_add_u32 s{S_FPF_P}, s{S_FPF_P}, 0x20000")
    VRL = TMP + 15
    k(f"s_lshl_b32 s{S_B}, s{S_LAY}, 23\ns_add_u32 s{S_B}, s{S_B}, s{S_ROWL}")
    k(f"v_lshrrev_b32 v{TMP+14}, 12, v{VROW}\nv_and_b32 v{VRL}, 0x3ff, v{VROW}\nv_lshl_add_u32 v{VRL}, v{TMP+14}, 10, v{VRL}")
    def p_loads(which):
        def f():
            for i in which:
                for j in range(2):
                    r = PP + 8 * i + 4 * j
                    k(f"s_add_u32 s{S_C}, s{S_B}, {WS_P + j*MB4 + i*0x100000}")
                    x = k(f"buffer_load_dwordx4 v[{r}:{r+3}], v{VRL}, {SW}, s{S_C} offen sc1")
            return x
        return f
    def add_p(which):
        for i in which:
            for e in range(8 * i, 8 * i + 8, 2):
                for j in range(2):
                    r = PP + 8 * i + 4 * j + (e % 8) // 2
                    unpk(k, T + 2 * j, r, 0); unpk(k, T + 2 * j + 1, r, 1)
                k(f"v_pk_add_f32 v[{T}:{T+1}], v[{T}:{T+1}], v[{T+2}:{T+3}]")
                k(f"v_pk_add_f32 v[{X+e}:{X+e+1}], v[{X+e}:{X+e+1}], v[{T}:{T+1}]")
                k(f"v_cvt_pk_bf16_f32 v{XP+e//2}, v{X+e}, v{X+e+1}")
                unpk(k, X + e, XP + e // 2, 0); unpk(k, X + e + 1, XP + e // 2, 1)
    if not sent:
        if diag == 5: stamp(12)
        poll_check(pe_ld, S_FPF_C, 16)
        if diag == 5: stamp(13)
        e_ld = p_loads((0, 1))()
        k(f"s_add_u32 s{S_FPF_C}, s{S_FPF_C}, 0x20000")
        row_addr()
        for i in range(4): k(f"ds_read_b128 v[{XP+4*i}:{XP+4*i+3}], v{AL} offset:{16384 + 4096*i}")
        for i in range(4): k(f"ds_read_b128 v[{YP+4*i}:{YP+4*i+3}], v{AL} offset:{4096*i}")
        pl_ld = k(poll_load(S_FPF_C))
        k("s_waitcnt lgkmcnt(0)")
        unpack(X, XP)
        if diag == 5: stamp(14)
        poll_check(pl_ld, S_FPF_C, 16)
        if diag == 5: stamp(15)
        k(f"s_add_u32 s{S_FPF_C}, s{S_FPF_C}, 0x20000")
        def mid():
            k("s_barrier")
            add_p((0, 1)); unpack(Yf, YP)
            if diag == 5: stamp(16)
        sentinel_loop("L_ppoll", p_loads((2, 3)), range(PP + 16, PP + 32), mid)
    else:
        if diag == 5: stamp(12); stamp(13)
        k(f"s_add_u32 s{S_FPF_C}, s{S_FPF_C}, 0x20000")
        def first():
            row_addr()
            for i in range(4): k(f"ds_read_b128 v[{XP+4*i}:{XP+4*i+3}], v{AL} offset:{16384 + 4096*i}")
            for i in range(4): k(f"ds_read_b128 v[{YP+4*i}:{YP+4*i+3}], v{AL} offset:{4096*i}")
            k("s_waitcnt lgkmcnt(0)\ns_barrier")
            unpack(X, XP); unpack(Yf, YP)
            if diag == 5: stamp(14)
        p_loads((0, 1, 2))()
        first()
        sentinel_loop("L_ppoll", p_loads((3,)), range(PP + 24, PP + 32))
        if diag == 5: stamp(15)
        sentinel_loop("L_ppoll2", p_loads((0, 1, 2)), range(PP, PP + 24), skip_first=True)
        if diag == 5: stamp(16)
    stamp(10)
    k(f"s_cmp_lg_u32 s{S_LAY}, 0\ns_cbranch_scc1 L_final")
    def tail_math():
        add_p((0, 1, 2, 3) if sent else (2, 3)); stats(0)
    weave(tail_math, range(7), 200)
    stamp(11)
    if diag: k(f"v_mov_b32 v{VSTAMP-1}, v{VSTAMP}")
    k(f"""
    s_mov_b32 s{S_LAY}, 1
    s_mov_b32 s26, 0
    s_mov_b32 s30, 0
    s_add_u32 s{S_XN}, s{S_XN}, {MB4}
    s_add_u32 s{S_HL}, s{S_HL}, {H_STRIDE}
    s_add_u32 s{S_HS}, s{S_HS}, {H_STRIDE}
    s_add_u32 s{S_PS}, s{S_PS}, {2*MB4}
    s_add_u32 s{S_FXN_P}, s{S_FXN_P}, 0x4000
    s_add_u32 s{S_FXN_C}, s{S_FXN_C}, 0x4000
    s_branch L_layer
    """)
    k.label("L_final")
    add_p((0, 1, 2, 3) if sent else (2, 3))
    k(f"s_or_b32 s16, s2, s17\ns_cbranch_scc1 L_noepoch\ns_add_u32 s87, s87, 1\nv_mov_b32 v{VP}, s87\ns_mov_b32 s16, {WS_FLAG + F_EPOCH}")
    k(f"s_mov_b64 exec, 1\nbuffer_store_dword v{VP}, off, {SW}, s16 sc1\ns_mov_b64 exec, -1")
    k.label("L_noepoch")
    srd(k, 32, 6, MB4)
    for i in range(4): k(f"buffer_store_dwordx4 v[{XP+4*i}:{XP+4*i+3}], v{AO}, s[32:35], s{S_ROWY} offen offset:{64*i}")
    if diag:
        k("s_waitcnt vmcnt(0)"); stamp(11)
        k(f"s_lshl_b32 s12, s2, 11\ns_lshl_b32 s13, s17, 9\ns_add_u32 s12, s12, s13\ns_add_u32 s12, s12, 0x8100000")
        k(f"buffer_store_dword v{VSTAMP-1}, v{VF}, {SW}, s12 offen\nbuffer_store_dword v{VSTAMP}, v{VF}, {SW}, s12 offen offset:256")
    k("s_endpgm")
    for lab, pre_, body in slow:
        k.label(lab); k("\n".join(pre_))
        k.label(lab + "_l"); k("\n".join(body)); k(f"s_cbranch_scc1 {lab}_l")
        k.label(lab + "_out"); k(f"s_waitcnt vmcnt(0)\ns_branch {lab}_ok")
    k.label("L_end"); k("s_endpgm")
    return (k, 512, 256), (k.name, 256, 256, 163840)

HEADER = open("interleave_layers__ssm_conv_h3__glu_gated_geglu__prompt.s.ref").read().split("; Override launch")[0]

def build(path, stamps=False, as_list=True, hpad=0, wpad=0, **kw):
    global TBH, W1T, W2T
    TBH = 224 * 512 + hpad; W1T = 448 + wpad; W2T = 448 + wpad
    asmlib.STAMPS[0] = stamps
    kk, l = gen_mega(**kw)
    txt = module(HEADER, [l], [kk])
    if not as_list: txt = txt.replace(f"; @launch kernel={l[0]} ", "; @launch ")
    txt = "\n".join(x.strip() if x.startswith("    ") else x for x in txt.split("\n"))
    open(path, "w").write(txt)
    return len(kk[0].lines), kk[0].padded, kk[0].info

if __name__ == "__main__":
    print(build("v8.s")); build("v8s.s", stamps=True); build("v8f.s", stamps=3)
```

```python
import math, struct, sys
import asmlib
from asmlib import *

MB4 = 0x400000
WS_TOTAL = 0x10000000
WS_Y, WS_KV = 0x0, 0x400000
WS_XN = 0x900000
WS_P = 0x5400000
WS_H = 0x1200000
H_STRIDE = 0x1000000
WS_W1, WS_W2, WS_FLAG = 0x3200000, 0x4200000, 0x5200000
WS_PL = 0x9000000
F_W0 = 0x14000
F_PE = 0x80000
W1T, W2T = 448, 448
F_W1, F_W2, F_PF, F_H, F_XN, F_KV, F_ARM, F_EPOCH = 0x0, 0x1000, 0x2000, 0x20000, 0x8000, 0x100000, 0x11000, 0x12000
H_BYTES = 2048 * 3584 * 2
W_BYTES = 1024 * 3584 * 2
TBH = 224 * 512
ARG = dict(q=0, k=8, v=16, shift=24, ssm=32, D=40, wg=56, wu=64, wd=72, out=80, dbg=88, ws=96)
lg = lambda x: x.bit_length() - 1
f32bits = lambda x: struct.unpack("<I", struct.pack("<f", x))[0]
SPIN = 0x20000

def srd(k, d, base, nbytes, off=0):
    if off: k(f"s_add_u32 s{d}, s{base}, {off:#x}\ns_addc_u32 s{d+1}, s{base+1}, 0")
    else: k(f"s_mov_b32 s{d}, s{base}\ns_mov_b32 s{d+1}, s{base+1}")
    k(f"s_mov_b32 s{d+2}, {nbytes:#x}\ns_mov_b32 s{d+3}, 0x20000")

def unpk(k, dst, src, hi):
    k(f"v_and_b32 v{dst}, 0xffff0000, v{src}" if hi else f"v_lshlrev_b32 v{dst}, 16, v{src}")

def touch_code(k, first, last, vaddr, vdst, sb, v0=0, n=1, step=32768):
    k.nl += 1
    here = f"L_{k.name}_pc{k.nl}"
    k(f"s_getpc_b64 s[{sb}:{sb+1}]")
    k.label(here)
    k(f"""
    s_add_u32 s{sb}, s{sb}, {first}-{here}
    s_addc_u32 s{sb+1}, s{sb+1}, 0
    s_mov_b32 s{sb+2}, {last}-{first}
    s_mov_b32 s{sb+3}, 0x20000
    v_lshlrev_b32 v{vaddr}, 7, v{v0}
    """)
    for i in range(n):
        if i: k(f"v_add_u32 v{vaddr}, {step}, v{vaddr}")
        k(f"buffer_load_dword v{vdst}, v{vaddr}, s[{sb}:{sb+3}], 0 offen")

CS = 4160; XS = 4640; CH_LDS = 4 * CS + 2 * XS; CONV_LDS = 4 * CH_LDS
NS = 8; RW = 8
LDS_Y, LDS_XR, LDS_ST = 131072, 147456, 131072 - 512
S_LAY, S_WAVE, S_WS = 3, 17, 8
SW = "s[20:23]"; SD = "s[24:27]"; SX = "s[28:31]"
(S_M0, S_W1, S_W2, S_XN, S_HL, S_HS, S_PS, S_ROWF, S_ROWY, S_FH_P, S_FH_C, S_FW2_P, S_FW2_C, S_FPF_P, S_FPF_C,
 S_FXN_P, S_FXN_C, S_SHA, S_SHB, S_SHD, S_HS6) = range(36, 57)
S_FW1_C = 19
S_PL, S_ROWL, S_TAG16, S_MSK = 56, 88, 89, 90
S_N = 68
S_DMA, S_SP, S_T = 57, 58, 10
S_A, S_B, S_C, S_D, S_E = 14, 15, 16, 18, 59
VR, VD, VST, VC2, VF, VTID, VS0, VS1, VROW, VP, VF16 = 224, 226, 227, 228, 229, 230, 231, 232, 233, 234, 235
TMP = 236
VTAG = 253
VSTAMP = 255

def gen_mega(KT=14, la_bar=5, la1=200, rate1=0.175, la2=96, rate2=0.225, wgran=2, rep=4, nap=3, q_step=2, r1_step=3, arm_step=2, npre=3, npre2=7, w0_at=2, sh_step=4, ord2=True, swz=0, now=0, wnt='', ct=True, pnap=2, ph_back=(90, 100, 100, 90), b2=3, fl_lag=48, thr=9999, chk=10, pf_step=4, pf_at=44, pe_back=6, sent=True, park=8, free_at=(335, 368, 402, 434), ph0=392, tw=0, tw0=96, tw_step=8, pe_lag=32, rmax=0.2, rmax2=0.25, w1_step=1, w1s=2, E=3, e_late=True, KT2=12, abl=""):
    k = K("interleave_layers__ssm_conv_h3__glu_gated_geglu__prompt_kernel")
    diag = asmlib.STAMPS[0]
    def stamp(i):
        if diag:
            k(f"s_memrealtime s[64:65]\ns_memtime s[66:67]\ns_waitcnt lgkmcnt(0)\nv_writelane_b32 v{VSTAMP}, s64, {i}\nv_writelane_b32 v{VSTAMP}, s66, {32 + i}")
    slow = []
    def poll_load(soff, width=1):
        if width == "w0": return f"buffer_load_dwordx2 v[{TMP}:{TMP+1}], v{TMP+13}, {SW}, s{soff} offen sc1"
        if width == "arm": return f"buffer_load_dwordx4 v[{TMP}:{TMP+3}], v{VR}, {SW}, s{soff} offen sc1"
        va = VF if soff in (S_FW1_C, S_FW2_C) else TMP + 13 if soff in (S_FPF_C, S_FKV) else VF16
        return f"buffer_load_dword v{VP}, v{va}, {SW}, s{soff} offen sc1"
    def poll_test(n, width, soff):
        if n == "w0":
            return [f"v_xor_b32 v{TMP}, v{TMP}, v{VTAG}", f"v_xor_b32 v{TMP+1}, v{TMP+1}, v{VTAG}", f"v_or_b32 v{VP}, v{TMP}, v{TMP+1}",
                    f"v_cmp_ne_u32 vcc, 0, v{VP}", f"s_or_b32 s{S_A}, vcc_lo, vcc_hi", f"s_and_b32 s{S_A}, s{S_A}, {(1 << (32 - KT)) - 1:#x}"]
        if n == "arm":
            o = [f"v_xor_b32 v{TMP+i}, v{TMP+i}, v{VTAG}" for i in range(4)]
            o += [f"v_or3_b32 v{VP}, v{TMP}, v{TMP+1}, v{TMP+2}", f"v_or_b32 v{VP}, v{VP}, v{TMP+3}", f"v_cmp_ne_u32 vcc, 0, v{VP}"]
            n = 64
        else: o = [f"v_cmp_ne_u32 vcc, v{VTAG}, v{VP}"]
        if n == "w1": o += [f"s_or_b32 s{S_A}, vcc_lo, vcc_hi", f"s_and_b32 s{S_A}, s{S_A}, {(1 << (2 * KT)) - 1:#x}"]
        elif n <= 32: o.append(f"s_and_b32 s{S_A}, vcc_lo, {(1 << n) - 1:#x}")
        elif n < 64: o += [f"s_and_b32 s{S_A}, vcc_hi, {(1 << (n - 32)) - 1:#x}", f"s_or_b32 s{S_A}, s{S_A}, vcc_lo"]
        else: o.append(f"s_or_b32 s{S_A}, vcc_lo, vcc_hi")
        return o
    def poll_check(ld, soff, n, width=1):
        k.nl += 1; lab = f"L_poll{k.nl}"
        k.wait(vm=ld)
        k("\n".join(poll_test(n, width, soff)) + f"\ns_cbranch_scc1 {lab}")
        k.label(lab + "_ok")
        slow.append((lab, [f"s_mov_b32 s{S_SP}, {SPIN}"], [f"s_sleep {nap}", poll_load(soff, n if n in ("arm", "w0") else width), f"s_sub_u32 s{S_SP}, s{S_SP}, 1", f"s_cbranch_scc1 {lab}_out",
                    "s_waitcnt vmcnt(0)"] + poll_test(n, width, soff)))
    def flag_store(soff):
        if soff in (S_FPF_P, 78):
            return f"s_mov_b32 exec_hi, 0\nbuffer_store_dword v{VTAG}, v{VF16}, {SW}, s{soff} offen sc1\ns_mov_b32 exec_hi, -1"
        return f"s_mov_b64 exec, 1\nbuffer_store_dword v{VTAG}, off, {SW}, s{soff} sc1\ns_mov_b64 exec, -1"

    c1 = -2 * math.sqrt(2 / math.pi) * math.log2(math.e)
    k("s_cmp_ge_u32 s2, 256\ns_cbranch_scc1 L_end")
    S_FKV = 69
    k(f"""
    s_load_dwordx4 s[72:75], s[0:1], {ARG['k']}
    s_load_dwordx2 s[8:9], s[0:1], {ARG['ws']}
    s_load_dwordx2 s[76:77], s[0:1], {ARG['shift']}
    s_load_dwordx4 s[4:7], s[0:1], {ARG['ssm']}
    s_load_dwordx4 s[12:15], s[0:1], {ARG['wg']}
    s_load_dwordx2 s[10:11], s[0:1], {ARG['q']}
    s_and_b32 s59, s2, 7
    s_lshr_b32 s60, s2, 3
    s_lshl_b32 s16, s60, 4
    v_and_b32 v3, 15, v0
    v_add_u32 v3, s16, v3
    """)
    touch_code(k, "L_body", "L_end", 4, 51, 80, v0=3)
    k.label("L_body")
    k(f"""
    s_mov_b32 s{S_LAY}, 0
    v_mov_b32 v{VTID}, v0
    v_lshrrev_b32 v1, 6, v0
    v_and_b32 v2, 63, v0
    v_readfirstlane_b32 s17, v1
    s_lshl_b32 s61, s59, 5
    s_add_u32 s61, s61, s60
    v_lshlrev_b32 v{VR}, 4, v2
    s_and_b32 s16, s61, 15
    s_lshl_b32 s16, s16, 4
    v_and_b32 v48, 7, v0
    v_bfe_u32 v49, v0, 6, 1
    v_lshl_add_u32 v48, v49, 3, v48
    v_add_u32 v48, s16, v48
    s_and_b32 s16, s61, 0xf0
    v_bfe_u32 v49, v0, 3, 3
    v_lshrrev_b32 v3, 7, v0
    v_lshl_add_u32 v49, v3, 3, v49
    v_add_u32 v49, s16, v49
    v_lshlrev_b32 v3, 14, v48
    v_lshl_add_u32 v3, v49, 3, v3
    v_subrev_u32 v8, 0x1800, v3
    v_subrev_u32 v9, 0x1000, v3
    v_subrev_u32 v10, 0x800, v3
    v_lshlrev_b32 v7, 5, v49
    s_mov_b32 s84, 4096
    s_mov_b32 s85, 8192
    s_mov_b32 s86, 12288
    s_lshl_b32 s18, s61, 2
    s_add_u32 s18, s18, s17
    s_mul_i32 s62, s17, {CH_LDS}
    """)
    if diag: k(f"v_mov_b32 v{VSTAMP}, 0")
    k("s_waitcnt lgkmcnt(0)")
    k(f"s_add_u32 s70, s8, {WS_FLAG + F_EPOCH}\ns_addc_u32 s71, s9, 0\ns_load_dword s87, s[70:71], 0")
    srd(k, 24, 72, MB4); srd(k, 28, 74, MB4); srd(k, 32, 76, 8192)
    KR = lambda t: 74 + 2 * t
    VV = lambda t: 90 + 2 * t
    so = ["0", "s84", "s85", "s86"]
    for i in range(3): k(f"buffer_load_dwordx2 v[{KR(i-3)}:{KR(i-3)+1}], v{8+i}, s[24:27], 0 offen")
    for t in range(8): k(f"buffer_load_dwordx2 v[{KR(t)}:{KR(t)+1}], v3, s[24:27], {so[t>>1]} offen offset:{(t&1)*2048}")
    k("buffer_load_dwordx4 v[108:111], v7, s[32:35], 0 offen")
    lk = k("buffer_load_dwordx4 v[112:115], v7, s[32:35], 0 offen offset:16")
    for t in range(8): lv = k(f"buffer_load_dwordx2 v[{VV(t)}:{VV(t)+1}], v3, s[28:31], {so[t>>1]} offen offset:{(t&1)*2048}")
    stamp(0)
    srd(k, 20, 8, WS_TOTAL); srd(k, 28, 8, WS_TOTAL)
    k(f"""
    s_lshl_b32 s16, s18, 12
    s_add_u32 s32, s4, s16
    s_addc_u32 s33, s5, 0
    s_mov_b32 s34, 4096
    s_mov_b32 s35, 0x20000
    s_add_u32 s16, s16, {WS_KV}
    s_add_u32 s88, s8, s16
    s_addc_u32 s89, s9, 0
    s_mov_b32 s90, 4096
    s_mov_b32 s91, 0x20000
    """)
    HR = 192
    for i in range(4):
        for h in range(2): h_ld = k(f"buffer_load_dwordx4 v[{HR+8*i+4*h}:{HR+8*i+4*h+3}], v{VR}, s[32:35], 0 offen offset:{i*1024 + 16*h}")
    k(f"v_sub_u32 v50, 255, v48\nv_lshlrev_b32 v50, 4, v50\nv_lshl_add_u32 v50, v49, 14, v50\nv_add_u32 v50, {WS_KV}, v50")
    srd(k, 92, 10, MB4)
    KM = 32 - KT
    NU0, NU1 = 56 * KM, 56 * KT
    assert NU0 <= 1024 and NU1 <= 1024 and 2 * KT <= 32
    k(f"""
    v_lshrrev_b32 v11, 4, v2
    v_mul_u32_u24 v54, 7168, v11
    v_and_b32 v12, 15, v2
    v_lshl_add_u32 v54, v12, 4, v54
    s_lshl_b32 s10, s2, 2
    s_add_u32 s10, s10, s17
    s_lshl_b32 s11, s17, 13
    s_add_u32 s11, s11, {CONV_LDS}
    s_mul_hi_u32 s48, s10, {-(-(1 << 32) // 28)}
    s_mul_i32 s47, s48, 28
    s_sub_u32 s47, s10, s47
    s_and_b32 s52, s48, 1
    s_lshr_b32 s48, s48, 1
    s_cmp_eq_u32 s52, 0
    s_cselect_b32 s24, s12, s14
    s_cselect_b32 s25, s13, s15
    s_mov_b32 s27, 0x20000
    s_mul_i32 s49, s48, {32*7168}
    s_lshl_b32 s12, s47, 8
    s_add_u32 s49, s49, s12
    """)
    def w_enable(n):
        return [f"s_cmp_lt_u32 s10, {n}", f"s_cselect_b32 s26, {0 if now & (1 if n == NU0 else 2) else W_BYTES}, 0", f"s_cselect_b32 s30, {WS_TOTAL}, 0"]
    def w_load(r, j):
        return [f"s_add_u32 m0, s11, {1024*j}", f"s_add_u32 s12, s49, {4*7168*j + r*KM*32*7168}", f"buffer_load_dwordx4 v54, s[24:27], s12 offen {wnt} lds"]
    for x in w_enable(NU0): k(x)
    def w0_issue():
        for j in range(8): k("\n".join(w_load(0, j)))
    A = lambda buf, p: 64 + buf * 64 + 4 * p
    B = lambda buf, j: 96 + buf * 64 + 4 * j
    AD = 40
    k("v_and_b32 v61, 15, v2\nv_lshrrev_b32 v62, 4, v2\nv_lshlrev_b32 v63, 2, v61\nv_lshl_add_u32 v63, v62, 4, v63")
    for w in range(4): k(f"v_subrev_u32 v{4+w}, {60-4*w}, v63")
    for w in range(4): k(f"buffer_load_dword v{A(0,0)+w}, v{4+w}, s[32:35], 0 offen")
    k(f"""
    s_and_b32 s16, s18, 0xfffffffe
    s_lshl_b32 s16, s16, 1
    s_add_u32 s6, s6, s16
    s_addc_u32 s7, s7, 0
    s_load_dword s63, s[6:7], 0
    s_load_dwordx4 s[4:7], s[0:1], {ARG['wd']}
    s_lshr_b32 s32, s59, 1
    s_lshl_b32 s32, s32, 2
    s_and_b32 s33, s60, 3
    s_add_u32 s32, s32, s33
    s_and_b32 s33, s59, 1
    s_lshr_b32 s34, s60, 2
    s_lshl_b32 s35, s33, 3
    s_add_u32 s35, s35, s34
    s_lshl_b32 s19, s32, 4
    s_add_u32 s19, s19, s35
    s_lshl_b32 s{S_ROWY}, s19, 14
    s_lshr_b32 s45, s19, 1
    s_lshl_b32 s45, s45, 15
    s_and_b32 s16, s19, 1
    s_lshl_b32 s16, s16, 7
    s_add_u32 s45, s45, s16
    v_and_b32 v8, 7, v0
    v_lshrrev_b32 v9, 3, v0
    v_lshlrev_b32 v15, 4, v8
    v_lshl_add_u32 v15, v9, 8, v15
    v_and_b32 v13, 3, v9
    v_lshrrev_b32 v9, 2, v9
    v_lshl_add_u32 v9, v9, 4, v13
    v_lshlrev_b32 v10, 11, v8
    v_lshl_add_u32 v10, v9, 4, v10
    v_lshlrev_b32 v{VROW}, 4, v8
    v_lshl_add_u32 v{VROW}, v9, 8, v{VROW}
    v_mov_b32 v16, -1
    v_mov_b32 v17, -1
    v_mov_b32 v18, -1
    v_mov_b32 v19, -1
    v_lshlrev_b32 v14, 4, v0
    """)
    QP = 192
    k("v_mov_b32 v53, v10")
    k(f"""
    v_and_b32 v8, 3, v61
    v_mul_u32_u24 v8, {CS}, v8
    v_lshrrev_b32 v9, 2, v61
    v_add_u32 v9, v9, v62
    v_lshl_add_u32 v56, v9, 4, v8
    v_add_u32 v56, s62, v56
    v_lshrrev_b32 v8, 3, v61
    v_mul_u32_u24 v9, {XS}, v8
    v_and_b32 v10, 7, v61
    v_lshlrev_b32 v13, 6, v10
    v_sub_u32 v9, v9, v13
    v_lshl_add_u32 v9, v62, 4, v9
    v_add_u32 v9, {4*CS + 4032 - 3584}, v9
    v_add_u32 v57, s62, v9
    v_lshrrev_b32 v13, 1, v10
    v_xor_b32 v13, v13, v62
    v_lshl_add_u32 v13, v10, 2, v13
    v_lshlrev_b32 v13, 4, v13
    v_lshl_add_u32 v13, v8, 12, v13
    v_add_u32 v59, s62, v13
    v_lshrrev_b32 v8, 5, v2
    v_mul_u32_u24 v8, {XS}, v8
    v_and_b32 v9, 31, v2
    v_lshl_add_u32 v8, v9, 4, v8
    v_add_u32 v8, s62, v8
    v_mov_b32 v44, 0
    v_mov_b32 v45, 0
    v_mov_b32 v46, 0
    v_mov_b32 v47, 0
    v_mov_b32 v58, s62
    ds_write_b128 v8, v[44:47] offset:{4*CS + 4096}
    v_lshlrev_b32 v55, 3, v11
    v_bfe_u32 v9, v2, 2, 2
    v_add_u32 v55, v55, v9
    v_lshlrev_b32 v55, 8, v55
    v_and_b32 v9, 3, v2
    v_lshl_add_u32 v55, v9, 3, v55
    v_add_u32 v55, s11, v55
    s_waitcnt lgkmcnt(0)
    s_and_b32 s12, s18, 1
    s_lshl_b32 s12, s12, 4
    s_lshr_b32 s63, s63, s12
    s_and_b32 s63, s63, 0xffff
    v_mov_b32 v9, s63
    """)
    for w in range(4): k(f"v_cmp_eq_u32 vcc, 0, v{4+w}\nv_cndmask_b32 v{AD+w}, 0, v9, vcc")
    assert all((x * 9363) >> 16 == x // 7 for x in range(224))
    OFFS = [[36 + i for i in range(8)], [70 + i for i in range(8)]]
    k(f"""
    s_mul_i32 s12, s48, 14
    s_mul_i32 s13, s52, 7
    s_add_u32 s12, s12, s13
    s_add_u32 s12, s12, {WS_W1 >> 10}
    s_lshl_b32 s13, s48, 1
    s_add_u32 s13, s13, s52
    s_lshl_b32 s50, s13, 2
    s_lshl_b32 s14, s47, 7
    s_add_u32 s50, s50, s14
    s_add_u32 s50, s50, {WS_FLAG + F_W1}
    s_add_u32 s13, s13, {14*KM + (WS_W1 >> 10)}
    s_lshl_b32 s18, s47, 3
    """)
    for i in range(8):
        k(f"""
        s_mul_i32 s14, s18, 9363
        s_lshr_b32 s14, s14, 16
        s_mul_i32 s15, s14, 7
        s_sub_u32 s15, s18, s15
        s_mul_i32 s14, s14, {W1T}
        s_add_u32 s58, s14, s15
        s_add_u32 s58, s58, s12
        s_lshl_b32 s{OFFS[0][i]}, s58, 10
        s_mul_i32 s15, s15, {2*KT}
        s_add_u32 s14, s14, s15
        s_add_u32 s14, s14, s13
        s_lshl_b32 s{OFFS[1][i]}, s14, 10
        s_add_u32 s18, s18, 1
        """)
    if w0_at == 0: w0_issue()
    k.wait(vm=lk)
    W = lambda c, j: 116 + 4 * c + j
    for c in range(4):
        for j in range(4): unpk(k, W(c, j), 108 + 2 * c + (j >> 1), j & 1)
    KS = lambda c, t: 132 + 8 * c + t
    KF = lambda t: 167 + t
    for c in range(4):
        for t in range(-3, 8): unpk(k, KF(t), KR(t) + (c >> 1), c & 1)
        for t in range(8): k(f"v_mul_f32 v{KS(c,t)}, v{W(c,3)}, v{KF(t-3)}")
        for j in (2, 1, 0):
            for t in range(8): k(f"v_fmac_f32 v{KS(c,t)}, v{W(c,j)}, v{KF(t-j)}")
    for i in range(4):
        k(f"s_add_u32 s16, s{S_ROWY}, {WS_Y + 4096*i}\nbuffer_store_dwordx4 v[16:19], v14, {SW}, s16 offen sc1")
    assert 4 * E <= 32
    for L in range(2):
        k(f"s_add_u32 s16, s45, {WS_XN + L*MB4}\nbuffer_store_dwordx4 v[16:19], v15, {SW}, s16 offen sc1")
    if w0_at == 1: w0_issue()
    k.wait(vm=lv)
    for c in range(4):
        for t in range(8): unpk(k, KF(t), VV(t) + (c >> 1), c & 1)
        for t in range(8): k(f"v_mul_f32 v{KS(c,t)}, v{KS(c,t)}, v{KF(t)}")
        for i in range(4): k(f"v_cvt_pk_bf16_f32 v{176+4*c+i}, v{KS(c,7-2*i)}, v{KS(c,6-2*i)}")
        k(f"buffer_store_dwordx4 v[{176+4*c}:{179+4*c}], v50, {SW}, {so[c]} offen sc1")
    stamp(26)
    kv_st = k.nvm
    if w0_at == 2: w0_issue()
    k(f"""
    s_lshr_b32 s{S_FKV}, s61, 4
    s_lshl_b32 s{S_FKV}, s{S_FKV}, 11
    s_add_u32 s{S_FKV}, s{S_FKV}, {WS_FLAG + F_KV}
    s_lshl_b32 s78, s61, 7
    s_add_u32 s78, s78, {WS_FLAG + F_KV}
    v_and_b32 v{TMP+13}, 15, v2
    v_lshlrev_b32 v{TMP+13}, 7, v{TMP+13}
    v_and_b32 v{VF16}, 31, v2
    v_lshlrev_b32 v{VF16}, 2, v{VF16}
    s_waitcnt lgkmcnt(0)
    s_mul_i32 s{S_N}, s87, 0x9e3779b1
    s_add_u32 s{S_N}, s{S_N}, 0x7f4a7c15
    s_add_u32 s16, s{S_N}, 1
    v_mov_b32 v{VTAG}, s16
    """)
    k.wait(vm=h_ld)
    k(f"v_add_u32 v60, s62, v{VR}")
    for i in range(4):
        r = HR + 8 * i; t = 72 + 8 * i
        for e in range(6): k(f"v_mov_b32 v{t+e}, v{r+1+e}")
        for cc, src in enumerate((t, r + 2, t + 2, r + 4)):
            k(f"ds_write_b128 v60, v[{src}:{src+3}] offset:{cc*CS + i*1024}")
    k.wait(vm=kv_st)
    k("s_barrier\ns_cmp_lg_u32 s17, 0\ns_cbranch_scc1 L_nokvf")
    k(flag_store(78)); k.nvm -= 1
    k.label("L_nokvf")
    k(f"s_lshl_b32 s16, s2, 2\ns_add_u32 s16, s16, {WS_FLAG + F_ARM}\ns_cmp_lg_u32 s17, 1\ns_cbranch_scc1 L_noarm")
    k(flag_store(16)); k.nvm -= 1
    k.label("L_noarm")
    x = k(poll_load(S_FKV))
    poll_check(x, S_FKV, 16)
    stamp(27)
    xl = []
    for i in range(4):
        k(f"buffer_load_dwordx4 v[{128+8*i}:{131+8*i}], v{VR}, s[88:91], 0 offen offset:{i*1024}")
        xl.append(k(f"buffer_load_dword v{132+8*i}, v{VR}, s[88:91], 0 offen offset:{i*1024 + 16}"))
    if w0_at == 3: side0 = [("v", "w0", "\n".join(w_load(0, j))) for j in range(8)]
    for i in range(4):
        r = 128 + 8 * i; t = 160 + 4 * i
        k.wait(vm=xl[i])
        k(f"ds_write_b128 v60, v[{r}:{r+3}] offset:{4*CS + XS + i*1024}")
        for e in range(4): k(f"v_alignbit_b32 v{t+e}, v{r+e+1}, v{r+e}, 16")
        k(f"ds_write_b128 v60, v[{t}:{t+3}] offset:{4*CS + i*1024}")
    stamp(1)
    Y = lambda j: 8 + 4 * j
    def reads(i):
        buf = i & 1; out = []
        for x in range(8):
            out.append(("B", x, f"ds_read_b128 v[{B(buf,x)}:{B(buf,x)+3}], v57 offset:{3584-512*x+64*i}"))
            if (i, x) != (0, 0):
                out.append(("A", x, f"ds_read_b128 v[{A(buf,x)}:{A(buf,x)+3}], v56 offset:{64*(i-1)+512*x}"))
        return out
    ids = {}
    for kind, x, txt in reads(0): ids[(0, kind, x)] = k(txt)
    for j in range(8):
        k.wait(lg=ids[(0, "B", j)])
        k(f"v_mfma_f32_16x16x32_bf16 v[{Y(j)}:{Y(j)+3}], v[{AD}:{AD+3}], v[{B(0,j)}:{B(0,j)+3}], 0")
    side = {i: [] for i in range(8)}
    def sh_reads(r):
        o = []
        for i in range(8):
            f = 224 * r + 4 * i
            o += [("r", None, f"ds_read_b64_tr_b16 a[{f}:{f+1}], v55 offset:{32*i}"), ("r", (r, i), f"ds_read_b64_tr_b16 a[{f+2}:{f+3}], v55 offset:{32*i + 1024}")]
        return o
    def sh_stores(r):
        return [("s", (r, i), f"buffer_store_dwordx4 a[{224*r+4*i}:{224*r+4*i+3}], v{VR}, {SX}, s{OFFS[r][i]} offen sc1") for i in range(8)]
    side[q_step] += [("v", "q", f"buffer_load_dwordx4 v[{QP+4*i}:{QP+4*i+3}], v53, s[92:95], s{S_ROWY} offen offset:{64*i}") for i in range(4)]
    s0 = 0
    if w0_at == 3:
        side[0] += side0; s0 = sh_step; side[s0].append(("w", 0))
    side[s0] += sh_reads(0)
    side[s0 + 1] += sh_stores(0)
    side[arm_step] += [("v", "arm", f"s_mov_b32 s79, {WS_FLAG + F_ARM}\n" + poll_load(79, "arm"))]
    side[r1_step] += [("x", None, "\n".join(w_enable(NU1)))] + [("v", "w1", "\n".join(w_load(1, j))) for j in range(8)]
    assert r1_step > s0 + 1
    sid = {}
    for i in range(8):
        buf = i & 1
        nxt = reads(i + 1) if i < 7 else []
        order = sorted([(p, j) for p in range(8) for j in range(8 - p)], key=lambda t: (max(t), t[0] + t[1]))
        sd = side[i]
        for n, (p, j) in enumerate(order):
            k.wait(lg=max(ids.get((i, "A", p), 0), ids[(i, "B", j)]))
            jp = p + j
            k(f"v_mfma_f32_16x16x32_bf16 v[{Y(jp)}:{Y(jp)+3}], v[{A(buf,p)}:{A(buf,p)+3}], v[{B(buf,j)}:{B(buf,j)+3}], v[{Y(jp)}:{Y(jp)+3}]")
            if n % 2 == 1 and nxt:
                kind, x, txt = nxt.pop(0); ids[(i + 1, kind, x)] = k(txt)
            if n % 2 == 0 and sd and (sd[0][0] not in "sv" or n % 4 == 0):
                it = sd.pop(0)
                if it[0] == "w": k.wait(vm=sid["w0"])
                elif it[0] == "s":
                    k.wait(lg=sid[it[1]]); sid["st0"] = k(it[2])
                else:
                    x = k(it[2])
                    if it[1]: sid[it[1]] = x
        assert not nxt and not sd
    stamp(2)
    for j in range(8): k(f"ds_write_b128 v59, v[{Y(j)}:{Y(j)+3}] offset:{512*j}")
    k(f"""
    v_lshrrev_b32 v4, 2, v0
    v_bfe_u32 v5, v4, 3, 2
    v_xor_b32 v5, v5, v4
    v_lshlrev_b32 v5, 4, v5
    v_and_b32 v6, 3, v0
    v_lshl_add_u32 v5, v6, 2, v5
    v_lshlrev_b32 v6, 4, v6
    v_lshl_add_u32 v6, v4, 14, v6
    s_lshl_b32 s12, s61, 6
    s_add_u32 s12, s12, {WS_Y}
    """)
    for c in range(1, 4): k(f"v_add_u32 v{40+c}, {c*CH_LDS}, v5")
    k("v_mov_b32 v40, v5")
    poll_check(sid["arm"], 79, "arm")
    k.wait(vm=sid["st0"], lg=k.nlg); k("s_barrier")
    rid = {}
    for i in range(4):
        for c in range(4):
            rid[i] = k(f"ds_read2st64_b32 v[{64+8*i+2*c}:{65+8*i+2*c}], v{40+c} offset0:{4*i} offset1:{16+4*i}")
    for i in range(4):
        k.wait(lg=rid[i])
        for par in range(2):
            for h in range(2):
                k(f"v_cvt_pk_bf16_f32 v{96+4*i+2*par+h}, v{64+8*i+4*h+par}, v{64+8*i+4*h+2+par}")
        k(f"buffer_store_dwordx4 v[{96+4*i}:{99+4*i}], v6, {SW}, s12 offen sc1")
        if i < 3: k("s_add_u32 s12, s12, 0x100000")
    stamp(3)
    k.wait(vm=sid["w1"])
    for it in sh_reads(1):
        x = k(it[2])
        if it[1]: sid[it[1]] = x
    for it in sh_stores(1):
        k.wait(lg=sid[it[1]]); k(it[2])
    k("s_mov_b32 s62, s50\ns_mov_b32 s63, s30")

    KM2 = 56 - KT2
    k(f"""
    s_lshl_b32 s{S_M0}, s17, 12
    s_lshr_b32 s13, s59, 1
    s_lshl_b32 s12, s13, 3
    s_add_u32 s12, s12, s34
    s_lshl_b32 s14, s33, 2
    s_and_b32 s15, s60, 3
    s_add_u32 s14, s14, s15
    s_lshl_b32 s14, s14, 2
    s_add_u32 s14, s14, s17
    s_lshl_b32 s16, s32, 2
    s_add_u32 s16, s16, s17
    s_mul_i32 s{S_W1}, s12, {W1T*1024}
    s_add_u32 s{S_W1}, s{S_W1}, {WS_W1}
    s_mul_i32 s{S_W2}, s35, {W2T*1024}
    s_add_u32 s{S_W2}, s{S_W2}, {WS_W2}
    s_and_b32 s15, s16, 15
    s_lshl_b32 s15, s15, 13
    s_add_u32 s91, s{S_W2}, s15
    s_lshl_b32 s{S_XN}, s14, 17
    s_add_u32 s{S_XN}, s{S_XN}, {WS_XN}
    s_lshl_b32 s{S_PS}, s16, 14
    s_lshl_b32 s15, s34, 10
    s_add_u32 s{S_PS}, s{S_PS}, s15
    s_lshl_b32 s15, s33, 22
    s_add_u32 s{S_PS}, s{S_PS}, s15
    s_add_u32 s{S_PS}, s{S_PS}, {WS_P}
    s_lshr_b32 s{S_ROWL}, s19, 1
    s_lshl_b32 s{S_ROWF}, s{S_ROWL}, 15
    s_lshl_b32 s{S_ROWL}, s{S_ROWL}, 13
    s_and_b32 s15, s19, 1
    s_lshl_b32 s15, s15, 7
    s_add_u32 s{S_ROWL}, s{S_ROWL}, s15
    s_add_u32 s{S_ROWF}, s{S_ROWF}, s15
    s_lshl_b32 s{S_FXN_C}, s14, 7
    s_lshl_b32 s15, s13, 12
    s_add_u32 s{S_FXN_C}, s{S_FXN_C}, s15
    s_add_u32 s{S_FXN_C}, s{S_FXN_C}, {WS_FLAG + F_XN}
    s_lshr_b32 s{S_FXN_P}, s19, 3
    s_lshl_b32 s{S_FXN_P}, s{S_FXN_P}, 7
    s_lshl_b32 s15, s34, 2
    s_add_u32 s{S_FXN_P}, s{S_FXN_P}, s15
    s_add_u32 s{S_FXN_P}, s{S_FXN_P}, s{S_M0}
    s_add_u32 s{S_FXN_P}, s{S_FXN_P}, {WS_FLAG + F_XN}
    s_lshr_b32 s{S_FPF_C}, s19, 2
    s_lshl_b32 s{S_FPF_C}, s{S_FPF_C}, 11
    s_add_u32 s{S_FPF_C}, s{S_FPF_C}, {WS_FLAG + F_PE}
    s_lshl_b32 s{S_FPF_P}, s16, 11
    s_lshl_b32 s15, s35, 7
    s_add_u32 s{S_FPF_P}, s{S_FPF_P}, s15
    s_add_u32 s{S_FPF_P}, s{S_FPF_P}, {WS_FLAG + F_PE}
    s_lshl_b32 s{S_FH_P}, s14, 8
    s_lshr_b32 s15, s12, 4
    s_lshl_b32 s15, s15, 7
    s_add_u32 s{S_FH_P}, s{S_FH_P}, s15
    s_and_b32 s15, s12, 15
    s_lshl_b32 s15, s15, 2
    s_add_u32 s{S_FH_P}, s{S_FH_P}, s15
    s_add_u32 s{S_FH_P}, s{S_FH_P}, {WS_FLAG + F_H}
    s_lshr_b32 s{S_FH_C}, s16, 1
    s_lshl_b32 s{S_FH_C}, s{S_FH_C}, 8
    s_lshl_b32 s15, s33, 7
    s_add_u32 s{S_FH_C}, s{S_FH_C}, s15
    s_add_u32 s{S_FH_C}, s{S_FH_C}, {WS_FLAG + F_H}
    s_mul_i32 s{S_HL}, s16, {2*TBH}
    s_mul_i32 s15, s33, {56*1024}
    s_add_u32 s{S_HL}, s{S_HL}, s15
    s_add_u32 s{S_HL}, s{S_HL}, {WS_H}
    s_mul_i32 s{S_HS}, s14, {4*TBH}
    s_lshr_b32 s15, s12, 4
    s_mul_i32 s15, s15, {56*1024}
    s_add_u32 s{S_HS}, s{S_HS}, s15
    s_and_b32 s15, s12, 15
    s_lshl_b32 s15, s15, 9
    s_add_u32 s{S_HS}, s{S_HS}, s15
    s_add_u32 s{S_HS}, s{S_HS}, {WS_H}
    s_lshl_b32 s{S_FW2_C}, s35, 8
    s_add_u32 s{S_FW2_C}, s{S_FW2_C}, {WS_FLAG + F_W2}
    s_mul_i32 s15, s12, 7
    s_lshr_b32 s15, s15, 3
    s_min_u32 s15, s15, 26
    s_lshl_b32 s15, s15, 7
    s_add_u32 s{S_FW1_C}, s15, {WS_FLAG + F_W1}
    """)
    k(f"""
    s_add_u32 s15, s32, s34
    s_and_b32 s15, s15, 1
    s_mul_i32 s86, s15, {1024 * swz}
    s_mul_i32 s15, s15, {8192 * swz}
    s_add_u32 s92, s{S_W2}, s15
    s_sub_u32 s93, s{S_W2}, s15
    """)
    k(f"""
    s_lshl_b32 s12, s2, 2
    s_add_u32 s12, s12, s17
    s_cmp_lt_u32 s12, 896
    s_cselect_b32 s26, {W_BYTES}, 0
    s_cselect_b32 s30, {WS_TOTAL}, 0
    s_mov_b32 s24, s4
    s_mov_b32 s25, s5
    s_lshr_b32 s13, s12, 3
    s_and_b32 s12, s12, 7
    s_cmp_ge_u32 s13, 56
    s_cselect_b32 s14, 1, 0
    s_cselect_b32 s15, 56, 0
    s_sub_u32 s13, s13, s15
    s_lshl_b32 s15, s14, 3
    s_add_u32 s15, s15, s12
    s_lshl_b32 s{S_FW2_P}, s15, 8
    s_lshl_b32 s16, s13, 2
    s_add_u32 s{S_FW2_P}, s{S_FW2_P}, s16
    s_add_u32 s{S_FW2_P}, s{S_FW2_P}, {WS_FLAG + F_W2}
    s_mul_i32 s{S_SHD}, s15, {W2T*1024}
    s_lshl_b32 s16, s13, 13
    s_lshl_b32 s60, s13, 11
    s_add_u32 s60, s60, {KM2 * 6 * 1024}
    s_cmp_lt_u32 s13, {KM2}
    s_cselect_b32 s16, s16, s60
    s_cselect_b32 s60, 1, {KT2}
    s_lshl_b32 s60, s60, 11
    s_add_u32 s{S_SHD}, s{S_SHD}, s16
    s_add_u32 s{S_SHD}, s{S_SHD}, {WS_W2}
    s_and_b32 s15, s13, 7
    s_mul_i32 s15, s15, 224
    s_lshr_b32 s16, s13, 3
    s_lshl_b32 s16, s16, 4
    s_add_u32 s15, s15, s16
    s_mul_i32 s14, s14, 1792
    s_add_u32 s15, s15, s14
    s_add_u32 s16, s15, 112
    s_lshl_b32 s12, s12, 8
    s_lshl_b32 s{S_SHA}, s15, 11
    s_add_u32 s{S_SHA}, s{S_SHA}, s12
    s_lshl_b32 s{S_SHB}, s16, 11
    s_add_u32 s{S_SHB}, s{S_SHB}, s12
    v_add_u32 v{VR+1}, 0x10000, v{VR}
    v_add_u32 v{VD}, s{S_M0}, v{VR}
    v_lshrrev_b32 v5, 5, v2
    v_and_b32 v6, 31, v2
    v_lshlrev_b32 v6, 4, v6
    v_mul_u32_u24 v7, {TBH}, v5
    v_add_u32 v{VST}, v7, v6
    v_mov_b32 v{VC2}, {f32bits(c1*0.044715):#x}
    v_lshlrev_b32 v{VF}, 2, v2
    v_lshrrev_b32 v3, 4, v2
    v_and_b32 v4, 15, v2
    v_lshlrev_b32 v4, 4, v4
    v_lshl_add_u32 v{VS0}, v3, 11, v4
    v_bfe_u32 v4, v2, 2, 3
    v_lshlrev_b32 v4, 8, v4
    v_lshl_add_u32 v4, v5, 14, v4
    v_and_b32 v3, 3, v2
    v_lshl_add_u32 v4, v3, 4, v4
    v_add_u32 v{VS1}, s{S_M0}, v4
    """)

    XP, YP, P0, P1, X, Yf, T, AY, AS0, AS1, AL, AO = 8, 24, 40, 56, 72, 104, 136, 0, 1, 2, 3, 4
    def row_addr():
        k(f"""
        v_and_b32 v6, 7, v{VTID}
        v_bfe_u32 v5, v{VTID}, 3, 2
        v_lshrrev_b32 v7, 5, v{VTID}
        v_lshl_add_u32 v7, v7, 4, v5
        v_lshlrev_b32 v{AY}, 3, v6
        v_lshl_add_u32 v{AY}, v7, 7, v{AY}
        v_lshlrev_b32 v{AO}, 11, v6
        v_lshl_add_u32 v{AO}, v7, 4, v{AO}
        v_lshrrev_b32 v{AS0}, 6, v{VTID}
        v_lshlrev_b32 v{AS0}, 3, v{AS0}
        v_lshl_add_u32 v{AS0}, v6, 5, v{AS0}
        v_bfe_u32 v7, v{VTID}, 4, 1
        v_lshl_add_u32 v{AS0}, v7, 2, v{AS0}
        v_add_u32 v{AS0}, {LDS_ST}, v{AS0}
        v_lshlrev_b32 v{AS1}, 5, v6
        v_add_u32 v{AS1}, {LDS_ST}, v{AS1}
        v_lshlrev_b32 v{AL}, 4, v{VTID}
        v_add_u32 v{AL}, {LDS_Y}, v{AL}
        """)
    def unpack(dst, src):
        for e in range(32): unpk(k, dst + e, src + e // 2, e & 1)
    def stats(off):
        k(f"v_pk_add_f32 v[{T}:{T+1}], v[{X}:{X+1}], v[{X+2}:{X+3}]")
        k(f"v_pk_mul_f32 v[{T+2}:{T+3}], v[{X}:{X+1}], v[{X}:{X+1}]")
        for e in range(2, 32, 2):
            if e > 2: k(f"v_pk_add_f32 v[{T}:{T+1}], v[{T}:{T+1}], v[{X+e}:{X+e+1}]")
            k(f"v_pk_fma_f32 v[{T+2}:{T+3}], v[{X+e}:{X+e+1}], v[{X+e}:{X+e+1}], v[{T+2}:{T+3}]")
        R = T + 8
        k(f"""
        v_add_f32 v{T}, v{T}, v{T+1}
        v_add_f32 v{T+2}, v{T+2}, v{T+3}
        v_permlane16_swap_b32 v{T}, v{T+2}
        v_add_f32 v{T}, v{T}, v{T+2}
        v_add_f32_dpp v{T}, v{T}, v{T} row_ror:8 row_mask:0xf bank_mask:0xf
        v_mov_b32 v{T+1}, v{T}
        v_permlane32_swap_b32 v{T}, v{T+1}
        v_add_f32 v{T}, v{T}, v{T+1}
        ds_write_b32 v{AS0}, v{T} offset:{off}
        s_waitcnt lgkmcnt(0)
        s_barrier
        ds_read_b128 v[{R}:{R+3}], v{AS1} offset:{off}
        ds_read_b128 v[{R+4}:{R+7}], v{AS1} offset:{off+16}
        s_waitcnt lgkmcnt(0)
        v_pk_add_f32 v[{R}:{R+1}], v[{R}:{R+1}], v[{R+2}:{R+3}]
        v_pk_add_f32 v[{R+4}:{R+5}], v[{R+4}:{R+5}], v[{R+6}:{R+7}]
        v_pk_add_f32 v[{R}:{R+1}], v[{R}:{R+1}], v[{R+4}:{R+5}]
        v_mul_f32 v{R}, {f32bits(1/1024):#x}, v{R}
        v_mul_f32 v{R+1}, {f32bits(1/1024):#x}, v{R+1}
        v_fma_f32 v{R+1}, -v{R}, v{R}, v{R+1}
        v_max_f32 v{R+1}, 0, v{R+1}
        v_cvt_pk_bf16_f32 v{R+2}, v{R}, v{R+1}
        v_lshlrev_b32 v{R}, 16, v{R+2}
        v_and_b32 v{R+1}, 0xffff0000, v{R+2}
        v_add_f32 v{R+1}, {f32bits(1e-5):#x}, v{R+1}
        v_cvt_pk_bf16_f32 v{R+1}, v{R+1}, v{R+1}
        v_lshlrev_b32 v{R+1}, 16, v{R+1}
        v_sqrt_f32 v{R+1}, v{R+1}
        v_cvt_pk_bf16_f32 v{R+1}, v{R+1}, v{R+1}
        v_lshlrev_b32 v{R+1}, 16, v{R+1}
        v_rcp_f32 v{T+4}, v{R+1}
        v_mov_b32 v{T+5}, v{T+4}
        v_mul_f32_e64 v{T+6}, -v{R}, v{T+4}
        v_mov_b32 v{T+7}, v{T+6}
        """)
    def sentinel_loop(name, loads, regs, between=None, skip_first=False, tagged=False):
        k(f"s_mov_b32 s{S_SP}, {SPIN}")
        regs = list(regs)
        if not skip_first: loads()
        if between: between()
        k(f"s_branch {name}_chk")
        k.label(name)
        if pnap: k(f"s_sleep {pnap}")
        loads()
        k.label(name + "_chk")
        if tagged:
            k(f"s_waitcnt vmcnt(0)\nv_or3_b32 v{T+16}, v{regs[0]}, v{regs[1]}, v{TMP+8}\nv_bitop3_b32 v{T+17}, v{regs[0]}, v{regs[1]}, v{TMP+8} bitop3:0x80")
            for i in range(2, len(regs), 2):
                k(f"v_or3_b32 v{T+16}, v{T+16}, v{regs[i]}, v{regs[i+1]}\nv_bitop3_b32 v{T+17}, v{T+17}, v{regs[i]}, v{regs[i+1]} bitop3:0x80")
            k(f"v_xor_b32 v{T+16}, v{T+16}, v{T+17}\nv_lshlrev_b32 v{T+16}, 16, v{T+16}\nv_cmp_ne_u32 vcc, 0, v{T+16}")
        else:
            k(f"s_waitcnt vmcnt(0)\nv_max_u32 v{T+16}, v{regs[0]}, v{regs[1]}")
            for i in range(2, len(regs), 2): k(f"v_max3_u32 v{T+16}, v{T+16}, v{regs[i]}, v{regs[i+1]}")
            k(f"v_cmp_eq_u32 vcc, -1, v{T+16}")
        k(f"s_sub_u32 s{S_SP}, s{S_SP}, 1\ns_cbranch_scc1 {name}_out\ns_cbranch_vccnz {name}")
        k.label(name + "_out")

    row_addr()
    k.wait(vm=sid["q"])
    unpack(X, QP)
    k("s_barrier")
    stats(0)
    def y_loads():
        assert WS_Y == 0
        for i in range(4):
            for h in range(2):
                r = YP + 4 * i + 2 * h
                k(f"buffer_load_dwordx2 v[{r}:{r+1}], v{AY}, {SW}, s{S_ROWY} offen offset:{512*i + 64*h} sc1")
    sentinel_loop("L_ypoll", y_loads, range(YP, YP + 16))
    stamp(4)
    def raw_stage(sidx):
        k(f"s_add_u32 m0, s{S_M0}, {sidx * 16384}\ns_add_u32 s{S_DMA}, s{S_W1}, {sidx * 16384}")
        for i in range(4): k(f"buffer_load_dwordx4 v{VD}, {SW}, s{S_DMA} offen offset:{1024*i} lds")
    def weave(body_fn, stages, span):
        n0 = len(k.lines); body_fn()
        body = k.lines[n0:]; del k.lines[n0:]
        for sidx in stages: raw_stage(sidx)
        dm = k.lines[n0:]; del k.lines[n0:]
        step = max(1, min(len(body), span) // len(dm))
        for n_, l in enumerate(body):
            if n_ % step == 0 and dm: k.lines.append(dm.pop(0))
            k.lines.append(l)
        k.lines += dm
    k("s_cmp_eq_u32 s63, 0\ns_cbranch_scc1 L_now1"); k(flag_store(62)); k.label("L_now1")
    k("s_barrier")
    def y_keep():
        unpack(Yf, YP)
        for i in range(4): k(f"ds_write_b128 v{AL}, v[{YP+4*i}:{YP+4*i+3}] offset:{4096*i}")
    weave(y_keep, range(npre), 36)

    k.label("L_layer")
    k(f"s_add_u32 s84, s{S_HL}, s86\ns_sub_u32 s85, s{S_HL}, s86")
    SWZ_END = (KM2 // (2 * swz)) * 2 * swz if swz else 0
    k.nvm = k.vm_done = 0; k.nlg = k.lg_done = 0
    ring = [("W1", s) for s in range(28)]
    S1_POS = 0
    SH_POS = 17
    ring[SH_POS:SH_POS] = [("SH", 0), ("SH", 1)]
    assert SH_POS % NS + 1 < 4 and S1_POS % NS + 1 < 4
    ring += [("W2", s) for s in range(28)]
    NREAL = len(ring)
    st = {"s": None}
    def dma(idx, i):
        kind, s = ring[idx]; pre_ = []
        if kind == "S1":
            st["s"] = None
            return [f"s_add_u32 m0, s{S_M0}, {(idx % NS) * 16384 + 1024 * i}", f"s_add_u32 s{S_DMA}, s63, {4 * 7168 * (4 * s + i)}",
                    f"buffer_load_dwordx4 v{TMP+4}, s[92:95], s{S_DMA} offen lds"]
        if kind == "SH":
            st["s"] = None
            return [f"s_add_u32 m0, s{S_M0}, {(idx % NS) * 16384 + 1024 * i}", f"s_add_u32 s{S_DMA}, s{S_SHB if s else S_SHA}, {8192 * i}",
                    f"buffer_load_dwordx4 v{VS0}, {SD}, s{S_DMA} offen lds"]
        if st["s"] != idx:
            pre_ = [f"s_add_u32 m0, s{S_M0}, {(idx % NS) * 16384}", f"s_add_u32 s{S_DMA}, s{(92 + (2 * s // swz) % 2 if 2 * s < SWZ_END else S_W2) if kind == 'W2' else S_W1}, {s * 16384}"]
            st["s"] = idx
        return pre_ + [f"buffer_load_dwordx4 v{VD}, {'s[88:91]' if kind == 'NX' else SW}, s{S_DMA} offen offset:{1024*i} lds"]
    w_id = {}; t_id = {}
    def pre_stage(idx):
        for i in range(4): w_id[idx] = k("\n".join(dma(idx, i)))
    for idx in range(4): w_id[idx] = 0
    for e in range(0, 32, 2):
        k(f"v_pk_fma_f32 v[{T}:{T+1}], v[{X+e}:{X+e+1}], v[{T+4}:{T+5}], v[{T+6}:{T+7}]")
        k(f"v_pk_fma_f32 v[{X+e}:{X+e+1}], v[{T}:{T+1}], v[{Yf+e}:{Yf+e+1}], v[{X+e}:{X+e+1}]")
        k(f"v_cvt_pk_bf16_f32 v{XP+e//2}, v{X+e}, v{X+e+1}")
    for i in range(4): k(f"ds_write_b128 v{AL}, v[{XP+4*i}:{XP+4*i+3}] offset:{16384 + 4096*i}")
    unpack(X, XP)
    stats(256)
    k(f"s_lshl_b32 s{S_B}, s{S_LAY}, 22\ns_add_u32 s{S_B}, s{S_B}, s{S_ROWF}\ns_add_u32 s{S_B}, s{S_B}, {WS_XN}")
    for e in range(0, 32, 2):
        k(f"v_pk_fma_f32 v[{X+e}:{X+e+1}], v[{X+e}:{X+e+1}], v[{T+4}:{T+5}], v[{T+6}:{T+7}]")
        k(f"v_cvt_pk_bf16_f32 v{P0+e//2}, v{X+e}, v{X+e+1}")
        if e % 8 == 6:
            i = e // 8
            k(f"buffer_store_dwordx4 v[{P0+4*i}:{P0+4*i+3}], v{VROW}, {SW}, s{S_B} offen offset:{1024*i} sc1")
    stamp(5)
    xn_st = k.nvm
    ET = 160
    for t in range(4): k(f"s_add_u32 s{S_T+t}, s{S_XN}, {t*32768}")
    def e_loads():
        for u in range(E):
            for t in range(4):
                r = ET + 16 * u + 4 * t
                k(f"buffer_load_dwordx4 v[{r}:{r+3}], v{VR}, {SW}, s{S_T+t} offen offset:{1024*u} sc1")
    def e_between():
        k.wait(vm=xn_st); k("s_barrier")
        k(flag_store(S_FXN_P))
    if e_late:
        e_between(); sentinel_loop("L_epoll", e_loads, range(ET, ET + 16 * E))
    else: sentinel_loop("L_epoll", e_loads, range(ET, ET + 16 * E), e_between)
    k(f"s_cmp_lg_u32 s{S_LAY}, 0\ns_cbranch_scc1 L_have")
    n0 = k.nvm
    for sidx in range(npre, 7): raw_stage(sidx)
    k.nvm = n0
    k.label("L_have")
    for sidx in range(npre, 7): w_id[sidx] = n0 + 1
    st["s"] = None
    for r in range(16 * E): k(f"v_accvgpr_write_b32 a{4*RW + r}, v{ET + r}")
    stamp(6)

    groups = [(1, u, g) for u in range(KM) for g in range(14)]
    tail_start = len(groups)
    for b in range(7):
        for u in range(KM, 32): groups += [(1, u, b), (1, u, 7 + b)]
    G2S = len(groups)
    groups += [(2, u, g) for u in range(KM2) for g in range(8)]
    T2S = len(groups)
    for p in range(4):
        for u in range(KM2, 56): groups += [(2, u, 2 * p), (2, u, 2 * p + 1)]
    NGR = len(groups); GPB = 2 * KT
    NTk = {1: 4, 2: 2}
    tm = [0]
    for kd, _, _ in groups: tm.append(tm[-1] + NTk[kd])
    real = [i for i, r_ in enumerate(ring) if r_[0] in ("W1", "W2")]
    stage_of = lambda i: real[i // 16]
    bars = {16 * n - la_bar: real[n] for n in range(npre, 56)}
    bar_list = sorted(bars)
    first_use = {}; last_use = {}
    for i, (kd, u, g) in enumerate(groups):
        first_use.setdefault((kd, u), i); last_use[(kd, u)] = i
    def slot(kd, u, t):
        return (u % KT) * 4 + t if kd == 1 else (4 * (KM % KT) + 2 * u + t) % (4 * KT)
    def AT(kd, u, t):
        if kd == 2 and u < park: return f"v[{112 + 8*u + 4*t}:{115 + 8*u + 4*t}]"
        a = 4 * RW + 4 * slot(kd, u - (park if kd == 2 else 0), t)
        return f"a[{a}:{a+3}]"
    AW = lambda i: 4 * (i % RW)
    acc = lambda kd, g, t: (g * NTk[kd] + t) * 4
    tok_base = {t: (S_XN, 0) for t in range(4)}
    for u in range(E):
        for t in range(4): t_id[((1, u), t)] = 0
    def tok(kd, u, t):
        off = u * 1024; pre_ = []
        src = S_XN if kd == 1 else 84 + (u // swz) % 2 if u < SWZ_END else S_HL
        if tok_base.get(t, (None, 0))[0] != src or not 0 <= off - tok_base[t][1] <= 4095:
            tok_base[t] = (src, off & ~4095)
            pre_ = [f"s_add_u32 s{S_T+t}, s{src}, {t * (32768 if kd == 1 else TBH) + tok_base[t][1]}"]
        return pre_ + [f"buffer_load_dwordx4 {AT(kd, u, t)}, v{VR}, {SW}, s{S_T+t} offen offset:{off - tok_base[t][1]}"]
    PH_B = [1, 3, 4, 5, 6]; PH_U = [0, 16, 32, 40, 48]
    P_SHR = tail_start + 6
    P_SH_END = tail_start + GPB - 2
    P_PX = 0
    P_PF = tail_start + pf_at
    P_W1S = 0
    P_PW1 = 120
    P_PW2 = tail_start + 3 * GPB
    P_PH = [ph0] + [first_use[(2, u_)] - pb for u_, pb in zip(PH_U[1:], ph_back)]
    P_PPF = P_PH[4] + 2 * chk + 4
    allp = sorted(P_PH + [P_PPF]); assert all(b_ - a_ > 2 * chk for a_, b_ in zip(allp, allp[1:])), allp
    CHK = {1: chk, 2: 2 * chk}
    CT_LAB = [150, 290, 370, 445, 590, 800]
    CT_AT = [20, 190, 300, 380, 470, 640]
    assert P_PPF > 660
    FREE_AT = list(free_at)
    def done_bar(idx):
        if ring[idx][0] == "SH": return P_SH_END
        if ring[idx][0] == "S1": return P_W1S + 20
        last = 16 * real.index(idx) + 15
        return next(p for p in bar_list if p > last)
    def earliest(it):
        if it[1] == "W":
            idx = it[2]
            e = done_bar(idx - NS) if idx >= NS else -1
            if ring[idx][0] == "W2": e = max(e, P_PW2 + CHK[1] + 1)
            if ring[idx][0] == "W1" and 16 * ring[idx][1] + 15 >= tail_start: e = max(e, P_PW1 + CHK[1] + 1)
            return e
        kd, u = it[2]
        if kd == 1: return P_PX + CHK[1] + 1 if u < KT else last_use[(1, u - KT)] + 1
        v_ = u - park
        if v_ < 0: e = FREE_AT[u // 2]
        else: e = last_use[(1, KM + v_ // 2)] + 1 if v_ < 2 * KT else last_use[(2, u - 2 * KT)] + 1
        return max(e, P_PH[max(j for j in range(5) if PH_U[j] <= u)] + CHK[2 if u >= 16 else 1] + 1)
    items = []
    for idx in range(7, NREAL):
        d = tm[P_SHR] - 100 if ring[idx][0] == "SH" else tm[P_W1S] - 40 if ring[idx][0] == "S1" else tm[16 * real.index(idx) - la_bar]
        items += [(d, "W", idx, i) for i in range(4)]
    for (kd, u), fu in first_use.items():
        if kd == 1 and u < E: continue
        items += [(tm[fu], "T", (kd, u), t) for t in range(NTk[kd])]
    items.sort(key=lambda x: x[0])
    nxt_t = 1e9; sched = []
    for it in reversed(items):
        late = it[0] >= tm[G2S]
        nxt_t = min(it[0] - (la2 if late else la1), nxt_t - 1.0 / (rate2 if nxt_t > tm[G2S] else rate1))
        e = earliest(it)
        sched.append((max(nxt_t, tm[e] if e >= 0 else -1e9),) + it[1:])
    sched.reverse()
    last_tok = max(x[0] for x in sched if x[1] == "T" and x[2][0] == 1)
    prev = last_tok
    for n_, it in enumerate(sched):
        if it[1] == "W" and it[0] > last_tok and prev < tm[G2S] - 8:
            prev = max(prev + 8, tm[earliest(it)]); sched[n_] = (min(it[0], prev),) + it[1:]
    wq = [x for x in sched if x[1] == "W"]
    wq.sort(key=lambda x: (x[2], x[3]))
    run = 1e9
    for n_ in range(len(wq) - 1, -1, -1):
        e = earliest(wq[n_]); run = min(run, wq[n_][0])
        wq[n_] = (max(run, tm[e] if e >= 0 else -1e9),) + wq[n_][1:]
    prev = max(x[0] for x in sched)
    for idx in range(NREAL, len(ring)):
        for i in range(4 if ring[idx][0] == "NX" else 0):
            prev = max(prev + 6, tm[done_bar(idx - NS)]); wq.append((prev, "W", idx, i))
    items = sorted(wq + [x for x in sched if x[1] == "T"], key=lambda x: x[0])
    prev = -1e9; slackv = []
    for n_, it in enumerate(items):
        if it[0] >= 0:
            prev = max(it[0], prev + 1.0 / (rmax if prev < tm[G2S] else rmax2)); items[n_] = (prev,) + it[1:]
        if it[1] == "T": slackv.append((tm[first_use[it[2]]] - items[n_][0], it[2]))
    MINSL = sorted(slackv)[:3]
    def lines(it):
        return dma(it[2], it[3]) if it[1] == "W" else tok(it[2][0], it[2][1], it[3])
    def record(it, i):
        if it[1] == "W": w_id[it[2]] = i
        else: t_id[(it[2], it[3])] = i
    while items and items[0][0] < 0:
        it = items.pop(0); record(it, k("\n".join(lines(it))))
    def rd(i):
        off = (stage_of(i) % NS) * 16384 + (i % 16) * 1024
        return f"ds_read_b128 a[{AW(i)}:{AW(i)+3}], v{VR + off // 65536} offset:{off % 65536}"
    def gelu4(G, U, P, tb):
        Tm = [tb + e for e in range(4)]
        o = [f"v_mul_f32 v{Tm[e]}, v{G+e}, v{G+e}" for e in range(4)]
        o += [f"v_fmaak_f32 v{Tm[e]}, v{VC2}, v{Tm[e]}, {f32bits(c1):#x}" for e in range(4)]
        o += [f"v_mul_f32 v{Tm[e]}, v{Tm[e]}, v{G+e}" for e in range(4)]
        for e in range(4): o += [f"v_exp_f32 v{Tm[e]}, v{Tm[e]}", f"v_mul_f32 v{U+e}, v{U+e}, v{G+e}"]
        o += [f"v_add_f32 v{Tm[e]}, 1.0, v{Tm[e]}" for e in range(4)]
        o += [f"v_rcp_f32 v{Tm[e]}, v{Tm[e]}" for e in range(4)]
        o += [f"v_mul_f32 v{U+e}, v{U+e}, v{Tm[e]}" for e in range(4)]
        o += [f"v_cvt_pk_bf16_f32 v{P}, v{U}, v{U+1}", f"v_cvt_pk_bf16_f32 v{P+1}, v{U+2}, v{U+3}"]
        return o
    def epilogue(b, t):
        a = acc(1, b, 2 * t); tb = TMP + 4 * t; sr = (S_C, S_E)[t]
        o = gelu4(a, acc(1, 7 + b, 2 * t), a, tb) + gelu4(acc(1, b, 2 * t + 1), acc(1, 7 + b, 2 * t + 1), a + 2, tb)
        o += [f"s_add_u32 s{sr}, s{S_HS}, {8192 * b + 2 * TBH * t}",
              f"v_permlane32_swap_b32 v{a}, v{a+2}", f"v_permlane32_swap_b32 v{a+1}, v{a+3}",
              f"buffer_store_dwordx4 v[{a}:{a+3}], v{VST}, {SW}, s{sr} offen sc1"]
        return [(x, b) for x in o]
    def p_store(p):
        o = []
        for t in range(2 if p >= 0 else 0):
            a = acc(2, 2 * p, t); b = acc(2, 2 * p + 1, t)
            o += [f"v_cvt_pk_bf16_f32 v{a}, v{a}, v{a+1}", f"v_cvt_pk_bf16_f32 v{a+1}, v{a+2}, v{a+3}",
                  f"v_cvt_pk_bf16_f32 v{a+2}, v{b}, v{b+1}", f"v_cvt_pk_bf16_f32 v{a+3}, v{b+2}, v{b+3}",
                  f"s_add_u32 s{S_C}, s{S_PS}, {8192 * t + p * 0x100000}",
                  f"buffer_store_dwordx4 v[{a}:{a+3}], v{VR}, {SW}, s{S_C} offen sc1"]
        return o
    cost = lambda s: 2 if s.startswith(("v_exp", "v_rcp", "v_permlane", "buffer_")) else 1

    published = npre - 1; r_id = {}; rp = 0; FL_AT = []; PE_AT = []; ready_b = -1; ready_at = 0
    while rp < RW - 2:
        r_id[rp] = k(rd(rp)); rp += 1
    seen = set(); epi = [[], []]; q = []; hold = 0; hst = {}; fl_due = {}; fl_next = 0; turn = 0
    last_st = {"h": None, "sh": None, "pf": None}; pend = {}; named = {}
    def emit_q():
        t_, c = q.pop(0)
        if c and c[0] == "L": k.wait(lg=named[c[1]])
        if c and c[0] == "Wv": k.wait(vm=w_id[c[1]])
        id_ = k(t_)
        if not c: return
        if c[0] == "V": record(c[1], id_)
        elif c[0] == "R": r_id[c[1]] = id_
        elif c[0] == "N": named[c[1]] = id_
        elif c[0] == "L": last_st["sh"] = id_
        elif c[0] in ("PF", "PG"): last_st["pf"] = id_
    for i, (kd, u, g) in enumerate(groups):
        NT = NTk[kd]
        if i == tail_start: stamp(7)
        if i == G2S: stamp(8); G2L = len(k.lines)
        if i == T2S and diag == 5: stamp(18)
        if i in bars:
            pub = bars[i]
            assert not any(it[1] == "W" and it[2] <= pub and ring[it[2]][0] not in ("SH", "S1") for it in items), (i, pub)
            while any(c and c[0] == "V" and c[1][1] == "W" and c[1][2] <= pub for _, c in q): emit_q()
            k.wait(vm=w_id[pub]); k("s_barrier"); published = max(published, pub)
        n = 0
        while rp < NGR and rp <= i + RW - 2 and stage_of(rp) <= published and n < 2:
            q.append((rd(rp), ("R", rp))); rp += 1; n += 1
        if items and items[0][0] <= tm[i]:
            it = items.pop(0); ls = lines(it)
            if it[1] == "T" and it[2][0] == 2 and it[2][1] < park:
                assert all((it[2][1] // 2, c_) in hst for c_ in (0, 1)), (i, it)
            q += [(x, None) for x in ls[:-1]] + [(ls[-1], ("V", it))]
        if P_SHR <= i < P_SHR + 16 and (i - P_SHR) % 4 == 0:
            assert not any(it[1] == "W" and ring[it[2]][0] == "SH" for it in items)
            p = (i - P_SHR) // 4
            base = (SH_POS % NS) * 16384
            for h in range(2):
                f = TMP + 8 + 4 * h; off = base + p * 64 + h * 8
                q.append((f"ds_read_b64_tr_b16 v[{f}:{f+1}], v{VS1} offset:{off}", ("Wv", SH_POS + 1)))
                q.append((f"ds_read_b64_tr_b16 v[{f+2}:{f+3}], v{VS1} offset:{off + 2048}", ("N", (p, h))))
        if P_SHR + 2 <= i < P_SHR + 18 and (i - P_SHR) % 4 == 2:
            p = (i - P_SHR) // 4
            q.append((f"s_add_u32 s{S_D}, s{S_D}, s60" if p else f"s_mov_b32 s{S_D}, s{S_SHD}", None))
            for h in range(2):
                f = TMP + 8 + 4 * h
                q.append((f"buffer_store_dwordx4 v[{f}:{f+3}], v{VR}, {SX}, s{S_D} offen offset:{1024*h} sc1", ("L", (p, h))))
        if ct and i in CT_AT:
            j = CT_AT.index(i)
            q += [(f"v_lshlrev_b32 v{TMP+13}, 3, v{VR}", None), (f"s_mov_b32 s{S_SP}, L_ct{j}-L_body", None),
                  (f"buffer_load_dword v{TMP+14}, v{TMP+13}, s[80:83], s{S_SP} offen", None)]
        if i in CT_LAB: k.label(f"L_ct{CT_LAB.index(i)}")
        if i == P_SH_END + 12:
            k.wait(vm=last_st["sh"]); k(f"s_mov_b64 exec, 1\nbuffer_store_dword v{VTAG}, off, {SX}, s{S_FW2_P} sc1\ns_mov_b64 exec, -1")
        PFR, PFS = (TMP, S_C) if pf_at < GPB else (TMP + 8, S_D)
        if i == P_PF: q += [(f"v_mov_b32 v{PFR+e}, -1", None) for e in range(4)]
        arm = list(range(0 if sent else 4, 8))
        if P_PF <= i < P_PF + len(arm) * pf_step and (i - P_PF) % pf_step == 0:
            t = arm[(i - P_PF) // pf_step]
            q += [(f"s_add_u32 s{PFS}, s{S_PS}, {8192 * (t & 1) + (t >> 1) * 0x100000}", None),
                  (f"buffer_store_dwordx4 v[{PFR}:{PFR+3}], v{VR}, {SW}, s{PFS} offen sc1", ("PF" if PFR == TMP else "PG",))]
        TW_AT = P_PW2 + chk + 4
        if TW_AT <= i < TW_AT + tw * tw_step and (i - TW_AT) % tw_step == 0:
            j = (i - TW_AT) // tw_step
            q += [(f"v_lshlrev_b32 v{TMP+13}, 3, v{VR}", None), (f"s_add_u32 s{S_SP}, s91, {tw0 * 1024 + j * 131072}", None),
                  (f"buffer_load_dword v{TMP+14}, v{TMP+13}, {SW}, s{S_SP} offen", None)]
        if sent and i == P_PF + 8 * pf_step + 30: named["pe"] = (0, last_st["pf"])
        if sent and i == P_PPF - 8: q += [(f"v_and_b32 v{TMP+13}, 60, v{VF}", None), (f"v_lshlrev_b32 v{TMP+13}, 5, v{TMP+13}", None)]
        if not sent and i == NGR - pe_back - 8:
            q += [(f"v_and_b32 v{TMP+13}, 60, v{VF}", None), (f"v_lshlrev_b32 v{TMP+13}, 5, v{TMP+13}", None)]
        if not sent and i == NGR - pe_back: q.append((poll_load(S_FPF_C), ("N", "pe_ld")))
        if "pe" in named and tm[i] >= named["pe"][0]:
            k.wait(vm=named.pop("pe")[1])
            k(flag_store(S_FPF_P)); k(f"s_add_u32 s{S_FPF_P}, s{S_FPF_P}, 0x20000")
            PE_AT.append(i)
        if fl_next in fl_due and tm[i] >= fl_due[fl_next][0]:
            if diag == 4: stamp(12 + 2 * fl_next)
            k.wait(vm=fl_due[fl_next][1])
            if diag == 4: stamp(13 + 2 * fl_next)
            k(flag_store(S_FH_P)); k(f"s_add_u32 s{S_FH_P}, s{S_FH_P}, 0x4000")
            FL_AT.append(i); fl_next += 1
        polls = [(P_PW1, S_FW1_C, "w1", 1), (P_PW2, S_FW2_C, 56, 1)] + [(P_PH[j], S_FH_C, 16, j + 1) for j in range(4)] + [(P_PPF if sent else -100, S_FPF_C, 16, 1), (P_PX, S_FXN_C, 8, 1), (P_PH[4], S_FH_C, 16, 5)]
        for z, (pos, soff, n_, lvl) in enumerate(polls):
            if i == pos: pend[pos] = k(poll_load(soff))
            if i == pos + CHK[kd] and pos in pend:
                if z >= 7: z += 1
                if diag == 3: stamp(12 + 2 * z)
                poll_check(pend.pop(pos), soff, n_, lvl)
                if soff == S_FH_C: k(f"s_add_u32 s{S_FH_C}, s{S_FH_C}, 0x4000")
                if diag == 3: stamp(13 + 2 * z)
        if tail_start + GPB <= i <= G2S and (i - tail_start) % GPB == 0:
            b = (i - tail_start) // GPB - 1
            assert not any(c_ and c_[0] == "PF" for _, c_ in q)
            if not epi[0] and not epi[1]: hold = 4
            for t in range(2): epi[t] += epilogue(b, t)
            ready_b = b; ready_at = tm[i] + 4
        if i > T2S and (i - T2S) % (2 * KT2) == 4:
            assert fl_next == 5 and not epi[0]
            pp_ = (i - T2S) // (2 * KT2) - 1
            epi[0] += [(x, 100 + pp_) for x in p_store(pp_)]
        if i == G2S: assert all(x[1] >= 4 for c_ in epi for x in c_)
        def waits(i, kd, u, t):
            if i not in r_id or ((kd, u), t) not in t_id: return None
            lgw = r_id[i]
            if lgw > k.lg_done:
                for j in range(1, wgran):
                    if i + j in r_id and k.nlg - r_id[i + j] >= 2: lgw = r_id[i + j]
            vmw = t_id[((kd, u), t)]
            if vmw > k.vm_done and i > 28 and ((kd, u), NTk[kd] - 1) in t_id: vmw = t_id[((kd, u), NTk[kd] - 1)]
            return vmw, lgw
        for t in range(NT):
            while waits(i, kd, u, t) is None: emit_q()
            vmw, lgw = waits(i, kd, u, t)
            k.wait(vm=vmw, lg=lgw)
            a = acc(kd, g, t)
            c = f"v[{a}:{a+3}]" if (kd, g, t) in seen else "0"
            seen.add((kd, g, t))
            at = AT(kd, u, t)
            k(f"v_mfma_f32_16x16x32_bf16 v[{a}:{a+3}], a[{AW(i)}:{AW(i)+3}], {at}, {c}")
            budget = 2 if kd == 1 else b2
            if len(epi[0]) + len(epi[1]) > thr and (tm[i] + t) % 2 == 0: budget += 1
            if t + 1 < NT: nw = waits(i, kd, u, t + 1)
            elif i + 1 < NGR:
                nw = waits(i + 1, groups[i + 1][0], groups[i + 1][1], 0)
                if i + 1 in bars: budget -= 1
            else: nw = (0, 0)
            if nw is None or nw[0] > k.vm_done or nw[1] > k.lg_done: budget -= 1
            used = 0
            while q and used < 2:
                mem = q[0][0].startswith(("ds_", "buffer_"))
                c_ = cost(q[0][0])
                if (mem and used) or (c_ > budget and not (len(q) > 5 and used == 0)): break
                if used and len(q) <= NT - t: break
                emit_q(); budget -= c_; used += 1
            while budget > 0:
                ok = [c_ for c_ in (turn, 1 - turn) if epi[c_] and cost(epi[c_][0][0]) <= budget
                      and not (epi[c_][0][1] == ready_b and tm[i] + t < ready_at)]
                if not ok: break
                big = [c_ for c_ in ok if cost(epi[c_][0][0]) == 2]
                c_ = big[0] if big else ok[0]
                if abs(len(epi[c_]) - len(epi[1 - c_])) > 24 and len(epi[c_]) < len(epi[1 - c_]):
                    if 1 - c_ in ok: c_ = 1 - c_
                    else: break
                x, b = epi[c_].pop(0); budget -= cost(x); turn = 1 - c_
                id_ = k(x)
                if b == 101 and not epi[0] and not sent: named["pe"] = (tm[i] + t + pe_lag, id_)
                if x.startswith("buffer_store") and b < 7:
                    hst[(b, c_)] = id_
                    if b in PH_B and (b, 0) in hst and (b, 1) in hst:
                        fl_due[PH_B.index(b)] = (tm[i] + t + fl_lag, id_)
    while epi[0] and epi[0][0][1] == 102: k(epi[0].pop(0)[0])
    assert len(PE_AT) == 1
    assert not items and not epi[0] and not epi[1] and not q and not pend and fl_next == 5
    assert all(tm[f] + 60 < tm[p] for f, p in zip(FL_AT, P_PH)), (FL_AT, P_PH)
    k.info = dict(pe=(PE_AT, NGR), minsl=[(int(a_), b_) for a_, b_ in MINSL], flags=FL_AT, polls=P_PH, slack=[tm[p] - tm[f] for f, p in zip(FL_AT, P_PH)])
    if abl:
        keep = []
        for l in k.lines[G2L:]:
            x = l.strip()
            if "T" in abl and x.startswith("buffer_load_dwordx4 a["): continue
            if "W" in abl and x.endswith(" lds"): continue
            if "D" in abl and x.startswith("ds_read_b128"): continue
            if "B" in abl and x == "s_barrier": continue
            if "V" in abl and x.startswith(("v_mul", "v_fmaak", "v_exp", "v_rcp", "v_add_f32")): continue
            keep.append(l)
        k.lines[G2L:] = keep
    stamp(9)
    PP = 160
    for x in p_store(3): k(x)
    if not sent:
        pe_ld = named["pe_ld"]
        k(flag_store(S_FPF_P)); k(f"s_add_u32 s{S_FPF_P}, s{S_FPF_P}, 0x20000")
    VRL = TMP + 15
    k(f"s_lshl_b32 s{S_B}, s{S_LAY}, 23\ns_add_u32 s{S_B}, s{S_B}, s{S_ROWL}")
    k(f"v_lshrrev_b32 v{TMP+14}, 12, v{VROW}\nv_and_b32 v{VRL}, 0x3ff, v{VROW}\nv_lshl_add_u32 v{VRL}, v{TMP+14}, 10, v{VRL}")
    def p_loads(which):
        def f():
            for i in which:
                for j in range(2):
                    r = PP + 8 * i + 4 * j
                    k(f"s_add_u32 s{S_C}, s{S_B}, {WS_P + j*MB4 + i*0x100000}")
                    x = k(f"buffer_load_dwordx4 v[{r}:{r+3}], v{VRL}, {SW}, s{S_C} offen sc1")
            return x
        return f
    def add_p(which):
        for i in which:
            for e in range(8 * i, 8 * i + 8, 2):
                for j in range(2):
                    r = PP + 8 * i + 4 * j + (e % 8) // 2
                    unpk(k, T + 2 * j, r, 0); unpk(k, T + 2 * j + 1, r, 1)
                k(f"v_pk_add_f32 v[{T}:{T+1}], v[{T}:{T+1}], v[{T+2}:{T+3}]")
                k(f"v_pk_add_f32 v[{X+e}:{X+e+1}], v[{X+e}:{X+e+1}], v[{T}:{T+1}]")
                k(f"v_cvt_pk_bf16_f32 v{XP+e//2}, v{X+e}, v{X+e+1}")
                unpk(k, X + e, XP + e // 2, 0); unpk(k, X + e + 1, XP + e // 2, 1)
    if not sent:
        if diag == 5: stamp(12)
        poll_check(pe_ld, S_FPF_C, 16)
        if diag == 5: stamp(13)
        e_ld = p_loads((0, 1))()
        k(f"s_add_u32 s{S_FPF_C}, s{S_FPF_C}, 0x20000")
        row_addr()
        for i in range(4): k(f"ds_read_b128 v[{XP+4*i}:{XP+4*i+3}], v{AL} offset:{16384 + 4096*i}")
        for i in range(4): k(f"ds_read_b128 v[{YP+4*i}:{YP+4*i+3}], v{AL} offset:{4096*i}")
        pl_ld = k(poll_load(S_FPF_C))
        k("s_waitcnt lgkmcnt(0)")
        unpack(X, XP)
        if diag == 5: stamp(14)
        poll_check(pl_ld, S_FPF_C, 16)
        if diag == 5: stamp(15)
        k(f"s_add_u32 s{S_FPF_C}, s{S_FPF_C}, 0x20000")
        def mid():
            k("s_barrier")
            add_p((0, 1)); unpack(Yf, YP)
            if diag == 5: stamp(16)
        sentinel_loop("L_ppoll", p_loads((2, 3)), range(PP + 16, PP + 32), mid)
    else:
        if diag == 5: stamp(12); stamp(13)
        k(f"s_add_u32 s{S_FPF_C}, s{S_FPF_C}, 0x20000")
        def first():
            row_addr()
            for i in range(4): k(f"ds_read_b128 v[{XP+4*i}:{XP+4*i+3}], v{AL} offset:{16384 + 4096*i}")
            for i in range(4): k(f"ds_read_b128 v[{YP+4*i}:{YP+4*i+3}], v{AL} offset:{4096*i}")
            k("s_waitcnt lgkmcnt(0)\ns_barrier")
            unpack(X, XP); unpack(Yf, YP)
            if diag == 5: stamp(14)
        if ord2:
            sentinel_loop("L_ppoll2", p_loads((0, 1, 2)), range(PP, PP + 24), first)
            if diag == 5: stamp(15)
            sentinel_loop("L_ppoll", p_loads((3,)), range(PP + 24, PP + 32), lambda: add_p((0, 1, 2)))
        else:
            p_loads((0, 1, 2))()
            first()
            sentinel_loop("L_ppoll", p_loads((3,)), range(PP + 24, PP + 32))
            if diag == 5: stamp(15)
            sentinel_loop("L_ppoll2", p_loads((0, 1, 2)), range(PP, PP + 24), skip_first=True)
        if diag == 5: stamp(16)
    stamp(10)
    k(f"s_cmp_lg_u32 s{S_LAY}, 0\ns_cbranch_scc1 L_final")
    def tail_math():
        add_p((2, 3) if not sent else (3,) if ord2 else (0, 1, 2, 3)); stats(0)
    weave(tail_math, range(npre2), 200)
    stamp(11)
    if diag: k(f"v_mov_b32 v{VSTAMP-1}, v{VSTAMP}")
    k(f"""
    s_mov_b32 s{S_LAY}, 1
    s_mov_b32 s26, 0
    s_mov_b32 s30, 0
    s_add_u32 s{S_XN}, s{S_XN}, {MB4}
    s_add_u32 s{S_HL}, s{S_HL}, {H_STRIDE}
    s_add_u32 s{S_HS}, s{S_HS}, {H_STRIDE}
    s_add_u32 s{S_PS}, s{S_PS}, {2*MB4}
    s_add_u32 s{S_FXN_P}, s{S_FXN_P}, 0x4000
    s_add_u32 s{S_FXN_C}, s{S_FXN_C}, 0x4000
    s_branch L_layer
    """)
    k.label("L_final")
    add_p((2, 3) if not sent else (3,) if ord2 else (0, 1, 2, 3))
    k(f"s_or_b32 s16, s2, s17\ns_cbranch_scc1 L_noepoch\ns_add_u32 s87, s87, 1\nv_mov_b32 v{VP}, s87\ns_mov_b32 s16, {WS_FLAG + F_EPOCH}")
    k(f"s_mov_b64 exec, 1\nbuffer_store_dword v{VP}, off, {SW}, s16 sc1\ns_mov_b64 exec, -1")
    k.label("L_noepoch")
    srd(k, 32, 6, MB4)
    for i in range(4): k(f"buffer_store_dwordx4 v[{XP+4*i}:{XP+4*i+3}], v{AO}, s[32:35], s{S_ROWY} offen offset:{64*i}")
    if diag:
        k("s_waitcnt vmcnt(0)"); stamp(11)
        k(f"s_lshl_b32 s12, s2, 11\ns_lshl_b32 s13, s17, 9\ns_add_u32 s12, s12, s13\ns_add_u32 s12, s12, 0x8100000")
        k(f"buffer_store_dword v{VSTAMP-1}, v{VF}, {SW}, s12 offen\nbuffer_store_dword v{VSTAMP}, v{VF}, {SW}, s12 offen offset:256")
    k("s_endpgm")
    for lab, pre_, body in slow:
        k.label(lab); k("\n".join(pre_))
        k.label(lab + "_l"); k("\n".join(body)); k(f"s_cbranch_scc1 {lab}_l")
        k.label(lab + "_out"); k(f"s_waitcnt vmcnt(0)\ns_branch {lab}_ok")
    k.label("L_end"); k("s_endpgm")
    return (k, 512, 256), (k.name, 256, 256, 163840)

HEADER = open("interleave_layers__ssm_conv_h3__glu_gated_geglu__prompt.s.ref").read().split("; Override launch")[0]

def build(path, stamps=False, as_list=True, hpad=0, wpad=0, **kw):
    global TBH, W1T, W2T
    TBH = 224 * 512 + hpad; W1T = 448 + wpad; W2T = 448 + wpad
    asmlib.STAMPS[0] = stamps
    kk, l = gen_mega(**kw)
    txt = module(HEADER, [l], [kk])
    if not as_list: txt = txt.replace(f"; @launch kernel={l[0]} ", "; @launch ")
    txt = "\n".join(x.strip() if x.startswith("    ") else x for x in txt.split("\n"))
    open(path, "w").write(txt)
    return len(kk[0].lines), kk[0].padded, kk[0].info

if __name__ == "__main__":
    print(build("v9.s")); build("v9s.s", stamps=True); build("v9f.s", stamps=3)
```

```python
import v6, v8, v9
v6.build("o_0.s", as_list=False)
v8.build("o_1.s", as_list=False)
v9.build("o_2.s", as_list=False, swz=4)
v9.build("o_3.s", as_list=False, swz=4, w0_at=3, sh_step=4, r1_step=6, q_step=1, arm_step=2)
v9.build("o_4.s", as_list=False, swz=4, w0_at=0)
```

```python
import math, struct, sys
import asmlib
from asmlib import *

MB4 = 0x400000
WS_TOTAL = 0x10000000
WS_Y, WS_KV = 0x0, 0x400000
WS_XN = 0x900000
WS_P = 0x5400000
WS_H = 0x1200000
H_STRIDE = 0x1000000
WS_W1, WS_W2, WS_FLAG = 0x3200000, 0x4200000, 0x5200000
WS_PL = 0x9000000
F_W0 = 0x14000
F_PE = 0x80000
W1T, W2T = 448, 448
F_W1, F_W2, F_PF, F_H, F_XN, F_KV, F_ARM, F_EPOCH = 0x0, 0x1000, 0x2000, 0x20000, 0x8000, 0x100000, 0x11000, 0x12000
H_BYTES = 2048 * 3584 * 2
W_BYTES = 1024 * 3584 * 2
TBH = 224 * 512
ARG = dict(q=0, k=8, v=16, shift=24, ssm=32, D=40, wg=56, wu=64, wd=72, out=80, dbg=88, ws=96)
lg = lambda x: x.bit_length() - 1
f32bits = lambda x: struct.unpack("<I", struct.pack("<f", x))[0]
SPIN = 0x20000

def srd(k, d, base, nbytes, off=0):
    if off: k(f"s_add_u32 s{d}, s{base}, {off:#x}\ns_addc_u32 s{d+1}, s{base+1}, 0")
    else: k(f"s_mov_b32 s{d}, s{base}\ns_mov_b32 s{d+1}, s{base+1}")
    k(f"s_mov_b32 s{d+2}, {nbytes:#x}\ns_mov_b32 s{d+3}, 0x20000")

def unpk(k, dst, src, hi):
    k(f"v_and_b32 v{dst}, 0xffff0000, v{src}" if hi else f"v_lshlrev_b32 v{dst}, 16, v{src}")

def touch_code(k, first, last, vaddr, vdst, sb, v0=0, n=1, step=32768):
    k.nl += 1
    here = f"L_{k.name}_pc{k.nl}"
    k(f"s_getpc_b64 s[{sb}:{sb+1}]")
    k.label(here)
    k(f"""
    s_add_u32 s{sb}, s{sb}, {first}-{here}
    s_addc_u32 s{sb+1}, s{sb+1}, 0
    s_mov_b32 s{sb+2}, {last}-{first}
    s_mov_b32 s{sb+3}, 0x20000
    v_lshlrev_b32 v{vaddr}, 7, v{v0}
    """)
    for i in range(n):
        if i: k(f"v_add_u32 v{vaddr}, {step}, v{vaddr}")
        k(f"buffer_load_dword v{vdst}, v{vaddr}, s[{sb}:{sb+3}], 0 offen")

CS = 4160; XS = 4640; CH_LDS = 4 * CS + 2 * XS; CONV_LDS = 4 * CH_LDS
NS = 8; RW = 8
LDS_Y, LDS_XR, LDS_ST = 131072, 147456, 131072 - 512
S_LAY, S_WAVE, S_WS = 3, 17, 8
SW = "s[20:23]"; SD = "s[24:27]"; SX = "s[28:31]"
(S_M0, S_W1, S_W2, S_XN, S_HL, S_HS, S_PS, S_ROWF, S_ROWY, S_FH_P, S_FH_C, S_FW2_P, S_FW2_C, S_FPF_P, S_FPF_C,
 S_FXN_P, S_FXN_C, S_SHA, S_SHB, S_SHD, S_HS6) = range(36, 57)
S_FW1_C = 19
S_PL, S_ROWL, S_TAG16, S_MSK = 56, 88, 89, 90
S_N = 68
S_DMA, S_SP, S_T = 57, 58, 10
S_A, S_B, S_C, S_D, S_E = 14, 15, 16, 18, 59
VR, VD, VST, VC2, VF, VTID, VS0, VS1, VROW, VP, VF16 = 224, 226, 227, 228, 229, 230, 231, 232, 233, 234, 235
TMP = 236
VTAG = 253
VSTAMP = 255

def gen_mega(KT=14, la_bar=5, la1=200, rate1=0.175, la2=96, rate2=0.225, wgran=2, rep=4, nap=3, q_step=2, r1_step=3, arm_step=2, npre=3, npre2=7, w0_at=2, sh_step=4, ord2=True, swz=4, kvnt='', qnt='', hnt='', dnt='', outm='', dbg_wg=77, now=0, wnt='', ct=True, pnap=2, ph_back=(90, 100, 100, 90), b2=3, fl_lag=48, thr=9999, chk=10, pf_step=4, pf_at=44, pe_back=6, sent=True, park=8, free_at=(335, 368, 402, 434), ph0=392, tw=0, tw0=96, tw_step=8, pe_lag=32, rmax=0.2, rmax2=0.25, w1_step=1, w1s=2, E=3, e_late=True, KT2=12, abl=""):
    k = K("interleave_layers__ssm_conv_h3__glu_gated_geglu__prompt_kernel")
    diag = asmlib.STAMPS[0]
    def stamp(i):
        if diag:
            k(f"s_memrealtime s[64:65]\ns_memtime s[66:67]\ns_waitcnt lgkmcnt(0)\nv_writelane_b32 v{VSTAMP}, s64, {i}\nv_writelane_b32 v{VSTAMP}, s66, {32 + i}")
    slow = []
    def poll_load(soff, width=1):
        if width == "w0": return f"buffer_load_dwordx2 v[{TMP}:{TMP+1}], v{TMP+13}, {SW}, s{soff} offen sc1"
        if width == "arm": return f"buffer_load_dwordx4 v[{TMP}:{TMP+3}], v{VR}, {SW}, s{soff} offen sc1"
        va = VF if soff in (S_FW1_C, S_FW2_C) else TMP + 13 if soff in (S_FPF_C, S_FKV) else VF16
        return f"buffer_load_dword v{VP}, v{va}, {SW}, s{soff} offen sc1"
    def poll_test(n, width, soff):
        if n == "w0":
            return [f"v_xor_b32 v{TMP}, v{TMP}, v{VTAG}", f"v_xor_b32 v{TMP+1}, v{TMP+1}, v{VTAG}", f"v_or_b32 v{VP}, v{TMP}, v{TMP+1}",
                    f"v_cmp_ne_u32 vcc, 0, v{VP}", f"s_or_b32 s{S_A}, vcc_lo, vcc_hi", f"s_and_b32 s{S_A}, s{S_A}, {(1 << (32 - KT)) - 1:#x}"]
        if n == "arm":
            o = [f"v_xor_b32 v{TMP+i}, v{TMP+i}, v{VTAG}" for i in range(4)]
            o += [f"v_or3_b32 v{VP}, v{TMP}, v{TMP+1}, v{TMP+2}", f"v_or_b32 v{VP}, v{VP}, v{TMP+3}", f"v_cmp_ne_u32 vcc, 0, v{VP}"]
            n = 64
        else: o = [f"v_cmp_ne_u32 vcc, v{VTAG}, v{VP}"]
        if n == "w1": o += [f"s_or_b32 s{S_A}, vcc_lo, vcc_hi", f"s_and_b32 s{S_A}, s{S_A}, {(1 << (2 * KT)) - 1:#x}"]
        elif n <= 32: o.append(f"s_and_b32 s{S_A}, vcc_lo, {(1 << n) - 1:#x}")
        elif n < 64: o += [f"s_and_b32 s{S_A}, vcc_hi, {(1 << (n - 32)) - 1:#x}", f"s_or_b32 s{S_A}, s{S_A}, vcc_lo"]
        else: o.append(f"s_or_b32 s{S_A}, vcc_lo, vcc_hi")
        return o
    def poll_check(ld, soff, n, width=1):
        k.nl += 1; lab = f"L_poll{k.nl}"
        k.wait(vm=ld)
        k("\n".join(poll_test(n, width, soff)) + f"\ns_cbranch_scc1 {lab}")
        k.label(lab + "_ok")
        slow.append((lab, [f"s_mov_b32 s{S_SP}, {SPIN}"], [f"s_sleep {nap}", poll_load(soff, n if n in ("arm", "w0") else width), f"s_sub_u32 s{S_SP}, s{S_SP}, 1", f"s_cbranch_scc1 {lab}_out",
                    "s_waitcnt vmcnt(0)"] + poll_test(n, width, soff)))
    def flag_store(soff):
        if soff in (S_FPF_P, 78):
            return f"s_mov_b32 exec_hi, 0\nbuffer_store_dword v{VTAG}, v{VF16}, {SW}, s{soff} offen sc1\ns_mov_b32 exec_hi, -1"
        return f"s_mov_b64 exec, 1\nbuffer_store_dword v{VTAG}, off, {SW}, s{soff} sc1\ns_mov_b64 exec, -1"

    c1 = -2 * math.sqrt(2 / math.pi) * math.log2(math.e)
    k("s_cmp_ge_u32 s2, 256\ns_cbranch_scc1 L_end")
    S_FKV = 69
    if diag == 7: k(f"v_mov_b32 v{VSTAMP}, 0"); stamp(12)
    k(f"""
    s_load_dwordx4 s[72:75], s[0:1], {ARG['k']}
    s_load_dwordx2 s[8:9], s[0:1], {ARG['ws']}
    s_load_dwordx2 s[76:77], s[0:1], {ARG['shift']}
    s_load_dwordx4 s[4:7], s[0:1], {ARG['ssm']}
    s_load_dwordx4 s[12:15], s[0:1], {ARG['wg']}
    s_load_dwordx2 s[10:11], s[0:1], {ARG['q']}
    s_and_b32 s59, s2, 7
    s_lshr_b32 s60, s2, 3
    s_lshl_b32 s16, s60, 4
    v_and_b32 v3, 15, v0
    v_add_u32 v3, s16, v3
    """)
    touch_code(k, "L_body", "L_end", 4, 51, 80, v0=3)
    k.label("L_body")
    k(f"""
    s_mov_b32 s{S_LAY}, 0
    v_mov_b32 v{VTID}, v0
    v_lshrrev_b32 v1, 6, v0
    v_and_b32 v2, 63, v0
    v_readfirstlane_b32 s17, v1
    s_lshl_b32 s61, s59, 5
    s_add_u32 s61, s61, s60
    v_lshlrev_b32 v{VR}, 4, v2
    s_and_b32 s16, s61, 15
    s_lshl_b32 s16, s16, 4
    v_and_b32 v48, 7, v0
    v_bfe_u32 v49, v0, 6, 1
    v_lshl_add_u32 v48, v49, 3, v48
    v_add_u32 v48, s16, v48
    s_and_b32 s16, s61, 0xf0
    v_bfe_u32 v49, v0, 3, 3
    v_lshrrev_b32 v3, 7, v0
    v_lshl_add_u32 v49, v3, 3, v49
    v_add_u32 v49, s16, v49
    v_lshlrev_b32 v3, 14, v48
    v_lshl_add_u32 v3, v49, 3, v3
    v_subrev_u32 v8, 0x1800, v3
    v_subrev_u32 v9, 0x1000, v3
    v_subrev_u32 v10, 0x800, v3
    v_lshlrev_b32 v7, 5, v49
    s_mov_b32 s84, 4096
    s_mov_b32 s85, 8192
    s_mov_b32 s86, 12288
    s_lshl_b32 s18, s61, 2
    s_add_u32 s18, s18, s17
    s_mul_i32 s62, s17, {CH_LDS}
    """)
    if diag and diag != 7: k(f"v_mov_b32 v{VSTAMP}, 0")
    k("s_waitcnt lgkmcnt(0)")
    k(f"s_add_u32 s70, s8, {WS_FLAG + F_EPOCH}\ns_addc_u32 s71, s9, 0\ns_load_dword s87, s[70:71], 0")
    srd(k, 24, 72, MB4); srd(k, 28, 74, MB4); srd(k, 32, 76, 8192)
    KR = lambda t: 74 + 2 * t
    VV = lambda t: 90 + 2 * t
    so = ["0", "s84", "s85", "s86"]
    for i in range(3): k(f"buffer_load_dwordx2 v[{KR(i-3)}:{KR(i-3)+1}], v{8+i}, s[24:27], 0 offen {kvnt}")
    for t in range(8): k(f"buffer_load_dwordx2 v[{KR(t)}:{KR(t)+1}], v3, s[24:27], {so[t>>1]} offen offset:{(t&1)*2048} {kvnt}")
    k("buffer_load_dwordx4 v[108:111], v7, s[32:35], 0 offen")
    lk = k("buffer_load_dwordx4 v[112:115], v7, s[32:35], 0 offen offset:16")
    for t in range(8): lv = k(f"buffer_load_dwordx2 v[{VV(t)}:{VV(t)+1}], v3, s[28:31], {so[t>>1]} offen offset:{(t&1)*2048} {kvnt}")
    stamp(0)
    srd(k, 20, 8, WS_TOTAL); srd(k, 28, 8, WS_TOTAL)
    k(f"""
    s_lshl_b32 s16, s18, 12
    s_add_u32 s32, s4, s16
    s_addc_u32 s33, s5, 0
    s_mov_b32 s34, 4096
    s_mov_b32 s35, 0x20000
    s_add_u32 s16, s16, {WS_KV}
    s_add_u32 s88, s8, s16
    s_addc_u32 s89, s9, 0
    s_mov_b32 s90, 4096
    s_mov_b32 s91, 0x20000
    """)
    HR = 192
    for i in range(4):
        for h in range(2): h_ld = k(f"buffer_load_dwordx4 v[{HR+8*i+4*h}:{HR+8*i+4*h+3}], v{VR}, s[32:35], 0 offen offset:{i*1024 + 16*h} {hnt}")
    k(f"v_sub_u32 v50, 255, v48\nv_lshlrev_b32 v50, 4, v50\nv_lshl_add_u32 v50, v49, 14, v50\nv_add_u32 v50, {WS_KV}, v50")
    srd(k, 92, 10, MB4)
    KM = 32 - KT
    NU0, NU1 = 56 * KM, 56 * KT
    assert NU0 <= 1024 and NU1 <= 1024 and 2 * KT <= 32
    k(f"""
    v_lshrrev_b32 v11, 4, v2
    v_mul_u32_u24 v54, 7168, v11
    v_and_b32 v12, 15, v2
    v_lshl_add_u32 v54, v12, 4, v54
    s_lshl_b32 s10, s2, 2
    s_add_u32 s10, s10, s17
    s_lshl_b32 s11, s17, 13
    s_add_u32 s11, s11, {CONV_LDS}
    s_mul_hi_u32 s48, s10, {-(-(1 << 32) // 28)}
    s_mul_i32 s47, s48, 28
    s_sub_u32 s47, s10, s47
    s_and_b32 s52, s48, 1
    s_lshr_b32 s48, s48, 1
    s_cmp_eq_u32 s52, 0
    s_cselect_b32 s24, s12, s14
    s_cselect_b32 s25, s13, s15
    s_mov_b32 s27, 0x20000
    s_mul_i32 s49, s48, {32*7168}
    s_lshl_b32 s12, s47, 8
    s_add_u32 s49, s49, s12
    """)
    def w_enable(n):
        return [f"s_cmp_lt_u32 s10, {n}", f"s_cselect_b32 s26, {0 if now & (1 if n == NU0 else 2) else W_BYTES}, 0", f"s_cselect_b32 s30, {WS_TOTAL}, 0"]
    def w_load(r, j):
        return [f"s_add_u32 m0, s11, {1024*j}", f"s_add_u32 s12, s49, {4*7168*j + r*KM*32*7168}", f"buffer_load_dwordx4 v54, s[24:27], s12 offen {wnt} lds"]
    for x in w_enable(NU0): k(x)
    def w0_issue():
        for j in range(8): k("\n".join(w_load(0, j)))
    A = lambda buf, p: 64 + buf * 64 + 4 * p
    B = lambda buf, j: 96 + buf * 64 + 4 * j
    AD = 40
    k("v_and_b32 v61, 15, v2\nv_lshrrev_b32 v62, 4, v2\nv_lshlrev_b32 v63, 2, v61\nv_lshl_add_u32 v63, v62, 4, v63")
    for w in range(4): k(f"v_subrev_u32 v{4+w}, {60-4*w}, v63")
    for w in range(4): k(f"buffer_load_dword v{A(0,0)+w}, v{4+w}, s[32:35], 0 offen")
    k(f"""
    s_and_b32 s16, s18, 0xfffffffe
    s_lshl_b32 s16, s16, 1
    s_add_u32 s6, s6, s16
    s_addc_u32 s7, s7, 0
    s_load_dword s63, s[6:7], 0
    s_load_dwordx4 s[4:7], s[0:1], {ARG['wd']}
    s_lshr_b32 s32, s59, 1
    s_lshl_b32 s32, s32, 2
    s_and_b32 s33, s60, 3
    s_add_u32 s32, s32, s33
    s_and_b32 s33, s59, 1
    s_lshr_b32 s34, s60, 2
    s_lshl_b32 s35, s33, 3
    s_add_u32 s35, s35, s34
    s_lshl_b32 s19, s32, 4
    s_add_u32 s19, s19, s35
    s_lshl_b32 s{S_ROWY}, s19, 14
    s_lshr_b32 s45, s19, 1
    s_lshl_b32 s45, s45, 15
    s_and_b32 s16, s19, 1
    s_lshl_b32 s16, s16, 7
    s_add_u32 s45, s45, s16
    v_and_b32 v8, 7, v0
    v_lshrrev_b32 v9, 3, v0
    v_lshlrev_b32 v15, 4, v8
    v_lshl_add_u32 v15, v9, 8, v15
    v_and_b32 v13, 3, v9
    v_lshrrev_b32 v9, 2, v9
    v_lshl_add_u32 v9, v9, 4, v13
    v_lshlrev_b32 v10, 11, v8
    v_lshl_add_u32 v10, v9, 4, v10
    v_lshlrev_b32 v{VROW}, 4, v8
    v_lshl_add_u32 v{VROW}, v9, 8, v{VROW}
    v_mov_b32 v16, -1
    v_mov_b32 v17, -1
    v_mov_b32 v18, -1
    v_mov_b32 v19, -1
    v_lshlrev_b32 v14, 4, v0
    """)
    QP = 192
    k("v_mov_b32 v53, v10")
    k(f"""
    v_and_b32 v8, 3, v61
    v_mul_u32_u24 v8, {CS}, v8
    v_lshrrev_b32 v9, 2, v61
    v_add_u32 v9, v9, v62
    v_lshl_add_u32 v56, v9, 4, v8
    v_add_u32 v56, s62, v56
    v_lshrrev_b32 v8, 3, v61
    v_mul_u32_u24 v9, {XS}, v8
    v_and_b32 v10, 7, v61
    v_lshlrev_b32 v13, 6, v10
    v_sub_u32 v9, v9, v13
    v_lshl_add_u32 v9, v62, 4, v9
    v_add_u32 v9, {4*CS + 4032 - 3584}, v9
    v_add_u32 v57, s62, v9
    v_lshrrev_b32 v13, 1, v10
    v_xor_b32 v13, v13, v62
    v_lshl_add_u32 v13, v10, 2, v13
    v_lshlrev_b32 v13, 4, v13
    v_lshl_add_u32 v13, v8, 12, v13
    v_add_u32 v59, s62, v13
    v_lshrrev_b32 v8, 5, v2
    v_mul_u32_u24 v8, {XS}, v8
    v_and_b32 v9, 31, v2
    v_lshl_add_u32 v8, v9, 4, v8
    v_add_u32 v8, s62, v8
    v_mov_b32 v44, 0
    v_mov_b32 v45, 0
    v_mov_b32 v46, 0
    v_mov_b32 v47, 0
    v_mov_b32 v58, s62
    ds_write_b128 v8, v[44:47] offset:{4*CS + 4096}
    v_lshlrev_b32 v55, 3, v11
    v_bfe_u32 v9, v2, 2, 2
    v_add_u32 v55, v55, v9
    v_lshlrev_b32 v55, 8, v55
    v_and_b32 v9, 3, v2
    v_lshl_add_u32 v55, v9, 3, v55
    v_add_u32 v55, s11, v55
    s_waitcnt lgkmcnt(0)
    s_and_b32 s12, s18, 1
    s_lshl_b32 s12, s12, 4
    s_lshr_b32 s63, s63, s12
    s_and_b32 s63, s63, 0xffff
    v_mov_b32 v9, s63
    """)
    for w in range(4): k(f"v_cmp_eq_u32 vcc, 0, v{4+w}\nv_cndmask_b32 v{AD+w}, 0, v9, vcc")
    assert all((x * 9363) >> 16 == x // 7 for x in range(224))
    OFFS = [[36 + i for i in range(8)], [70 + i for i in range(8)]]
    k(f"""
    s_mul_i32 s12, s48, 14
    s_mul_i32 s13, s52, 7
    s_add_u32 s12, s12, s13
    s_add_u32 s12, s12, {WS_W1 >> 10}
    s_lshl_b32 s13, s48, 1
    s_add_u32 s13, s13, s52
    s_lshl_b32 s50, s13, 2
    s_lshl_b32 s14, s47, 7
    s_add_u32 s50, s50, s14
    s_add_u32 s50, s50, {WS_FLAG + F_W1}
    s_add_u32 s13, s13, {14*KM + (WS_W1 >> 10)}
    s_lshl_b32 s18, s47, 3
    """)
    for i in range(8):
        k(f"""
        s_mul_i32 s14, s18, 9363
        s_lshr_b32 s14, s14, 16
        s_mul_i32 s15, s14, 7
        s_sub_u32 s15, s18, s15
        s_mul_i32 s14, s14, {W1T}
        s_add_u32 s58, s14, s15
        s_add_u32 s58, s58, s12
        s_lshl_b32 s{OFFS[0][i]}, s58, 10
        s_mul_i32 s15, s15, {2*KT}
        s_add_u32 s14, s14, s15
        s_add_u32 s14, s14, s13
        s_lshl_b32 s{OFFS[1][i]}, s14, 10
        s_add_u32 s18, s18, 1
        """)
    if w0_at == 0: w0_issue()
    k.wait(vm=lk)
    W = lambda c, j: 116 + 4 * c + j
    for c in range(4):
        for j in range(4): unpk(k, W(c, j), 108 + 2 * c + (j >> 1), j & 1)
    KS = lambda c, t: 132 + 8 * c + t
    KF = lambda t: 167 + t
    for c in range(4):
        for t in range(-3, 8): unpk(k, KF(t), KR(t) + (c >> 1), c & 1)
        for t in range(8): k(f"v_mul_f32 v{KS(c,t)}, v{W(c,3)}, v{KF(t-3)}")
        for j in (2, 1, 0):
            for t in range(8): k(f"v_fmac_f32 v{KS(c,t)}, v{W(c,j)}, v{KF(t-j)}")
    for i in range(4):
        k(f"s_add_u32 s16, s{S_ROWY}, {WS_Y + 4096*i}\nbuffer_store_dwordx4 v[16:19], v14, {SW}, s16 offen sc1")
    assert 4 * E <= 32
    for L in range(2):
        k(f"s_add_u32 s16, s45, {WS_XN + L*MB4}\nbuffer_store_dwordx4 v[16:19], v15, {SW}, s16 offen sc1")
    if w0_at == 1: w0_issue()
    k.wait(vm=lv)
    for c in range(4):
        for t in range(8): unpk(k, KF(t), VV(t) + (c >> 1), c & 1)
        for t in range(8): k(f"v_mul_f32 v{KS(c,t)}, v{KS(c,t)}, v{KF(t)}")
        for i in range(4): k(f"v_cvt_pk_bf16_f32 v{176+4*c+i}, v{KS(c,7-2*i)}, v{KS(c,6-2*i)}")
        k(f"buffer_store_dwordx4 v[{176+4*c}:{179+4*c}], v50, {SW}, {so[c]} offen sc1")
    stamp(26)
    kv_st = k.nvm
    if w0_at == 2: w0_issue()
    k(f"""
    s_lshr_b32 s{S_FKV}, s61, 4
    s_lshl_b32 s{S_FKV}, s{S_FKV}, 11
    s_add_u32 s{S_FKV}, s{S_FKV}, {WS_FLAG + F_KV}
    s_lshl_b32 s78, s61, 7
    s_add_u32 s78, s78, {WS_FLAG + F_KV}
    v_and_b32 v{TMP+13}, 15, v2
    v_lshlrev_b32 v{TMP+13}, 7, v{TMP+13}
    v_and_b32 v{VF16}, 31, v2
    v_lshlrev_b32 v{VF16}, 2, v{VF16}
    s_waitcnt lgkmcnt(0)
    s_mul_i32 s{S_N}, s87, 0x9e3779b1
    s_add_u32 s{S_N}, s{S_N}, 0x7f4a7c15
    s_add_u32 s16, s{S_N}, 1
    v_mov_b32 v{VTAG}, s16
    """)
    k.wait(vm=h_ld)
    k(f"v_add_u32 v60, s62, v{VR}")
    for i in range(4):
        r = HR + 8 * i; t = 72 + 8 * i
        for e in range(6): k(f"v_mov_b32 v{t+e}, v{r+1+e}")
        for cc, src in enumerate((t, r + 2, t + 2, r + 4)):
            k(f"ds_write_b128 v60, v[{src}:{src+3}] offset:{cc*CS + i*1024}")
    k.wait(vm=kv_st)
    k("s_barrier\ns_cmp_lg_u32 s17, 0\ns_cbranch_scc1 L_nokvf")
    k(flag_store(78)); k.nvm -= 1
    k.label("L_nokvf")
    k(f"s_lshl_b32 s16, s2, 2\ns_add_u32 s16, s16, {WS_FLAG + F_ARM}\ns_cmp_lg_u32 s17, 1\ns_cbranch_scc1 L_noarm")
    k(flag_store(16)); k.nvm -= 1
    k.label("L_noarm")
    x = k(poll_load(S_FKV))
    poll_check(x, S_FKV, 16)
    stamp(27)
    xl = []
    for i in range(4):
        k(f"buffer_load_dwordx4 v[{128+8*i}:{131+8*i}], v{VR}, s[88:91], 0 offen offset:{i*1024}")
        xl.append(k(f"buffer_load_dword v{132+8*i}, v{VR}, s[88:91], 0 offen offset:{i*1024 + 16}"))
    if w0_at == 3: side0 = [("v", "w0", "\n".join(w_load(0, j))) for j in range(8)]
    for i in range(4):
        r = 128 + 8 * i; t = 160 + 4 * i
        k.wait(vm=xl[i])
        k(f"ds_write_b128 v60, v[{r}:{r+3}] offset:{4*CS + XS + i*1024}")
        for e in range(4): k(f"v_alignbit_b32 v{t+e}, v{r+e+1}, v{r+e}, 16")
        k(f"ds_write_b128 v60, v[{t}:{t+3}] offset:{4*CS + i*1024}")
    stamp(1)
    Y = lambda j: 8 + 4 * j
    def reads(i):
        buf = i & 1; out = []
        for x in range(8):
            out.append(("B", x, f"ds_read_b128 v[{B(buf,x)}:{B(buf,x)+3}], v57 offset:{3584-512*x+64*i}"))
            if (i, x) != (0, 0):
                out.append(("A", x, f"ds_read_b128 v[{A(buf,x)}:{A(buf,x)+3}], v56 offset:{64*(i-1)+512*x}"))
        return out
    ids = {}
    for kind, x, txt in reads(0): ids[(0, kind, x)] = k(txt)
    for j in range(8):
        k.wait(lg=ids[(0, "B", j)])
        k(f"v_mfma_f32_16x16x32_bf16 v[{Y(j)}:{Y(j)+3}], v[{AD}:{AD+3}], v[{B(0,j)}:{B(0,j)+3}], 0")
    side = {i: [] for i in range(8)}
    def sh_reads(r):
        o = []
        for i in range(8):
            f = 224 * r + 4 * i
            o += [("r", None, f"ds_read_b64_tr_b16 a[{f}:{f+1}], v55 offset:{32*i}"), ("r", (r, i), f"ds_read_b64_tr_b16 a[{f+2}:{f+3}], v55 offset:{32*i + 1024}")]
        return o
    def sh_stores(r):
        return [("s", (r, i), f"buffer_store_dwordx4 a[{224*r+4*i}:{224*r+4*i+3}], v{VR}, {SX}, s{OFFS[r][i]} offen sc1") for i in range(8)]
    side[q_step] += [("v", "q", f"buffer_load_dwordx4 v[{QP+4*i}:{QP+4*i+3}], v53, s[92:95], s{S_ROWY} offen offset:{64*i} {qnt}") for i in range(4)]
    s0 = 0
    if w0_at == 3:
        side[0] += side0; s0 = sh_step; side[s0].append(("w", 0))
    side[s0] += sh_reads(0)
    side[s0 + 1] += sh_stores(0)
    side[arm_step] += [("v", "arm", f"s_mov_b32 s79, {WS_FLAG + F_ARM}\n" + poll_load(79, "arm"))]
    side[r1_step] += [("x", None, "\n".join(w_enable(NU1)))] + [("v", "w1", "\n".join(w_load(1, j))) for j in range(8)]
    assert r1_step > s0 + 1
    sid = {}
    for i in range(8):
        buf = i & 1
        nxt = reads(i + 1) if i < 7 else []
        order = sorted([(p, j) for p in range(8) for j in range(8 - p)], key=lambda t: (max(t), t[0] + t[1]))
        sd = side[i]
        for n, (p, j) in enumerate(order):
            k.wait(lg=max(ids.get((i, "A", p), 0), ids[(i, "B", j)]))
            jp = p + j
            k(f"v_mfma_f32_16x16x32_bf16 v[{Y(jp)}:{Y(jp)+3}], v[{A(buf,p)}:{A(buf,p)+3}], v[{B(buf,j)}:{B(buf,j)+3}], v[{Y(jp)}:{Y(jp)+3}]")
            if n % 2 == 1 and nxt:
                kind, x, txt = nxt.pop(0); ids[(i + 1, kind, x)] = k(txt)
            if n % 2 == 0 and sd and (sd[0][0] not in "sv" or n % 4 == 0):
                it = sd.pop(0)
                if it[0] == "w": k.wait(vm=sid["w0"])
                elif it[0] == "s":
                    k.wait(lg=sid[it[1]]); sid["st0"] = k(it[2])
                else:
                    x = k(it[2])
                    if it[1]: sid[it[1]] = x
        assert not nxt and not sd
    stamp(2)
    for j in range(8): k(f"ds_write_b128 v59, v[{Y(j)}:{Y(j)+3}] offset:{512*j}")
    k(f"""
    v_lshrrev_b32 v4, 2, v0
    v_bfe_u32 v5, v4, 3, 2
    v_xor_b32 v5, v5, v4
    v_lshlrev_b32 v5, 4, v5
    v_and_b32 v6, 3, v0
    v_lshl_add_u32 v5, v6, 2, v5
    v_lshlrev_b32 v6, 4, v6
    v_lshl_add_u32 v6, v4, 14, v6
    s_lshl_b32 s12, s61, 6
    s_add_u32 s12, s12, {WS_Y}
    """)
    for c in range(1, 4): k(f"v_add_u32 v{40+c}, {c*CH_LDS}, v5")
    k("v_mov_b32 v40, v5")
    poll_check(sid["arm"], 79, "arm")
    k.wait(vm=sid["st0"], lg=k.nlg); k("s_barrier")
    rid = {}
    for i in range(4):
        for c in range(4):
            rid[i] = k(f"ds_read2st64_b32 v[{64+8*i+2*c}:{65+8*i+2*c}], v{40+c} offset0:{4*i} offset1:{16+4*i}")
    for i in range(4):
        k.wait(lg=rid[i])
        for par in range(2):
            for h in range(2):
                k(f"v_cvt_pk_bf16_f32 v{96+4*i+2*par+h}, v{64+8*i+4*h+par}, v{64+8*i+4*h+2+par}")
        k(f"buffer_store_dwordx4 v[{96+4*i}:{99+4*i}], v6, {SW}, s12 offen sc1")
        if i < 3: k("s_add_u32 s12, s12, 0x100000")
    stamp(3)
    k.wait(vm=sid["w1"])
    for it in sh_reads(1):
        x = k(it[2])
        if it[1]: sid[it[1]] = x
    for it in sh_stores(1):
        k.wait(lg=sid[it[1]]); k(it[2])
    k("s_mov_b32 s62, s50\ns_mov_b32 s63, s30")

    KM2 = 56 - KT2
    k(f"""
    s_lshl_b32 s{S_M0}, s17, 12
    s_lshr_b32 s13, s59, 1
    s_lshl_b32 s12, s13, 3
    s_add_u32 s12, s12, s34
    s_lshl_b32 s14, s33, 2
    s_and_b32 s15, s60, 3
    s_add_u32 s14, s14, s15
    s_lshl_b32 s14, s14, 2
    s_add_u32 s14, s14, s17
    s_lshl_b32 s16, s32, 2
    s_add_u32 s16, s16, s17
    s_mul_i32 s{S_W1}, s12, {W1T*1024}
    s_add_u32 s{S_W1}, s{S_W1}, {WS_W1}
    s_mul_i32 s{S_W2}, s35, {W2T*1024}
    s_add_u32 s{S_W2}, s{S_W2}, {WS_W2}
    s_and_b32 s15, s16, 15
    s_lshl_b32 s15, s15, 13
    s_add_u32 s91, s{S_W2}, s15
    s_lshl_b32 s{S_XN}, s14, 17
    s_add_u32 s{S_XN}, s{S_XN}, {WS_XN}
    s_lshl_b32 s{S_PS}, s16, 14
    s_lshl_b32 s15, s34, 10
    s_add_u32 s{S_PS}, s{S_PS}, s15
    s_lshl_b32 s15, s33, 22
    s_add_u32 s{S_PS}, s{S_PS}, s15
    s_add_u32 s{S_PS}, s{S_PS}, {WS_P}
    s_lshr_b32 s{S_ROWL}, s19, 1
    s_lshl_b32 s{S_ROWF}, s{S_ROWL}, 15
    s_lshl_b32 s{S_ROWL}, s{S_ROWL}, 13
    s_and_b32 s15, s19, 1
    s_lshl_b32 s15, s15, 7
    s_add_u32 s{S_ROWL}, s{S_ROWL}, s15
    s_add_u32 s{S_ROWF}, s{S_ROWF}, s15
    s_lshl_b32 s{S_FXN_C}, s14, 7
    s_lshl_b32 s15, s13, 12
    s_add_u32 s{S_FXN_C}, s{S_FXN_C}, s15
    s_add_u32 s{S_FXN_C}, s{S_FXN_C}, {WS_FLAG + F_XN}
    s_lshr_b32 s{S_FXN_P}, s19, 3
    s_lshl_b32 s{S_FXN_P}, s{S_FXN_P}, 7
    s_lshl_b32 s15, s34, 2
    s_add_u32 s{S_FXN_P}, s{S_FXN_P}, s15
    s_add_u32 s{S_FXN_P}, s{S_FXN_P}, s{S_M0}
    s_add_u32 s{S_FXN_P}, s{S_FXN_P}, {WS_FLAG + F_XN}
    s_lshr_b32 s{S_FPF_C}, s19, 2
    s_lshl_b32 s{S_FPF_C}, s{S_FPF_C}, 11
    s_add_u32 s{S_FPF_C}, s{S_FPF_C}, {WS_FLAG + F_PE}
    s_lshl_b32 s{S_FPF_P}, s16, 11
    s_lshl_b32 s15, s35, 7
    s_add_u32 s{S_FPF_P}, s{S_FPF_P}, s15
    s_add_u32 s{S_FPF_P}, s{S_FPF_P}, {WS_FLAG + F_PE}
    s_lshl_b32 s{S_FH_P}, s14, 8
    s_lshr_b32 s15, s12, 4
    s_lshl_b32 s15, s15, 7
    s_add_u32 s{S_FH_P}, s{S_FH_P}, s15
    s_and_b32 s15, s12, 15
    s_lshl_b32 s15, s15, 2
    s_add_u32 s{S_FH_P}, s{S_FH_P}, s15
    s_add_u32 s{S_FH_P}, s{S_FH_P}, {WS_FLAG + F_H}
    s_lshr_b32 s{S_FH_C}, s16, 1
    s_lshl_b32 s{S_FH_C}, s{S_FH_C}, 8
    s_lshl_b32 s15, s33, 7
    s_add_u32 s{S_FH_C}, s{S_FH_C}, s15
    s_add_u32 s{S_FH_C}, s{S_FH_C}, {WS_FLAG + F_H}
    s_mul_i32 s{S_HL}, s16, {2*TBH}
    s_mul_i32 s15, s33, {56*1024}
    s_add_u32 s{S_HL}, s{S_HL}, s15
    s_add_u32 s{S_HL}, s{S_HL}, {WS_H}
    s_mul_i32 s{S_HS}, s14, {4*TBH}
    s_lshr_b32 s15, s12, 4
    s_mul_i32 s15, s15, {56*1024}
    s_add_u32 s{S_HS}, s{S_HS}, s15
    s_and_b32 s15, s12, 15
    s_lshl_b32 s15, s15, 9
    s_add_u32 s{S_HS}, s{S_HS}, s15
    s_add_u32 s{S_HS}, s{S_HS}, {WS_H}
    s_lshl_b32 s{S_FW2_C}, s35, 8
    s_add_u32 s{S_FW2_C}, s{S_FW2_C}, {WS_FLAG + F_W2}
    s_mul_i32 s15, s12, 7
    s_lshr_b32 s15, s15, 3
    s_min_u32 s15, s15, 26
    s_lshl_b32 s15, s15, 7
    s_add_u32 s{S_FW1_C}, s15, {WS_FLAG + F_W1}
    """)
    k(f"""
    s_add_u32 s15, s32, s34
    s_and_b32 s15, s15, 1
    s_mul_i32 s86, s15, {1024 * swz}
    s_mul_i32 s15, s15, {8192 * swz}
    s_add_u32 s92, s{S_W2}, s15
    s_sub_u32 s93, s{S_W2}, s15
    """)
    k(f"""
    s_lshl_b32 s12, s2, 2
    s_add_u32 s12, s12, s17
    s_cmp_lt_u32 s12, 896
    s_cselect_b32 s26, {W_BYTES}, 0
    s_cselect_b32 s30, {WS_TOTAL}, 0
    s_mov_b32 s24, s4
    s_mov_b32 s25, s5
    s_lshr_b32 s13, s12, 3
    s_and_b32 s12, s12, 7
    s_cmp_ge_u32 s13, 56
    s_cselect_b32 s14, 1, 0
    s_cselect_b32 s15, 56, 0
    s_sub_u32 s13, s13, s15
    s_lshl_b32 s15, s14, 3
    s_add_u32 s15, s15, s12
    s_lshl_b32 s{S_FW2_P}, s15, 8
    s_lshl_b32 s16, s13, 2
    s_add_u32 s{S_FW2_P}, s{S_FW2_P}, s16
    s_add_u32 s{S_FW2_P}, s{S_FW2_P}, {WS_FLAG + F_W2}
    s_mul_i32 s{S_SHD}, s15, {W2T*1024}
    s_lshl_b32 s16, s13, 13
    s_lshl_b32 s60, s13, 11
    s_add_u32 s60, s60, {KM2 * 6 * 1024}
    s_cmp_lt_u32 s13, {KM2}
    s_cselect_b32 s16, s16, s60
    s_cselect_b32 s60, 1, {KT2}
    s_lshl_b32 s60, s60, 11
    s_add_u32 s{S_SHD}, s{S_SHD}, s16
    s_add_u32 s{S_SHD}, s{S_SHD}, {WS_W2}
    s_and_b32 s15, s13, 7
    s_mul_i32 s15, s15, 224
    s_lshr_b32 s16, s13, 3
    s_lshl_b32 s16, s16, 4
    s_add_u32 s15, s15, s16
    s_mul_i32 s14, s14, 1792
    s_add_u32 s15, s15, s14
    s_add_u32 s16, s15, 112
    s_lshl_b32 s12, s12, 8
    s_lshl_b32 s{S_SHA}, s15, 11
    s_add_u32 s{S_SHA}, s{S_SHA}, s12
    s_lshl_b32 s{S_SHB}, s16, 11
    s_add_u32 s{S_SHB}, s{S_SHB}, s12
    v_add_u32 v{VR+1}, 0x10000, v{VR}
    v_add_u32 v{VD}, s{S_M0}, v{VR}
    v_lshrrev_b32 v5, 5, v2
    v_and_b32 v6, 31, v2
    v_lshlrev_b32 v6, 4, v6
    v_mul_u32_u24 v7, {TBH}, v5
    v_add_u32 v{VST}, v7, v6
    v_mov_b32 v{VC2}, {f32bits(c1*0.044715):#x}
    v_lshlrev_b32 v{VF}, 2, v2
    v_lshrrev_b32 v3, 4, v2
    v_and_b32 v4, 15, v2
    v_lshlrev_b32 v4, 4, v4
    v_lshl_add_u32 v{VS0}, v3, 11, v4
    v_bfe_u32 v4, v2, 2, 3
    v_lshlrev_b32 v4, 8, v4
    v_lshl_add_u32 v4, v5, 14, v4
    v_and_b32 v3, 3, v2
    v_lshl_add_u32 v4, v3, 4, v4
    v_add_u32 v{VS1}, s{S_M0}, v4
    """)

    XP, YP, P0, P1, X, Yf, T, AY, AS0, AS1, AL, AO = 8, 24, 40, 56, 72, 104, 136, 0, 1, 2, 3, 4
    def row_addr():
        k(f"""
        v_and_b32 v6, 7, v{VTID}
        v_bfe_u32 v5, v{VTID}, 3, 2
        v_lshrrev_b32 v7, 5, v{VTID}
        v_lshl_add_u32 v7, v7, 4, v5
        v_lshlrev_b32 v{AY}, 3, v6
        v_lshl_add_u32 v{AY}, v7, 7, v{AY}
        v_lshlrev_b32 v{AO}, 11, v6
        v_lshl_add_u32 v{AO}, v7, 4, v{AO}
        v_lshrrev_b32 v{AS0}, 6, v{VTID}
        v_lshlrev_b32 v{AS0}, 3, v{AS0}
        v_lshl_add_u32 v{AS0}, v6, 5, v{AS0}
        v_bfe_u32 v7, v{VTID}, 4, 1
        v_lshl_add_u32 v{AS0}, v7, 2, v{AS0}
        v_add_u32 v{AS0}, {LDS_ST}, v{AS0}
        v_lshlrev_b32 v{AS1}, 5, v6
        v_add_u32 v{AS1}, {LDS_ST}, v{AS1}
        v_lshlrev_b32 v{AL}, 4, v{VTID}
        v_add_u32 v{AL}, {LDS_Y}, v{AL}
        """)
    def unpack(dst, src):
        for e in range(32): unpk(k, dst + e, src + e // 2, e & 1)
    def stats(off):
        k(f"v_pk_add_f32 v[{T}:{T+1}], v[{X}:{X+1}], v[{X+2}:{X+3}]")
        k(f"v_pk_mul_f32 v[{T+2}:{T+3}], v[{X}:{X+1}], v[{X}:{X+1}]")
        for e in range(2, 32, 2):
            if e > 2: k(f"v_pk_add_f32 v[{T}:{T+1}], v[{T}:{T+1}], v[{X+e}:{X+e+1}]")
            k(f"v_pk_fma_f32 v[{T+2}:{T+3}], v[{X+e}:{X+e+1}], v[{X+e}:{X+e+1}], v[{T+2}:{T+3}]")
        R = T + 8
        k(f"""
        v_add_f32 v{T}, v{T}, v{T+1}
        v_add_f32 v{T+2}, v{T+2}, v{T+3}
        v_permlane16_swap_b32 v{T}, v{T+2}
        v_add_f32 v{T}, v{T}, v{T+2}
        v_add_f32_dpp v{T}, v{T}, v{T} row_ror:8 row_mask:0xf bank_mask:0xf
        v_mov_b32 v{T+1}, v{T}
        v_permlane32_swap_b32 v{T}, v{T+1}
        v_add_f32 v{T}, v{T}, v{T+1}
        ds_write_b32 v{AS0}, v{T} offset:{off}
        s_waitcnt lgkmcnt(0)
        s_barrier
        ds_read_b128 v[{R}:{R+3}], v{AS1} offset:{off}
        ds_read_b128 v[{R+4}:{R+7}], v{AS1} offset:{off+16}
        s_waitcnt lgkmcnt(0)
        v_pk_add_f32 v[{R}:{R+1}], v[{R}:{R+1}], v[{R+2}:{R+3}]
        v_pk_add_f32 v[{R+4}:{R+5}], v[{R+4}:{R+5}], v[{R+6}:{R+7}]
        v_pk_add_f32 v[{R}:{R+1}], v[{R}:{R+1}], v[{R+4}:{R+5}]
        v_mul_f32 v{R}, {f32bits(1/1024):#x}, v{R}
        v_mul_f32 v{R+1}, {f32bits(1/1024):#x}, v{R+1}
        v_fma_f32 v{R+1}, -v{R}, v{R}, v{R+1}
        v_max_f32 v{R+1}, 0, v{R+1}
        v_cvt_pk_bf16_f32 v{R+2}, v{R}, v{R+1}
        v_lshlrev_b32 v{R}, 16, v{R+2}
        v_and_b32 v{R+1}, 0xffff0000, v{R+2}
        v_add_f32 v{R+1}, {f32bits(1e-5):#x}, v{R+1}
        v_cvt_pk_bf16_f32 v{R+1}, v{R+1}, v{R+1}
        v_lshlrev_b32 v{R+1}, 16, v{R+1}
        v_sqrt_f32 v{R+1}, v{R+1}
        v_cvt_pk_bf16_f32 v{R+1}, v{R+1}, v{R+1}
        v_lshlrev_b32 v{R+1}, 16, v{R+1}
        v_rcp_f32 v{T+4}, v{R+1}
        v_mov_b32 v{T+5}, v{T+4}
        v_mul_f32_e64 v{T+6}, -v{R}, v{T+4}
        v_mov_b32 v{T+7}, v{T+6}
        """)
    def sentinel_loop(name, loads, regs, between=None, skip_first=False, tagged=False):
        k(f"s_mov_b32 s{S_SP}, {SPIN}")
        regs = list(regs)
        if not skip_first: loads()
        if between: between()
        k(f"s_branch {name}_chk")
        k.label(name)
        if pnap: k(f"s_sleep {pnap}")
        loads()
        k.label(name + "_chk")
        if tagged:
            k(f"s_waitcnt vmcnt(0)\nv_or3_b32 v{T+16}, v{regs[0]}, v{regs[1]}, v{TMP+8}\nv_bitop3_b32 v{T+17}, v{regs[0]}, v{regs[1]}, v{TMP+8} bitop3:0x80")
            for i in range(2, len(regs), 2):
                k(f"v_or3_b32 v{T+16}, v{T+16}, v{regs[i]}, v{regs[i+1]}\nv_bitop3_b32 v{T+17}, v{T+17}, v{regs[i]}, v{regs[i+1]} bitop3:0x80")
            k(f"v_xor_b32 v{T+16}, v{T+16}, v{T+17}\nv_lshlrev_b32 v{T+16}, 16, v{T+16}\nv_cmp_ne_u32 vcc, 0, v{T+16}")
        else:
            k(f"s_waitcnt vmcnt(0)\nv_max_u32 v{T+16}, v{regs[0]}, v{regs[1]}")
            for i in range(2, len(regs), 2): k(f"v_max3_u32 v{T+16}, v{T+16}, v{regs[i]}, v{regs[i+1]}")
            k(f"v_cmp_eq_u32 vcc, -1, v{T+16}")
        k(f"s_sub_u32 s{S_SP}, s{S_SP}, 1\ns_cbranch_scc1 {name}_out\ns_cbranch_vccnz {name}")
        k.label(name + "_out")

    row_addr()
    k.wait(vm=sid["q"])
    unpack(X, QP)
    k("s_barrier")
    stats(0)
    def y_loads():
        assert WS_Y == 0
        for i in range(4):
            for h in range(2):
                r = YP + 4 * i + 2 * h
                k(f"buffer_load_dwordx2 v[{r}:{r+1}], v{AY}, {SW}, s{S_ROWY} offen offset:{512*i + 64*h} sc1")
    sentinel_loop("L_ypoll", y_loads, range(YP, YP + 16))
    stamp(4)
    def raw_stage(sidx):
        k(f"s_add_u32 m0, s{S_M0}, {sidx * 16384}\ns_add_u32 s{S_DMA}, s{S_W1}, {sidx * 16384}")
        for i in range(4): k(f"buffer_load_dwordx4 v{VD}, {SW}, s{S_DMA} offen offset:{1024*i} lds")
    def weave(body_fn, stages, span):
        n0 = len(k.lines); body_fn()
        body = k.lines[n0:]; del k.lines[n0:]
        for sidx in stages: raw_stage(sidx)
        dm = k.lines[n0:]; del k.lines[n0:]
        step = max(1, min(len(body), span) // len(dm))
        for n_, l in enumerate(body):
            if n_ % step == 0 and dm: k.lines.append(dm.pop(0))
            k.lines.append(l)
        k.lines += dm
    k("s_cmp_eq_u32 s63, 0\ns_cbranch_scc1 L_now1"); k(flag_store(62)); k.label("L_now1")
    k("s_barrier")
    def y_keep():
        unpack(Yf, YP)
        for i in range(4): k(f"ds_write_b128 v{AL}, v[{YP+4*i}:{YP+4*i+3}] offset:{4096*i}")
    weave(y_keep, range(npre), 36)

    k.label("L_layer")
    k(f"s_add_u32 s84, s{S_HL}, s86\ns_sub_u32 s85, s{S_HL}, s86")
    SWZ_END = (KM2 // (2 * swz)) * 2 * swz if swz else 0
    k.nvm = k.vm_done = 0; k.nlg = k.lg_done = 0
    ring = [("W1", s) for s in range(28)]
    S1_POS = 0
    SH_POS = 17
    ring[SH_POS:SH_POS] = [("SH", 0), ("SH", 1)]
    assert SH_POS % NS + 1 < 4 and S1_POS % NS + 1 < 4
    ring += [("W2", s) for s in range(28)]
    NREAL = len(ring)
    st = {"s": None}
    def dma(idx, i):
        kind, s = ring[idx]; pre_ = []
        if kind == "S1":
            st["s"] = None
            return [f"s_add_u32 m0, s{S_M0}, {(idx % NS) * 16384 + 1024 * i}", f"s_add_u32 s{S_DMA}, s63, {4 * 7168 * (4 * s + i)}",
                    f"buffer_load_dwordx4 v{TMP+4}, s[92:95], s{S_DMA} offen lds"]
        if kind == "SH":
            st["s"] = None
            return [f"s_add_u32 m0, s{S_M0}, {(idx % NS) * 16384 + 1024 * i}", f"s_add_u32 s{S_DMA}, s{S_SHB if s else S_SHA}, {8192 * i}",
                    f"buffer_load_dwordx4 v{VS0}, {SD}, s{S_DMA} offen {dnt} lds"]
        if st["s"] != idx:
            pre_ = [f"s_add_u32 m0, s{S_M0}, {(idx % NS) * 16384}", f"s_add_u32 s{S_DMA}, s{(92 + (2 * s // swz) % 2 if 2 * s < SWZ_END else S_W2) if kind == 'W2' else S_W1}, {s * 16384}"]
            st["s"] = idx
        return pre_ + [f"buffer_load_dwordx4 v{VD}, {'s[88:91]' if kind == 'NX' else SW}, s{S_DMA} offen offset:{1024*i} lds"]
    w_id = {}; t_id = {}
    def pre_stage(idx):
        for i in range(4): w_id[idx] = k("\n".join(dma(idx, i)))
    for idx in range(4): w_id[idx] = 0
    for e in range(0, 32, 2):
        k(f"v_pk_fma_f32 v[{T}:{T+1}], v[{X+e}:{X+e+1}], v[{T+4}:{T+5}], v[{T+6}:{T+7}]")
        k(f"v_pk_fma_f32 v[{X+e}:{X+e+1}], v[{T}:{T+1}], v[{Yf+e}:{Yf+e+1}], v[{X+e}:{X+e+1}]")
        k(f"v_cvt_pk_bf16_f32 v{XP+e//2}, v{X+e}, v{X+e+1}")
    for i in range(4): k(f"ds_write_b128 v{AL}, v[{XP+4*i}:{XP+4*i+3}] offset:{16384 + 4096*i}")
    unpack(X, XP)
    stats(256)
    k(f"s_lshl_b32 s{S_B}, s{S_LAY}, 22\ns_add_u32 s{S_B}, s{S_B}, s{S_ROWF}\ns_add_u32 s{S_B}, s{S_B}, {WS_XN}")
    for e in range(0, 32, 2):
        k(f"v_pk_fma_f32 v[{X+e}:{X+e+1}], v[{X+e}:{X+e+1}], v[{T+4}:{T+5}], v[{T+6}:{T+7}]")
        k(f"v_cvt_pk_bf16_f32 v{P0+e//2}, v{X+e}, v{X+e+1}")
        if e % 8 == 6:
            i = e // 8
            k(f"buffer_store_dwordx4 v[{P0+4*i}:{P0+4*i+3}], v{VROW}, {SW}, s{S_B} offen offset:{1024*i} sc1")
    stamp(5)
    xn_st = k.nvm
    ET = 160
    for t in range(4): k(f"s_add_u32 s{S_T+t}, s{S_XN}, {t*32768}")
    def e_loads():
        for u in range(E):
            for t in range(4):
                r = ET + 16 * u + 4 * t
                k(f"buffer_load_dwordx4 v[{r}:{r+3}], v{VR}, {SW}, s{S_T+t} offen offset:{1024*u} sc1")
    def e_between():
        k.wait(vm=xn_st); k("s_barrier")
        k(flag_store(S_FXN_P))
    if e_late:
        e_between(); sentinel_loop("L_epoll", e_loads, range(ET, ET + 16 * E))
    else: sentinel_loop("L_epoll", e_loads, range(ET, ET + 16 * E), e_between)
    k(f"s_cmp_lg_u32 s{S_LAY}, 0\ns_cbranch_scc1 L_have")
    n0 = k.nvm
    for sidx in range(npre, 7): raw_stage(sidx)
    k.nvm = n0
    k.label("L_have")
    for sidx in range(npre, 7): w_id[sidx] = n0 + 1
    st["s"] = None
    for r in range(16 * E): k(f"v_accvgpr_write_b32 a{4*RW + r}, v{ET + r}")
    stamp(6)

    groups = [(1, u, g) for u in range(KM) for g in range(14)]
    tail_start = len(groups)
    for b in range(7):
        for u in range(KM, 32): groups += [(1, u, b), (1, u, 7 + b)]
    G2S = len(groups)
    groups += [(2, u, g) for u in range(KM2) for g in range(8)]
    T2S = len(groups)
    for p in range(4):
        for u in range(KM2, 56): groups += [(2, u, 2 * p), (2, u, 2 * p + 1)]
    NGR = len(groups); GPB = 2 * KT
    NTk = {1: 4, 2: 2}
    tm = [0]
    for kd, _, _ in groups: tm.append(tm[-1] + NTk[kd])
    real = [i for i, r_ in enumerate(ring) if r_[0] in ("W1", "W2")]
    stage_of = lambda i: real[i // 16]
    bars = {16 * n - la_bar: real[n] for n in range(npre, 56)}
    bar_list = sorted(bars)
    first_use = {}; last_use = {}
    for i, (kd, u, g) in enumerate(groups):
        first_use.setdefault((kd, u), i); last_use[(kd, u)] = i
    def slot(kd, u, t):
        return (u % KT) * 4 + t if kd == 1 else (4 * (KM % KT) + 2 * u + t) % (4 * KT)
    def AT(kd, u, t):
        if kd == 2 and u < park: return f"v[{112 + 8*u + 4*t}:{115 + 8*u + 4*t}]"
        a = 4 * RW + 4 * slot(kd, u - (park if kd == 2 else 0), t)
        return f"a[{a}:{a+3}]"
    AW = lambda i: 4 * (i % RW)
    acc = lambda kd, g, t: (g * NTk[kd] + t) * 4
    tok_base = {t: (S_XN, 0) for t in range(4)}
    for u in range(E):
        for t in range(4): t_id[((1, u), t)] = 0
    def tok(kd, u, t):
        off = u * 1024; pre_ = []
        src = S_XN if kd == 1 else 84 + (u // swz) % 2 if u < SWZ_END else S_HL
        if tok_base.get(t, (None, 0))[0] != src or not 0 <= off - tok_base[t][1] <= 4095:
            tok_base[t] = (src, off & ~4095)
            pre_ = [f"s_add_u32 s{S_T+t}, s{src}, {t * (32768 if kd == 1 else TBH) + tok_base[t][1]}"]
        return pre_ + [f"buffer_load_dwordx4 {AT(kd, u, t)}, v{VR}, {SW}, s{S_T+t} offen offset:{off - tok_base[t][1]}"]
    PH_B = [1, 3, 4, 5, 6]; PH_U = [0, 16, 32, 40, 48]
    P_SHR = tail_start + 6
    P_SH_END = tail_start + GPB - 2
    P_PX = 0
    P_PF = tail_start + pf_at
    P_W1S = 0
    P_PW1 = 120
    P_PW2 = tail_start + 3 * GPB
    P_PH = [ph0] + [first_use[(2, u_)] - pb for u_, pb in zip(PH_U[1:], ph_back)]
    P_PPF = P_PH[4] + 2 * chk + 4
    allp = sorted(P_PH + [P_PPF]); assert all(b_ - a_ > 2 * chk for a_, b_ in zip(allp, allp[1:])), allp
    CHK = {1: chk, 2: 2 * chk}
    CT_LAB = [150, 290, 370, 445, 590, 800]
    CT_AT = [20, 190, 300, 380, 470, 640]
    assert P_PPF > 660
    FREE_AT = list(free_at)
    def done_bar(idx):
        if ring[idx][0] == "SH": return P_SH_END
        if ring[idx][0] == "S1": return P_W1S + 20
        last = 16 * real.index(idx) + 15
        return next(p for p in bar_list if p > last)
    def earliest(it):
        if it[1] == "W":
            idx = it[2]
            e = done_bar(idx - NS) if idx >= NS else -1
            if ring[idx][0] == "W2": e = max(e, P_PW2 + CHK[1] + 1)
            if ring[idx][0] == "W1" and 16 * ring[idx][1] + 15 >= tail_start: e = max(e, P_PW1 + CHK[1] + 1)
            return e
        kd, u = it[2]
        if kd == 1: return P_PX + CHK[1] + 1 if u < KT else last_use[(1, u - KT)] + 1
        v_ = u - park
        if v_ < 0: e = FREE_AT[u // 2]
        else: e = last_use[(1, KM + v_ // 2)] + 1 if v_ < 2 * KT else last_use[(2, u - 2 * KT)] + 1
        return max(e, P_PH[max(j for j in range(5) if PH_U[j] <= u)] + CHK[2 if u >= 16 else 1] + 1)
    items = []
    for idx in range(7, NREAL):
        d = tm[P_SHR] - 100 if ring[idx][0] == "SH" else tm[P_W1S] - 40 if ring[idx][0] == "S1" else tm[16 * real.index(idx) - la_bar]
        items += [(d, "W", idx, i) for i in range(4)]
    for (kd, u), fu in first_use.items():
        if kd == 1 and u < E: continue
        items += [(tm[fu], "T", (kd, u), t) for t in range(NTk[kd])]
    items.sort(key=lambda x: x[0])
    nxt_t = 1e9; sched = []
    for it in reversed(items):
        late = it[0] >= tm[G2S]
        nxt_t = min(it[0] - (la2 if late else la1), nxt_t - 1.0 / (rate2 if nxt_t > tm[G2S] else rate1))
        e = earliest(it)
        sched.append((max(nxt_t, tm[e] if e >= 0 else -1e9),) + it[1:])
    sched.reverse()
    last_tok = max(x[0] for x in sched if x[1] == "T" and x[2][0] == 1)
    prev = last_tok
    for n_, it in enumerate(sched):
        if it[1] == "W" and it[0] > last_tok and prev < tm[G2S] - 8:
            prev = max(prev + 8, tm[earliest(it)]); sched[n_] = (min(it[0], prev),) + it[1:]
    wq = [x for x in sched if x[1] == "W"]
    wq.sort(key=lambda x: (x[2], x[3]))
    run = 1e9
    for n_ in range(len(wq) - 1, -1, -1):
        e = earliest(wq[n_]); run = min(run, wq[n_][0])
        wq[n_] = (max(run, tm[e] if e >= 0 else -1e9),) + wq[n_][1:]
    prev = max(x[0] for x in sched)
    for idx in range(NREAL, len(ring)):
        for i in range(4 if ring[idx][0] == "NX" else 0):
            prev = max(prev + 6, tm[done_bar(idx - NS)]); wq.append((prev, "W", idx, i))
    items = sorted(wq + [x for x in sched if x[1] == "T"], key=lambda x: x[0])
    prev = -1e9; slackv = []
    for n_, it in enumerate(items):
        if it[0] >= 0:
            prev = max(it[0], prev + 1.0 / (rmax if prev < tm[G2S] else rmax2)); items[n_] = (prev,) + it[1:]
        if it[1] == "T": slackv.append((tm[first_use[it[2]]] - items[n_][0], it[2]))
    MINSL = sorted(slackv)[:3]
    def lines(it):
        return dma(it[2], it[3]) if it[1] == "W" else tok(it[2][0], it[2][1], it[3])
    def record(it, i):
        if it[1] == "W": w_id[it[2]] = i
        else: t_id[(it[2], it[3])] = i
    while items and items[0][0] < 0:
        it = items.pop(0); record(it, k("\n".join(lines(it))))
    def rd(i):
        off = (stage_of(i) % NS) * 16384 + (i % 16) * 1024
        return f"ds_read_b128 a[{AW(i)}:{AW(i)+3}], v{VR + off // 65536} offset:{off % 65536}"
    def gelu4(G, U, P, tb):
        Tm = [tb + e for e in range(4)]
        o = [f"v_mul_f32 v{Tm[e]}, v{G+e}, v{G+e}" for e in range(4)]
        o += [f"v_fmaak_f32 v{Tm[e]}, v{VC2}, v{Tm[e]}, {f32bits(c1):#x}" for e in range(4)]
        o += [f"v_mul_f32 v{Tm[e]}, v{Tm[e]}, v{G+e}" for e in range(4)]
        for e in range(4): o += [f"v_exp_f32 v{Tm[e]}, v{Tm[e]}", f"v_mul_f32 v{U+e}, v{U+e}, v{G+e}"]
        o += [f"v_add_f32 v{Tm[e]}, 1.0, v{Tm[e]}" for e in range(4)]
        o += [f"v_rcp_f32 v{Tm[e]}, v{Tm[e]}" for e in range(4)]
        o += [f"v_mul_f32 v{U+e}, v{U+e}, v{Tm[e]}" for e in range(4)]
        o += [f"v_cvt_pk_bf16_f32 v{P}, v{U}, v{U+1}", f"v_cvt_pk_bf16_f32 v{P+1}, v{U+2}, v{U+3}"]
        return o
    def epilogue(b, t):
        a = acc(1, b, 2 * t); tb = TMP + 4 * t; sr = (S_C, S_E)[t]
        o = gelu4(a, acc(1, 7 + b, 2 * t), a, tb) + gelu4(acc(1, b, 2 * t + 1), acc(1, 7 + b, 2 * t + 1), a + 2, tb)
        o += [f"s_add_u32 s{sr}, s{S_HS}, {8192 * b + 2 * TBH * t}",
              f"v_permlane32_swap_b32 v{a}, v{a+2}", f"v_permlane32_swap_b32 v{a+1}, v{a+3}",
              f"buffer_store_dwordx4 v[{a}:{a+3}], v{VST}, {SW}, s{sr} offen sc1"]
        return [(x, b) for x in o]
    def p_store(p):
        o = []
        for t in range(2 if p >= 0 else 0):
            a = acc(2, 2 * p, t); b = acc(2, 2 * p + 1, t)
            o += [f"v_cvt_pk_bf16_f32 v{a}, v{a}, v{a+1}", f"v_cvt_pk_bf16_f32 v{a+1}, v{a+2}, v{a+3}",
                  f"v_cvt_pk_bf16_f32 v{a+2}, v{b}, v{b+1}", f"v_cvt_pk_bf16_f32 v{a+3}, v{b+2}, v{b+3}",
                  f"s_add_u32 s{S_C}, s{S_PS}, {8192 * t + p * 0x100000}",
                  f"buffer_store_dwordx4 v[{a}:{a+3}], v{VR}, {SW}, s{S_C} offen sc1"]
        return o
    cost = lambda s: 2 if s.startswith(("v_exp", "v_rcp", "v_permlane", "buffer_")) else 1

    published = npre - 1; r_id = {}; rp = 0; FL_AT = []; PE_AT = []; ready_b = -1; ready_at = 0
    while rp < RW - 2:
        r_id[rp] = k(rd(rp)); rp += 1
    seen = set(); epi = [[], []]; q = []; hold = 0; hst = {}; fl_due = {}; fl_next = 0; turn = 0
    last_st = {"h": None, "sh": None, "pf": None}; pend = {}; named = {}
    def emit_q():
        t_, c = q.pop(0)
        if c and c[0] == "L": k.wait(lg=named[c[1]])
        if c and c[0] == "Wv": k.wait(vm=w_id[c[1]])
        id_ = k(t_)
        if not c: return
        if c[0] == "V": record(c[1], id_)
        elif c[0] == "R": r_id[c[1]] = id_
        elif c[0] == "N": named[c[1]] = id_
        elif c[0] == "L": last_st["sh"] = id_
        elif c[0] in ("PF", "PG"): last_st["pf"] = id_
    for i, (kd, u, g) in enumerate(groups):
        NT = NTk[kd]
        if i == tail_start: stamp(7)
        if i == G2S: stamp(8); G2L = len(k.lines)
        if i == T2S and diag == 5: stamp(18)
        if i in bars:
            pub = bars[i]
            assert not any(it[1] == "W" and it[2] <= pub and ring[it[2]][0] not in ("SH", "S1") for it in items), (i, pub)
            while any(c and c[0] == "V" and c[1][1] == "W" and c[1][2] <= pub for _, c in q): emit_q()
            k.wait(vm=w_id[pub]); k("s_barrier"); published = max(published, pub)
        n = 0
        while rp < NGR and rp <= i + RW - 2 and stage_of(rp) <= published and n < 2:
            q.append((rd(rp), ("R", rp))); rp += 1; n += 1
        if items and items[0][0] <= tm[i]:
            it = items.pop(0); ls = lines(it)
            if it[1] == "T" and it[2][0] == 2 and it[2][1] < park:
                assert all((it[2][1] // 2, c_) in hst for c_ in (0, 1)), (i, it)
            q += [(x, None) for x in ls[:-1]] + [(ls[-1], ("V", it))]
        if P_SHR <= i < P_SHR + 16 and (i - P_SHR) % 4 == 0:
            assert not any(it[1] == "W" and ring[it[2]][0] == "SH" for it in items)
            p = (i - P_SHR) // 4
            base = (SH_POS % NS) * 16384
            for h in range(2):
                f = TMP + 8 + 4 * h; off = base + p * 64 + h * 8
                q.append((f"ds_read_b64_tr_b16 v[{f}:{f+1}], v{VS1} offset:{off}", ("Wv", SH_POS + 1)))
                q.append((f"ds_read_b64_tr_b16 v[{f+2}:{f+3}], v{VS1} offset:{off + 2048}", ("N", (p, h))))
        if P_SHR + 2 <= i < P_SHR + 18 and (i - P_SHR) % 4 == 2:
            p = (i - P_SHR) // 4
            q.append((f"s_add_u32 s{S_D}, s{S_D}, s60" if p else f"s_mov_b32 s{S_D}, s{S_SHD}", None))
            for h in range(2):
                f = TMP + 8 + 4 * h
                q.append((f"buffer_store_dwordx4 v[{f}:{f+3}], v{VR}, {SX}, s{S_D} offen offset:{1024*h} sc1", ("L", (p, h))))
        if ct and i in CT_AT:
            j = CT_AT.index(i)
            q += [(f"v_lshlrev_b32 v{TMP+13}, 3, v{VR}", None), (f"s_mov_b32 s{S_SP}, L_ct{j}-L_body", None),
                  (f"buffer_load_dword v{TMP+14}, v{TMP+13}, s[80:83], s{S_SP} offen", None)]
        if i in CT_LAB: k.label(f"L_ct{CT_LAB.index(i)}")
        if i == P_SH_END + 12:
            k.wait(vm=last_st["sh"]); k(f"s_mov_b64 exec, 1\nbuffer_store_dword v{VTAG}, off, {SX}, s{S_FW2_P} sc1\ns_mov_b64 exec, -1")
        PFR, PFS = (TMP, S_C) if pf_at < GPB else (TMP + 8, S_D)
        if i == P_PF: q += [(f"v_mov_b32 v{PFR+e}, -1", None) for e in range(4)]
        arm = list(range(0 if sent else 4, 8))
        if P_PF <= i < P_PF + len(arm) * pf_step and (i - P_PF) % pf_step == 0:
            t = arm[(i - P_PF) // pf_step]
            q += [(f"s_add_u32 s{PFS}, s{S_PS}, {8192 * (t & 1) + (t >> 1) * 0x100000}", None),
                  (f"buffer_store_dwordx4 v[{PFR}:{PFR+3}], v{VR}, {SW}, s{PFS} offen sc1", ("PF" if PFR == TMP else "PG",))]
        TW_AT = P_PW2 + chk + 4
        if TW_AT <= i < TW_AT + tw * tw_step and (i - TW_AT) % tw_step == 0:
            j = (i - TW_AT) // tw_step
            q += [(f"v_lshlrev_b32 v{TMP+13}, 3, v{VR}", None), (f"s_add_u32 s{S_SP}, s91, {tw0 * 1024 + j * 131072}", None),
                  (f"buffer_load_dword v{TMP+14}, v{TMP+13}, {SW}, s{S_SP} offen", None)]
        if sent and i == P_PF + 8 * pf_step + 30: named["pe"] = (0, last_st["pf"])
        if sent and i == P_PPF - 8: q += [(f"v_and_b32 v{TMP+13}, 60, v{VF}", None), (f"v_lshlrev_b32 v{TMP+13}, 5, v{TMP+13}", None)]
        if not sent and i == NGR - pe_back - 8:
            q += [(f"v_and_b32 v{TMP+13}, 60, v{VF}", None), (f"v_lshlrev_b32 v{TMP+13}, 5, v{TMP+13}", None)]
        if not sent and i == NGR - pe_back: q.append((poll_load(S_FPF_C), ("N", "pe_ld")))
        if "pe" in named and tm[i] >= named["pe"][0]:
            k.wait(vm=named.pop("pe")[1])
            k(flag_store(S_FPF_P)); k(f"s_add_u32 s{S_FPF_P}, s{S_FPF_P}, 0x20000")
            PE_AT.append(i)
        if fl_next in fl_due and tm[i] >= fl_due[fl_next][0]:
            if diag == 4: stamp(12 + 2 * fl_next)
            k.wait(vm=fl_due[fl_next][1])
            if diag == 4: stamp(13 + 2 * fl_next)
            k(flag_store(S_FH_P)); k(f"s_add_u32 s{S_FH_P}, s{S_FH_P}, 0x4000")
            FL_AT.append(i); fl_next += 1
        polls = [(P_PW1, S_FW1_C, "w1", 1), (P_PW2, S_FW2_C, 56, 1)] + [(P_PH[j], S_FH_C, 16, j + 1) for j in range(4)] + [(P_PPF if sent else -100, S_FPF_C, 16, 1), (P_PX, S_FXN_C, 8, 1), (P_PH[4], S_FH_C, 16, 5)]
        for z, (pos, soff, n_, lvl) in enumerate(polls):
            if i == pos: pend[pos] = k(poll_load(soff))
            if i == pos + CHK[kd] and pos in pend:
                if z >= 7: z += 1
                if diag == 3: stamp(12 + 2 * z)
                poll_check(pend.pop(pos), soff, n_, lvl)
                if soff == S_FH_C: k(f"s_add_u32 s{S_FH_C}, s{S_FH_C}, 0x4000")
                if diag == 3: stamp(13 + 2 * z)
        if tail_start + GPB <= i <= G2S and (i - tail_start) % GPB == 0:
            b = (i - tail_start) // GPB - 1
            assert not any(c_ and c_[0] == "PF" for _, c_ in q)
            if not epi[0] and not epi[1]: hold = 4
            for t in range(2): epi[t] += epilogue(b, t)
            ready_b = b; ready_at = tm[i] + 4
        if i > T2S and (i - T2S) % (2 * KT2) == 4:
            assert fl_next == 5 and not epi[0]
            pp_ = (i - T2S) // (2 * KT2) - 1
            epi[0] += [(x, 100 + pp_) for x in p_store(pp_)]
        if i == G2S: assert all(x[1] >= 4 for c_ in epi for x in c_)
        def waits(i, kd, u, t):
            if i not in r_id or ((kd, u), t) not in t_id: return None
            lgw = r_id[i]
            if lgw > k.lg_done:
                for j in range(1, wgran):
                    if i + j in r_id and k.nlg - r_id[i + j] >= 2: lgw = r_id[i + j]
            vmw = t_id[((kd, u), t)]
            if vmw > k.vm_done and i > 28 and ((kd, u), NTk[kd] - 1) in t_id: vmw = t_id[((kd, u), NTk[kd] - 1)]
            return vmw, lgw
        for t in range(NT):
            while waits(i, kd, u, t) is None: emit_q()
            vmw, lgw = waits(i, kd, u, t)
            k.wait(vm=vmw, lg=lgw)
            a = acc(kd, g, t)
            c = f"v[{a}:{a+3}]" if (kd, g, t) in seen else "0"
            seen.add((kd, g, t))
            at = AT(kd, u, t)
            k(f"v_mfma_f32_16x16x32_bf16 v[{a}:{a+3}], a[{AW(i)}:{AW(i)+3}], {at}, {c}")
            budget = 2 if kd == 1 else b2
            if len(epi[0]) + len(epi[1]) > thr and (tm[i] + t) % 2 == 0: budget += 1
            if t + 1 < NT: nw = waits(i, kd, u, t + 1)
            elif i + 1 < NGR:
                nw = waits(i + 1, groups[i + 1][0], groups[i + 1][1], 0)
                if i + 1 in bars: budget -= 1
            else: nw = (0, 0)
            if nw is None or nw[0] > k.vm_done or nw[1] > k.lg_done: budget -= 1
            used = 0
            while q and used < 2:
                mem = q[0][0].startswith(("ds_", "buffer_"))
                c_ = cost(q[0][0])
                if (mem and used) or (c_ > budget and not (len(q) > 5 and used == 0)): break
                if used and len(q) <= NT - t: break
                emit_q(); budget -= c_; used += 1
            while budget > 0:
                ok = [c_ for c_ in (turn, 1 - turn) if epi[c_] and cost(epi[c_][0][0]) <= budget
                      and not (epi[c_][0][1] == ready_b and tm[i] + t < ready_at)]
                if not ok: break
                big = [c_ for c_ in ok if cost(epi[c_][0][0]) == 2]
                c_ = big[0] if big else ok[0]
                if abs(len(epi[c_]) - len(epi[1 - c_])) > 24 and len(epi[c_]) < len(epi[1 - c_]):
                    if 1 - c_ in ok: c_ = 1 - c_
                    else: break
                x, b = epi[c_].pop(0); budget -= cost(x); turn = 1 - c_
                id_ = k(x)
                if b == 101 and not epi[0] and not sent: named["pe"] = (tm[i] + t + pe_lag, id_)
                if x.startswith("buffer_store") and b < 7:
                    hst[(b, c_)] = id_
                    if b in PH_B and (b, 0) in hst and (b, 1) in hst:
                        fl_due[PH_B.index(b)] = (tm[i] + t + fl_lag, id_)
    while epi[0] and epi[0][0][1] == 102: k(epi[0].pop(0)[0])
    assert len(PE_AT) == 1
    assert not items and not epi[0] and not epi[1] and not q and not pend and fl_next == 5
    assert all(tm[f] + 60 < tm[p] for f, p in zip(FL_AT, P_PH)), (FL_AT, P_PH)
    k.info = dict(pe=(PE_AT, NGR), minsl=[(int(a_), b_) for a_, b_ in MINSL], flags=FL_AT, polls=P_PH, slack=[tm[p] - tm[f] for f, p in zip(FL_AT, P_PH)])
    if abl:
        keep = []
        for l in k.lines[G2L:]:
            x = l.strip()
            if "T" in abl and x.startswith("buffer_load_dwordx4 a["): continue
            if "W" in abl and x.endswith(" lds"): continue
            if "D" in abl and x.startswith("ds_read_b128"): continue
            if "B" in abl and x == "s_barrier": continue
            if "V" in abl and x.startswith(("v_mul", "v_fmaak", "v_exp", "v_rcp", "v_add_f32")): continue
            keep.append(l)
        k.lines[G2L:] = keep
    stamp(9)
    PP = 160
    for x in p_store(3): k(x)
    if not sent:
        pe_ld = named["pe_ld"]
        k(flag_store(S_FPF_P)); k(f"s_add_u32 s{S_FPF_P}, s{S_FPF_P}, 0x20000")
    VRL = TMP + 15
    k(f"s_lshl_b32 s{S_B}, s{S_LAY}, 23\ns_add_u32 s{S_B}, s{S_B}, s{S_ROWL}")
    k(f"v_lshrrev_b32 v{TMP+14}, 12, v{VROW}\nv_and_b32 v{VRL}, 0x3ff, v{VROW}\nv_lshl_add_u32 v{VRL}, v{TMP+14}, 10, v{VRL}")
    def p_loads(which):
        def f():
            for i in which:
                for j in range(2):
                    r = PP + 8 * i + 4 * j
                    k(f"s_add_u32 s{S_C}, s{S_B}, {WS_P + j*MB4 + i*0x100000}")
                    x = k(f"buffer_load_dwordx4 v[{r}:{r+3}], v{VRL}, {SW}, s{S_C} offen sc1")
            return x
        return f
    def add_p(which):
        for i in which:
            for e in range(8 * i, 8 * i + 8, 2):
                for j in range(2):
                    r = PP + 8 * i + 4 * j + (e % 8) // 2
                    unpk(k, T + 2 * j, r, 0); unpk(k, T + 2 * j + 1, r, 1)
                k(f"v_pk_add_f32 v[{T}:{T+1}], v[{T}:{T+1}], v[{T+2}:{T+3}]")
                k(f"v_pk_add_f32 v[{X+e}:{X+e+1}], v[{X+e}:{X+e+1}], v[{T}:{T+1}]")
                k(f"v_cvt_pk_bf16_f32 v{XP+e//2}, v{X+e}, v{X+e+1}")
                unpk(k, X + e, XP + e // 2, 0); unpk(k, X + e + 1, XP + e // 2, 1)
    if not sent:
        if diag == 5: stamp(12)
        poll_check(pe_ld, S_FPF_C, 16)
        if diag == 5: stamp(13)
        e_ld = p_loads((0, 1))()
        k(f"s_add_u32 s{S_FPF_C}, s{S_FPF_C}, 0x20000")
        row_addr()
        for i in range(4): k(f"ds_read_b128 v[{XP+4*i}:{XP+4*i+3}], v{AL} offset:{16384 + 4096*i}")
        for i in range(4): k(f"ds_read_b128 v[{YP+4*i}:{YP+4*i+3}], v{AL} offset:{4096*i}")
        pl_ld = k(poll_load(S_FPF_C))
        k("s_waitcnt lgkmcnt(0)")
        unpack(X, XP)
        if diag == 5: stamp(14)
        poll_check(pl_ld, S_FPF_C, 16)
        if diag == 5: stamp(15)
        k(f"s_add_u32 s{S_FPF_C}, s{S_FPF_C}, 0x20000")
        def mid():
            k("s_barrier")
            add_p((0, 1)); unpack(Yf, YP)
            if diag == 5: stamp(16)
        sentinel_loop("L_ppoll", p_loads((2, 3)), range(PP + 16, PP + 32), mid)
    else:
        if diag == 5: stamp(12); stamp(13)
        k(f"s_add_u32 s{S_FPF_C}, s{S_FPF_C}, 0x20000")
        def first():
            row_addr()
            for i in range(4): k(f"ds_read_b128 v[{XP+4*i}:{XP+4*i+3}], v{AL} offset:{16384 + 4096*i}")
            for i in range(4): k(f"ds_read_b128 v[{YP+4*i}:{YP+4*i+3}], v{AL} offset:{4096*i}")
            k("s_waitcnt lgkmcnt(0)\ns_barrier")
            unpack(X, XP); unpack(Yf, YP)
            if diag == 5: stamp(14)
        if ord2:
            sentinel_loop("L_ppoll2", p_loads((0, 1, 2)), range(PP, PP + 24), first)
            if diag == 5: stamp(15)
            sentinel_loop("L_ppoll", p_loads((3,)), range(PP + 24, PP + 32), lambda: add_p((0, 1, 2)))
        else:
            p_loads((0, 1, 2))()
            first()
            sentinel_loop("L_ppoll", p_loads((3,)), range(PP + 24, PP + 32))
            if diag == 5: stamp(15)
            sentinel_loop("L_ppoll2", p_loads((0, 1, 2)), range(PP, PP + 24), skip_first=True)
        if diag == 5: stamp(16)
    stamp(10)
    k(f"s_cmp_lg_u32 s{S_LAY}, 0\ns_cbranch_scc1 L_final")
    def tail_math():
        add_p((2, 3) if not sent else (3,) if ord2 else (0, 1, 2, 3)); stats(0)
    weave(tail_math, range(npre2), 200)
    stamp(11)
    if diag: k(f"v_mov_b32 v{VSTAMP-1}, v{VSTAMP}")
    k(f"""
    s_mov_b32 s{S_LAY}, 1
    s_mov_b32 s26, 0
    s_mov_b32 s30, 0
    s_add_u32 s{S_XN}, s{S_XN}, {MB4}
    s_add_u32 s{S_HL}, s{S_HL}, {H_STRIDE}
    s_add_u32 s{S_HS}, s{S_HS}, {H_STRIDE}
    s_add_u32 s{S_PS}, s{S_PS}, {2*MB4}
    s_add_u32 s{S_FXN_P}, s{S_FXN_P}, 0x4000
    s_add_u32 s{S_FXN_C}, s{S_FXN_C}, 0x4000
    s_branch L_layer
    """)
    k.label("L_final")
    add_p((2, 3) if not sent else (3,) if ord2 else (0, 1, 2, 3))
    k(f"s_or_b32 s16, s2, s17\ns_cbranch_scc1 L_noepoch\ns_add_u32 s87, s87, 1\nv_mov_b32 v{VP}, s87\ns_mov_b32 s16, {WS_FLAG + F_EPOCH}")
    k(f"s_mov_b64 exec, 1\nbuffer_store_dword v{VP}, off, {SW}, s16 sc1\ns_mov_b64 exec, -1")
    k.label("L_noepoch")
    srd(k, 32, 6, MB4)
    for i in range(4): k(f"buffer_store_dwordx4 v[{XP+4*i}:{XP+4*i+3}], v{AO}, s[32:35], s{S_ROWY} offen offset:{64*i} {outm}")
    if diag:
        k("s_waitcnt vmcnt(0)"); stamp(11)
        if diag == 7:
            k(f"s_cmp_lg_u32 s2, {dbg_wg}\ns_cbranch_scc1 L_nodbg\ns_cmp_lg_u32 s17, 0\ns_cbranch_scc1 L_nodbg")
            k(f"s_load_dwordx2 s[32:33], s[0:1], {ARG['dbg']}\nv_readlane_b32 s12, v{VSTAMP}, 12\nv_mov_b32 v8, 0")
            sel = [(1, x) for x in (26, 27, 1, 2, 3, 4, 5, 6, 7, 8, 9, 10)] + [(0, x) for x in (6, 8, 9, 11)]
            for n_, (w_, x) in enumerate(sel):
                k(f"v_readlane_b32 s13, v{VSTAMP - w_}, {x}\ns_nop 3\ns_sub_u32 s13, s13, s12\nv_writelane_b32 v8, s13, {n_}")
            k(f"s_waitcnt lgkmcnt(0)\ns_mov_b32 s34, 64\ns_mov_b32 s35, 0x20000\nbuffer_store_dword v8, v{VF}, s[32:35], 0 offen")
            k.label("L_nodbg")
        k(f"s_lshl_b32 s12, s2, 11\ns_lshl_b32 s13, s17, 9\ns_add_u32 s12, s12, s13\ns_add_u32 s12, s12, 0x8100000")
        k(f"buffer_store_dword v{VSTAMP-1}, v{VF}, {SW}, s12 offen\nbuffer_store_dword v{VSTAMP}, v{VF}, {SW}, s12 offen offset:256")
    k("s_endpgm")
    for lab, pre_, body in slow:
        k.label(lab); k("\n".join(pre_))
        k.label(lab + "_l"); k("\n".join(body)); k(f"s_cbranch_scc1 {lab}_l")
        k.label(lab + "_out"); k(f"s_waitcnt vmcnt(0)\ns_branch {lab}_ok")
    k.label("L_end"); k("s_endpgm")
    return (k, 512, 256), (k.name, 256, 256, 163840)

HEADER = open("interleave_layers__ssm_conv_h3__glu_gated_geglu__prompt.s.ref").read().split("; Override launch")[0]

def build(path, stamps=False, as_list=True, hpad=0, wpad=0, **kw):
    global TBH, W1T, W2T
    TBH = 224 * 512 + hpad; W1T = 448 + wpad; W2T = 448 + wpad
    asmlib.STAMPS[0] = stamps
    kk, l = gen_mega(**kw)
    txt = module(HEADER, [l], [kk])
    if not as_list: txt = txt.replace(f"; @launch kernel={l[0]} ", "; @launch ")
    txt = "\n".join(x.strip() if x.startswith("    ") else x for x in txt.split("\n"))
    open(path, "w").write(txt)
    return len(kk[0].lines), kk[0].padded, kk[0].info

if __name__ == "__main__":
    print(build("v9.s")); build("v9s.s", stamps=True); build("v9f.s", stamps=3)
```

```python
import v9
kw = dict(w0_at=3, sh_step=4, r1_step=6, q_step=1, arm_step=2, as_list=False)
v9.build("o_0.s", **kw)
v9.build("o_1.s", wnt="nt", dnt="nt", **kw)
v9.build("o_2.s", wnt="nt", dnt="nt", kvnt="nt", qnt="nt", hnt="nt", **kw)
v9.build("o_3.s", outm="sc1", **kw)
v9.build("o_4.s", outm="nt", **kw)
v9.build("o_5.s", ct=False, **kw)
```

```python
import math, struct, sys
import asmlib
from asmlib import *

MB4 = 0x400000
WS_TOTAL = 0x10000000
WS_Y, WS_KV = 0x0, 0x400000
WS_XN = 0x900000
WS_P = 0x5400000
WS_H = 0x1200000
H_STRIDE = 0x1000000
WS_W1, WS_W2, WS_FLAG = 0x3200000, 0x4200000, 0x5200000
WS_PL = 0x9000000
F_W0 = 0x14000
F_PE = 0x80000
W1T, W2T = 448, 448
F_W1, F_W2, F_PF, F_H, F_XN, F_KV, F_ARM, F_EPOCH = 0x0, 0x1000, 0x2000, 0x20000, 0x8000, 0x100000, 0x11000, 0x12000
H_BYTES = 2048 * 3584 * 2
W_BYTES = 1024 * 3584 * 2
TBH = 224 * 512
ARG = dict(q=0, k=8, v=16, shift=24, ssm=32, D=40, wg=56, wu=64, wd=72, out=80, dbg=88, ws=96)
lg = lambda x: x.bit_length() - 1
f32bits = lambda x: struct.unpack("<I", struct.pack("<f", x))[0]
SPIN = 0x20000

def srd(k, d, base, nbytes, off=0):
    if off: k(f"s_add_u32 s{d}, s{base}, {off:#x}\ns_addc_u32 s{d+1}, s{base+1}, 0")
    else: k(f"s_mov_b32 s{d}, s{base}\ns_mov_b32 s{d+1}, s{base+1}")
    k(f"s_mov_b32 s{d+2}, {nbytes:#x}\ns_mov_b32 s{d+3}, 0x20000")

def unpk(k, dst, src, hi):
    k(f"v_and_b32 v{dst}, 0xffff0000, v{src}" if hi else f"v_lshlrev_b32 v{dst}, 16, v{src}")

def touch_code(k, first, last, vaddr, vdst, sb, v0=0, n=1, step=32768):
    k.nl += 1
    here = f"L_{k.name}_pc{k.nl}"
    k(f"s_getpc_b64 s[{sb}:{sb+1}]")
    k.label(here)
    k(f"""
    s_add_u32 s{sb}, s{sb}, {first}-{here}
    s_addc_u32 s{sb+1}, s{sb+1}, 0
    s_mov_b32 s{sb+2}, {last}-{first}
    s_mov_b32 s{sb+3}, 0x20000
    v_lshlrev_b32 v{vaddr}, 7, v{v0}
    """)
    for i in range(n):
        if i: k(f"v_add_u32 v{vaddr}, {step}, v{vaddr}")
        k(f"buffer_load_dword v{vdst}, v{vaddr}, s[{sb}:{sb+3}], 0 offen")

CS = 4160; XS = 4640; CH_LDS = 4 * CS + 2 * XS; CONV_LDS = 4 * CH_LDS
NS = 8; RW = 8
LDS_Y, LDS_XR, LDS_ST = 131072, 147456, 131072 - 512
S_LAY, S_WAVE, S_WS = 3, 17, 8
SW = "s[20:23]"; SD = "s[24:27]"; SX = "s[28:31]"
(S_M0, S_W1, S_W2, S_XN, S_HL, S_HS, S_PS, S_ROWF, S_ROWY, S_FH_P, S_FH_C, S_FW2_P, S_FW2_C, S_FPF_P, S_FPF_C,
 S_FXN_P, S_FXN_C, S_SHA, S_SHB, S_SHD, S_HS6) = range(36, 57)
S_FW1_C = 19
S_PL, S_ROWL, S_TAG16, S_MSK = 56, 88, 89, 90
S_N = 68
S_DMA, S_SP, S_T = 57, 58, 10
S_A, S_B, S_C, S_D, S_E = 14, 15, 16, 18, 59
VR, VD, VST, VC2, VF, VTID, VS0, VS1, VROW, VP, VF16 = 224, 226, 227, 228, 229, 230, 231, 232, 233, 234, 235
TMP = 236
VTAG = 253
VSTAMP = 255

def gen_mega(KT=14, la_bar=5, la1=200, rate1=0.175, la2=96, rate2=0.225, wgran=2, rep=4, nap=3, q_step=1, r1_step=6, arm_step=2, npre=4, npre2=7, w0_at=3, sh_step=4, chain=True, bper=2, zig=True, cchain=True, ord2=True, swz=4, kvnt='', qnt='', hnt='', dnt='', outm='nt', dbg_wg=77, now=0, wnt='', ct=True, pnap=2, ph_back=(90, 100, 100, 90), b2=3, fl_lag=48, thr=9999, chk=10, pf_step=4, pf_at=44, pe_back=6, sent=True, park=8, free_at=(335, 368, 402, 434), ph0=392, tw=0, tw0=96, tw_step=8, pe_lag=32, rmax=0.2, rmax2=0.25, w1_step=1, w1s=2, E=2, e_late=True, KT2=12, abl=""):
    k = K("interleave_layers__ssm_conv_h3__glu_gated_geglu__prompt_kernel")
    diag = asmlib.STAMPS[0]
    def stamp(i):
        if diag:
            k(f"s_memrealtime s[64:65]\ns_memtime s[66:67]\ns_waitcnt lgkmcnt(0)\nv_writelane_b32 v{VSTAMP}, s64, {i}\nv_writelane_b32 v{VSTAMP}, s66, {32 + i}")
    slow = []
    def poll_load(soff, width=1):
        if width == "w0": return f"buffer_load_dwordx2 v[{TMP}:{TMP+1}], v{TMP+13}, {SW}, s{soff} offen sc1"
        if width == "arm": return f"buffer_load_dwordx4 v[{TMP}:{TMP+3}], v{VR}, {SW}, s{soff} offen sc1"
        va = VF if soff in (S_FW1_C, S_FW2_C) else TMP + 13 if soff in (S_FPF_C, S_FKV) else VF16
        return f"buffer_load_dword v{VP}, v{va}, {SW}, s{soff} offen sc1"
    def poll_test(n, width, soff):
        if n == "w0":
            return [f"v_xor_b32 v{TMP}, v{TMP}, v{VTAG}", f"v_xor_b32 v{TMP+1}, v{TMP+1}, v{VTAG}", f"v_or_b32 v{VP}, v{TMP}, v{TMP+1}",
                    f"v_cmp_ne_u32 vcc, 0, v{VP}", f"s_or_b32 s{S_A}, vcc_lo, vcc_hi", f"s_and_b32 s{S_A}, s{S_A}, {(1 << (32 - KT)) - 1:#x}"]
        if n == "arm":
            o = [f"v_xor_b32 v{TMP+i}, v{TMP+i}, v{VTAG}" for i in range(4)]
            o += [f"v_or3_b32 v{VP}, v{TMP}, v{TMP+1}, v{TMP+2}", f"v_or_b32 v{VP}, v{VP}, v{TMP+3}", f"v_cmp_ne_u32 vcc, 0, v{VP}"]
            n = 64
        else: o = [f"v_cmp_ne_u32 vcc, v{VTAG}, v{VP}"]
        if n == "w1": o += [f"s_or_b32 s{S_A}, vcc_lo, vcc_hi", f"s_and_b32 s{S_A}, s{S_A}, {(1 << (2 * KT)) - 1:#x}"]
        elif n <= 32: o.append(f"s_and_b32 s{S_A}, vcc_lo, {(1 << n) - 1:#x}")
        elif n < 64: o += [f"s_and_b32 s{S_A}, vcc_hi, {(1 << (n - 32)) - 1:#x}", f"s_or_b32 s{S_A}, s{S_A}, vcc_lo"]
        else: o.append(f"s_or_b32 s{S_A}, vcc_lo, vcc_hi")
        return o
    def poll_check(ld, soff, n, width=1):
        k.nl += 1; lab = f"L_poll{k.nl}"
        k.wait(vm=ld)
        k("\n".join(poll_test(n, width, soff)) + f"\ns_cbranch_scc1 {lab}")
        k.label(lab + "_ok")
        slow.append((lab, [f"s_mov_b32 s{S_SP}, {SPIN}"], [f"s_sleep {nap}", poll_load(soff, n if n in ("arm", "w0") else width), f"s_sub_u32 s{S_SP}, s{S_SP}, 1", f"s_cbranch_scc1 {lab}_out",
                    "s_waitcnt vmcnt(0)"] + poll_test(n, width, soff)))
    def flag_store(soff):
        if soff in (S_FPF_P, 78):
            return f"s_mov_b32 exec_hi, 0\nbuffer_store_dword v{VTAG}, v{VF16}, {SW}, s{soff} offen sc1\ns_mov_b32 exec_hi, -1"
        return f"s_mov_b64 exec, 1\nbuffer_store_dword v{VTAG}, off, {SW}, s{soff} sc1\ns_mov_b64 exec, -1"

    c1 = -2 * math.sqrt(2 / math.pi) * math.log2(math.e)
    k("s_cmp_ge_u32 s2, 256\ns_cbranch_scc1 L_end")
    S_FKV = 69
    if diag == 7: k(f"v_mov_b32 v{VSTAMP}, 0"); stamp(12)
    k(f"""
    s_load_dwordx4 s[72:75], s[0:1], {ARG['k']}
    s_load_dwordx2 s[8:9], s[0:1], {ARG['ws']}
    s_load_dwordx2 s[76:77], s[0:1], {ARG['shift']}
    s_load_dwordx4 s[4:7], s[0:1], {ARG['ssm']}
    s_load_dwordx4 s[12:15], s[0:1], {ARG['wg']}
    s_load_dwordx2 s[10:11], s[0:1], {ARG['q']}
    s_and_b32 s59, s2, 7
    s_lshr_b32 s60, s2, 3
    s_lshl_b32 s16, s60, 4
    v_and_b32 v3, 15, v0
    v_add_u32 v3, s16, v3
    """)
    touch_code(k, "L_body", "L_end", 4, 51, 80, v0=3)
    k.label("L_body")
    k(f"""
    s_mov_b32 s{S_LAY}, 0
    v_mov_b32 v{VTID}, v0
    v_lshrrev_b32 v1, 6, v0
    v_and_b32 v2, 63, v0
    v_readfirstlane_b32 s17, v1
    s_lshl_b32 s61, s59, 5
    s_add_u32 s61, s61, s60
    v_lshlrev_b32 v{VR}, 4, v2
    s_and_b32 s16, s61, 15
    s_lshl_b32 s16, s16, 4
    v_and_b32 v48, 7, v0
    v_bfe_u32 v49, v0, 6, 1
    v_lshl_add_u32 v48, v49, 3, v48
    v_add_u32 v48, s16, v48
    s_and_b32 s16, s61, 0xf0
    v_bfe_u32 v49, v0, 3, 3
    v_lshrrev_b32 v3, 7, v0
    v_lshl_add_u32 v49, v3, 3, v49
    v_add_u32 v49, s16, v49
    v_lshlrev_b32 v3, 14, v48
    v_lshl_add_u32 v3, v49, 3, v3
    v_subrev_u32 v8, 0x1800, v3
    v_subrev_u32 v9, 0x1000, v3
    v_subrev_u32 v10, 0x800, v3
    v_lshlrev_b32 v7, 5, v49
    s_mov_b32 s84, 4096
    s_mov_b32 s85, 8192
    s_mov_b32 s86, 12288
    s_lshl_b32 s18, s61, 2
    s_add_u32 s18, s18, s17
    s_mul_i32 s62, s17, {CH_LDS}
    """)
    if diag and diag != 7: k(f"v_mov_b32 v{VSTAMP}, 0")
    k("s_waitcnt lgkmcnt(0)")
    k(f"s_add_u32 s70, s8, {WS_FLAG + F_EPOCH}\ns_addc_u32 s71, s9, 0\ns_load_dword s87, s[70:71], 0")
    srd(k, 24, 72, MB4); srd(k, 28, 74, MB4); srd(k, 32, 76, 8192)
    KR = lambda t: 74 + 2 * t
    VV = lambda t: 90 + 2 * t
    so = ["0", "s84", "s85", "s86"]
    for i in range(3): k(f"buffer_load_dwordx2 v[{KR(i-3)}:{KR(i-3)+1}], v{8+i}, s[24:27], 0 offen {kvnt}")
    for t in range(8): k(f"buffer_load_dwordx2 v[{KR(t)}:{KR(t)+1}], v3, s[24:27], {so[t>>1]} offen offset:{(t&1)*2048} {kvnt}")
    k("buffer_load_dwordx4 v[108:111], v7, s[32:35], 0 offen")
    lk = k("buffer_load_dwordx4 v[112:115], v7, s[32:35], 0 offen offset:16")
    for t in range(8): lv = k(f"buffer_load_dwordx2 v[{VV(t)}:{VV(t)+1}], v3, s[28:31], {so[t>>1]} offen offset:{(t&1)*2048} {kvnt}")
    stamp(0)
    srd(k, 20, 8, WS_TOTAL); srd(k, 28, 8, WS_TOTAL)
    k(f"""
    s_lshl_b32 s16, s18, 12
    s_add_u32 s32, s4, s16
    s_addc_u32 s33, s5, 0
    s_mov_b32 s34, 4096
    s_mov_b32 s35, 0x20000
    s_add_u32 s16, s16, {WS_KV}
    s_add_u32 s88, s8, s16
    s_addc_u32 s89, s9, 0
    s_mov_b32 s90, 4096
    s_mov_b32 s91, 0x20000
    """)
    HR = 192
    for i in range(4):
        for h in range(2): h_ld = k(f"buffer_load_dwordx4 v[{HR+8*i+4*h}:{HR+8*i+4*h+3}], v{VR}, s[32:35], 0 offen offset:{i*1024 + 16*h} {hnt}")
    k(f"v_sub_u32 v50, 255, v48\nv_lshlrev_b32 v50, 4, v50\nv_lshl_add_u32 v50, v49, 14, v50\nv_add_u32 v50, {WS_KV}, v50")
    srd(k, 92, 10, MB4)
    KM = 32 - KT
    NU0, NU1 = 56 * KM, 56 * KT
    assert NU0 <= 1024 and NU1 <= 1024 and 2 * KT <= 32
    k(f"""
    v_lshrrev_b32 v11, 4, v2
    v_mul_u32_u24 v54, 7168, v11
    v_and_b32 v12, 15, v2
    v_lshl_add_u32 v54, v12, 4, v54
    s_lshl_b32 s10, s2, 2
    s_add_u32 s10, s10, s17
    s_lshl_b32 s11, s17, 13
    s_add_u32 s11, s11, {CONV_LDS}
    s_mul_hi_u32 s48, s10, {-(-(1 << 32) // 28)}
    s_mul_i32 s47, s48, 28
    s_sub_u32 s47, s10, s47
    s_and_b32 s52, s48, 1
    s_lshr_b32 s48, s48, 1
    s_cmp_eq_u32 s52, 0
    s_cselect_b32 s24, s12, s14
    s_cselect_b32 s25, s13, s15
    s_mov_b32 s27, 0x20000
    s_mul_i32 s49, s48, {32*7168}
    s_lshl_b32 s12, s47, 8
    s_add_u32 s49, s49, s12
    """)
    def w_enable(n):
        return [f"s_cmp_lt_u32 s10, {n}", f"s_cselect_b32 s26, {0 if now & (1 if n == NU0 else 2) else W_BYTES}, 0", f"s_cselect_b32 s30, {WS_TOTAL}, 0"]
    def w_load(r, j):
        return [f"s_add_u32 m0, s11, {1024*j}", f"s_add_u32 s12, s49, {4*7168*j + r*KM*32*7168}", f"buffer_load_dwordx4 v54, s[24:27], s12 offen {wnt} lds"]
    for x in w_enable(NU0): k(x)
    def w0_issue():
        for j in range(8): k("\n".join(w_load(0, j)))
    A = lambda buf, p: 64 + buf * 64 + 4 * p
    B = lambda buf, j: 96 + buf * 64 + 4 * j
    AD = 40
    k("v_and_b32 v61, 15, v2\nv_lshrrev_b32 v62, 4, v2\nv_lshlrev_b32 v63, 2, v61\nv_lshl_add_u32 v63, v62, 4, v63")
    for w in range(4): k(f"v_subrev_u32 v{4+w}, {60-4*w}, v63")
    for w in range(4): k(f"buffer_load_dword v{A(0,0)+w}, v{4+w}, s[32:35], 0 offen")
    k(f"""
    s_and_b32 s16, s18, 0xfffffffe
    s_lshl_b32 s16, s16, 1
    s_add_u32 s6, s6, s16
    s_addc_u32 s7, s7, 0
    s_load_dword s63, s[6:7], 0
    s_load_dwordx4 s[4:7], s[0:1], {ARG['wd']}
    s_lshr_b32 s32, s59, 1
    s_lshl_b32 s32, s32, 2
    s_and_b32 s33, s60, 3
    s_add_u32 s32, s32, s33
    s_and_b32 s33, s59, 1
    s_lshr_b32 s34, s60, 2
    s_lshl_b32 s35, s33, 3
    s_add_u32 s35, s35, s34
    s_lshl_b32 s19, s32, 4
    s_add_u32 s19, s19, s35
    s_lshl_b32 s{S_ROWY}, s19, 14
    s_lshr_b32 s45, s19, 1
    s_lshl_b32 s45, s45, 15
    s_and_b32 s16, s19, 1
    s_lshl_b32 s16, s16, 7
    s_add_u32 s45, s45, s16
    v_and_b32 v8, 7, v0
    v_lshrrev_b32 v9, 3, v0
    v_lshlrev_b32 v15, 4, v8
    v_lshl_add_u32 v15, v9, 8, v15
    v_and_b32 v13, 3, v9
    v_lshrrev_b32 v9, 2, v9
    v_lshl_add_u32 v9, v9, 4, v13
    v_lshlrev_b32 v10, 11, v8
    v_lshl_add_u32 v10, v9, 4, v10
    v_lshlrev_b32 v{VROW}, 4, v8
    v_lshl_add_u32 v{VROW}, v9, 8, v{VROW}
    v_mov_b32 v16, -1
    v_mov_b32 v17, -1
    v_mov_b32 v18, -1
    v_mov_b32 v19, -1
    v_lshlrev_b32 v14, 4, v0
    """)
    QP = 192
    k("v_mov_b32 v53, v10")
    k(f"""
    v_and_b32 v8, 3, v61
    v_mul_u32_u24 v8, {CS}, v8
    v_lshrrev_b32 v9, 2, v61
    v_add_u32 v9, v9, v62
    v_lshl_add_u32 v56, v9, 4, v8
    v_add_u32 v56, s62, v56
    v_lshrrev_b32 v8, 3, v61
    v_mul_u32_u24 v9, {XS}, v8
    v_and_b32 v10, 7, v61
    v_lshlrev_b32 v13, 6, v10
    v_sub_u32 v9, v9, v13
    v_lshl_add_u32 v9, v62, 4, v9
    v_add_u32 v9, {4*CS + 4032 - 3584}, v9
    v_add_u32 v57, s62, v9
    v_lshrrev_b32 v13, 1, v10
    v_xor_b32 v13, v13, v62
    v_lshl_add_u32 v13, v10, 2, v13
    v_lshlrev_b32 v13, 4, v13
    v_lshl_add_u32 v13, v8, 12, v13
    v_add_u32 v59, s62, v13
    v_lshrrev_b32 v8, 5, v2
    v_mul_u32_u24 v8, {XS}, v8
    v_and_b32 v9, 31, v2
    v_lshl_add_u32 v8, v9, 4, v8
    v_add_u32 v8, s62, v8
    v_mov_b32 v44, 0
    v_mov_b32 v45, 0
    v_mov_b32 v46, 0
    v_mov_b32 v47, 0
    v_mov_b32 v58, s62
    ds_write_b128 v8, v[44:47] offset:{4*CS + 4096}
    v_lshlrev_b32 v55, 3, v11
    v_bfe_u32 v9, v2, 2, 2
    v_add_u32 v55, v55, v9
    v_lshlrev_b32 v55, 8, v55
    v_and_b32 v9, 3, v2
    v_lshl_add_u32 v55, v9, 3, v55
    v_add_u32 v55, s11, v55
    s_waitcnt lgkmcnt(0)
    s_and_b32 s12, s18, 1
    s_lshl_b32 s12, s12, 4
    s_lshr_b32 s63, s63, s12
    s_and_b32 s63, s63, 0xffff
    v_mov_b32 v9, s63
    """)
    for w in range(4): k(f"v_cmp_eq_u32 vcc, 0, v{4+w}\nv_cndmask_b32 v{AD+w}, 0, v9, vcc")
    assert all((x * 9363) >> 16 == x // 7 for x in range(224))
    OFFS = [[36 + i for i in range(8)], [70 + i for i in range(8)]]
    k(f"""
    s_and_b32 s53, s48, {1 if chain else 0}
    s_sub_u32 s54, s48, s53
    s_mul_i32 s12, s54, 14
    s_mul_i32 s13, s52, {14 if chain else 7}
    s_add_u32 s12, s12, s13
    s_add_u32 s12, s12, s53
    s_add_u32 s12, s12, {WS_W1 >> 10}
    s_lshl_b32 s13, s48, 1
    s_add_u32 s13, s13, s52
    s_lshl_b32 s50, s13, 2
    s_lshl_b32 s14, s47, 7
    s_add_u32 s50, s50, s14
    s_add_u32 s50, s50, {WS_FLAG + F_W1}
    s_lshl_b32 s13, s54, 1
    s_mul_i32 s14, s52, {2 if chain else 1}
    s_add_u32 s13, s13, s14
    s_add_u32 s13, s13, s53
    s_add_u32 s13, s13, {14*KM + (WS_W1 >> 10)}
    s_lshl_b32 s18, s47, 3
    """)
    for i in range(8):
        k(f"""
        s_mul_i32 s14, s18, 9363
        s_lshr_b32 s14, s14, 16
        s_mul_i32 s15, s14, 7
        s_sub_u32 s15, s18, s15
        s_mul_i32 s14, s14, {W1T}
        s_lshl_b32 s58, s15, {1 if chain else 0}
        s_add_u32 s58, s14, s58
        s_add_u32 s58, s58, s12
        s_lshl_b32 s{OFFS[0][i]}, s58, 10
        s_mul_i32 s15, s15, {2*KT}
        s_add_u32 s14, s14, s15
        s_add_u32 s14, s14, s13
        s_lshl_b32 s{OFFS[1][i]}, s14, 10
        s_add_u32 s18, s18, 1
        """)
    if w0_at == 0: w0_issue()
    k.wait(vm=lk)
    W = lambda c, j: 116 + 4 * c + j
    for c in range(4):
        for j in range(4): unpk(k, W(c, j), 108 + 2 * c + (j >> 1), j & 1)
    KS = lambda c, t: 132 + 8 * c + t
    KF = lambda t: 167 + t
    for c in range(4):
        for t in range(-3, 8): unpk(k, KF(t), KR(t) + (c >> 1), c & 1)
        for t in range(8): k(f"v_mul_f32 v{KS(c,t)}, v{W(c,3)}, v{KF(t-3)}")
        for j in (2, 1, 0):
            for t in range(8): k(f"v_fmac_f32 v{KS(c,t)}, v{W(c,j)}, v{KF(t-j)}")
    for i in range(4):
        k(f"s_add_u32 s16, s{S_ROWY}, {WS_Y + 4096*i}\nbuffer_store_dwordx4 v[16:19], v14, {SW}, s16 offen sc1")
    assert 4 * E <= 32
    for L in range(2):
        k(f"s_add_u32 s16, s45, {WS_XN + L*MB4}\nbuffer_store_dwordx4 v[16:19], v15, {SW}, s16 offen sc1")
    if w0_at == 1: w0_issue()
    k.wait(vm=lv)
    for c in range(4):
        for t in range(8): unpk(k, KF(t), VV(t) + (c >> 1), c & 1)
        for t in range(8): k(f"v_mul_f32 v{KS(c,t)}, v{KS(c,t)}, v{KF(t)}")
        for i in range(4): k(f"v_cvt_pk_bf16_f32 v{176+4*c+i}, v{KS(c,7-2*i)}, v{KS(c,6-2*i)}")
        k(f"buffer_store_dwordx4 v[{176+4*c}:{179+4*c}], v50, {SW}, {so[c]} offen sc1")
    stamp(26)
    kv_st = k.nvm
    if w0_at == 2: w0_issue()
    k(f"""
    s_lshr_b32 s{S_FKV}, s61, 4
    s_lshl_b32 s{S_FKV}, s{S_FKV}, 11
    s_add_u32 s{S_FKV}, s{S_FKV}, {WS_FLAG + F_KV}
    s_lshl_b32 s78, s61, 7
    s_add_u32 s78, s78, {WS_FLAG + F_KV}
    v_and_b32 v{TMP+13}, 15, v2
    v_lshlrev_b32 v{TMP+13}, 7, v{TMP+13}
    v_and_b32 v{VF16}, 31, v2
    v_lshlrev_b32 v{VF16}, 2, v{VF16}
    s_waitcnt lgkmcnt(0)
    s_mul_i32 s{S_N}, s87, 0x9e3779b1
    s_add_u32 s{S_N}, s{S_N}, 0x7f4a7c15
    s_add_u32 s16, s{S_N}, 1
    v_mov_b32 v{VTAG}, s16
    """)
    k.wait(vm=h_ld)
    k(f"v_add_u32 v60, s62, v{VR}")
    for i in range(4):
        r = HR + 8 * i; t = 72 + 8 * i
        for e in range(6): k(f"v_mov_b32 v{t+e}, v{r+1+e}")
        for cc, src in enumerate((t, r + 2, t + 2, r + 4)):
            k(f"ds_write_b128 v60, v[{src}:{src+3}] offset:{cc*CS + i*1024}")
    k.wait(vm=kv_st)
    k("s_barrier\ns_cmp_lg_u32 s17, 0\ns_cbranch_scc1 L_nokvf")
    k(flag_store(78)); k.nvm -= 1
    k.label("L_nokvf")
    k(f"s_lshl_b32 s16, s2, 2\ns_add_u32 s16, s16, {WS_FLAG + F_ARM}\ns_cmp_lg_u32 s17, 1\ns_cbranch_scc1 L_noarm")
    k(flag_store(16)); k.nvm -= 1
    k.label("L_noarm")
    x = k(poll_load(S_FKV))
    poll_check(x, S_FKV, 16)
    stamp(27)
    xl = []
    for i in range(4):
        k(f"buffer_load_dwordx4 v[{128+8*i}:{131+8*i}], v{VR}, s[88:91], 0 offen offset:{i*1024}")
        xl.append(k(f"buffer_load_dword v{132+8*i}, v{VR}, s[88:91], 0 offen offset:{i*1024 + 16}"))
    if w0_at == 3: side0 = [("v", "w0", "\n".join(w_load(0, j))) for j in range(8)]
    for i in range(4):
        r = 128 + 8 * i; t = 160 + 4 * i
        k.wait(vm=xl[i])
        k(f"ds_write_b128 v60, v[{r}:{r+3}] offset:{4*CS + XS + i*1024}")
        for e in range(4): k(f"v_alignbit_b32 v{t+e}, v{r+e+1}, v{r+e}, 16")
        k(f"ds_write_b128 v60, v[{t}:{t+3}] offset:{4*CS + i*1024}")
    stamp(1)
    Y = lambda j: 8 + 4 * j
    def reads(i):
        buf = i & 1; out = []
        for x in range(8):
            out.append(("B", x, f"ds_read_b128 v[{B(buf,x)}:{B(buf,x)+3}], v57 offset:{3584-512*x+64*i}"))
            if (i, x) != (0, 0):
                out.append(("A", x, f"ds_read_b128 v[{A(buf,x)}:{A(buf,x)+3}], v56 offset:{64*(i-1)+512*x}"))
        return out
    ids = {}
    for kind, x, txt in reads(0): ids[(0, kind, x)] = k(txt)
    for j in range(8):
        k.wait(lg=ids[(0, "B", j)])
        k(f"v_mfma_f32_16x16x32_bf16 v[{Y(j)}:{Y(j)+3}], v[{AD}:{AD+3}], v[{B(0,j)}:{B(0,j)+3}], 0")
    side = {i: [] for i in range(8)}
    def sh_reads(r):
        o = []
        for i in range(8):
            f = 224 * r + 4 * i
            o += [("r", None, f"ds_read_b64_tr_b16 a[{f}:{f+1}], v55 offset:{32*i}"), ("r", (r, i), f"ds_read_b64_tr_b16 a[{f+2}:{f+3}], v55 offset:{32*i + 1024}")]
        return o
    def sh_stores(r):
        return [("s", (r, i), f"buffer_store_dwordx4 a[{224*r+4*i}:{224*r+4*i+3}], v{VR}, {SX}, s{OFFS[r][i]} offen sc1") for i in range(8)]
    side[q_step] += [("v", "q", f"buffer_load_dwordx4 v[{QP+4*i}:{QP+4*i+3}], v53, s[92:95], s{S_ROWY} offen offset:{64*i} {qnt}") for i in range(4)]
    s0 = 0
    if w0_at == 3:
        side[0] += side0; s0 = sh_step; side[s0].append(("w", 0))
    side[s0] += sh_reads(0)
    side[s0 + 1] += sh_stores(0)
    side[arm_step] += [("v", "arm", f"s_mov_b32 s79, {WS_FLAG + F_ARM}\n" + poll_load(79, "arm"))]
    side[r1_step] += [("x", None, "\n".join(w_enable(NU1)))] + [("v", "w1", "\n".join(w_load(1, j))) for j in range(8)]
    assert r1_step > s0 + 1
    sid = {}
    for i in range(8):
        buf = i & 1
        nxt = reads(i + 1) if i < 7 else []
        order = sorted([(p, j) for p in range(8) for j in range(8 - p)], key=(lambda t: (t[0] + t[1], t[0] if (t[0] + t[1]) & 1 else -t[0])) if cchain else (lambda t: (max(t), t[0] + t[1])))
        sd = side[i]
        for n, (p, j) in enumerate(order):
            k.wait(lg=max(ids.get((i, "A", p), 0), ids[(i, "B", j)]))
            jp = p + j
            k(f"v_mfma_f32_16x16x32_bf16 v[{Y(jp)}:{Y(jp)+3}], v[{A(buf,p)}:{A(buf,p)+3}], v[{B(buf,j)}:{B(buf,j)+3}], v[{Y(jp)}:{Y(jp)+3}]")
            if n % 2 == 1 and nxt:
                kind, x, txt = nxt.pop(0); ids[(i + 1, kind, x)] = k(txt)
            if n % 2 == 0 and sd and (sd[0][0] not in "sv" or n % 4 == 0):
                it = sd.pop(0)
                if it[0] == "w": k.wait(vm=sid["w0"])
                elif it[0] == "s":
                    k.wait(lg=sid[it[1]]); sid["st0"] = k(it[2])
                else:
                    x = k(it[2])
                    if it[1]: sid[it[1]] = x
        assert not nxt and not sd
    stamp(2)
    for j in range(8): k(f"ds_write_b128 v59, v[{Y(j)}:{Y(j)+3}] offset:{512*j}")
    k(f"""
    v_lshrrev_b32 v4, 2, v0
    v_bfe_u32 v5, v4, 3, 2
    v_xor_b32 v5, v5, v4
    v_lshlrev_b32 v5, 4, v5
    v_and_b32 v6, 3, v0
    v_lshl_add_u32 v5, v6, 2, v5
    v_lshlrev_b32 v6, 4, v6
    v_lshl_add_u32 v6, v4, 14, v6
    s_lshl_b32 s12, s61, 6
    s_add_u32 s12, s12, {WS_Y}
    """)
    for c in range(1, 4): k(f"v_add_u32 v{40+c}, {c*CH_LDS}, v5")
    k("v_mov_b32 v40, v5")
    poll_check(sid["arm"], 79, "arm")
    k.wait(vm=sid["st0"], lg=k.nlg); k("s_barrier")
    rid = {}
    for i in range(4):
        for c in range(4):
            rid[i] = k(f"ds_read2st64_b32 v[{64+8*i+2*c}:{65+8*i+2*c}], v{40+c} offset0:{4*i} offset1:{16+4*i}")
    for i in range(4):
        k.wait(lg=rid[i])
        for par in range(2):
            for h in range(2):
                k(f"v_cvt_pk_bf16_f32 v{96+4*i+2*par+h}, v{64+8*i+4*h+par}, v{64+8*i+4*h+2+par}")
        k(f"buffer_store_dwordx4 v[{96+4*i}:{99+4*i}], v6, {SW}, s12 offen sc1")
        if i < 3: k("s_add_u32 s12, s12, 0x100000")
    stamp(3)
    k.wait(vm=sid["w1"])
    for it in sh_reads(1):
        x = k(it[2])
        if it[1]: sid[it[1]] = x
    for it in sh_stores(1):
        k.wait(lg=sid[it[1]]); k(it[2])
    k("s_mov_b32 s62, s50\ns_mov_b32 s63, s30")

    KM2 = 56 - KT2
    k(f"""
    s_lshl_b32 s{S_M0}, s17, 12
    s_lshr_b32 s13, s59, 1
    s_lshl_b32 s12, s13, 3
    s_add_u32 s12, s12, s34
    s_lshl_b32 s14, s33, 2
    s_and_b32 s15, s60, 3
    s_add_u32 s14, s14, s15
    s_lshl_b32 s14, s14, 2
    s_add_u32 s14, s14, s17
    s_lshl_b32 s16, s32, 2
    s_add_u32 s16, s16, s17
    s_mul_i32 s{S_W1}, s12, {W1T*1024}
    s_add_u32 s{S_W1}, s{S_W1}, {WS_W1}
    s_mul_i32 s{S_W2}, s35, {W2T*1024}
    s_add_u32 s{S_W2}, s{S_W2}, {WS_W2}
    s_and_b32 s15, s16, 15
    s_lshl_b32 s15, s15, 13
    s_add_u32 s91, s{S_W2}, s15
    s_lshl_b32 s{S_XN}, s14, 17
    s_add_u32 s{S_XN}, s{S_XN}, {WS_XN}
    s_lshl_b32 s{S_PS}, s16, 14
    s_lshl_b32 s15, s34, 10
    s_add_u32 s{S_PS}, s{S_PS}, s15
    s_lshl_b32 s15, s33, 22
    s_add_u32 s{S_PS}, s{S_PS}, s15
    s_add_u32 s{S_PS}, s{S_PS}, {WS_P}
    s_lshr_b32 s{S_ROWL}, s19, 1
    s_lshl_b32 s{S_ROWF}, s{S_ROWL}, 15
    s_lshl_b32 s{S_ROWL}, s{S_ROWL}, 13
    s_and_b32 s15, s19, 1
    s_lshl_b32 s15, s15, 7
    s_add_u32 s{S_ROWL}, s{S_ROWL}, s15
    s_add_u32 s{S_ROWF}, s{S_ROWF}, s15
    s_lshl_b32 s{S_FXN_C}, s14, 7
    s_lshl_b32 s15, s13, 12
    s_add_u32 s{S_FXN_C}, s{S_FXN_C}, s15
    s_add_u32 s{S_FXN_C}, s{S_FXN_C}, {WS_FLAG + F_XN}
    s_lshr_b32 s{S_FXN_P}, s19, 3
    s_lshl_b32 s{S_FXN_P}, s{S_FXN_P}, 7
    s_lshl_b32 s15, s34, 2
    s_add_u32 s{S_FXN_P}, s{S_FXN_P}, s15
    s_add_u32 s{S_FXN_P}, s{S_FXN_P}, s{S_M0}
    s_add_u32 s{S_FXN_P}, s{S_FXN_P}, {WS_FLAG + F_XN}
    s_lshr_b32 s{S_FPF_C}, s19, 2
    s_lshl_b32 s{S_FPF_C}, s{S_FPF_C}, 11
    s_add_u32 s{S_FPF_C}, s{S_FPF_C}, {WS_FLAG + F_PE}
    s_lshl_b32 s{S_FPF_P}, s16, 11
    s_lshl_b32 s15, s35, 7
    s_add_u32 s{S_FPF_P}, s{S_FPF_P}, s15
    s_add_u32 s{S_FPF_P}, s{S_FPF_P}, {WS_FLAG + F_PE}
    s_lshl_b32 s{S_FH_P}, s14, 8
    s_lshr_b32 s15, s12, 4
    s_lshl_b32 s15, s15, 7
    s_add_u32 s{S_FH_P}, s{S_FH_P}, s15
    s_and_b32 s15, s12, 15
    s_lshl_b32 s15, s15, 2
    s_add_u32 s{S_FH_P}, s{S_FH_P}, s15
    s_add_u32 s{S_FH_P}, s{S_FH_P}, {WS_FLAG + F_H}
    s_lshr_b32 s{S_FH_C}, s16, 1
    s_lshl_b32 s{S_FH_C}, s{S_FH_C}, 8
    s_lshl_b32 s15, s33, 7
    s_add_u32 s{S_FH_C}, s{S_FH_C}, s15
    s_add_u32 s{S_FH_C}, s{S_FH_C}, {WS_FLAG + F_H}
    s_mul_i32 s{S_HL}, s16, {2*TBH}
    s_mul_i32 s15, s33, {56*1024}
    s_add_u32 s{S_HL}, s{S_HL}, s15
    s_add_u32 s{S_HL}, s{S_HL}, {WS_H}
    s_mul_i32 s{S_HS}, s14, {4*TBH}
    s_lshr_b32 s15, s12, 4
    s_mul_i32 s15, s15, {56*1024}
    s_add_u32 s{S_HS}, s{S_HS}, s15
    s_and_b32 s15, s12, 15
    s_lshl_b32 s15, s15, 9
    s_add_u32 s{S_HS}, s{S_HS}, s15
    s_add_u32 s{S_HS}, s{S_HS}, {WS_H}
    s_lshl_b32 s{S_FW2_C}, s35, 8
    s_add_u32 s{S_FW2_C}, s{S_FW2_C}, {WS_FLAG + F_W2}
    s_mul_i32 s15, s12, 7
    s_lshr_b32 s15, s15, 3
    s_min_u32 s15, s15, 26
    s_lshl_b32 s15, s15, 7
    s_add_u32 s{S_FW1_C}, s15, {WS_FLAG + F_W1}
    """)
    k(f"""
    s_add_u32 s15, s32, s34
    s_and_b32 s15, s15, 1
    s_mul_i32 s86, s15, {1024 * swz}
    s_mul_i32 s15, s15, {8192 * swz}
    s_add_u32 s92, s{S_W2}, s15
    s_sub_u32 s93, s{S_W2}, s15
    """)
    k(f"""
    s_lshl_b32 s12, s2, 2
    s_add_u32 s12, s12, s17
    s_cmp_lt_u32 s12, 896
    s_cselect_b32 s26, {W_BYTES}, 0
    s_cselect_b32 s30, {WS_TOTAL}, 0
    s_mov_b32 s24, s4
    s_mov_b32 s25, s5
    s_lshr_b32 s13, s12, 3
    s_and_b32 s12, s12, 7
    s_cmp_ge_u32 s13, 56
    s_cselect_b32 s14, 1, 0
    s_cselect_b32 s15, 56, 0
    s_sub_u32 s13, s13, s15
    s_lshl_b32 s15, s14, 3
    s_add_u32 s15, s15, s12
    s_lshl_b32 s{S_FW2_P}, s15, 8
    s_lshl_b32 s16, s13, 2
    s_add_u32 s{S_FW2_P}, s{S_FW2_P}, s16
    s_add_u32 s{S_FW2_P}, s{S_FW2_P}, {WS_FLAG + F_W2}
    s_mul_i32 s{S_SHD}, s15, {W2T*1024}
    s_and_b32 s32, s13, {1 if chain else 0}
    s_sub_u32 s33, s13, s32
    s_lshl_b32 s16, s33, 13
    s_lshl_b32 s60, s33, 11
    s_add_u32 s60, s60, {KM2 * 6 * 1024}
    s_cmp_lt_u32 s13, {KM2}
    s_cselect_b32 s16, s16, s60
    s_cselect_b32 s60, {2 if chain else 1}, {KT2}
    s_lshl_b32 s60, s60, 11
    s_lshl_b32 s32, s32, 10
    s_add_u32 s16, s16, s32
    s_add_u32 s{S_SHD}, s{S_SHD}, s16
    s_add_u32 s{S_SHD}, s{S_SHD}, {WS_W2}
    s_and_b32 s15, s13, 7
    s_mul_i32 s15, s15, 224
    s_lshr_b32 s16, s13, 3
    s_lshl_b32 s16, s16, 4
    s_add_u32 s15, s15, s16
    s_mul_i32 s14, s14, 1792
    s_add_u32 s15, s15, s14
    s_add_u32 s16, s15, 112
    s_lshl_b32 s12, s12, 8
    s_lshl_b32 s{S_SHA}, s15, 11
    s_add_u32 s{S_SHA}, s{S_SHA}, s12
    s_lshl_b32 s{S_SHB}, s16, 11
    s_add_u32 s{S_SHB}, s{S_SHB}, s12
    v_add_u32 v{VR+1}, 0x10000, v{VR}
    v_add_u32 v{VD}, s{S_M0}, v{VR}
    v_lshrrev_b32 v5, 5, v2
    v_and_b32 v6, 31, v2
    v_lshlrev_b32 v6, 4, v6
    v_mul_u32_u24 v7, {TBH}, v5
    v_add_u32 v{VST}, v7, v6
    v_mov_b32 v{VC2}, {f32bits(c1*0.044715):#x}
    v_lshlrev_b32 v{VF}, 2, v2
    v_lshrrev_b32 v3, 4, v2
    v_and_b32 v4, 15, v2
    v_lshlrev_b32 v4, 4, v4
    v_lshl_add_u32 v{VS0}, v3, 11, v4
    v_bfe_u32 v4, v2, 2, 3
    v_lshlrev_b32 v4, 8, v4
    v_lshl_add_u32 v4, v5, 14, v4
    v_and_b32 v3, 3, v2
    v_lshl_add_u32 v4, v3, 4, v4
    v_add_u32 v{VS1}, s{S_M0}, v4
    """)

    XP, YP, P0, P1, X, Yf, T, AY, AS0, AS1, AL, AO = 8, 24, 40, 56, 72, 104, 136, 0, 1, 2, 3, 4
    def row_addr():
        k(f"""
        v_and_b32 v6, 7, v{VTID}
        v_bfe_u32 v5, v{VTID}, 3, 2
        v_lshrrev_b32 v7, 5, v{VTID}
        v_lshl_add_u32 v7, v7, 4, v5
        v_lshlrev_b32 v{AY}, 3, v6
        v_lshl_add_u32 v{AY}, v7, 7, v{AY}
        v_lshlrev_b32 v{AO}, 11, v6
        v_lshl_add_u32 v{AO}, v7, 4, v{AO}
        v_lshrrev_b32 v{AS0}, 6, v{VTID}
        v_lshlrev_b32 v{AS0}, 3, v{AS0}
        v_lshl_add_u32 v{AS0}, v6, 5, v{AS0}
        v_bfe_u32 v7, v{VTID}, 4, 1
        v_lshl_add_u32 v{AS0}, v7, 2, v{AS0}
        v_add_u32 v{AS0}, {LDS_ST}, v{AS0}
        v_lshlrev_b32 v{AS1}, 5, v6
        v_add_u32 v{AS1}, {LDS_ST}, v{AS1}
        v_lshlrev_b32 v{AL}, 4, v{VTID}
        v_add_u32 v{AL}, {LDS_Y}, v{AL}
        """)
    def unpack(dst, src):
        for e in range(32): unpk(k, dst + e, src + e // 2, e & 1)
    def stats(off):
        k(f"v_pk_add_f32 v[{T}:{T+1}], v[{X}:{X+1}], v[{X+2}:{X+3}]")
        k(f"v_pk_mul_f32 v[{T+2}:{T+3}], v[{X}:{X+1}], v[{X}:{X+1}]")
        for e in range(2, 32, 2):
            if e > 2: k(f"v_pk_add_f32 v[{T}:{T+1}], v[{T}:{T+1}], v[{X+e}:{X+e+1}]")
            k(f"v_pk_fma_f32 v[{T+2}:{T+3}], v[{X+e}:{X+e+1}], v[{X+e}:{X+e+1}], v[{T+2}:{T+3}]")
        R = T + 8
        k(f"""
        v_add_f32 v{T}, v{T}, v{T+1}
        v_add_f32 v{T+2}, v{T+2}, v{T+3}
        v_permlane16_swap_b32 v{T}, v{T+2}
        v_add_f32 v{T}, v{T}, v{T+2}
        v_add_f32_dpp v{T}, v{T}, v{T} row_ror:8 row_mask:0xf bank_mask:0xf
        v_mov_b32 v{T+1}, v{T}
        v_permlane32_swap_b32 v{T}, v{T+1}
        v_add_f32 v{T}, v{T}, v{T+1}
        ds_write_b32 v{AS0}, v{T} offset:{off}
        s_waitcnt lgkmcnt(0)
        s_barrier
        ds_read_b128 v[{R}:{R+3}], v{AS1} offset:{off}
        ds_read_b128 v[{R+4}:{R+7}], v{AS1} offset:{off+16}
        s_waitcnt lgkmcnt(0)
        v_pk_add_f32 v[{R}:{R+1}], v[{R}:{R+1}], v[{R+2}:{R+3}]
        v_pk_add_f32 v[{R+4}:{R+5}], v[{R+4}:{R+5}], v[{R+6}:{R+7}]
        v_pk_add_f32 v[{R}:{R+1}], v[{R}:{R+1}], v[{R+4}:{R+5}]
        v_mul_f32 v{R}, {f32bits(1/1024):#x}, v{R}
        v_mul_f32 v{R+1}, {f32bits(1/1024):#x}, v{R+1}
        v_fma_f32 v{R+1}, -v{R}, v{R}, v{R+1}
        v_max_f32 v{R+1}, 0, v{R+1}
        v_cvt_pk_bf16_f32 v{R+2}, v{R}, v{R+1}
        v_lshlrev_b32 v{R}, 16, v{R+2}
        v_and_b32 v{R+1}, 0xffff0000, v{R+2}
        v_add_f32 v{R+1}, {f32bits(1e-5):#x}, v{R+1}
        v_cvt_pk_bf16_f32 v{R+1}, v{R+1}, v{R+1}
        v_lshlrev_b32 v{R+1}, 16, v{R+1}
        v_sqrt_f32 v{R+1}, v{R+1}
        v_cvt_pk_bf16_f32 v{R+1}, v{R+1}, v{R+1}
        v_lshlrev_b32 v{R+1}, 16, v{R+1}
        v_rcp_f32 v{T+4}, v{R+1}
        v_mov_b32 v{T+5}, v{T+4}
        v_mul_f32_e64 v{T+6}, -v{R}, v{T+4}
        v_mov_b32 v{T+7}, v{T+6}
        """)
    def sentinel_loop(name, loads, regs, between=None, skip_first=False, tagged=False):
        k(f"s_mov_b32 s{S_SP}, {SPIN}")
        regs = list(regs)
        if not skip_first: loads()
        if between: between()
        k(f"s_branch {name}_chk")
        k.label(name)
        if pnap: k(f"s_sleep {pnap}")
        loads()
        k.label(name + "_chk")
        if tagged:
            k(f"s_waitcnt vmcnt(0)\nv_or3_b32 v{T+16}, v{regs[0]}, v{regs[1]}, v{TMP+8}\nv_bitop3_b32 v{T+17}, v{regs[0]}, v{regs[1]}, v{TMP+8} bitop3:0x80")
            for i in range(2, len(regs), 2):
                k(f"v_or3_b32 v{T+16}, v{T+16}, v{regs[i]}, v{regs[i+1]}\nv_bitop3_b32 v{T+17}, v{T+17}, v{regs[i]}, v{regs[i+1]} bitop3:0x80")
            k(f"v_xor_b32 v{T+16}, v{T+16}, v{T+17}\nv_lshlrev_b32 v{T+16}, 16, v{T+16}\nv_cmp_ne_u32 vcc, 0, v{T+16}")
        else:
            k(f"s_waitcnt vmcnt(0)\nv_max_u32 v{T+16}, v{regs[0]}, v{regs[1]}")
            for i in range(2, len(regs), 2): k(f"v_max3_u32 v{T+16}, v{T+16}, v{regs[i]}, v{regs[i+1]}")
            k(f"v_cmp_eq_u32 vcc, -1, v{T+16}")
        k(f"s_sub_u32 s{S_SP}, s{S_SP}, 1\ns_cbranch_scc1 {name}_out\ns_cbranch_vccnz {name}")
        k.label(name + "_out")

    row_addr()
    k.wait(vm=sid["q"])
    unpack(X, QP)
    k("s_barrier")
    stats(0)
    def y_loads():
        assert WS_Y == 0
        for i in range(4):
            for h in range(2):
                r = YP + 4 * i + 2 * h
                k(f"buffer_load_dwordx2 v[{r}:{r+1}], v{AY}, {SW}, s{S_ROWY} offen offset:{512*i + 64*h} sc1")
    sentinel_loop("L_ypoll", y_loads, range(YP, YP + 16))
    stamp(4)
    def raw_stage(sidx):
        k(f"s_add_u32 m0, s{S_M0}, {sidx * 16384}\ns_add_u32 s{S_DMA}, s{S_W1}, {sidx * 16384}")
        for i in range(4): k(f"buffer_load_dwordx4 v{VD}, {SW}, s{S_DMA} offen offset:{1024*i} lds")
    def weave(body_fn, stages, span):
        n0 = len(k.lines); body_fn()
        body = k.lines[n0:]; del k.lines[n0:]
        for sidx in stages: raw_stage(sidx)
        dm = k.lines[n0:]; del k.lines[n0:]
        step = max(1, min(len(body), span) // len(dm))
        for n_, l in enumerate(body):
            if n_ % step == 0 and dm: k.lines.append(dm.pop(0))
            k.lines.append(l)
        k.lines += dm
    k("s_cmp_eq_u32 s63, 0\ns_cbranch_scc1 L_now1"); k(flag_store(62)); k.label("L_now1")
    k("s_barrier")
    def y_keep():
        unpack(Yf, YP)
        for i in range(4): k(f"ds_write_b128 v{AL}, v[{YP+4*i}:{YP+4*i+3}] offset:{4096*i}")
    weave(y_keep, range(npre), 36)

    k.label("L_layer")
    k(f"s_add_u32 s84, s{S_HL}, s86\ns_sub_u32 s85, s{S_HL}, s86")
    SWZ_END = (KM2 // (2 * swz)) * 2 * swz if swz else 0
    k.nvm = k.vm_done = 0; k.nlg = k.lg_done = 0
    ring = [("W1", s) for s in range(28)]
    S1_POS = 0
    SH_POS = 17
    ring[SH_POS:SH_POS] = [("SH", 0), ("SH", 1)]
    assert SH_POS % NS + 1 < 4 and S1_POS % NS + 1 < 4
    ring += [("W2", s) for s in range(28)]
    NREAL = len(ring)
    st = {"s": None}
    def dma(idx, i):
        kind, s = ring[idx]; pre_ = []
        if kind == "S1":
            st["s"] = None
            return [f"s_add_u32 m0, s{S_M0}, {(idx % NS) * 16384 + 1024 * i}", f"s_add_u32 s{S_DMA}, s63, {4 * 7168 * (4 * s + i)}",
                    f"buffer_load_dwordx4 v{TMP+4}, s[92:95], s{S_DMA} offen lds"]
        if kind == "SH":
            st["s"] = None
            return [f"s_add_u32 m0, s{S_M0}, {(idx % NS) * 16384 + 1024 * i}", f"s_add_u32 s{S_DMA}, s{S_SHB if s else S_SHA}, {8192 * i}",
                    f"buffer_load_dwordx4 v{VS0}, {SD}, s{S_DMA} offen {dnt} lds"]
        if st["s"] != idx:
            pre_ = [f"s_add_u32 m0, s{S_M0}, {(idx % NS) * 16384}", f"s_add_u32 s{S_DMA}, s{(92 + (2 * s // swz) % 2 if 2 * s < SWZ_END else S_W2) if kind == 'W2' else S_W1}, {s * 16384}"]
            st["s"] = idx
        return pre_ + [f"buffer_load_dwordx4 v{VD}, {'s[88:91]' if kind == 'NX' else SW}, s{S_DMA} offen offset:{1024*i} lds"]
    w_id = {}; t_id = {}
    def pre_stage(idx):
        for i in range(4): w_id[idx] = k("\n".join(dma(idx, i)))
    for idx in range(4): w_id[idx] = 0
    for e in range(0, 32, 2):
        k(f"v_pk_fma_f32 v[{T}:{T+1}], v[{X+e}:{X+e+1}], v[{T+4}:{T+5}], v[{T+6}:{T+7}]")
        k(f"v_pk_fma_f32 v[{X+e}:{X+e+1}], v[{T}:{T+1}], v[{Yf+e}:{Yf+e+1}], v[{X+e}:{X+e+1}]")
        k(f"v_cvt_pk_bf16_f32 v{XP+e//2}, v{X+e}, v{X+e+1}")
    for i in range(4): k(f"ds_write_b128 v{AL}, v[{XP+4*i}:{XP+4*i+3}] offset:{16384 + 4096*i}")
    unpack(X, XP)
    stats(256)
    k(f"s_lshl_b32 s{S_B}, s{S_LAY}, 22\ns_add_u32 s{S_B}, s{S_B}, s{S_ROWF}\ns_add_u32 s{S_B}, s{S_B}, {WS_XN}")
    for e in range(0, 32, 2):
        k(f"v_pk_fma_f32 v[{X+e}:{X+e+1}], v[{X+e}:{X+e+1}], v[{T+4}:{T+5}], v[{T+6}:{T+7}]")
        k(f"v_cvt_pk_bf16_f32 v{P0+e//2}, v{X+e}, v{X+e+1}")
        if e % 8 == 6:
            i = e // 8
            k(f"buffer_store_dwordx4 v[{P0+4*i}:{P0+4*i+3}], v{VROW}, {SW}, s{S_B} offen offset:{1024*i} sc1")
    stamp(5)
    xn_st = k.nvm
    ET = 160
    for t in range(4): k(f"s_add_u32 s{S_T+t}, s{S_XN}, {t*32768}")
    def e_loads():
        for u in range(E):
            for t in range(4):
                r = ET + 16 * u + 4 * t
                k(f"buffer_load_dwordx4 v[{r}:{r+3}], v{VR}, {SW}, s{S_T+t} offen offset:{1024*u} sc1")
    def e_between():
        k.wait(vm=xn_st); k("s_barrier")
        k(flag_store(S_FXN_P))
    if e_late:
        e_between(); sentinel_loop("L_epoll", e_loads, range(ET, ET + 16 * E))
    else: sentinel_loop("L_epoll", e_loads, range(ET, ET + 16 * E), e_between)
    k(f"s_cmp_lg_u32 s{S_LAY}, 0\ns_cbranch_scc1 L_have")
    n0 = k.nvm
    for sidx in range(npre, 7): raw_stage(sidx)
    k.nvm = n0
    k.label("L_have")
    for sidx in range(npre, 7): w_id[sidx] = n0 + 1
    st["s"] = None
    for r in range(16 * E): k(f"v_accvgpr_write_b32 a{4*RW + r}, v{ET + r}")
    stamp(6)

    def sweep(kd, u0, u1, gs):
        if chain: return [(kd, u + e, g) for u in range(u0, u1, 2) for g in gs for e in range(2)]
        return [(kd, u, g) for u in range(u0, u1) for g in gs]
    assert not chain or (KM % 2 == 0 and KM2 % 2 == 0 and E % 2 == 0)
    groups = sweep(1, 0, KM, range(14))
    tail_start = len(groups)
    for b in range(7): groups += sweep(1, KM, 32, (b, 7 + b))
    G2S = len(groups)
    groups += sweep(2, 0, KM2, range(8))
    T2S = len(groups)
    for p in range(4): groups += sweep(2, KM2, 56, (2 * p, 2 * p + 1))
    NGR = len(groups); GPB = 2 * KT
    NTk = {1: 4, 2: 2}
    tm = [0]
    for kd, _, _ in groups: tm.append(tm[-1] + NTk[kd])
    real = [i for i, r_ in enumerate(ring) if r_[0] in ("W1", "W2")]
    stage_of = lambda i: real[i // 16]
    bars = {16 * n - la_bar: real[min(n + bper - 1, 55)] for n in range(npre, 56, bper)}
    pub_at = {}
    for p_, r_ in sorted(bars.items()):
        for x in real:
            if x <= r_: pub_at.setdefault(x, p_)
    bar_list = sorted(bars)
    first_use = {}; last_use = {}
    for i, (kd, u, g) in enumerate(groups):
        first_use.setdefault((kd, u), i & ~1 if chain else i); last_use[(kd, u)] = i | 1 if chain else i
    def slot(kd, u, t):
        return (u % KT) * 4 + t if kd == 1 else (4 * (KM % KT) + 2 * u + t) % (4 * KT)
    def AT(kd, u, t):
        if kd == 2 and u < park: return f"v[{112 + 8*u + 4*t}:{115 + 8*u + 4*t}]"
        a = 4 * RW + 4 * slot(kd, u - (park if kd == 2 else 0), t)
        return f"a[{a}:{a+3}]"
    AW = lambda i: 4 * (i % RW)
    acc = lambda kd, g, t: (g * NTk[kd] + t) * 4
    tok_base = {t: (S_XN, 0) for t in range(4)}
    for u in range(E):
        for t in range(4): t_id[((1, u), t)] = 0
    def tok(kd, u, t):
        off = u * 1024; pre_ = []
        src = S_XN if kd == 1 else 84 + (u // swz) % 2 if u < SWZ_END else S_HL
        if tok_base.get(t, (None, 0))[0] != src or not 0 <= off - tok_base[t][1] <= 4095:
            tok_base[t] = (src, off & ~4095)
            pre_ = [f"s_add_u32 s{S_T+t}, s{src}, {t * (32768 if kd == 1 else TBH) + tok_base[t][1]}"]
        return pre_ + [f"buffer_load_dwordx4 {AT(kd, u, t)}, v{VR}, {SW}, s{S_T+t} offen offset:{off - tok_base[t][1]}"]
    PH_B = [1, 3, 4, 5, 6]; PH_U = [0, 16, 32, 40, 48]
    P_SHR = tail_start + 6
    P_SH_END = tail_start + GPB - 2
    P_PX = 0
    P_PF = tail_start + pf_at
    P_W1S = 0
    P_PW1 = 120
    P_PW2 = tail_start + 3 * GPB
    P_PH = [ph0] + [first_use[(2, u_)] - pb for u_, pb in zip(PH_U[1:], ph_back)]
    P_PPF = P_PH[4] + 2 * chk + 4
    allp = sorted(P_PH + [P_PPF]); assert all(b_ - a_ > 2 * chk for a_, b_ in zip(allp, allp[1:])), allp
    CHK = {1: chk, 2: 2 * chk}
    CT_LAB = [150, 290, 370, 445, 590, 800]
    CT_AT = [20, 190, 300, 380, 470, 640]
    assert P_PPF > 660
    FREE_AT = list(free_at)
    def done_bar(idx):
        if ring[idx][0] == "SH": return P_SH_END
        if ring[idx][0] == "S1": return P_W1S + 20
        last = 16 * real.index(idx) + 15
        return next(p for p in bar_list if p > last)
    def earliest(it):
        if it[1] == "W":
            idx = it[2]
            e = done_bar(idx - NS) if idx >= NS else -1
            if ring[idx][0] == "W2": e = max(e, P_PW2 + CHK[1] + 1)
            if ring[idx][0] == "W1" and 16 * ring[idx][1] + 15 >= tail_start: e = max(e, P_PW1 + CHK[1] + 1)
            return e
        kd, u = it[2]
        if kd == 1: return P_PX + CHK[1] + 1 if u < KT else last_use[(1, u - KT)] + 1
        v_ = u - park
        if v_ < 0: e = FREE_AT[u // 2]
        else: e = last_use[(1, KM + v_ // 2)] + 1 if v_ < 2 * KT else last_use[(2, u - 2 * KT)] + 1
        return max(e, P_PH[max(j for j in range(5) if PH_U[j] <= u)] + CHK[2 if u >= 16 else 1] + 1)
    items = []
    for idx in range(7, NREAL):
        d = tm[P_SHR] - 100 if ring[idx][0] == "SH" else tm[P_W1S] - 40 if ring[idx][0] == "S1" else tm[pub_at[idx]]
        items += [(d, "W", idx, i) for i in range(4)]
    for (kd, u), fu in first_use.items():
        if kd == 1 and u < E: continue
        items += [(tm[fu], "T", (kd, u), t) for t in range(NTk[kd])]
    items.sort(key=lambda x: x[0])
    nxt_t = 1e9; sched = []
    for it in reversed(items):
        late = it[0] >= tm[G2S]
        nxt_t = min(it[0] - (la2 if late else la1), nxt_t - 1.0 / (rate2 if nxt_t > tm[G2S] else rate1))
        e = earliest(it)
        sched.append((max(nxt_t, tm[e] if e >= 0 else -1e9),) + it[1:])
    sched.reverse()
    last_tok = max(x[0] for x in sched if x[1] == "T" and x[2][0] == 1)
    prev = last_tok
    for n_, it in enumerate(sched):
        if it[1] == "W" and it[0] > last_tok and prev < tm[G2S] - 8:
            prev = max(prev + 8, tm[earliest(it)]); sched[n_] = (min(it[0], prev),) + it[1:]
    wq = [x for x in sched if x[1] == "W"]
    wq.sort(key=lambda x: (x[2], x[3]))
    run = 1e9
    for n_ in range(len(wq) - 1, -1, -1):
        e = earliest(wq[n_]); run = min(run, wq[n_][0])
        wq[n_] = (max(run, tm[e] if e >= 0 else -1e9),) + wq[n_][1:]
    prev = max(x[0] for x in sched)
    for idx in range(NREAL, len(ring)):
        for i in range(4 if ring[idx][0] == "NX" else 0):
            prev = max(prev + 6, tm[done_bar(idx - NS)]); wq.append((prev, "W", idx, i))
    items = sorted(wq + [x for x in sched if x[1] == "T"], key=lambda x: x[0])
    prev = -1e9; slackv = []
    for n_, it in enumerate(items):
        if it[0] >= 0:
            prev = max(it[0], prev + 1.0 / (rmax if prev < tm[G2S] else rmax2)); items[n_] = (prev,) + it[1:]
        if it[1] == "T": slackv.append((tm[first_use[it[2]]] - items[n_][0], it[2]))
    MINSL = sorted(slackv)[:3]
    def lines(it):
        return dma(it[2], it[3]) if it[1] == "W" else tok(it[2][0], it[2][1], it[3])
    def record(it, i):
        if it[1] == "W": w_id[it[2]] = i
        else: t_id[(it[2], it[3])] = i
    while items and items[0][0] < 0:
        it = items.pop(0); record(it, k("\n".join(lines(it))))
    def rd(i):
        off = (stage_of(i) % NS) * 16384 + (i % 16) * 1024
        return f"ds_read_b128 a[{AW(i)}:{AW(i)+3}], v{VR + off // 65536} offset:{off % 65536}"
    def gelu4(G, U, P, tb):
        Tm = [tb + e for e in range(4)]
        o = [f"v_mul_f32 v{Tm[e]}, v{G+e}, v{G+e}" for e in range(4)]
        o += [f"v_fmaak_f32 v{Tm[e]}, v{VC2}, v{Tm[e]}, {f32bits(c1):#x}" for e in range(4)]
        o += [f"v_mul_f32 v{Tm[e]}, v{Tm[e]}, v{G+e}" for e in range(4)]
        for e in range(4): o += [f"v_exp_f32 v{Tm[e]}, v{Tm[e]}", f"v_mul_f32 v{U+e}, v{U+e}, v{G+e}"]
        o += [f"v_add_f32 v{Tm[e]}, 1.0, v{Tm[e]}" for e in range(4)]
        o += [f"v_rcp_f32 v{Tm[e]}, v{Tm[e]}" for e in range(4)]
        o += [f"v_mul_f32 v{U+e}, v{U+e}, v{Tm[e]}" for e in range(4)]
        o += [f"v_cvt_pk_bf16_f32 v{P}, v{U}, v{U+1}", f"v_cvt_pk_bf16_f32 v{P+1}, v{U+2}, v{U+3}"]
        return o
    def epilogue(b, t):
        a = acc(1, b, 2 * t); tb = TMP + 4 * t; sr = (S_C, S_E)[t]
        o = gelu4(a, acc(1, 7 + b, 2 * t), a, tb) + gelu4(acc(1, b, 2 * t + 1), acc(1, 7 + b, 2 * t + 1), a + 2, tb)
        o += [f"s_add_u32 s{sr}, s{S_HS}, {8192 * b + 2 * TBH * t}",
              f"v_permlane32_swap_b32 v{a}, v{a+2}", f"v_permlane32_swap_b32 v{a+1}, v{a+3}",
              f"buffer_store_dwordx4 v[{a}:{a+3}], v{VST}, {SW}, s{sr} offen sc1"]
        return [(x, b) for x in o]
    def p_store(p):
        o = []
        for t in range(2 if p >= 0 else 0):
            a = acc(2, 2 * p, t); b = acc(2, 2 * p + 1, t)
            o += [f"v_cvt_pk_bf16_f32 v{a}, v{a}, v{a+1}", f"v_cvt_pk_bf16_f32 v{a+1}, v{a+2}, v{a+3}",
                  f"v_cvt_pk_bf16_f32 v{a+2}, v{b}, v{b+1}", f"v_cvt_pk_bf16_f32 v{a+3}, v{b+2}, v{b+3}",
                  f"s_add_u32 s{S_C}, s{S_PS}, {8192 * t + p * 0x100000}",
                  f"buffer_store_dwordx4 v[{a}:{a+3}], v{VR}, {SW}, s{S_C} offen sc1"]
        return o
    cost = lambda s: 2 if s.startswith(("v_exp", "v_rcp", "v_permlane", "buffer_")) else 1

    published = npre - 1; r_id = {}; rp = 0; FL_AT = []; PE_AT = []; ready_b = -1; ready_at = 0
    while rp < RW - 2:
        r_id[rp] = k(rd(rp)); rp += 1
    seen = set(); epi = [[], []]; q = []; hold = 0; hst = {}; fl_due = {}; fl_next = 0; turn = 0
    last_st = {"h": None, "sh": None, "pf": None}; pend = {}; named = {}
    def emit_q():
        t_, c = q.pop(0)
        if c and c[0] == "L": k.wait(lg=named[c[1]])
        if c and c[0] == "Wv": k.wait(vm=w_id[c[1]])
        id_ = k(t_)
        if not c: return
        if c[0] == "V": record(c[1], id_)
        elif c[0] == "R": r_id[c[1]] = id_
        elif c[0] == "N": named[c[1]] = id_
        elif c[0] == "L": last_st["sh"] = id_
        elif c[0] in ("PF", "PG"): last_st["pf"] = id_
    for i, (kd, u, g) in enumerate(groups):
        NT = NTk[kd]
        if i == tail_start: stamp(7)
        if i == G2S: stamp(8); G2L = len(k.lines)
        if i == T2S and diag == 5: stamp(18)
        if i in bars:
            pub = bars[i]
            assert not any(it[1] == "W" and it[2] <= pub and ring[it[2]][0] not in ("SH", "S1") for it in items), (i, pub)
            while any(c and c[0] == "V" and c[1][1] == "W" and c[1][2] <= pub for _, c in q): emit_q()
            k.wait(vm=w_id[pub]); k("s_barrier"); published = max(published, pub)
        n = 0
        while rp < NGR and rp <= i + RW - 2 and stage_of(rp) <= published and n < 2:
            q.append((rd(rp), ("R", rp))); rp += 1; n += 1
        if items and items[0][0] <= tm[i]:
            it = items.pop(0); ls = lines(it)
            if it[1] == "T" and it[2][0] == 2 and it[2][1] < park:
                assert all((it[2][1] // 2, c_) in hst for c_ in (0, 1)), (i, it)
            q += [(x, None) for x in ls[:-1]] + [(ls[-1], ("V", it))]
        if P_SHR <= i < P_SHR + 16 and (i - P_SHR) % 4 == 0:
            assert not any(it[1] == "W" and ring[it[2]][0] == "SH" for it in items)
            p = (i - P_SHR) // 4
            base = (SH_POS % NS) * 16384
            for h in range(2):
                f = TMP + 8 + 4 * h; off = base + p * 64 + h * 8
                q.append((f"ds_read_b64_tr_b16 v[{f}:{f+1}], v{VS1} offset:{off}", ("Wv", SH_POS + 1)))
                q.append((f"ds_read_b64_tr_b16 v[{f+2}:{f+3}], v{VS1} offset:{off + 2048}", ("N", (p, h))))
        if P_SHR + 2 <= i < P_SHR + 18 and (i - P_SHR) % 4 == 2:
            p = (i - P_SHR) // 4
            q.append((f"s_add_u32 s{S_D}, s{S_D}, s60" if p else f"s_mov_b32 s{S_D}, s{S_SHD}", None))
            for h in range(2):
                f = TMP + 8 + 4 * h
                q.append((f"buffer_store_dwordx4 v[{f}:{f+3}], v{VR}, {SX}, s{S_D} offen offset:{(2048 if chain else 1024)*h} sc1", ("L", (p, h))))
        if ct and i in CT_AT:
            j = CT_AT.index(i)
            q += [(f"v_lshlrev_b32 v{TMP+13}, 3, v{VR}", None), (f"s_mov_b32 s{S_SP}, L_ct{j}-L_body", None),
                  (f"buffer_load_dword v{TMP+14}, v{TMP+13}, s[80:83], s{S_SP} offen", None)]
        if i in CT_LAB: k.label(f"L_ct{CT_LAB.index(i)}")
        if i == P_SH_END + 12:
            k.wait(vm=last_st["sh"]); k(f"s_mov_b64 exec, 1\nbuffer_store_dword v{VTAG}, off, {SX}, s{S_FW2_P} sc1\ns_mov_b64 exec, -1")
        PFR, PFS = (TMP, S_C) if pf_at < GPB else (TMP + 8, S_D)
        if i == P_PF: q += [(f"v_mov_b32 v{PFR+e}, -1", None) for e in range(4)]
        arm = list(range(0 if sent else 4, 8))
        if P_PF <= i < P_PF + len(arm) * pf_step and (i - P_PF) % pf_step == 0:
            t = arm[(i - P_PF) // pf_step]
            q += [(f"s_add_u32 s{PFS}, s{S_PS}, {8192 * (t & 1) + (t >> 1) * 0x100000}", None),
                  (f"buffer_store_dwordx4 v[{PFR}:{PFR+3}], v{VR}, {SW}, s{PFS} offen sc1", ("PF" if PFR == TMP else "PG",))]
        TW_AT = P_PW2 + chk + 4
        if TW_AT <= i < TW_AT + tw * tw_step and (i - TW_AT) % tw_step == 0:
            j = (i - TW_AT) // tw_step
            q += [(f"v_lshlrev_b32 v{TMP+13}, 3, v{VR}", None), (f"s_add_u32 s{S_SP}, s91, {tw0 * 1024 + j * 131072}", None),
                  (f"buffer_load_dword v{TMP+14}, v{TMP+13}, {SW}, s{S_SP} offen", None)]
        if sent and i == P_PF + 8 * pf_step + 30: named["pe"] = (0, last_st["pf"])
        if sent and i == P_PPF - 8: q += [(f"v_and_b32 v{TMP+13}, 60, v{VF}", None), (f"v_lshlrev_b32 v{TMP+13}, 5, v{TMP+13}", None)]
        if not sent and i == NGR - pe_back - 8:
            q += [(f"v_and_b32 v{TMP+13}, 60, v{VF}", None), (f"v_lshlrev_b32 v{TMP+13}, 5, v{TMP+13}", None)]
        if not sent and i == NGR - pe_back: q.append((poll_load(S_FPF_C), ("N", "pe_ld")))
        if "pe" in named and tm[i] >= named["pe"][0]:
            k.wait(vm=named.pop("pe")[1])
            k(flag_store(S_FPF_P)); k(f"s_add_u32 s{S_FPF_P}, s{S_FPF_P}, 0x20000")
            PE_AT.append(i)
        if fl_next in fl_due and tm[i] >= fl_due[fl_next][0]:
            if diag == 4: stamp(12 + 2 * fl_next)
            k.wait(vm=fl_due[fl_next][1])
            if diag == 4: stamp(13 + 2 * fl_next)
            k(flag_store(S_FH_P)); k(f"s_add_u32 s{S_FH_P}, s{S_FH_P}, 0x4000")
            FL_AT.append(i); fl_next += 1
        polls = [(P_PW1, S_FW1_C, "w1", 1), (P_PW2, S_FW2_C, 56, 1)] + [(P_PH[j], S_FH_C, 16, j + 1) for j in range(4)] + [(P_PPF if sent else -100, S_FPF_C, 16, 1), (P_PX, S_FXN_C, 8, 1), (P_PH[4], S_FH_C, 16, 5)]
        for z, (pos, soff, n_, lvl) in enumerate(polls):
            if i == pos: pend[pos] = k(poll_load(soff))
            if i == pos + CHK[kd] and pos in pend:
                if z >= 7: z += 1
                if diag == 3: stamp(12 + 2 * z)
                poll_check(pend.pop(pos), soff, n_, lvl)
                if soff == S_FH_C: k(f"s_add_u32 s{S_FH_C}, s{S_FH_C}, 0x4000")
                if diag == 3: stamp(13 + 2 * z)
        if tail_start + GPB <= i <= G2S and (i - tail_start) % GPB == 0:
            b = (i - tail_start) // GPB - 1
            assert not any(c_ and c_[0] == "PF" for _, c_ in q)
            if not epi[0] and not epi[1]: hold = 4
            for t in range(2): epi[t] += epilogue(b, t)
            ready_b = b; ready_at = tm[i] + 4
        if i > T2S and (i - T2S) % (2 * KT2) == 4:
            assert fl_next == 5 and not epi[0]
            pp_ = (i - T2S) // (2 * KT2) - 1
            epi[0] += [(x, 100 + pp_) for x in p_store(pp_)]
        if i == G2S: assert all(x[1] >= 4 for c_ in epi for x in c_)
        def waits(i, kd, u, t):
            if i not in r_id or ((kd, u), t) not in t_id: return None
            lgw = r_id[i]
            if lgw > k.lg_done:
                for j in range(1, wgran):
                    if i + j in r_id and k.nlg - r_id[i + j] >= 2: lgw = r_id[i + j]
            vmw = t_id[((kd, u), t)]
            if vmw > k.vm_done and i > 28 and ((kd, u), NTk[kd] - 1) in t_id: vmw = t_id[((kd, u), NTk[kd] - 1)]
            return vmw, lgw
        def pick(i, j):
            if not chain: return i, j
            m = (i & 1) * NTk[groups[i][0]] + j
            n, e = m >> 1, m & 1
            if zig:
                e ^= n & 1
                if (i >> 1) & 1: n = NTk[groups[i][0]] - 1 - n
            return (i & ~1) + e, n
        def waits2(i, j):
            gi, tt = pick(i, j)
            return waits(gi, groups[gi][0], groups[gi][1], tt)
        for t in range(NT):
            while waits2(i, t) is None: emit_q()
            vmw, lgw = waits2(i, t)
            k.wait(vm=vmw, lg=lgw)
            gi, tt = pick(i, t)
            a = acc(kd, g, tt)
            c = f"v[{a}:{a+3}]" if (kd, g, tt) in seen else "0"
            seen.add((kd, g, tt))
            at = AT(kd, groups[gi][1], tt)
            k(f"v_mfma_f32_16x16x32_bf16 v[{a}:{a+3}], a[{AW(gi)}:{AW(gi)+3}], {at}, {c}")
            budget = 2 if kd == 1 else b2
            if len(epi[0]) + len(epi[1]) > thr and (tm[i] + t) % 2 == 0: budget += 1
            if t + 1 < NT: nw = waits2(i, t + 1)
            elif i + 1 < NGR:
                nw = waits2(i + 1, 0)
                if i + 1 in bars: budget -= 1
            else: nw = (0, 0)
            if nw is None or nw[0] > k.vm_done or nw[1] > k.lg_done: budget -= 1
            used = 0
            while q and used < 2:
                mem = q[0][0].startswith(("ds_", "buffer_"))
                c_ = cost(q[0][0])
                if (mem and used) or (c_ > budget and not (len(q) > 5 and used == 0)): break
                if used and len(q) <= NT - t: break
                emit_q(); budget -= c_; used += 1
            while budget > 0:
                ok = [c_ for c_ in (turn, 1 - turn) if epi[c_] and cost(epi[c_][0][0]) <= budget
                      and not (epi[c_][0][1] == ready_b and tm[i] + t < ready_at)]
                if not ok: break
                big = [c_ for c_ in ok if cost(epi[c_][0][0]) == 2]
                c_ = big[0] if big else ok[0]
                if abs(len(epi[c_]) - len(epi[1 - c_])) > 24 and len(epi[c_]) < len(epi[1 - c_]):
                    if 1 - c_ in ok: c_ = 1 - c_
                    else: break
                x, b = epi[c_].pop(0); budget -= cost(x); turn = 1 - c_
                id_ = k(x)
                if b == 101 and not epi[0] and not sent: named["pe"] = (tm[i] + t + pe_lag, id_)
                if x.startswith("buffer_store") and b < 7:
                    hst[(b, c_)] = id_
                    if b in PH_B and (b, 0) in hst and (b, 1) in hst:
                        fl_due[PH_B.index(b)] = (tm[i] + t + fl_lag, id_)
    while epi[0] and epi[0][0][1] == 102: k(epi[0].pop(0)[0])
    assert len(PE_AT) == 1
    assert not items and not epi[0] and not epi[1] and not q and not pend and fl_next == 5
    assert all(tm[f] + 60 < tm[p] for f, p in zip(FL_AT, P_PH)), (FL_AT, P_PH)
    k.info = dict(pe=(PE_AT, NGR), minsl=[(int(a_), b_) for a_, b_ in MINSL], flags=FL_AT, polls=P_PH, slack=[tm[p] - tm[f] for f, p in zip(FL_AT, P_PH)])
    if abl:
        keep = []
        for l in k.lines[G2L:]:
            x = l.strip()
            if "T" in abl and x.startswith("buffer_load_dwordx4 a["): continue
            if "W" in abl and x.endswith(" lds"): continue
            if "D" in abl and x.startswith("ds_read_b128"): continue
            if "B" in abl and x == "s_barrier": continue
            if "V" in abl and x.startswith(("v_mul", "v_fmaak", "v_exp", "v_rcp", "v_add_f32")): continue
            keep.append(l)
        k.lines[G2L:] = keep
    stamp(9)
    PP = 160
    for x in p_store(3): k(x)
    if not sent:
        pe_ld = named["pe_ld"]
        k(flag_store(S_FPF_P)); k(f"s_add_u32 s{S_FPF_P}, s{S_FPF_P}, 0x20000")
    VRL = TMP + 15
    k(f"s_lshl_b32 s{S_B}, s{S_LAY}, 23\ns_add_u32 s{S_B}, s{S_B}, s{S_ROWL}")
    k(f"v_lshrrev_b32 v{TMP+14}, 12, v{VROW}\nv_and_b32 v{VRL}, 0x3ff, v{VROW}\nv_lshl_add_u32 v{VRL}, v{TMP+14}, 10, v{VRL}")
    def p_loads(which):
        def f():
            for i in which:
                for j in range(2):
                    r = PP + 8 * i + 4 * j
                    k(f"s_add_u32 s{S_C}, s{S_B}, {WS_P + j*MB4 + i*0x100000}")
                    x = k(f"buffer_load_dwordx4 v[{r}:{r+3}], v{VRL}, {SW}, s{S_C} offen sc1")
            return x
        return f
    def add_p(which):
        for i in which:
            for e in range(8 * i, 8 * i + 8, 2):
                for j in range(2):
                    r = PP + 8 * i + 4 * j + (e % 8) // 2
                    unpk(k, T + 2 * j, r, 0); unpk(k, T + 2 * j + 1, r, 1)
                k(f"v_pk_add_f32 v[{T}:{T+1}], v[{T}:{T+1}], v[{T+2}:{T+3}]")
                k(f"v_pk_add_f32 v[{X+e}:{X+e+1}], v[{X+e}:{X+e+1}], v[{T}:{T+1}]")
                k(f"v_cvt_pk_bf16_f32 v{XP+e//2}, v{X+e}, v{X+e+1}")
                unpk(k, X + e, XP + e // 2, 0); unpk(k, X + e + 1, XP + e // 2, 1)
    if not sent:
        if diag == 5: stamp(12)
        poll_check(pe_ld, S_FPF_C, 16)
        if diag == 5: stamp(13)
        e_ld = p_loads((0, 1))()
        k(f"s_add_u32 s{S_FPF_C}, s{S_FPF_C}, 0x20000")
        row_addr()
        for i in range(4): k(f"ds_read_b128 v[{XP+4*i}:{XP+4*i+3}], v{AL} offset:{16384 + 4096*i}")
        for i in range(4): k(f"ds_read_b128 v[{YP+4*i}:{YP+4*i+3}], v{AL} offset:{4096*i}")
        pl_ld = k(poll_load(S_FPF_C))
        k("s_waitcnt lgkmcnt(0)")
        unpack(X, XP)
        if diag == 5: stamp(14)
        poll_check(pl_ld, S_FPF_C, 16)
        if diag == 5: stamp(15)
        k(f"s_add_u32 s{S_FPF_C}, s{S_FPF_C}, 0x20000")
        def mid():
            k("s_barrier")
            add_p((0, 1)); unpack(Yf, YP)
            if diag == 5: stamp(16)
        sentinel_loop("L_ppoll", p_loads((2, 3)), range(PP + 16, PP + 32), mid)
    else:
        if diag == 5: stamp(12); stamp(13)
        k(f"s_add_u32 s{S_FPF_C}, s{S_FPF_C}, 0x20000")
        def first():
            row_addr()
            for i in range(4): k(f"ds_read_b128 v[{XP+4*i}:{XP+4*i+3}], v{AL} offset:{16384 + 4096*i}")
            for i in range(4): k(f"ds_read_b128 v[{YP+4*i}:{YP+4*i+3}], v{AL} offset:{4096*i}")
            k("s_waitcnt lgkmcnt(0)\ns_barrier")
            unpack(X, XP); unpack(Yf, YP)
            if diag == 5: stamp(14)
        if ord2:
            sentinel_loop("L_ppoll2", p_loads((0, 1, 2)), range(PP, PP + 24), first)
            if diag == 5: stamp(15)
            sentinel_loop("L_ppoll", p_loads((3,)), range(PP + 24, PP + 32), lambda: add_p((0, 1, 2)))
        else:
            p_loads((0, 1, 2))()
            first()
            sentinel_loop("L_ppoll", p_loads((3,)), range(PP + 24, PP + 32))
            if diag == 5: stamp(15)
            sentinel_loop("L_ppoll2", p_loads((0, 1, 2)), range(PP, PP + 24), skip_first=True)
        if diag == 5: stamp(16)
    stamp(10)
    k(f"s_cmp_lg_u32 s{S_LAY}, 0\ns_cbranch_scc1 L_final")
    def tail_math():
        add_p((2, 3) if not sent else (3,) if ord2 else (0, 1, 2, 3)); stats(0)
    weave(tail_math, range(npre2), 200)
    stamp(11)
    if diag: k(f"v_mov_b32 v{VSTAMP-1}, v{VSTAMP}")
    k(f"""
    s_mov_b32 s{S_LAY}, 1
    s_mov_b32 s26, 0
    s_mov_b32 s30, 0
    s_add_u32 s{S_XN}, s{S_XN}, {MB4}
    s_add_u32 s{S_HL}, s{S_HL}, {H_STRIDE}
    s_add_u32 s{S_HS}, s{S_HS}, {H_STRIDE}
    s_add_u32 s{S_PS}, s{S_PS}, {2*MB4}
    s_add_u32 s{S_FXN_P}, s{S_FXN_P}, 0x4000
    s_add_u32 s{S_FXN_C}, s{S_FXN_C}, 0x4000
    s_branch L_layer
    """)
    k.label("L_final")
    add_p((2, 3) if not sent else (3,) if ord2 else (0, 1, 2, 3))
    k(f"s_or_b32 s16, s2, s17\ns_cbranch_scc1 L_noepoch\ns_add_u32 s87, s87, 1\nv_mov_b32 v{VP}, s87\ns_mov_b32 s16, {WS_FLAG + F_EPOCH}")
    k(f"s_mov_b64 exec, 1\nbuffer_store_dword v{VP}, off, {SW}, s16 sc1\ns_mov_b64 exec, -1")
    k.label("L_noepoch")
    srd(k, 32, 6, MB4)
    for i in range(4): k(f"buffer_store_dwordx4 v[{XP+4*i}:{XP+4*i+3}], v{AO}, s[32:35], s{S_ROWY} offen offset:{64*i} {outm}")
    if diag:
        k("s_waitcnt vmcnt(0)"); stamp(11)
        if diag == 7:
            k(f"s_cmp_lg_u32 s2, {dbg_wg}\ns_cbranch_scc1 L_nodbg\ns_cmp_lg_u32 s17, 0\ns_cbranch_scc1 L_nodbg")
            k(f"s_load_dwordx2 s[32:33], s[0:1], {ARG['dbg']}\nv_readlane_b32 s12, v{VSTAMP}, 12\nv_mov_b32 v8, 0")
            sel = [(1, x) for x in (26, 27, 1, 2, 3, 4, 5, 6, 7, 8, 9, 10)] + [(0, x) for x in (6, 8, 9, 11)]
            for n_, (w_, x) in enumerate(sel):
                k(f"v_readlane_b32 s13, v{VSTAMP - w_}, {x}\ns_nop 3\ns_sub_u32 s13, s13, s12\nv_writelane_b32 v8, s13, {n_}")
            k(f"s_waitcnt lgkmcnt(0)\ns_mov_b32 s34, 64\ns_mov_b32 s35, 0x20000\nbuffer_store_dword v8, v{VF}, s[32:35], 0 offen")
            k.label("L_nodbg")
        k(f"s_lshl_b32 s12, s2, 11\ns_lshl_b32 s13, s17, 9\ns_add_u32 s12, s12, s13\ns_add_u32 s12, s12, 0x8100000")
        k(f"buffer_store_dword v{VSTAMP-1}, v{VF}, {SW}, s12 offen\nbuffer_store_dword v{VSTAMP}, v{VF}, {SW}, s12 offen offset:256")
    k("s_endpgm")
    for lab, pre_, body in slow:
        k.label(lab); k("\n".join(pre_))
        k.label(lab + "_l"); k("\n".join(body)); k(f"s_cbranch_scc1 {lab}_l")
        k.label(lab + "_out"); k(f"s_waitcnt vmcnt(0)\ns_branch {lab}_ok")
    k.label("L_end"); k("s_endpgm")
    return (k, 512, 256), (k.name, 256, 256, 163840)

HEADER = open("interleave_layers__ssm_conv_h3__glu_gated_geglu__prompt.s.ref").read().split("; Override launch")[0]

def build(path, stamps=False, as_list=True, hpad=0, wpad=0, **kw):
    global TBH, W1T, W2T
    TBH = 224 * 512 + hpad; W1T = 448 + wpad; W2T = 448 + wpad
    asmlib.STAMPS[0] = stamps
    kk, l = gen_mega(**kw)
    txt = module(HEADER, [l], [kk])
    if not as_list: txt = txt.replace(f"; @launch kernel={l[0]} ", "; @launch ")
    txt = "\n".join(x.strip() if x.startswith("    ") else x for x in txt.split("\n"))
    open(path, "w").write(txt)
    return len(kk[0].lines), kk[0].padded, kk[0].info

if __name__ == "__main__":
    print(build("v10.s")); build("v10s.s", stamps=True); build("v10f.s", stamps=3)
```

```python
import math, struct, sys
import asmlib
from asmlib import *

MB4 = 0x400000
WS_TOTAL = 0x10000000
WS_Y, WS_KV = 0x0, 0x400000
WS_XN = 0x900000
WS_P = 0x5400000
WS_H = 0x1200000
H_STRIDE = 0x1000000
WS_W1, WS_W2, WS_FLAG = 0x3200000, 0x4200000, 0x5200000
WS_PL = 0x9000000
F_W0 = 0x14000
F_PE = 0x80000
W1T, W2T = 448, 448
F_W1, F_W2, F_PF, F_H, F_XN, F_KV, F_ARM, F_EPOCH = 0x0, 0x1000, 0x2000, 0x20000, 0x8000, 0x100000, 0x11000, 0x12000
H_BYTES = 2048 * 3584 * 2
W_BYTES = 1024 * 3584 * 2
TBH = 224 * 512
ARG = dict(q=0, k=8, v=16, shift=24, ssm=32, D=40, wg=56, wu=64, wd=72, out=80, dbg=88, ws=96)
lg = lambda x: x.bit_length() - 1
f32bits = lambda x: struct.unpack("<I", struct.pack("<f", x))[0]
SPIN = 0x20000

def srd(k, d, base, nbytes, off=0):
    if off: k(f"s_add_u32 s{d}, s{base}, {off:#x}\ns_addc_u32 s{d+1}, s{base+1}, 0")
    else: k(f"s_mov_b32 s{d}, s{base}\ns_mov_b32 s{d+1}, s{base+1}")
    k(f"s_mov_b32 s{d+2}, {nbytes:#x}\ns_mov_b32 s{d+3}, 0x20000")

def unpk(k, dst, src, hi):
    k(f"v_and_b32 v{dst}, 0xffff0000, v{src}" if hi else f"v_lshlrev_b32 v{dst}, 16, v{src}")

def touch_code(k, first, last, vaddr, vdst, sb, v0=0, n=1, step=32768):
    k.nl += 1
    here = f"L_{k.name}_pc{k.nl}"
    k(f"s_getpc_b64 s[{sb}:{sb+1}]")
    k.label(here)
    k(f"""
    s_add_u32 s{sb}, s{sb}, {first}-{here}
    s_addc_u32 s{sb+1}, s{sb+1}, 0
    s_mov_b32 s{sb+2}, {last}-{first}
    s_mov_b32 s{sb+3}, 0x20000
    v_lshlrev_b32 v{vaddr}, 7, v{v0}
    """)
    for i in range(n):
        if i: k(f"v_add_u32 v{vaddr}, {step}, v{vaddr}")
        k(f"buffer_load_dword v{vdst}, v{vaddr}, s[{sb}:{sb+3}], 0 offen")

CS = 4160; XS = 4640; CH_LDS = 4 * CS + 2 * XS; CONV_LDS = 4 * CH_LDS
NS = 8; RW = 8
LDS_Y, LDS_XR, LDS_ST = 131072, 147456, 131072 - 512
S_LAY, S_WAVE, S_WS = 3, 17, 8
SW = "s[20:23]"; SD = "s[24:27]"; SX = "s[28:31]"
(S_M0, S_W1, S_W2, S_XN, S_HL, S_HS, S_PS, S_ROWF, S_ROWY, S_FH_P, S_FH_C, S_FW2_P, S_FW2_C, S_FPF_P, S_FPF_C,
 S_FXN_P, S_FXN_C, S_SHA, S_SHB, S_SHD, S_HS6) = range(36, 57)
S_FW1_C = 19
S_PL, S_ROWL, S_TAG16, S_MSK = 56, 88, 89, 90
S_N = 68
S_DMA, S_SP, S_T = 57, 58, 10
S_A, S_B, S_C, S_D, S_E = 14, 15, 16, 18, 59
VR, VD, VST, VC2, VF, VTID, VS0, VS1, VROW, VP, VF16 = 224, 226, 227, 228, 229, 230, 231, 232, 233, 234, 235
TMP = 236
VTAG = 253
VSTAMP = 255

def gen_mega(KT=14, la_bar=5, la1=260, rate1=0.175, la2=96, rate2=0.225, wgran=2, rep=4, nap=3, q_step=1, r1_step=6, arm_step=0, npre=4, npre2=7, w0_at=3, sh_step=4, chain=True, bper=2, zig=True, cchain=False, q_at=1, wsteps=(0, 0, 0, 0, 0, 0, 1, 1, 1, 1, 1, 1, 2, 2, 2, 2), a_step=3, sh_pos=17, shr=258, sh_lead=100, pw2=336, ord2=True, swz=4, kvnt='', qnt='', hnt='', dnt='', outm='nt', dbg_wg=77, now=0, wnt='', ct=True, pnap=2, ph_back=(90, 100, 100, 90), b2=3, fl_lag=48, thr=170, chk=10, pf_step=4, pf_at=44, pe_back=6, sent=True, park=8, free_at=(335, 368, 402, 434), ph0=392, tw=0, tw0=96, tw_step=8, pe_lag=32, rmax=0.2, rmax2=0.25, w1_step=1, w1s=2, E=2, e_late=True, KT2=12, abl=""):
    k = K("interleave_layers__ssm_conv_h3__glu_gated_geglu__prompt_kernel")
    diag = asmlib.STAMPS[0]
    def stamp(i):
        if diag:
            k(f"s_memrealtime s[64:65]\ns_memtime s[66:67]\ns_waitcnt lgkmcnt(0)\nv_writelane_b32 v{VSTAMP}, s64, {i}\nv_writelane_b32 v{VSTAMP}, s66, {32 + i}")
    slow = []
    def poll_load(soff, width=1):
        if width == "w0": return f"buffer_load_dwordx2 v[{TMP}:{TMP+1}], v{TMP+13}, {SW}, s{soff} offen sc1"
        if width == "arm": return f"buffer_load_dwordx4 v[{TMP}:{TMP+3}], v{VR}, {SW}, s{soff} offen sc1"
        va = VF if soff in (S_FW1_C, S_FW2_C) else TMP + 13 if soff in (S_FPF_C, S_FKV) else VF16
        return f"buffer_load_dword v{VP}, v{va}, {SW}, s{soff} offen sc1"
    def poll_test(n, width, soff):
        if n == "w0":
            return [f"v_xor_b32 v{TMP}, v{TMP}, v{VTAG}", f"v_xor_b32 v{TMP+1}, v{TMP+1}, v{VTAG}", f"v_or_b32 v{VP}, v{TMP}, v{TMP+1}",
                    f"v_cmp_ne_u32 vcc, 0, v{VP}", f"s_or_b32 s{S_A}, vcc_lo, vcc_hi", f"s_and_b32 s{S_A}, s{S_A}, {(1 << (32 - KT)) - 1:#x}"]
        if n == "arm":
            o = [f"v_xor_b32 v{TMP+i}, v{TMP+i}, v{VTAG}" for i in range(4)]
            o += [f"v_or3_b32 v{VP}, v{TMP}, v{TMP+1}, v{TMP+2}", f"v_or_b32 v{VP}, v{VP}, v{TMP+3}", f"v_cmp_ne_u32 vcc, 0, v{VP}"]
            n = 64
        else: o = [f"v_cmp_ne_u32 vcc, v{VTAG}, v{VP}"]
        if n == "w1": o += [f"s_or_b32 s{S_A}, vcc_lo, vcc_hi", f"s_and_b32 s{S_A}, s{S_A}, {(1 << (2 * KT)) - 1:#x}"]
        elif n <= 32: o.append(f"s_and_b32 s{S_A}, vcc_lo, {(1 << n) - 1:#x}")
        elif n < 64: o += [f"s_and_b32 s{S_A}, vcc_hi, {(1 << (n - 32)) - 1:#x}", f"s_or_b32 s{S_A}, s{S_A}, vcc_lo"]
        else: o.append(f"s_or_b32 s{S_A}, vcc_lo, vcc_hi")
        return o
    def poll_check(ld, soff, n, width=1):
        k.nl += 1; lab = f"L_poll{k.nl}"
        k.wait(vm=ld)
        k("\n".join(poll_test(n, width, soff)) + f"\ns_cbranch_scc1 {lab}")
        k.label(lab + "_ok")
        slow.append((lab, [f"s_mov_b32 s{S_SP}, {SPIN}"], [f"s_sleep {nap}", poll_load(soff, n if n in ("arm", "w0") else width), f"s_sub_u32 s{S_SP}, s{S_SP}, 1", f"s_cbranch_scc1 {lab}_out",
                    "s_waitcnt vmcnt(0)"] + poll_test(n, width, soff)))
    def flag_store(soff):
        if soff in (S_FPF_P, 78):
            return f"s_mov_b32 exec_hi, 0\nbuffer_store_dword v{VTAG}, v{VF16}, {SW}, s{soff} offen sc1\ns_mov_b32 exec_hi, -1"
        return f"s_mov_b64 exec, 1\nbuffer_store_dword v{VTAG}, off, {SW}, s{soff} sc1\ns_mov_b64 exec, -1"

    c1 = -2 * math.sqrt(2 / math.pi) * math.log2(math.e)
    k("s_cmp_ge_u32 s2, 256\ns_cbranch_scc1 L_end")
    S_FKV = 69
    if diag == 7: k(f"v_mov_b32 v{VSTAMP}, 0"); stamp(12)
    k(f"""
    s_load_dwordx4 s[72:75], s[0:1], {ARG['k']}
    s_load_dwordx2 s[8:9], s[0:1], {ARG['ws']}
    s_load_dwordx2 s[76:77], s[0:1], {ARG['shift']}
    s_load_dwordx4 s[4:7], s[0:1], {ARG['ssm']}
    s_load_dwordx4 s[12:15], s[0:1], {ARG['wg']}
    s_load_dwordx2 s[10:11], s[0:1], {ARG['q']}
    s_and_b32 s59, s2, 7
    s_lshr_b32 s60, s2, 3
    s_lshl_b32 s16, s60, 4
    v_and_b32 v3, 15, v0
    v_add_u32 v3, s16, v3
    """)
    touch_code(k, "L_body", "L_end", 4, 51, 80, v0=3)
    k.label("L_body")
    GS = 1056; KB = CONV_LDS; VB = KB + 17 * GS
    k(f"""
    v_lshrrev_b32 v1, 6, v0
    v_and_b32 v2, 63, v0
    v_readfirstlane_b32 s17, v1
    s_lshl_b32 s61, s59, 5
    s_add_u32 s61, s61, s60
    s_and_b32 s16, s61, 15
    s_lshl_b32 s16, s16, 18
    s_lshr_b32 s18, s61, 4
    s_lshl_b32 s18, s18, 7
    s_add_u32 s16, s16, s18
    v_lshrrev_b32 v3, 3, v2
    v_lshlrev_b32 v3, 11, v3
    v_and_b32 v7, 7, v2
    v_lshl_add_u32 v3, v7, 4, v3
    v_add_u32 v3, s16, v3
    v_subrev_u32 v8, 0x4000, v3
    s_lshl_b32 s84, s17, 16
    s_mul_i32 s85, s17, {4*GS}
    s_and_b32 s16, s61, 0xf0
    v_bfe_u32 v49, v0, 3, 3
    v_lshrrev_b32 v9, 7, v0
    v_lshl_add_u32 v49, v9, 3, v49
    v_add_u32 v9, s16, v49
    v_lshlrev_b32 v7, 5, v9
    """)
    if diag and diag != 7: k(f"v_mov_b32 v{VSTAMP}, 0")
    k("s_waitcnt lgkmcnt(0)")
    srd(k, 24, 72, MB4); srd(k, 28, 74, MB4); srd(k, 32, 76, 8192)
    k(f"s_mov_b32 m0, {KB}\ns_nop 0\nbuffer_load_dwordx4 v8, s[24:27], 0 offen {kvnt} lds")
    for base, sr in ((KB + GS, "s[24:27]"), (VB, "s[28:31]")):
        for j in range(4):
            k(f"s_add_u32 m0, s85, {base + j*GS}\ns_add_u32 s16, s84, {j*16384}")
            k(f"buffer_load_dwordx4 v3, {sr}, s16 offen {kvnt} lds")
    k("buffer_load_dwordx4 v[108:111], v7, s[32:35], 0 offen")
    lkv = k("buffer_load_dwordx4 v[112:115], v7, s[32:35], 0 offen offset:16")
    stamp(0)
    k(f"s_add_u32 s70, s8, {WS_FLAG + F_EPOCH}\ns_addc_u32 s71, s9, 0\ns_load_dword s87, s[70:71], 0")
    srd(k, 20, 8, WS_TOTAL); srd(k, 28, 8, WS_TOTAL); srd(k, 92, 10, MB4)
    KM = 32 - KT
    assert KM == 18
    k(f"""
    s_mov_b32 s{S_LAY}, 0
    v_mov_b32 v{VTID}, v0
    v_lshlrev_b32 v{VR}, 4, v2
    s_lshl_b32 s18, s61, 2
    s_add_u32 s18, s18, s17
    s_mul_i32 s62, s17, {CH_LDS}
    s_lshl_b32 s16, s18, 12
    s_add_u32 s64, s4, s16
    s_addc_u32 s65, s5, 0
    s_add_u32 s16, s16, {WS_KV}
    s_add_u32 s88, s8, s16
    s_addc_u32 s89, s9, 0
    s_mov_b32 s90, 4096
    s_mov_b32 s91, 0x20000
    s_and_b32 s16, s18, 0xfffffffe
    s_lshl_b32 s16, s16, 1
    s_add_u32 s6, s6, s16
    s_addc_u32 s7, s7, 0
    s_mov_b32 s24, s64
    s_mov_b32 s25, s65
    s_mov_b32 s26, 4096
    s_load_dword s63, s[6:7], 0
    s_load_dwordx4 s[4:7], s[0:1], {ARG['wd']}
    s_mov_b32 s84, 4096
    s_mov_b32 s85, 8192
    s_mov_b32 s86, 12288
    v_and_b32 v48, 7, v0
    v_bfe_u32 v10, v0, 6, 1
    v_lshl_add_u32 v48, v10, 3, v48
    v_mul_u32_u24 v52, {GS}, v48
    v_lshl_add_u32 v52, v49, 3, v52
    v_add_u32 v52, {KB}, v52
    s_and_b32 s16, s61, 15
    s_lshl_b32 s16, s16, 4
    v_add_u32 v48, s16, v48
    v_sub_u32 v50, 255, v48
    v_lshlrev_b32 v50, 4, v50
    v_lshl_add_u32 v50, v9, 14, v50
    v_add_u32 v50, {WS_KV}, v50
    s_lshr_b32 s32, s59, 1
    s_lshl_b32 s32, s32, 2
    s_and_b32 s33, s60, 3
    s_add_u32 s32, s32, s33
    s_and_b32 s33, s59, 1
    s_lshr_b32 s34, s60, 2
    s_lshl_b32 s35, s33, 3
    s_add_u32 s35, s35, s34
    s_lshl_b32 s19, s32, 4
    s_add_u32 s19, s19, s35
    s_lshl_b32 s{S_ROWY}, s19, 14
    s_lshr_b32 s45, s19, 1
    s_lshl_b32 s45, s45, 15
    s_and_b32 s16, s19, 1
    s_lshl_b32 s16, s16, 7
    s_add_u32 s45, s45, s16
    s_and_b32 s16, s17, 1
    s_lshl_b32 s16, s16, 11
    s_add_u32 s45, s45, s16
    s_lshr_b32 s16, s17, 1
    s_lshl_b32 s16, s16, 22
    s_add_u32 s45, s45, s16
    s_add_u32 s45, s45, {WS_XN}
    v_and_b32 v8, 7, v0
    v_lshrrev_b32 v9, 3, v2
    v_lshlrev_b32 v15, 4, v8
    v_lshl_add_u32 v15, v9, 8, v15
    v_lshrrev_b32 v9, 3, v0
    v_and_b32 v13, 3, v9
    v_lshrrev_b32 v9, 2, v9
    v_lshl_add_u32 v9, v9, 4, v13
    v_lshlrev_b32 v53, 11, v8
    v_lshl_add_u32 v53, v9, 4, v53
    v_lshlrev_b32 v{VROW}, 4, v8
    v_lshl_add_u32 v{VROW}, v9, 8, v{VROW}
    v_mov_b32 v16, -1
    v_mov_b32 v17, -1
    v_mov_b32 v18, -1
    v_mov_b32 v19, -1
    v_lshlrev_b32 v14, 4, v0
    v_and_b32 v61, 15, v2
    v_lshrrev_b32 v62, 4, v2
    v_lshlrev_b32 v63, 2, v61
    v_lshl_add_u32 v63, v62, 4, v63
    v_mul_u32_u24 v54, 7168, v62
    v_lshl_add_u32 v54, v61, 4, v54
    s_lshl_b32 s11, s17, 13
    s_add_u32 s11, s11, {CONV_LDS}
    """)
    assert E <= 4
    so = ["0", "s84", "s85", "s86"]
    A = lambda buf, p: 64 + buf * 64 + 4 * p
    B = lambda buf, j: 96 + buf * 64 + 4 * j
    AD = 40; HR = 192; QP = 20
    for w in range(4): k(f"v_subrev_u32 v{4+w}, {60-4*w}, v63")
    OFFS = [[36 + i for i in range(8)], [70 + i for i in range(8)]]
    WSRC, WBASE, WFLAG = (49, 50), ((52, 53), (54, 55)), (46, 47)
    assert all((x * 9363) >> 16 == x // 7 for x in range(232))
    k("s_waitcnt lgkmcnt(0)")
    for r in range(2):
        k(f"s_mul_i32 s10, s2, {3 if r else 4}\ns_add_u32 s10, s10, s17\ns_add_u32 s10, s10, {1024 * r}")
        k(f"""
        s_mul_hi_u32 s48, s10, {-(-(1 << 32) // 28)}
        s_mul_i32 s16, s48, 28
        s_sub_u32 s10, s10, s16
        s_and_b32 s51, s48, 1
        s_lshr_b32 s48, s48, 1
        s_cmp_eq_u32 s51, 0
        s_cselect_b32 s{WBASE[r][0]}, s12, s14
        s_cselect_b32 s{WBASE[r][1]}, s13, s15
        s_mul_i32 s{WSRC[r]}, s48, {32*7168}
        s_lshl_b32 s16, s10, 8
        s_add_u32 s{WSRC[r]}, s{WSRC[r]}, s16
        s_lshl_b32 s56, s48, 1
        s_add_u32 s56, s56, s51
        s_lshl_b32 s56, s56, 2
        s_lshl_b32 s16, s10, 7
        s_add_u32 s56, s56, s16
        s_add_u32 s56, s56, {WS_FLAG + F_W1 - 8*KM}
        s_and_b32 s57, s48, 1
        s_sub_u32 s58, s48, s57
        s_mul_i32 s64, s58, 14
        s_mul_i32 s16, s51, 14
        s_add_u32 s64, s64, s16
        s_lshl_b32 s65, s58, 1
        s_lshl_b32 s16, s51, 1
        s_add_u32 s65, s65, s16
        s_add_u32 s65, s65, {12*KM}
        s_cmp_lt_u32 s48, {KM}
        s_cselect_b32 s64, s64, s65
        s_cselect_b32 s65, 2, {2*KT}
        s_cselect_b32 s{WFLAG[r]}, 0, s56
        s_add_u32 s64, s64, s57
        s_add_u32 s64, s64, {WS_W1 >> 10}
        s_lshl_b32 s10, s10, 3
        s_mul_i32 s56, s10, 9363
        s_lshr_b32 s56, s56, 16
        s_mul_i32 s57, s56, 7
        s_sub_u32 s57, s10, s57
        s_mul_i32 s56, s56, {W1T}
        s_add_u32 s64, s64, s56
        s_mul_i32 s56, s57, s65
        s_add_u32 s64, s64, s56
        s_lshl_b32 s64, s64, 10
        s_lshl_b32 s65, s65, 10
        s_mul_i32 s58, s65, 6
        s_sub_u32 s58, {W1T * 1024}, s58
        """)
        for i in range(8):
            k(f"s_mov_b32 s{OFFS[r][i]}, s64")
            if i < 7: k(f"s_cmp_eq_u32 s57, {(6 - i) % 7}\ns_cselect_b32 s16, s58, s65\ns_add_u32 s64, s64, s16")
    assert chain
    k(f"s_cmp_eq_u32 s17, 3\ns_cselect_b32 s{WFLAG[1]}, 0, s{WFLAG[1]}\ns_cselect_b32 s30, 0, s30\ns_cselect_b32 s51, 0, {0 if now & 2 else W_BYTES}")
    def w_srd(r):
        return f"s_mov_b32 s24, s{WBASE[r][0]}\ns_mov_b32 s25, s{WBASE[r][1]}\ns_mov_b32 s26, {'s51' if r else 0 if now & 1 else W_BYTES}"
    def w_load(r, j):
        return [f"s_add_u32 m0, s11, {1024*j + 32768*r}", f"s_add_u32 s12, s{WSRC[r]}, {4*7168*j}", f"buffer_load_dwordx4 v54, s[24:27], s12 offen {wnt} lds"]
    k(f"""
    v_and_b32 v8, 3, v61
    v_mul_u32_u24 v8, {CS}, v8
    v_lshrrev_b32 v9, 2, v61
    v_add_u32 v9, v9, v62
    v_lshl_add_u32 v56, v9, 4, v8
    v_add_u32 v56, s62, v56
    v_lshrrev_b32 v8, 3, v61
    v_mul_u32_u24 v9, {XS}, v8
    v_and_b32 v10, 7, v61
    v_lshlrev_b32 v13, 6, v10
    v_sub_u32 v9, v9, v13
    v_lshl_add_u32 v9, v62, 4, v9
    v_add_u32 v9, {4*CS + 4032 - 3584}, v9
    v_add_u32 v57, s62, v9
    v_lshrrev_b32 v13, 1, v10
    v_xor_b32 v13, v13, v62
    v_lshl_add_u32 v13, v10, 2, v13
    v_lshlrev_b32 v13, 4, v13
    v_lshl_add_u32 v13, v8, 12, v13
    v_add_u32 v59, s62, v13
    v_lshrrev_b32 v8, 5, v2
    v_mul_u32_u24 v8, {XS}, v8
    v_and_b32 v9, 31, v2
    v_lshl_add_u32 v8, v9, 4, v8
    v_add_u32 v8, s62, v8
    v_mov_b32 v44, 0
    v_mov_b32 v45, 0
    v_mov_b32 v46, 0
    v_mov_b32 v47, 0
    ds_write_b128 v8, v[44:47] offset:{4*CS + 4096}
    v_lshlrev_b32 v55, 3, v62
    v_bfe_u32 v9, v2, 2, 2
    v_add_u32 v55, v55, v9
    v_lshlrev_b32 v55, 8, v55
    v_and_b32 v9, 3, v2
    v_lshl_add_u32 v55, v9, 3, v55
    v_add_u32 v55, s11, v55
    v_add_u32 v60, s62, v{VR}
    s_and_b32 s16, s18, 1
    s_lshl_b32 s16, s16, 4
    s_lshr_b32 s63, s63, s16
    s_and_b32 s63, s63, 0xffff
    v_mov_b32 v9, s63
    s_lshr_b32 s{S_FKV}, s61, 4
    s_lshl_b32 s{S_FKV}, s{S_FKV}, 11
    s_add_u32 s{S_FKV}, s{S_FKV}, {WS_FLAG + F_KV}
    s_lshl_b32 s78, s61, 7
    s_add_u32 s78, s78, {WS_FLAG + F_KV}
    v_lshlrev_b32 v{TMP+13}, 7, v61
    v_and_b32 v{VF16}, 31, v2
    v_lshlrev_b32 v{VF16}, 2, v{VF16}
    s_mul_i32 s{S_N}, s87, 0x9e3779b1
    s_add_u32 s{S_N}, s{S_N}, 0x7f4a7c15
    s_add_u32 s16, s{S_N}, 1
    v_mov_b32 v{VTAG}, s16
    """)
    for w in range(4): k(f"v_cmp_eq_u32 vcc, 0, v{4+w}\nv_cndmask_b32 v{AD+w}, 0, v9, vcc")
    for i in range(4):
        for h in range(2): h_ld = k(f"buffer_load_dwordx4 v[{HR+8*i+4*h}:{HR+8*i+4*h+3}], v{VR}, s[24:27], 0 offen offset:{i*1024 + 16*h} {hnt}")
    for w in range(4): k(f"buffer_load_dword v{A(0,0)+w}, v{4+w}, s[24:27], 0 offen")
    for i in range(4):
        k(f"s_add_u32 s16, s{S_ROWY}, {WS_Y + 4096*i}\nbuffer_store_dwordx4 v[16:19], v14, {SW}, s16 offen sc1")
    k(f"buffer_store_dwordx4 v[16:19], v15, {SW}, s45 offen sc1")
    qid = {}
    def q_line(i): return f"buffer_load_dwordx4 a[{64+4*i}:{67+4*i}], v53, s[92:95], s{S_ROWY} offen offset:{64*i} {qnt}"
    def q_issue():
        for i in range(4): qid["q"] = k(q_line(i))
    if q_at == 0: q_issue()
    if diag == 6: stamp(12)
    k.wait(vm=lkv); k("s_barrier")
    if diag == 6: stamp(13)
    KR = lambda t: 74 + 2 * t
    VV = lambda t: 90 + 2 * t
    for t in range(-3, 8): lk = k(f"ds_read_b64 v[{KR(t)}:{KR(t)+1}], v52 offset:{GS + 128*t if t >= 0 else 128*(8+t)}")
    for t in range(8): lv = k(f"ds_read_b64 v[{VV(t)}:{VV(t)+1}], v52 offset:{17*GS + 128*t}")
    W = lambda c, j: 116 + 4 * c + j
    for c in range(4):
        for j in range(4): unpk(k, W(c, j), 108 + 2 * c + (j >> 1), j & 1)
    KS = lambda c, t: 132 + 8 * c + t
    KF = lambda t: 167 + t
    k.wait(lg=lk)
    for c in range(4):
        for t in range(-3, 8): unpk(k, KF(t), KR(t) + (c >> 1), c & 1)
        for t in range(8): k(f"v_mul_f32 v{KS(c,t)}, v{W(c,3)}, v{KF(t-3)}")
        for j in (2, 1, 0):
            for t in range(8): k(f"v_fmac_f32 v{KS(c,t)}, v{W(c,j)}, v{KF(t-j)}")
        k.wait(lg=lv)
        for t in range(8): unpk(k, KF(t), VV(t) + (c >> 1), c & 1)
        for t in range(8): k(f"v_mul_f32 v{KS(c,t)}, v{KS(c,t)}, v{KF(t)}")
        for i in range(4): k(f"v_cvt_pk_bf16_f32 v{176+4*c+i}, v{KS(c,7-2*i)}, v{KS(c,6-2*i)}")
        k(f"buffer_store_dwordx4 v[{176+4*c}:{179+4*c}], v50, {SW}, {so[c]} offen sc1")
    stamp(26)
    kv_st = k.nvm
    if q_at == 1: q_issue()
    k.wait(vm=h_ld)
    for i in range(4):
        r = HR + 8 * i; t = 72 + 8 * i
        for e in range(6): k(f"v_mov_b32 v{t+e}, v{r+1+e}")
        for cc, src in enumerate((t, r + 2, t + 2, r + 4)):
            k(f"ds_write_b128 v60, v[{src}:{src+3}] offset:{cc*CS + i*1024}")
    if diag == 6: stamp(14)
    k.wait(vm=kv_st)
    if diag == 6: stamp(15)
    k("s_barrier")
    if diag == 6: stamp(16)
    k("s_cmp_lg_u32 s17, 0\ns_cbranch_scc1 L_nokvf")
    k(flag_store(78)); k.nvm -= 1
    k.label("L_nokvf")
    k(f"s_lshl_b32 s16, s2, 2\ns_add_u32 s16, s16, {WS_FLAG + F_ARM}\ns_cmp_lg_u32 s17, 1\ns_cbranch_scc1 L_noarm")
    k(flag_store(16)); k.nvm -= 1
    k.label("L_noarm")
    x = k(poll_load(S_FKV))
    poll_check(x, S_FKV, 16)
    stamp(27)
    xl = []
    for i in range(4):
        k(f"buffer_load_dwordx4 v[{128+8*i}:{131+8*i}], v{VR}, s[88:91], 0 offen offset:{i*1024}")
        xl.append(k(f"buffer_load_dword v{132+8*i}, v{VR}, s[88:91], 0 offen offset:{i*1024 + 16}"))
    for i in range(4):
        r = 128 + 8 * i; t = 160 + 4 * i
        k.wait(vm=xl[i])
        k(f"ds_write_b128 v60, v[{r}:{r+3}] offset:{4*CS + XS + i*1024}")
        for e in range(4): k(f"v_alignbit_b32 v{t+e}, v{r+e+1}, v{r+e}, 16")
        k(f"ds_write_b128 v60, v[{t}:{t+3}] offset:{4*CS + i*1024}")
    stamp(1)
    Y = lambda j: 8 + 4 * j
    def reads(i):
        buf = i & 1; out = []
        for x in range(8):
            out.append(("B", x, f"ds_read_b128 v[{B(buf,x)}:{B(buf,x)+3}], v57 offset:{3584-512*x+64*i}"))
            if (i, x) != (0, 0):
                out.append(("A", x, f"ds_read_b128 v[{A(buf,x)}:{A(buf,x)+3}], v56 offset:{64*(i-1)+512*x}"))
        return out
    ids = {}
    for kind, x, txt in reads(0): ids[(0, kind, x)] = k(txt)
    for j in range(8):
        k.wait(lg=ids[(0, "B", j)])
        k(f"v_mfma_f32_16x16x32_bf16 v[{Y(j)}:{Y(j)+3}], v[{AD}:{AD+3}], v[{B(0,j)}:{B(0,j)+3}], 0")
    side = {i: [] for i in range(8)}
    def sh_reads(r):
        o = []
        for i in range(8):
            f = 32 * r + 4 * i
            o += [("r", None, f"ds_read_b64_tr_b16 a[{f}:{f+1}], v55 offset:{32*i + 32768*r}"), ("r", (r, i), f"ds_read_b64_tr_b16 a[{f+2}:{f+3}], v55 offset:{32*i + 1024 + 32768*r}")]
        return o
    def sh_stores(r):
        return [("s", (r, i), f"buffer_store_dwordx4 a[{32*r+4*i}:{32*r+4*i+3}], v{VR}, {SX if r else SW}, s{OFFS[r][i]} offen sc1") for i in range(8)]
    side[arm_step] += [("v", "arm", f"s_mov_b32 s79, {WS_FLAG + F_ARM}\n" + poll_load(79, "arm"))]
    for n_, st_ in enumerate(wsteps):
        r, j = divmod(n_, 8)
        if j == 0: side[st_].append(("x", None, w_srd(r)))
        side[st_].append(("v", f"w{r}", "\n".join(w_load(r, j))))
    if q_at == 2: side[q_step] += [("v", "q", q_line(i)) for i in range(4)]
    rd0 = sh_reads(0)
    side[a_step] += [("w", 0)] + rd0[:10]
    side[a_step + 1] += rd0[10:] + sh_stores(0)[:4]
    side[a_step + 2] += sh_stores(0)[4:]
    sid = dict(qid)
    for i in range(8):
        buf = i & 1
        nxt = reads(i + 1) if i < 7 else []
        order = sorted([(p, j) for p in range(8) for j in range(8 - p)], key=(lambda t: (t[0] + t[1], t[0] if (t[0] + t[1]) & 1 else -t[0])) if cchain else (lambda t: (max(t), t[0] + t[1])))
        sd = side[i]
        for n, (p, j) in enumerate(order):
            k.wait(lg=max(ids.get((i, "A", p), 0), ids[(i, "B", j)]))
            jp = p + j
            k(f"v_mfma_f32_16x16x32_bf16 v[{Y(jp)}:{Y(jp)+3}], v[{A(buf,p)}:{A(buf,p)+3}], v[{B(buf,j)}:{B(buf,j)+3}], v[{Y(jp)}:{Y(jp)+3}]")
            if n % 2 == 1 and nxt:
                kind, x, txt = nxt.pop(0); ids[(i + 1, kind, x)] = k(txt)
            if n % 2 == 0 and sd and (sd[0][0] not in "sv" or n % 4 == 0):
                it = sd.pop(0)
                if it[0] == "w": k.wait(vm=sid["w0"])
                elif it[0] == "s":
                    k.wait(lg=sid[it[1]]); sid["st0"] = k(it[2])
                else:
                    x = k(it[2])
                    if it[1]: sid[it[1]] = x
        assert not nxt and not sd
    stamp(2)
    for j in range(8): k(f"ds_write_b128 v59, v[{Y(j)}:{Y(j)+3}] offset:{512*j}")
    k(f"""
    v_lshrrev_b32 v4, 2, v0
    v_bfe_u32 v5, v4, 3, 2
    v_xor_b32 v5, v5, v4
    v_lshlrev_b32 v5, 4, v5
    v_and_b32 v6, 3, v0
    v_lshl_add_u32 v5, v6, 2, v5
    v_lshlrev_b32 v6, 4, v6
    v_lshl_add_u32 v6, v4, 14, v6
    s_lshl_b32 s12, s61, 6
    s_add_u32 s12, s12, {WS_Y}
    """)
    for c in range(1, 4): k(f"v_add_u32 v{40+c}, {c*CH_LDS}, v5")
    k("v_mov_b32 v40, v5")
    poll_check(sid["arm"], 79, "arm")
    k.wait(vm=sid["st0"], lg=k.nlg); k("s_barrier")
    rid = {}
    for i in range(4):
        for c in range(4):
            rid[i] = k(f"ds_read2st64_b32 v[{64+8*i+2*c}:{65+8*i+2*c}], v{40+c} offset0:{4*i} offset1:{16+4*i}")
    for i in range(4):
        k.wait(lg=rid[i])
        for par in range(2):
            for h in range(2):
                k(f"v_cvt_pk_bf16_f32 v{96+4*i+2*par+h}, v{64+8*i+4*h+par}, v{64+8*i+4*h+2+par}")
        k(f"buffer_store_dwordx4 v[{96+4*i}:{99+4*i}], v6, {SW}, s12 offen sc1")
        if i < 3: k("s_add_u32 s12, s12, 0x100000")
    stamp(3)
    k.wait(vm=sid["w1"])
    if diag == 6: stamp(17)
    for it in sh_reads(1):
        x = k(it[2])
        if it[1]: sid[it[1]] = x
    for it in sh_stores(1):
        k.wait(lg=sid[it[1]]); k(it[2])
    k(f"s_mov_b32 s62, s{WFLAG[0]}\ns_mov_b32 s63, s{WFLAG[1]}")

    if diag == 6: stamp(18)
    KM2 = 56 - KT2
    k(f"""
    s_lshl_b32 s{S_M0}, s17, 12
    s_lshr_b32 s13, s59, 1
    s_lshl_b32 s12, s13, 3
    s_add_u32 s12, s12, s34
    s_lshl_b32 s14, s33, 2
    s_and_b32 s15, s60, 3
    s_add_u32 s14, s14, s15
    s_lshl_b32 s14, s14, 2
    s_add_u32 s14, s14, s17
    s_lshl_b32 s16, s32, 2
    s_add_u32 s16, s16, s17
    s_mul_i32 s{S_W1}, s12, {W1T*1024}
    s_add_u32 s{S_W1}, s{S_W1}, {WS_W1}
    s_mul_i32 s{S_W2}, s35, {W2T*1024}
    s_add_u32 s{S_W2}, s{S_W2}, {WS_W2}
    s_and_b32 s15, s16, 15
    s_lshl_b32 s15, s15, 13
    s_add_u32 s91, s{S_W2}, s15
    s_lshl_b32 s{S_XN}, s14, 17
    s_add_u32 s{S_XN}, s{S_XN}, {WS_XN}
    s_lshl_b32 s{S_PS}, s16, 14
    s_lshl_b32 s15, s34, 10
    s_add_u32 s{S_PS}, s{S_PS}, s15
    s_lshl_b32 s15, s33, 22
    s_add_u32 s{S_PS}, s{S_PS}, s15
    s_add_u32 s{S_PS}, s{S_PS}, {WS_P}
    s_lshr_b32 s{S_ROWL}, s19, 1
    s_lshl_b32 s{S_ROWF}, s{S_ROWL}, 15
    s_lshl_b32 s{S_ROWL}, s{S_ROWL}, 13
    s_and_b32 s15, s19, 1
    s_lshl_b32 s15, s15, 7
    s_add_u32 s{S_ROWL}, s{S_ROWL}, s15
    s_add_u32 s{S_ROWF}, s{S_ROWF}, s15
    s_lshl_b32 s{S_FXN_C}, s14, 7
    s_lshl_b32 s15, s13, 12
    s_add_u32 s{S_FXN_C}, s{S_FXN_C}, s15
    s_add_u32 s{S_FXN_C}, s{S_FXN_C}, {WS_FLAG + F_XN}
    s_lshr_b32 s{S_FXN_P}, s19, 3
    s_lshl_b32 s{S_FXN_P}, s{S_FXN_P}, 7
    s_lshl_b32 s15, s34, 2
    s_add_u32 s{S_FXN_P}, s{S_FXN_P}, s15
    s_add_u32 s{S_FXN_P}, s{S_FXN_P}, s{S_M0}
    s_add_u32 s{S_FXN_P}, s{S_FXN_P}, {WS_FLAG + F_XN}
    s_lshr_b32 s{S_FPF_C}, s19, 2
    s_lshl_b32 s{S_FPF_C}, s{S_FPF_C}, 11
    s_add_u32 s{S_FPF_C}, s{S_FPF_C}, {WS_FLAG + F_PE}
    s_lshl_b32 s{S_FPF_P}, s16, 11
    s_lshl_b32 s15, s35, 7
    s_add_u32 s{S_FPF_P}, s{S_FPF_P}, s15
    s_add_u32 s{S_FPF_P}, s{S_FPF_P}, {WS_FLAG + F_PE}
    s_lshl_b32 s{S_FH_P}, s14, 8
    s_lshr_b32 s15, s12, 4
    s_lshl_b32 s15, s15, 7
    s_add_u32 s{S_FH_P}, s{S_FH_P}, s15
    s_and_b32 s15, s12, 15
    s_lshl_b32 s15, s15, 2
    s_add_u32 s{S_FH_P}, s{S_FH_P}, s15
    s_add_u32 s{S_FH_P}, s{S_FH_P}, {WS_FLAG + F_H}
    s_lshr_b32 s{S_FH_C}, s16, 1
    s_lshl_b32 s{S_FH_C}, s{S_FH_C}, 8
    s_lshl_b32 s15, s33, 7
    s_add_u32 s{S_FH_C}, s{S_FH_C}, s15
    s_add_u32 s{S_FH_C}, s{S_FH_C}, {WS_FLAG + F_H}
    s_mul_i32 s{S_HL}, s16, {2*TBH}
    s_mul_i32 s15, s33, {56*1024}
    s_add_u32 s{S_HL}, s{S_HL}, s15
    s_add_u32 s{S_HL}, s{S_HL}, {WS_H}
    s_mul_i32 s{S_HS}, s14, {4*TBH}
    s_lshr_b32 s15, s12, 4
    s_mul_i32 s15, s15, {56*1024}
    s_add_u32 s{S_HS}, s{S_HS}, s15
    s_and_b32 s15, s12, 15
    s_lshl_b32 s15, s15, 9
    s_add_u32 s{S_HS}, s{S_HS}, s15
    s_add_u32 s{S_HS}, s{S_HS}, {WS_H}
    s_lshl_b32 s{S_FW2_C}, s35, 8
    s_add_u32 s{S_FW2_C}, s{S_FW2_C}, {WS_FLAG + F_W2}
    s_mul_i32 s15, s12, 7
    s_lshr_b32 s15, s15, 3
    s_min_u32 s15, s15, 26
    s_lshl_b32 s15, s15, 7
    s_add_u32 s{S_FW1_C}, s15, {WS_FLAG + F_W1}
    """)
    k(f"""
    s_add_u32 s15, s32, s34
    s_and_b32 s15, s15, 1
    s_mul_i32 s86, s15, {1024 * swz}
    s_mul_i32 s15, s15, {8192 * swz}
    s_add_u32 s92, s{S_W2}, s15
    s_sub_u32 s93, s{S_W2}, s15
    """)
    k(f"""
    s_lshl_b32 s12, s2, 2
    s_add_u32 s12, s12, s17
    s_cmp_lt_u32 s12, 896
    s_cselect_b32 s26, {W_BYTES}, 0
    s_cselect_b32 s30, {WS_TOTAL}, 0
    s_mov_b32 s24, s4
    s_mov_b32 s25, s5
    s_lshr_b32 s13, s12, 3
    s_and_b32 s12, s12, 7
    s_cmp_ge_u32 s13, 56
    s_cselect_b32 s14, 1, 0
    s_cselect_b32 s15, 56, 0
    s_sub_u32 s13, s13, s15
    s_lshl_b32 s15, s14, 3
    s_add_u32 s15, s15, s12
    s_lshl_b32 s{S_FW2_P}, s15, 8
    s_lshl_b32 s16, s13, 2
    s_add_u32 s{S_FW2_P}, s{S_FW2_P}, s16
    s_add_u32 s{S_FW2_P}, s{S_FW2_P}, {WS_FLAG + F_W2}
    s_mul_i32 s{S_SHD}, s15, {W2T*1024}
    s_and_b32 s32, s13, {1 if chain else 0}
    s_sub_u32 s33, s13, s32
    s_lshl_b32 s16, s33, 13
    s_lshl_b32 s60, s33, 11
    s_add_u32 s60, s60, {KM2 * 6 * 1024}
    s_cmp_lt_u32 s13, {KM2}
    s_cselect_b32 s16, s16, s60
    s_cselect_b32 s60, {2 if chain else 1}, {KT2}
    s_lshl_b32 s60, s60, 11
    s_lshl_b32 s32, s32, 10
    s_add_u32 s16, s16, s32
    s_add_u32 s{S_SHD}, s{S_SHD}, s16
    s_add_u32 s{S_SHD}, s{S_SHD}, {WS_W2}
    s_and_b32 s15, s13, 7
    s_mul_i32 s15, s15, 224
    s_lshr_b32 s16, s13, 3
    s_lshl_b32 s16, s16, 4
    s_add_u32 s15, s15, s16
    s_mul_i32 s14, s14, 1792
    s_add_u32 s15, s15, s14
    s_add_u32 s16, s15, 112
    s_lshl_b32 s12, s12, 8
    s_lshl_b32 s{S_SHA}, s15, 11
    s_add_u32 s{S_SHA}, s{S_SHA}, s12
    s_lshl_b32 s{S_SHB}, s16, 11
    s_add_u32 s{S_SHB}, s{S_SHB}, s12
    v_add_u32 v{VR+1}, 0x10000, v{VR}
    v_add_u32 v{VD}, s{S_M0}, v{VR}
    v_lshrrev_b32 v5, 5, v2
    v_and_b32 v6, 31, v2
    v_lshlrev_b32 v6, 4, v6
    v_mul_u32_u24 v7, {TBH}, v5
    v_add_u32 v{VST}, v7, v6
    v_mov_b32 v{VC2}, {f32bits(c1*0.044715):#x}
    v_lshlrev_b32 v{VF}, 2, v2
    v_lshrrev_b32 v3, 4, v2
    v_and_b32 v4, 15, v2
    v_lshlrev_b32 v4, 4, v4
    v_lshl_add_u32 v{VS0}, v3, 11, v4
    v_bfe_u32 v4, v2, 2, 3
    v_lshlrev_b32 v4, 8, v4
    v_lshl_add_u32 v4, v5, 14, v4
    v_and_b32 v3, 3, v2
    v_lshl_add_u32 v4, v3, 4, v4
    v_add_u32 v{VS1}, s{S_M0}, v4
    """)

    XP, YP, P0, P1, X, Yf, T, AY, AS0, AS1, AL, AO = 8, 24, 40, 56, 72, 104, 136, 0, 1, 2, 3, 4
    def row_addr():
        k(f"""
        v_and_b32 v6, 7, v{VTID}
        v_bfe_u32 v5, v{VTID}, 3, 2
        v_lshrrev_b32 v7, 5, v{VTID}
        v_lshl_add_u32 v7, v7, 4, v5
        v_lshlrev_b32 v{AY}, 3, v6
        v_lshl_add_u32 v{AY}, v7, 7, v{AY}
        v_lshlrev_b32 v{AO}, 11, v6
        v_lshl_add_u32 v{AO}, v7, 4, v{AO}
        v_lshrrev_b32 v{AS0}, 6, v{VTID}
        v_lshlrev_b32 v{AS0}, 3, v{AS0}
        v_lshl_add_u32 v{AS0}, v6, 5, v{AS0}
        v_bfe_u32 v7, v{VTID}, 4, 1
        v_lshl_add_u32 v{AS0}, v7, 2, v{AS0}
        v_add_u32 v{AS0}, {LDS_ST}, v{AS0}
        v_lshlrev_b32 v{AS1}, 5, v6
        v_add_u32 v{AS1}, {LDS_ST}, v{AS1}
        v_lshlrev_b32 v{AL}, 4, v{VTID}
        v_add_u32 v{AL}, {LDS_Y}, v{AL}
        """)
    def unpack(dst, src):
        for e in range(32): unpk(k, dst + e, src + e // 2, e & 1)
    def stats(off):
        k(f"v_pk_add_f32 v[{T}:{T+1}], v[{X}:{X+1}], v[{X+2}:{X+3}]")
        k(f"v_pk_mul_f32 v[{T+2}:{T+3}], v[{X}:{X+1}], v[{X}:{X+1}]")
        for e in range(2, 32, 2):
            if e > 2: k(f"v_pk_add_f32 v[{T}:{T+1}], v[{T}:{T+1}], v[{X+e}:{X+e+1}]")
            k(f"v_pk_fma_f32 v[{T+2}:{T+3}], v[{X+e}:{X+e+1}], v[{X+e}:{X+e+1}], v[{T+2}:{T+3}]")
        R = T + 8
        k(f"""
        v_add_f32 v{T}, v{T}, v{T+1}
        v_add_f32 v{T+2}, v{T+2}, v{T+3}
        v_permlane16_swap_b32 v{T}, v{T+2}
        v_add_f32 v{T}, v{T}, v{T+2}
        v_add_f32_dpp v{T}, v{T}, v{T} row_ror:8 row_mask:0xf bank_mask:0xf
        v_mov_b32 v{T+1}, v{T}
        v_permlane32_swap_b32 v{T}, v{T+1}
        v_add_f32 v{T}, v{T}, v{T+1}
        ds_write_b32 v{AS0}, v{T} offset:{off}
        s_waitcnt lgkmcnt(0)
        s_barrier
        ds_read_b128 v[{R}:{R+3}], v{AS1} offset:{off}
        ds_read_b128 v[{R+4}:{R+7}], v{AS1} offset:{off+16}
        s_waitcnt lgkmcnt(0)
        v_pk_add_f32 v[{R}:{R+1}], v[{R}:{R+1}], v[{R+2}:{R+3}]
        v_pk_add_f32 v[{R+4}:{R+5}], v[{R+4}:{R+5}], v[{R+6}:{R+7}]
        v_pk_add_f32 v[{R}:{R+1}], v[{R}:{R+1}], v[{R+4}:{R+5}]
        v_mul_f32 v{R}, {f32bits(1/1024):#x}, v{R}
        v_mul_f32 v{R+1}, {f32bits(1/1024):#x}, v{R+1}
        v_fma_f32 v{R+1}, -v{R}, v{R}, v{R+1}
        v_max_f32 v{R+1}, 0, v{R+1}
        v_cvt_pk_bf16_f32 v{R+2}, v{R}, v{R+1}
        v_lshlrev_b32 v{R}, 16, v{R+2}
        v_and_b32 v{R+1}, 0xffff0000, v{R+2}
        v_add_f32 v{R+1}, {f32bits(1e-5):#x}, v{R+1}
        v_cvt_pk_bf16_f32 v{R+1}, v{R+1}, v{R+1}
        v_lshlrev_b32 v{R+1}, 16, v{R+1}
        v_sqrt_f32 v{R+1}, v{R+1}
        v_cvt_pk_bf16_f32 v{R+1}, v{R+1}, v{R+1}
        v_lshlrev_b32 v{R+1}, 16, v{R+1}
        v_rcp_f32 v{T+4}, v{R+1}
        v_mov_b32 v{T+5}, v{T+4}
        v_mul_f32_e64 v{T+6}, -v{R}, v{T+4}
        v_mov_b32 v{T+7}, v{T+6}
        """)
    def sentinel_loop(name, loads, regs, between=None, skip_first=False, tagged=False):
        k(f"s_mov_b32 s{S_SP}, {SPIN}")
        regs = list(regs)
        if not skip_first: loads()
        if between: between()
        k(f"s_branch {name}_chk")
        k.label(name)
        if pnap: k(f"s_sleep {pnap}")
        loads()
        k.label(name + "_chk")
        if tagged:
            k(f"s_waitcnt vmcnt(0)\nv_or3_b32 v{T+16}, v{regs[0]}, v{regs[1]}, v{TMP+8}\nv_bitop3_b32 v{T+17}, v{regs[0]}, v{regs[1]}, v{TMP+8} bitop3:0x80")
            for i in range(2, len(regs), 2):
                k(f"v_or3_b32 v{T+16}, v{T+16}, v{regs[i]}, v{regs[i+1]}\nv_bitop3_b32 v{T+17}, v{T+17}, v{regs[i]}, v{regs[i+1]} bitop3:0x80")
            k(f"v_xor_b32 v{T+16}, v{T+16}, v{T+17}\nv_lshlrev_b32 v{T+16}, 16, v{T+16}\nv_cmp_ne_u32 vcc, 0, v{T+16}")
        else:
            k(f"s_waitcnt vmcnt(0)\nv_max_u32 v{T+16}, v{regs[0]}, v{regs[1]}")
            for i in range(2, len(regs), 2): k(f"v_max3_u32 v{T+16}, v{T+16}, v{regs[i]}, v{regs[i+1]}")
            k(f"v_cmp_eq_u32 vcc, -1, v{T+16}")
        k(f"s_sub_u32 s{S_SP}, s{S_SP}, 1\ns_cbranch_scc1 {name}_out\ns_cbranch_vccnz {name}")
        k.label(name + "_out")

    row_addr()
    k.wait(vm=sid["q"])
    for e in range(16): k(f"v_accvgpr_read_b32 v{XP+e}, a{64+e}")
    unpack(X, XP)
    k("s_barrier")
    stats(0)
    def y_loads():
        assert WS_Y == 0
        for i in range(4):
            for h in range(2):
                r = YP + 4 * i + 2 * h
                k(f"buffer_load_dwordx2 v[{r}:{r+1}], v{AY}, {SW}, s{S_ROWY} offen offset:{512*i + 64*h} sc1")
    if diag == 6: stamp(19)
    sentinel_loop("L_ypoll", y_loads, range(YP, YP + 16))
    stamp(4)
    def raw_stage(sidx):
        k(f"s_add_u32 m0, s{S_M0}, {sidx * 16384}\ns_add_u32 s{S_DMA}, s{S_W1}, {sidx * 16384}")
        for i in range(4): k(f"buffer_load_dwordx4 v{VD}, {SW}, s{S_DMA} offen offset:{1024*i} lds")
    def weave(body_fn, stages, span):
        n0 = len(k.lines); body_fn()
        body = k.lines[n0:]; del k.lines[n0:]
        for sidx in stages: raw_stage(sidx)
        dm = k.lines[n0:]; del k.lines[n0:]
        step = max(1, min(len(body), span) // len(dm))
        for n_, l in enumerate(body):
            if n_ % step == 0 and dm: k.lines.append(dm.pop(0))
            k.lines.append(l)
        k.lines += dm
    for r in range(2):
        k(f"s_cmp_eq_u32 s{62+r}, 0\ns_cbranch_scc1 L_now{r}"); k(flag_store(62 + r)); k.label(f"L_now{r}")
    k("s_barrier")
    def y_keep():
        unpack(Yf, YP)
        for i in range(4): k(f"ds_write_b128 v{AL}, v[{YP+4*i}:{YP+4*i+3}] offset:{4096*i}")
    if diag == 6: stamp(20)
    weave(y_keep, range(npre), 36)
    if diag == 6: stamp(21)

    k.label("L_layer")
    k(f"s_add_u32 s84, s{S_HL}, s86\ns_sub_u32 s85, s{S_HL}, s86")
    SWZ_END = (KM2 // (2 * swz)) * 2 * swz if swz else 0
    k.nvm = k.vm_done = 0; k.nlg = k.lg_done = 0
    ring = [("W1", s) for s in range(28)]
    S1_POS = 0
    SH_POS = sh_pos
    ring[SH_POS:SH_POS] = [("SH", 0), ("SH", 1)]
    assert SH_POS % NS + 1 < 4 and S1_POS % NS + 1 < 4
    ring += [("W2", s) for s in range(28)]
    NREAL = len(ring)
    st = {"s": None}
    def dma(idx, i):
        kind, s = ring[idx]; pre_ = []
        if kind == "S1":
            st["s"] = None
            return [f"s_add_u32 m0, s{S_M0}, {(idx % NS) * 16384 + 1024 * i}", f"s_add_u32 s{S_DMA}, s63, {4 * 7168 * (4 * s + i)}",
                    f"buffer_load_dwordx4 v{TMP+4}, s[92:95], s{S_DMA} offen lds"]
        if kind == "SH":
            st["s"] = None
            return [f"s_add_u32 m0, s{S_M0}, {(idx % NS) * 16384 + 1024 * i}", f"s_add_u32 s{S_DMA}, s{S_SHB if s else S_SHA}, {8192 * i}",
                    f"buffer_load_dwordx4 v{VS0}, {SD}, s{S_DMA} offen {dnt} lds"]
        if st["s"] != idx:
            pre_ = [f"s_add_u32 m0, s{S_M0}, {(idx % NS) * 16384}", f"s_add_u32 s{S_DMA}, s{(92 + (2 * s // swz) % 2 if 2 * s < SWZ_END else S_W2) if kind == 'W2' else S_W1}, {s * 16384}"]
            st["s"] = idx
        return pre_ + [f"buffer_load_dwordx4 v{VD}, {'s[88:91]' if kind == 'NX' else SW}, s{S_DMA} offen offset:{1024*i} lds"]
    w_id = {}; t_id = {}
    def pre_stage(idx):
        for i in range(4): w_id[idx] = k("\n".join(dma(idx, i)))
    for idx in range(4): w_id[idx] = 0
    for e in range(0, 32, 2):
        k(f"v_pk_fma_f32 v[{T}:{T+1}], v[{X+e}:{X+e+1}], v[{T+4}:{T+5}], v[{T+6}:{T+7}]")
        k(f"v_pk_fma_f32 v[{X+e}:{X+e+1}], v[{T}:{T+1}], v[{Yf+e}:{Yf+e+1}], v[{X+e}:{X+e+1}]")
        k(f"v_cvt_pk_bf16_f32 v{XP+e//2}, v{X+e}, v{X+e+1}")
    for i in range(4): k(f"ds_write_b128 v{AL}, v[{XP+4*i}:{XP+4*i+3}] offset:{16384 + 4096*i}")
    unpack(X, XP)
    stats(256)
    k(f"s_lshl_b32 s{S_B}, s{S_LAY}, 22\ns_add_u32 s{S_B}, s{S_B}, s{S_ROWF}\ns_add_u32 s{S_B}, s{S_B}, {WS_XN}")
    for e in range(0, 32, 2):
        k(f"v_pk_fma_f32 v[{X+e}:{X+e+1}], v[{X+e}:{X+e+1}], v[{T+4}:{T+5}], v[{T+6}:{T+7}]")
        k(f"v_cvt_pk_bf16_f32 v{P0+e//2}, v{X+e}, v{X+e+1}")
        if e % 8 == 6:
            i = e // 8
            k(f"buffer_store_dwordx4 v[{P0+4*i}:{P0+4*i+3}], v{VROW}, {SW}, s{S_B} offen offset:{1024*i} sc1")
    stamp(5)
    xn_st = k.nvm
    ET = 160
    for t in range(4): k(f"s_add_u32 s{S_T+t}, s{S_XN}, {t*32768}")
    def e_loads():
        for u in range(E):
            for t in range(4):
                r = ET + 16 * u + 4 * t
                k(f"buffer_load_dwordx4 v[{r}:{r+3}], v{VR}, {SW}, s{S_T+t} offen offset:{1024*u} sc1")
    def e_between():
        k.wait(vm=xn_st); k("s_barrier")
        k(flag_store(S_FXN_P))
        if diag == 6: stamp(22)
    if e_late:
        e_between(); sentinel_loop("L_epoll", e_loads, range(ET, ET + 16 * E))
    else: sentinel_loop("L_epoll", e_loads, range(ET, ET + 16 * E), e_between)
    if diag == 6: stamp(23)
    k(f"s_cmp_lg_u32 s{S_LAY}, 0\ns_cbranch_scc1 L_have")
    n0 = k.nvm
    for sidx in range(npre, 7): raw_stage(sidx)
    k.nvm = n0
    k.label("L_have")
    for sidx in range(npre, 7): w_id[sidx] = n0 + 1
    st["s"] = None
    for r in range(16 * E): k(f"v_accvgpr_write_b32 a{4*RW + r}, v{ET + r}")
    stamp(6)

    def sweep(kd, u0, u1, gs):
        if chain: return [(kd, u + e, g) for u in range(u0, u1, 2) for g in gs for e in range(2)]
        return [(kd, u, g) for u in range(u0, u1) for g in gs]
    assert not chain or (KM % 2 == 0 and KM2 % 2 == 0 and E % 2 == 0)
    groups = sweep(1, 0, KM, range(14))
    tail_start = len(groups)
    for b in range(7): groups += sweep(1, KM, 32, (b, 7 + b))
    G2S = len(groups)
    groups += sweep(2, 0, KM2, range(8))
    T2S = len(groups)
    for p in range(4): groups += sweep(2, KM2, 56, (2 * p, 2 * p + 1))
    NGR = len(groups); GPB = 2 * KT
    NTk = {1: 4, 2: 2}
    tm = [0]
    for kd, _, _ in groups: tm.append(tm[-1] + NTk[kd])
    real = [i for i, r_ in enumerate(ring) if r_[0] in ("W1", "W2")]
    stage_of = lambda i: real[i // 16]
    bars = {16 * n - la_bar: real[min(n + bper - 1, 55)] for n in range(npre, 56, bper)}
    pub_at = {}
    for p_, r_ in sorted(bars.items()):
        for x in real:
            if x <= r_: pub_at.setdefault(x, p_)
    bar_list = sorted(bars)
    first_use = {}; last_use = {}
    for i, (kd, u, g) in enumerate(groups):
        first_use.setdefault((kd, u), i & ~1 if chain else i); last_use[(kd, u)] = i | 1 if chain else i
    def slot(kd, u, t):
        return (u % KT) * 4 + t if kd == 1 else (4 * (KM % KT) + 2 * u + t) % (4 * KT)
    def AT(kd, u, t):
        if kd == 2 and u < park: return f"v[{112 + 8*u + 4*t}:{115 + 8*u + 4*t}]"
        a = 4 * RW + 4 * slot(kd, u - (park if kd == 2 else 0), t)
        return f"a[{a}:{a+3}]"
    AW = lambda i: 4 * (i % RW)
    acc = lambda kd, g, t: (g * NTk[kd] + t) * 4
    tok_base = {t: (S_XN, 0) for t in range(4)}
    for u in range(E):
        for t in range(4): t_id[((1, u), t)] = 0
    def tok(kd, u, t):
        off = u * 1024; pre_ = []
        src = S_XN if kd == 1 else 84 + (u // swz) % 2 if u < SWZ_END else S_HL
        if tok_base.get(t, (None, 0))[0] != src or not 0 <= off - tok_base[t][1] <= 4095:
            tok_base[t] = (src, off & ~4095)
            pre_ = [f"s_add_u32 s{S_T+t}, s{src}, {t * (32768 if kd == 1 else TBH) + tok_base[t][1]}"]
        return pre_ + [f"buffer_load_dwordx4 {AT(kd, u, t)}, v{VR}, {SW}, s{S_T+t} offen offset:{off - tok_base[t][1]}"]
    PH_B = [1, 3, 4, 5, 6]; PH_U = [0, 16, 32, 40, 48]
    P_SHR = shr
    P_SH_END = shr + 20
    P_PX = 0
    P_PF = tail_start + pf_at
    P_W1S = 0
    P_PW1 = 120
    P_PW2 = pw2
    P_PH = [ph0] + [first_use[(2, u_)] - pb for u_, pb in zip(PH_U[1:], ph_back)]
    P_PPF = P_PH[4] + 2 * chk + 4
    allp = sorted(P_PH + [P_PPF]); assert all(b_ - a_ > 2 * chk for a_, b_ in zip(allp, allp[1:])), allp
    CHK = {1: chk, 2: 2 * chk}
    CT_LAB = [150, 290, 370, 445, 590, 800]
    CT_AT = [20, 205, 300, 380, 470, 640]
    assert P_PPF > 660
    FREE_AT = list(free_at)
    def done_bar(idx):
        if ring[idx][0] == "SH": return P_SH_END
        if ring[idx][0] == "S1": return P_W1S + 20
        last = 16 * real.index(idx) + 15
        return next(p for p in bar_list if p > last)
    def earliest(it):
        if it[1] == "W":
            idx = it[2]
            e = done_bar(idx - NS) if idx >= NS else -1
            if ring[idx][0] == "W2": e = max(e, P_PW2 + CHK[1] + 1)
            if ring[idx][0] == "W1" and 16 * ring[idx][1] + 15 >= tail_start: e = max(e, P_PW1 + CHK[1] + 1)
            return e
        kd, u = it[2]
        if kd == 1: return P_PX + CHK[1] + 1 if u < KT else last_use[(1, u - KT)] + 1
        v_ = u - park
        if v_ < 0: e = FREE_AT[u // 2]
        else: e = last_use[(1, KM + v_ // 2)] + 1 if v_ < 2 * KT else last_use[(2, u - 2 * KT)] + 1
        return max(e, P_PH[max(j for j in range(5) if PH_U[j] <= u)] + CHK[2 if u >= 16 else 1] + 1)
    items = []
    for idx in range(7, NREAL):
        d = tm[P_SHR] - sh_lead if ring[idx][0] == "SH" else tm[P_W1S] - 40 if ring[idx][0] == "S1" else tm[pub_at[idx]]
        items += [(d, "W", idx, i) for i in range(4)]
    for (kd, u), fu in first_use.items():
        if kd == 1 and u < E: continue
        items += [(tm[fu], "T", (kd, u), t) for t in range(NTk[kd])]
    items.sort(key=lambda x: x[0])
    nxt_t = 1e9; sched = []
    for it in reversed(items):
        late = it[0] >= tm[G2S]
        nxt_t = min(it[0] - (la2 if late else la1), nxt_t - 1.0 / (rate2 if nxt_t > tm[G2S] else rate1))
        e = earliest(it)
        sched.append((max(nxt_t, tm[e] if e >= 0 else -1e9),) + it[1:])
    sched.reverse()
    last_tok = max(x[0] for x in sched if x[1] == "T" and x[2][0] == 1)
    prev = last_tok
    for n_, it in enumerate(sched):
        if it[1] == "W" and it[0] > last_tok and prev < tm[G2S] - 8:
            prev = max(prev + 8, tm[earliest(it)]); sched[n_] = (min(it[0], prev),) + it[1:]
    wq = [x for x in sched if x[1] == "W"]
    wq.sort(key=lambda x: (x[2], x[3]))
    run = 1e9
    for n_ in range(len(wq) - 1, -1, -1):
        e = earliest(wq[n_]); run = min(run, wq[n_][0])
        wq[n_] = (max(run, tm[e] if e >= 0 else -1e9),) + wq[n_][1:]
    prev = max(x[0] for x in sched)
    for idx in range(NREAL, len(ring)):
        for i in range(4 if ring[idx][0] == "NX" else 0):
            prev = max(prev + 6, tm[done_bar(idx - NS)]); wq.append((prev, "W", idx, i))
    items = sorted(wq + [x for x in sched if x[1] == "T"], key=lambda x: x[0])
    prev = -1e9; slackv = []
    for n_, it in enumerate(items):
        if it[0] >= 0:
            prev = max(it[0], prev + 1.0 / (rmax if prev < tm[G2S] else rmax2)); items[n_] = (prev,) + it[1:]
        if it[1] == "T": slackv.append((tm[first_use[it[2]]] - items[n_][0], it[2]))
    MINSL = sorted(slackv)[:3]
    def lines(it):
        return dma(it[2], it[3]) if it[1] == "W" else tok(it[2][0], it[2][1], it[3])
    def record(it, i):
        if it[1] == "W": w_id[it[2]] = i
        else: t_id[(it[2], it[3])] = i
    while items and items[0][0] < 0:
        it = items.pop(0); record(it, k("\n".join(lines(it))))
    def rd(i):
        off = (stage_of(i) % NS) * 16384 + (i % 16) * 1024
        return f"ds_read_b128 a[{AW(i)}:{AW(i)+3}], v{VR + off // 65536} offset:{off % 65536}"
    def gelu4(G, U, P, tb):
        Tm = [tb + e for e in range(4)]
        o = [f"v_mul_f32 v{Tm[e]}, v{G+e}, v{G+e}" for e in range(4)]
        o += [f"v_fmaak_f32 v{Tm[e]}, v{VC2}, v{Tm[e]}, {f32bits(c1):#x}" for e in range(4)]
        o += [f"v_mul_f32 v{Tm[e]}, v{Tm[e]}, v{G+e}" for e in range(4)]
        for e in range(4): o += [f"v_exp_f32 v{Tm[e]}, v{Tm[e]}", f"v_mul_f32 v{U+e}, v{U+e}, v{G+e}"]
        o += [f"v_add_f32 v{Tm[e]}, 1.0, v{Tm[e]}" for e in range(4)]
        o += [f"v_rcp_f32 v{Tm[e]}, v{Tm[e]}" for e in range(4)]
        o += [f"v_mul_f32 v{U+e}, v{U+e}, v{Tm[e]}" for e in range(4)]
        o += [f"v_cvt_pk_bf16_f32 v{P}, v{U}, v{U+1}", f"v_cvt_pk_bf16_f32 v{P+1}, v{U+2}, v{U+3}"]
        return o
    def epilogue(b, t):
        a = acc(1, b, 2 * t); tb = TMP + 4 * t; sr = (S_C, S_E)[t]
        o = gelu4(a, acc(1, 7 + b, 2 * t), a, tb) + gelu4(acc(1, b, 2 * t + 1), acc(1, 7 + b, 2 * t + 1), a + 2, tb)
        o += [f"s_add_u32 s{sr}, s{S_HS}, {8192 * b + 2 * TBH * t}",
              f"v_permlane32_swap_b32 v{a}, v{a+2}", f"v_permlane32_swap_b32 v{a+1}, v{a+3}",
              f"buffer_store_dwordx4 v[{a}:{a+3}], v{VST}, {SW}, s{sr} offen sc1"]
        return [(x, b) for x in o]
    def p_store(p):
        o = []
        for t in range(2 if p >= 0 else 0):
            a = acc(2, 2 * p, t); b = acc(2, 2 * p + 1, t)
            o += [f"v_cvt_pk_bf16_f32 v{a}, v{a}, v{a+1}", f"v_cvt_pk_bf16_f32 v{a+1}, v{a+2}, v{a+3}",
                  f"v_cvt_pk_bf16_f32 v{a+2}, v{b}, v{b+1}", f"v_cvt_pk_bf16_f32 v{a+3}, v{b+2}, v{b+3}",
                  f"s_add_u32 s{S_C}, s{S_PS}, {8192 * t + p * 0x100000}",
                  f"buffer_store_dwordx4 v[{a}:{a+3}], v{VR}, {SW}, s{S_C} offen sc1"]
        return o
    cost = lambda s: 2 if s.startswith(("v_exp", "v_rcp", "v_permlane", "buffer_")) else 1

    published = npre - 1; r_id = {}; rp = 0; FL_AT = []; PE_AT = []; ready_b = -1; ready_at = 0
    while rp < RW - 2:
        r_id[rp] = k(rd(rp)); rp += 1
    seen = set(); epi = [[], []]; q = []; hold = 0; hst = {}; fl_due = {}; fl_next = 0; turn = 0
    last_st = {"h": None, "sh": None, "pf": None}; pend = {}; named = {}
    def emit_q():
        t_, c = q.pop(0)
        if c and c[0] == "L": k.wait(lg=named[c[1]])
        if c and c[0] == "Wv": k.wait(vm=w_id[c[1]])
        id_ = k(t_)
        if not c: return
        if c[0] == "V": record(c[1], id_)
        elif c[0] == "R": r_id[c[1]] = id_
        elif c[0] == "N": named[c[1]] = id_
        elif c[0] == "L": last_st["sh"] = id_
        elif c[0] in ("PF", "PG"): last_st["pf"] = id_
    for i, (kd, u, g) in enumerate(groups):
        NT = NTk[kd]
        if i == tail_start: stamp(7)
        if i == G2S: stamp(8); G2L = len(k.lines)
        if i == T2S and diag == 5: stamp(18)
        if i in bars:
            pub = bars[i]
            assert not any(it[1] == "W" and it[2] <= pub and ring[it[2]][0] not in ("SH", "S1") for it in items), (i, pub)
            while any(c and c[0] == "V" and c[1][1] == "W" and c[1][2] <= pub for _, c in q): emit_q()
            k.wait(vm=w_id[pub]); k("s_barrier"); published = max(published, pub)
        n = 0
        while rp < NGR and rp <= i + RW - 2 and stage_of(rp) <= published and n < 2:
            q.append((rd(rp), ("R", rp))); rp += 1; n += 1
        if items and items[0][0] <= tm[i]:
            it = items.pop(0); ls = lines(it)
            if it[1] == "T" and it[2][0] == 2 and it[2][1] < park:
                assert all((it[2][1] // 2, c_) in hst for c_ in (0, 1)), (i, it)
            q += [(x, None) for x in ls[:-1]] + [(ls[-1], ("V", it))]
        if P_SHR <= i < P_SHR + 16 and (i - P_SHR) % 4 == 0:
            assert not any(it[1] == "W" and ring[it[2]][0] == "SH" for it in items)
            p = (i - P_SHR) // 4
            base = (SH_POS % NS) * 16384
            for h in range(2):
                f = TMP + 8 + 4 * h; off = base + p * 64 + h * 8
                q.append((f"ds_read_b64_tr_b16 v[{f}:{f+1}], v{VS1} offset:{off}", ("Wv", SH_POS + 1)))
                q.append((f"ds_read_b64_tr_b16 v[{f+2}:{f+3}], v{VS1} offset:{off + 2048}", ("N", (p, h))))
        if P_SHR + 2 <= i < P_SHR + 18 and (i - P_SHR) % 4 == 2:
            p = (i - P_SHR) // 4
            q.append((f"s_add_u32 s{S_D}, s{S_D}, s60" if p else f"s_mov_b32 s{S_D}, s{S_SHD}", None))
            for h in range(2):
                f = TMP + 8 + 4 * h
                q.append((f"buffer_store_dwordx4 v[{f}:{f+3}], v{VR}, {SX}, s{S_D} offen offset:{(2048 if chain else 1024)*h} sc1", ("L", (p, h))))
        if ct and i in CT_AT:
            j = CT_AT.index(i)
            q += [(f"v_lshlrev_b32 v{TMP+13}, 3, v{VR}", None), (f"s_mov_b32 s{S_SP}, L_ct{j}-L_body", None),
                  (f"buffer_load_dword v{TMP+14}, v{TMP+13}, s[80:83], s{S_SP} offen", None)]
        if i in CT_LAB: k.label(f"L_ct{CT_LAB.index(i)}")
        if i == P_SH_END + 12:
            k.wait(vm=last_st["sh"]); k(f"s_mov_b64 exec, 1\nbuffer_store_dword v{VTAG}, off, {SX}, s{S_FW2_P} sc1\ns_mov_b64 exec, -1")
        PFR, PFS = (TMP, S_C) if pf_at < GPB else (TMP + 8, S_D)
        if i == P_PF: q += [(f"v_mov_b32 v{PFR+e}, -1", None) for e in range(4)]
        arm = list(range(0 if sent else 4, 8))
        if P_PF <= i < P_PF + len(arm) * pf_step and (i - P_PF) % pf_step == 0:
            t = arm[(i - P_PF) // pf_step]
            q += [(f"s_add_u32 s{PFS}, s{S_PS}, {8192 * (t & 1) + (t >> 1) * 0x100000}", None),
                  (f"buffer_store_dwordx4 v[{PFR}:{PFR+3}], v{VR}, {SW}, s{PFS} offen sc1", ("PF" if PFR == TMP else "PG",))]
        TW_AT = P_PW2 + chk + 4
        if TW_AT <= i < TW_AT + tw * tw_step and (i - TW_AT) % tw_step == 0:
            j = (i - TW_AT) // tw_step
            q += [(f"v_lshlrev_b32 v{TMP+13}, 3, v{VR}", None), (f"s_add_u32 s{S_SP}, s91, {tw0 * 1024 + j * 131072}", None),
                  (f"buffer_load_dword v{TMP+14}, v{TMP+13}, {SW}, s{S_SP} offen", None)]
        if sent and i == P_PF + 8 * pf_step + 30: named["pe"] = (0, last_st["pf"])
        if sent and i == P_PPF - 8: q += [(f"v_and_b32 v{TMP+13}, 60, v{VF}", None), (f"v_lshlrev_b32 v{TMP+13}, 5, v{TMP+13}", None)]
        if not sent and i == NGR - pe_back - 8:
            q += [(f"v_and_b32 v{TMP+13}, 60, v{VF}", None), (f"v_lshlrev_b32 v{TMP+13}, 5, v{TMP+13}", None)]
        if not sent and i == NGR - pe_back: q.append((poll_load(S_FPF_C), ("N", "pe_ld")))
        if "pe" in named and tm[i] >= named["pe"][0]:
            k.wait(vm=named.pop("pe")[1])
            k(flag_store(S_FPF_P)); k(f"s_add_u32 s{S_FPF_P}, s{S_FPF_P}, 0x20000")
            PE_AT.append(i)
        if fl_next in fl_due and tm[i] >= fl_due[fl_next][0]:
            if diag == 4: stamp(12 + 2 * fl_next)
            k.wait(vm=fl_due[fl_next][1])
            if diag == 4: stamp(13 + 2 * fl_next)
            k(flag_store(S_FH_P)); k(f"s_add_u32 s{S_FH_P}, s{S_FH_P}, 0x4000")
            FL_AT.append(i); fl_next += 1
        polls = [(P_PW1, S_FW1_C, "w1", 1), (P_PW2, S_FW2_C, 56, 1)] + [(P_PH[j], S_FH_C, 16, j + 1) for j in range(4)] + [(P_PPF if sent else -100, S_FPF_C, 16, 1), (P_PX, S_FXN_C, 8, 1), (P_PH[4], S_FH_C, 16, 5)]
        for z, (pos, soff, n_, lvl) in enumerate(polls):
            if i == pos: pend[pos] = k(poll_load(soff))
            if i == pos + CHK[kd] and pos in pend:
                if z >= 7: z += 1
                if diag == 3: stamp(12 + 2 * z)
                poll_check(pend.pop(pos), soff, n_, lvl)
                if soff == S_FH_C: k(f"s_add_u32 s{S_FH_C}, s{S_FH_C}, 0x4000")
                if diag == 3: stamp(13 + 2 * z)
        if tail_start + GPB <= i <= G2S and (i - tail_start) % GPB == 0:
            b = (i - tail_start) // GPB - 1
            assert not any(c_ and c_[0] == "PF" for _, c_ in q)
            if not epi[0] and not epi[1]: hold = 4
            for t in range(2): epi[t] += epilogue(b, t)
            ready_b = b; ready_at = tm[i] + 4
        if i > T2S and (i - T2S) % (2 * KT2) == 4:
            assert fl_next == 5 and not epi[0]
            pp_ = (i - T2S) // (2 * KT2) - 1
            epi[0] += [(x, 100 + pp_) for x in p_store(pp_)]
        if i == G2S: assert all(x[1] >= 4 for c_ in epi for x in c_)
        def waits(i, kd, u, t):
            if i not in r_id or ((kd, u), t) not in t_id: return None
            lgw = r_id[i]
            if lgw > k.lg_done:
                for j in range(1, wgran):
                    if i + j in r_id and k.nlg - r_id[i + j] >= 2: lgw = r_id[i + j]
            vmw = t_id[((kd, u), t)]
            if vmw > k.vm_done and i > 28 and ((kd, u), NTk[kd] - 1) in t_id: vmw = t_id[((kd, u), NTk[kd] - 1)]
            return vmw, lgw
        def pick(i, j):
            if not chain: return i, j
            m = (i & 1) * NTk[groups[i][0]] + j
            n, e = m >> 1, m & 1
            if zig:
                e ^= n & 1
                if (i >> 1) & 1: n = NTk[groups[i][0]] - 1 - n
            return (i & ~1) + e, n
        def waits2(i, j):
            gi, tt = pick(i, j)
            return waits(gi, groups[gi][0], groups[gi][1], tt)
        for t in range(NT):
            while waits2(i, t) is None: emit_q()
            vmw, lgw = waits2(i, t)
            k.wait(vm=vmw, lg=lgw)
            gi, tt = pick(i, t)
            a = acc(kd, g, tt)
            c = f"v[{a}:{a+3}]" if (kd, g, tt) in seen else "0"
            seen.add((kd, g, tt))
            at = AT(kd, groups[gi][1], tt)
            k(f"v_mfma_f32_16x16x32_bf16 v[{a}:{a+3}], a[{AW(gi)}:{AW(gi)+3}], {at}, {c}")
            budget = 2 if kd == 1 else b2
            if len(epi[0]) + len(epi[1]) > thr and (tm[i] + t) % 2 == 0: budget += 1
            if t + 1 < NT: nw = waits2(i, t + 1)
            elif i + 1 < NGR:
                nw = waits2(i + 1, 0)
                if i + 1 in bars: budget -= 1
            else: nw = (0, 0)
            if nw is None or nw[0] > k.vm_done or nw[1] > k.lg_done: budget -= 1
            used = 0
            while q and used < 2:
                mem = q[0][0].startswith(("ds_", "buffer_"))
                c_ = cost(q[0][0])
                if (mem and used) or (c_ > budget and not (len(q) > 5 and used == 0)): break
                if used and len(q) <= NT - t: break
                emit_q(); budget -= c_; used += 1
            while budget > 0:
                ok = [c_ for c_ in (turn, 1 - turn) if epi[c_] and cost(epi[c_][0][0]) <= budget
                      and not (epi[c_][0][1] == ready_b and tm[i] + t < ready_at)]
                if not ok: break
                big = [c_ for c_ in ok if cost(epi[c_][0][0]) == 2]
                c_ = big[0] if big else ok[0]
                if abs(len(epi[c_]) - len(epi[1 - c_])) > 24 and len(epi[c_]) < len(epi[1 - c_]):
                    if 1 - c_ in ok: c_ = 1 - c_
                    else: break
                x, b = epi[c_].pop(0); budget -= cost(x); turn = 1 - c_
                id_ = k(x)
                if b == 101 and not epi[0] and not sent: named["pe"] = (tm[i] + t + pe_lag, id_)
                if x.startswith("buffer_store") and b < 7:
                    hst[(b, c_)] = id_
                    if b in PH_B and (b, 0) in hst and (b, 1) in hst:
                        fl_due[PH_B.index(b)] = (tm[i] + t + fl_lag, id_)
    while epi[0] and epi[0][0][1] == 102: k(epi[0].pop(0)[0])
    assert len(PE_AT) == 1
    assert not items and not epi[0] and not epi[1] and not q and not pend and fl_next == 5
    assert all(tm[f] + 60 < tm[p] for f, p in zip(FL_AT, P_PH)), (FL_AT, P_PH)
    k.info = dict(pe=(PE_AT, NGR), minsl=[(int(a_), b_) for a_, b_ in MINSL], flags=FL_AT, polls=P_PH, slack=[tm[p] - tm[f] for f, p in zip(FL_AT, P_PH)])
    if abl:
        keep = []
        for l in k.lines[G2L:]:
            x = l.strip()
            if "T" in abl and x.startswith("buffer_load_dwordx4 a["): continue
            if "W" in abl and x.endswith(" lds"): continue
            if "D" in abl and x.startswith("ds_read_b128"): continue
            if "B" in abl and x == "s_barrier": continue
            if "V" in abl and x.startswith(("v_mul", "v_fmaak", "v_exp", "v_rcp", "v_add_f32")): continue
            keep.append(l)
        k.lines[G2L:] = keep
    stamp(9)
    PP = 160
    for x in p_store(3): k(x)
    if not sent:
        pe_ld = named["pe_ld"]
        k(flag_store(S_FPF_P)); k(f"s_add_u32 s{S_FPF_P}, s{S_FPF_P}, 0x20000")
    VRL = TMP + 15
    k(f"s_lshl_b32 s{S_B}, s{S_LAY}, 23\ns_add_u32 s{S_B}, s{S_B}, s{S_ROWL}")
    k(f"v_lshrrev_b32 v{TMP+14}, 12, v{VROW}\nv_and_b32 v{VRL}, 0x3ff, v{VROW}\nv_lshl_add_u32 v{VRL}, v{TMP+14}, 10, v{VRL}")
    def p_loads(which):
        def f():
            for i in which:
                for j in range(2):
                    r = PP + 8 * i + 4 * j
                    k(f"s_add_u32 s{S_C}, s{S_B}, {WS_P + j*MB4 + i*0x100000}")
                    x = k(f"buffer_load_dwordx4 v[{r}:{r+3}], v{VRL}, {SW}, s{S_C} offen sc1")
            return x
        return f
    def add_p(which):
        for i in which:
            for e in range(8 * i, 8 * i + 8, 2):
                for j in range(2):
                    r = PP + 8 * i + 4 * j + (e % 8) // 2
                    unpk(k, T + 2 * j, r, 0); unpk(k, T + 2 * j + 1, r, 1)
                k(f"v_pk_add_f32 v[{T}:{T+1}], v[{T}:{T+1}], v[{T+2}:{T+3}]")
                k(f"v_pk_add_f32 v[{X+e}:{X+e+1}], v[{X+e}:{X+e+1}], v[{T}:{T+1}]")
                k(f"v_cvt_pk_bf16_f32 v{XP+e//2}, v{X+e}, v{X+e+1}")
                unpk(k, X + e, XP + e // 2, 0); unpk(k, X + e + 1, XP + e // 2, 1)
    if not sent:
        if diag == 5: stamp(12)
        poll_check(pe_ld, S_FPF_C, 16)
        if diag == 5: stamp(13)
        e_ld = p_loads((0, 1))()
        k(f"s_add_u32 s{S_FPF_C}, s{S_FPF_C}, 0x20000")
        row_addr()
        for i in range(4): k(f"ds_read_b128 v[{XP+4*i}:{XP+4*i+3}], v{AL} offset:{16384 + 4096*i}")
        for i in range(4): k(f"ds_read_b128 v[{YP+4*i}:{YP+4*i+3}], v{AL} offset:{4096*i}")
        pl_ld = k(poll_load(S_FPF_C))
        k("s_waitcnt lgkmcnt(0)")
        unpack(X, XP)
        if diag == 5: stamp(14)
        poll_check(pl_ld, S_FPF_C, 16)
        if diag == 5: stamp(15)
        k(f"s_add_u32 s{S_FPF_C}, s{S_FPF_C}, 0x20000")
        def mid():
            k("s_barrier")
            add_p((0, 1)); unpack(Yf, YP)
            if diag == 5: stamp(16)
        sentinel_loop("L_ppoll", p_loads((2, 3)), range(PP + 16, PP + 32), mid)
    else:
        if diag == 5: stamp(12); stamp(13)
        k(f"s_add_u32 s{S_FPF_C}, s{S_FPF_C}, 0x20000")
        def first():
            row_addr()
            for i in range(4): k(f"ds_read_b128 v[{XP+4*i}:{XP+4*i+3}], v{AL} offset:{16384 + 4096*i}")
            for i in range(4): k(f"ds_read_b128 v[{YP+4*i}:{YP+4*i+3}], v{AL} offset:{4096*i}")
            k("s_waitcnt lgkmcnt(0)\ns_barrier")
            unpack(X, XP); unpack(Yf, YP)
            if diag == 5: stamp(14)
        if ord2:
            sentinel_loop("L_ppoll2", p_loads((0, 1, 2)), range(PP, PP + 24), first)
            if diag == 5: stamp(15)
            sentinel_loop("L_ppoll", p_loads((3,)), range(PP + 24, PP + 32), lambda: add_p((0, 1, 2)))
        else:
            p_loads((0, 1, 2))()
            first()
            sentinel_loop("L_ppoll", p_loads((3,)), range(PP + 24, PP + 32))
            if diag == 5: stamp(15)
            sentinel_loop("L_ppoll2", p_loads((0, 1, 2)), range(PP, PP + 24), skip_first=True)
        if diag == 5: stamp(16)
    stamp(10)
    k(f"s_cmp_lg_u32 s{S_LAY}, 0\ns_cbranch_scc1 L_final")
    def tail_math():
        add_p((2, 3) if not sent else (3,) if ord2 else (0, 1, 2, 3)); stats(0)
    weave(tail_math, range(npre2), 200)
    stamp(11)
    if diag: k(f"v_mov_b32 v{VSTAMP-1}, v{VSTAMP}")
    k(f"""
    s_mov_b32 s{S_LAY}, 1
    s_mov_b32 s26, 0
    s_mov_b32 s30, 0
    s_add_u32 s{S_XN}, s{S_XN}, {MB4}
    s_add_u32 s{S_HL}, s{S_HL}, {H_STRIDE}
    s_add_u32 s{S_HS}, s{S_HS}, {H_STRIDE}
    s_add_u32 s{S_PS}, s{S_PS}, {2*MB4}
    s_add_u32 s{S_FXN_P}, s{S_FXN_P}, 0x4000
    s_add_u32 s{S_FXN_C}, s{S_FXN_C}, 0x4000
    s_branch L_layer
    """)
    k.label("L_final")
    add_p((2, 3) if not sent else (3,) if ord2 else (0, 1, 2, 3))
    k(f"s_or_b32 s16, s2, s17\ns_cbranch_scc1 L_noepoch\ns_add_u32 s87, s87, 1\nv_mov_b32 v{VP}, s87\ns_mov_b32 s16, {WS_FLAG + F_EPOCH}")
    k(f"s_mov_b64 exec, 1\nbuffer_store_dword v{VP}, off, {SW}, s16 sc1\ns_mov_b64 exec, -1")
    k.label("L_noepoch")
    srd(k, 32, 6, MB4)
    for i in range(4): k(f"buffer_store_dwordx4 v[{XP+4*i}:{XP+4*i+3}], v{AO}, s[32:35], s{S_ROWY} offen offset:{64*i} {outm}")
    if diag:
        k("s_waitcnt vmcnt(0)"); stamp(11)
        if diag == 7:
            k(f"s_cmp_lg_u32 s2, {dbg_wg}\ns_cbranch_scc1 L_nodbg\ns_cmp_lg_u32 s17, 0\ns_cbranch_scc1 L_nodbg")
            k(f"s_load_dwordx2 s[32:33], s[0:1], {ARG['dbg']}\nv_readlane_b32 s12, v{VSTAMP}, 12\nv_mov_b32 v8, 0")
            sel = [(1, x) for x in (26, 27, 1, 2, 3, 4, 5, 6, 7, 8, 9, 10)] + [(0, x) for x in (6, 8, 9, 11)]
            for n_, (w_, x) in enumerate(sel):
                k(f"v_readlane_b32 s13, v{VSTAMP - w_}, {x}\ns_nop 3\ns_sub_u32 s13, s13, s12\nv_writelane_b32 v8, s13, {n_}")
            k(f"s_waitcnt lgkmcnt(0)\ns_mov_b32 s34, 64\ns_mov_b32 s35, 0x20000\nbuffer_store_dword v8, v{VF}, s[32:35], 0 offen")
            k.label("L_nodbg")
        k(f"s_lshl_b32 s12, s2, 11\ns_lshl_b32 s13, s17, 9\ns_add_u32 s12, s12, s13\ns_add_u32 s12, s12, 0x8100000")
        k(f"buffer_store_dword v{VSTAMP-1}, v{VF}, {SW}, s12 offen\nbuffer_store_dword v{VSTAMP}, v{VF}, {SW}, s12 offen offset:256")
    k("s_endpgm")
    for lab, pre_, body in slow:
        k.label(lab); k("\n".join(pre_))
        k.label(lab + "_l"); k("\n".join(body)); k(f"s_cbranch_scc1 {lab}_l")
        k.label(lab + "_out"); k(f"s_waitcnt vmcnt(0)\ns_branch {lab}_ok")
    k.label("L_end"); k("s_endpgm")
    return (k, 512, 256), (k.name, 256, 256, 163840)

HEADER = open("interleave_layers__ssm_conv_h3__glu_gated_geglu__prompt.s.ref").read().split("; Override launch")[0]

def build(path, stamps=False, as_list=True, hpad=0, wpad=0, **kw):
    global TBH, W1T, W2T
    TBH = 224 * 512 + hpad; W1T = 448 + wpad; W2T = 448 + wpad
    asmlib.STAMPS[0] = stamps
    kk, l = gen_mega(**kw)
    txt = module(HEADER, [l], [kk])
    if not as_list: txt = txt.replace(f"; @launch kernel={l[0]} ", "; @launch ")
    txt = "\n".join(x.strip() if x.startswith("    ") else x for x in txt.split("\n"))
    open(path, "w").write(txt)
    return len(kk[0].lines), kk[0].padded, kk[0].info

if __name__ == "__main__":
    print(build("v11.s")); build("v11s.s", stamps=True); build("v11f.s", stamps=3)
```

```python
import math, struct, sys
import asmlib
from asmlib import *

MB4 = 0x400000
WS_TOTAL = 0x10000000
WS_Y, WS_KV = 0x0, 0x400000
WS_XN = 0x900000
WS_P = 0x5400000
WS_H = 0x1200000
H_STRIDE = 0x1000000
WS_W1, WS_W2, WS_FLAG = 0x3200000, 0x4200000, 0x5200000
WS_PL = 0x9000000
F_W0 = 0x14000
F_PE = 0x80000
W1T, W2T = 448, 448
F_W1, F_W2, F_PF, F_H, F_XN, F_KV, F_ARM, F_EPOCH = 0x0, 0x1000, 0x2000, 0x20000, 0x8000, 0x100000, 0x11000, 0x12000
H_BYTES = 2048 * 3584 * 2
W_BYTES = 1024 * 3584 * 2
TBH = 224 * 512
ARG = dict(q=0, k=8, v=16, shift=24, ssm=32, D=40, wg=56, wu=64, wd=72, out=80, dbg=88, ws=96)
lg = lambda x: x.bit_length() - 1
f32bits = lambda x: struct.unpack("<I", struct.pack("<f", x))[0]
SPIN = 0x20000

def srd(k, d, base, nbytes, off=0):
    if off: k(f"s_add_u32 s{d}, s{base}, {off:#x}\ns_addc_u32 s{d+1}, s{base+1}, 0")
    else: k(f"s_mov_b32 s{d}, s{base}\ns_mov_b32 s{d+1}, s{base+1}")
    k(f"s_mov_b32 s{d+2}, {nbytes:#x}\ns_mov_b32 s{d+3}, 0x20000")

def unpk(k, dst, src, hi):
    k(f"v_and_b32 v{dst}, 0xffff0000, v{src}" if hi else f"v_lshlrev_b32 v{dst}, 16, v{src}")

def touch_code(k, first, last, vaddr, vdst, sb, v0=0, n=1, step=32768):
    k.nl += 1
    here = f"L_{k.name}_pc{k.nl}"
    k(f"s_getpc_b64 s[{sb}:{sb+1}]")
    k.label(here)
    k(f"""
    s_add_u32 s{sb}, s{sb}, {first}-{here}
    s_addc_u32 s{sb+1}, s{sb+1}, 0
    s_mov_b32 s{sb+2}, {last}-{first}
    s_mov_b32 s{sb+3}, 0x20000
    v_lshlrev_b32 v{vaddr}, 7, v{v0}
    """)
    for i in range(n):
        if i: k(f"v_add_u32 v{vaddr}, {step}, v{vaddr}")
        k(f"buffer_load_dword v{vdst}, v{vaddr}, s[{sb}:{sb+3}], 0 offen")

CS = 4160; XS = 4640; CH_LDS = 4 * CS + 2 * XS; CONV_LDS = 4 * CH_LDS
NS = 8; RW = 8
LDS_Y, LDS_XR, LDS_ST = 131072, 147456, 131072 - 512
S_LAY, S_WAVE, S_WS = 3, 17, 8
SW = "s[20:23]"; SD = "s[24:27]"; SX = "s[28:31]"
(S_M0, S_W1, S_W2, S_XN, S_HL, S_HS, S_PS, S_ROWF, S_ROWY, S_FH_P, S_FH_C, S_FW2_P, S_FW2_C, S_FPF_P, S_FPF_C,
 S_FXN_P, S_FXN_C, S_SHA, S_SHB, S_SHD, S_HS6) = range(36, 57)
S_FW1_C = 19
S_PL, S_ROWL, S_TAG16, S_MSK = 56, 88, 89, 90
S_N = 68
S_DMA, S_SP, S_T = 57, 58, 10
S_A, S_B, S_C, S_D, S_E = 14, 15, 16, 18, 59
VR, VD, VST, VC2, VF, VTID, VS0, VS1, VROW, VP, VF16 = 224, 226, 227, 228, 229, 230, 231, 232, 233, 234, 235
TMP = 236
VTAG = 253
VSTAMP = 255

def gen_mega(KT=14, la_bar=5, la1=260, rate1=0.175, la2=96, rate2=0.225, wgran=2, rep=4, nap=3, q_step=6, r1_step=6, arm_step=6, npre=3, npre2=7, w0_at=3, sh_step=4, chain=True, bper=2, zig=True, cchain=False,  wsteps=(0, 0, 0, 0, 0, 0, 1, 1, 1, 1, 1, 1, 2, 2, 2, 2), a_step=3, sh_pos=17, shr=258, sh_lead=100, pw2=336, ord2=True, swz=4, kvnt='', qnt='', hnt='', dnt='', outm='nt', dbg_wg=77, now=0, wnt='', ct=True, pnap=2, ph_back=(90, 100, 100, 90), b2=3, fl_lag=48, thr=170, chk=10, pf_step=4, pf_at=44, pe_back=6, sent=True, park=8, free_at=(335, 368, 402, 434), ph0=392, tw=0, tw0=96, tw_step=8, pe_lag=32, rmax=0.2, rmax2=0.25, w1_step=1, w1s=2, E=2, e_late=True, KT2=12, abl=""):
    k = K("interleave_layers__ssm_conv_h3__glu_gated_geglu__prompt_kernel")
    diag = asmlib.STAMPS[0]
    def stamp(i):
        if diag:
            k(f"s_memrealtime s[64:65]\ns_memtime s[66:67]\ns_waitcnt lgkmcnt(0)\nv_writelane_b32 v{VSTAMP}, s64, {i}\nv_writelane_b32 v{VSTAMP}, s66, {32 + i}")
    slow = []
    def poll_load(soff, width=1):
        if width == "w0": return f"buffer_load_dwordx2 v[{TMP}:{TMP+1}], v{TMP+13}, {SW}, s{soff} offen sc1"
        if width == "arm": return f"buffer_load_dwordx4 v[{TMP}:{TMP+3}], v{VR}, {SW}, s{soff} offen sc1"
        va = VF if soff in (S_FW1_C, S_FW2_C) else TMP + 13 if soff in (S_FPF_C, S_FKV) else VF16
        return f"buffer_load_dword v{VP}, v{va}, {SW}, s{soff} offen sc1"
    def poll_test(n, width, soff):
        if n == "w0":
            return [f"v_xor_b32 v{TMP}, v{TMP}, v{VTAG}", f"v_xor_b32 v{TMP+1}, v{TMP+1}, v{VTAG}", f"v_or_b32 v{VP}, v{TMP}, v{TMP+1}",
                    f"v_cmp_ne_u32 vcc, 0, v{VP}", f"s_or_b32 s{S_A}, vcc_lo, vcc_hi", f"s_and_b32 s{S_A}, s{S_A}, {(1 << (32 - KT)) - 1:#x}"]
        if n == "arm":
            o = [f"v_xor_b32 v{TMP+i}, v{TMP+i}, v{VTAG}" for i in range(4)]
            o += [f"v_or3_b32 v{VP}, v{TMP}, v{TMP+1}, v{TMP+2}", f"v_or_b32 v{VP}, v{VP}, v{TMP+3}", f"v_cmp_ne_u32 vcc, 0, v{VP}"]
            n = 64
        else: o = [f"v_cmp_ne_u32 vcc, v{VTAG}, v{VP}"]
        if n == "w1": o += [f"s_or_b32 s{S_A}, vcc_lo, vcc_hi", f"s_and_b32 s{S_A}, s{S_A}, {(1 << (2 * KT)) - 1:#x}"]
        elif n <= 32: o.append(f"s_and_b32 s{S_A}, vcc_lo, {(1 << n) - 1:#x}")
        elif n < 64: o += [f"s_and_b32 s{S_A}, vcc_hi, {(1 << (n - 32)) - 1:#x}", f"s_or_b32 s{S_A}, s{S_A}, vcc_lo"]
        else: o.append(f"s_or_b32 s{S_A}, vcc_lo, vcc_hi")
        return o
    def poll_check(ld, soff, n, width=1):
        k.nl += 1; lab = f"L_poll{k.nl}"
        k.wait(vm=ld)
        k("\n".join(poll_test(n, width, soff)) + f"\ns_cbranch_scc1 {lab}")
        k.label(lab + "_ok")
        slow.append((lab, [f"s_mov_b32 s{S_SP}, {SPIN}"], [f"s_sleep {nap}", poll_load(soff, n if n in ("arm", "w0") else width), f"s_sub_u32 s{S_SP}, s{S_SP}, 1", f"s_cbranch_scc1 {lab}_out",
                    "s_waitcnt vmcnt(0)"] + poll_test(n, width, soff)))
    def flag_store(soff):
        if soff in (S_FPF_P, 78):
            return f"s_mov_b32 exec_hi, 0\nbuffer_store_dword v{VTAG}, v{VF16}, {SW}, s{soff} offen sc1\ns_mov_b32 exec_hi, -1"
        return f"s_mov_b64 exec, 1\nbuffer_store_dword v{VTAG}, off, {SW}, s{soff} sc1\ns_mov_b64 exec, -1"

    c1 = -2 * math.sqrt(2 / math.pi) * math.log2(math.e)
    k("s_cmp_ge_u32 s2, 256\ns_cbranch_scc1 L_end")
    S_FKV = 69
    if diag == 7: k(f"v_mov_b32 v{VSTAMP}, 0"); stamp(12)
    k(f"""
    s_load_dwordx4 s[72:75], s[0:1], {ARG['k']}
    s_load_dwordx2 s[8:9], s[0:1], {ARG['ws']}
    s_load_dwordx2 s[76:77], s[0:1], {ARG['shift']}
    s_load_dwordx4 s[4:7], s[0:1], {ARG['ssm']}
    s_load_dwordx4 s[96:99], s[0:1], {ARG['wg']}
    s_load_dwordx2 s[100:101], s[0:1], {ARG['q']}
    s_and_b32 s59, s2, 7
    s_lshr_b32 s60, s2, 3
    s_lshl_b32 s16, s60, 4
    v_and_b32 v3, 15, v0
    v_add_u32 v3, s16, v3
    """)
    touch_code(k, "L_body", "L_end", 4, 51, 80, v0=3)
    k.label("L_body")
    GS = 1056; KB = CONV_LDS; VB = KB + 17 * GS
    k(f"""
    v_lshrrev_b32 v1, 6, v0
    v_and_b32 v2, 63, v0
    v_readfirstlane_b32 s17, v1
    s_lshl_b32 s61, s59, 5
    s_add_u32 s61, s61, s60
    s_and_b32 s16, s61, 15
    s_lshl_b32 s16, s16, 18
    s_lshr_b32 s18, s61, 4
    s_lshl_b32 s18, s18, 7
    s_add_u32 s16, s16, s18
    v_lshrrev_b32 v3, 3, v2
    v_lshlrev_b32 v3, 11, v3
    v_and_b32 v7, 7, v2
    v_lshl_add_u32 v3, v7, 4, v3
    v_add_u32 v3, s16, v3
    v_subrev_u32 v8, 0x4000, v3
    s_lshl_b32 s84, s17, 16
    s_mul_i32 s85, s17, {4*GS}
    s_and_b32 s16, s61, 0xf0
    v_bfe_u32 v49, v0, 3, 3
    v_lshrrev_b32 v9, 7, v0
    v_lshl_add_u32 v49, v9, 3, v49
    v_add_u32 v9, s16, v49
    v_lshlrev_b32 v7, 5, v9
    """)
    if diag and diag != 7: k(f"v_mov_b32 v{VSTAMP}, 0")
    k("s_waitcnt lgkmcnt(0)")
    srd(k, 24, 72, MB4); srd(k, 28, 74, MB4); srd(k, 32, 76, 8192)
    k(f"s_mov_b32 m0, {KB}\ns_nop 0\nbuffer_load_dwordx4 v8, s[24:27], 0 offen {kvnt} lds")
    for base, sr in ((KB + GS, "s[24:27]"), (VB, "s[28:31]")):
        for j in range(4):
            k(f"s_add_u32 m0, s85, {base + j*GS}\ns_add_u32 s16, s84, {j*16384}")
            k(f"buffer_load_dwordx4 v3, {sr}, s16 offen {kvnt} lds")
    k("buffer_load_dwordx4 v[108:111], v7, s[32:35], 0 offen")
    lkv = k("buffer_load_dwordx4 v[112:115], v7, s[32:35], 0 offen offset:16")
    stamp(0)
    k(f"s_add_u32 s70, s8, {WS_FLAG + F_EPOCH}\ns_addc_u32 s71, s9, 0\ns_load_dword s87, s[70:71], 0")
    srd(k, 20, 8, WS_TOTAL); srd(k, 28, 8, WS_TOTAL)
    KM = 32 - KT
    assert KM == 18
    k(f"""
    s_mov_b32 s{S_LAY}, 0
    v_mov_b32 v{VTID}, v0
    v_lshlrev_b32 v{VR}, 4, v2
    s_lshl_b32 s18, s61, 2
    s_add_u32 s18, s18, s17
    s_mul_i32 s62, s17, {CH_LDS}
    s_lshl_b32 s16, s18, 12
    s_add_u32 s64, s4, s16
    s_addc_u32 s65, s5, 0
    s_add_u32 s16, s16, {WS_KV}
    s_add_u32 s72, s8, s16
    s_addc_u32 s73, s9, 0
    s_mov_b32 s74, 4096
    s_mov_b32 s75, 0x20000
    s_and_b32 s16, s18, 0xfffffffe
    s_lshl_b32 s16, s16, 1
    s_add_u32 s6, s6, s16
    s_addc_u32 s7, s7, 0
    s_mov_b32 s24, s64
    s_mov_b32 s25, s65
    s_mov_b32 s26, 4096
    s_load_dword s63, s[6:7], 0
    s_load_dwordx4 s[4:7], s[0:1], {ARG['wd']}
    s_mov_b32 s84, 4096
    s_mov_b32 s85, 8192
    s_mov_b32 s86, 12288
    v_and_b32 v48, 7, v0
    v_bfe_u32 v10, v0, 6, 1
    v_lshl_add_u32 v48, v10, 3, v48
    v_mul_u32_u24 v52, {GS}, v48
    v_lshl_add_u32 v52, v49, 3, v52
    v_add_u32 v52, {KB}, v52
    s_and_b32 s16, s61, 15
    s_lshl_b32 s16, s16, 4
    v_add_u32 v48, s16, v48
    v_sub_u32 v50, 255, v48
    v_lshlrev_b32 v50, 4, v50
    v_lshl_add_u32 v50, v9, 14, v50
    v_add_u32 v50, {WS_KV}, v50
    s_lshr_b32 s32, s59, 1
    s_lshl_b32 s32, s32, 2
    s_and_b32 s33, s60, 3
    s_add_u32 s32, s32, s33
    s_and_b32 s33, s59, 1
    s_lshr_b32 s34, s60, 2
    s_lshl_b32 s35, s33, 3
    s_add_u32 s35, s35, s34
    s_lshl_b32 s19, s32, 4
    s_add_u32 s19, s19, s35
    s_lshl_b32 s{S_ROWY}, s19, 14
    s_lshr_b32 s45, s19, 1
    s_lshl_b32 s45, s45, 15
    s_and_b32 s16, s19, 1
    s_lshl_b32 s16, s16, 7
    s_add_u32 s45, s45, s16
    s_and_b32 s16, s17, 1
    s_lshl_b32 s16, s16, 11
    s_add_u32 s45, s45, s16
    s_lshr_b32 s16, s17, 1
    s_lshl_b32 s16, s16, 22
    s_add_u32 s45, s45, s16
    s_add_u32 s45, s45, {WS_XN}
    v_and_b32 v8, 7, v0
    v_lshrrev_b32 v9, 3, v2
    v_lshlrev_b32 v15, 4, v8
    v_lshl_add_u32 v15, v9, 8, v15
    v_lshrrev_b32 v9, 3, v0
    v_and_b32 v13, 3, v9
    v_lshrrev_b32 v9, 2, v9
    v_lshl_add_u32 v9, v9, 4, v13
    v_lshlrev_b32 v53, 11, v8
    v_lshl_add_u32 v53, v9, 4, v53
    v_lshlrev_b32 v{VROW}, 4, v8
    v_lshl_add_u32 v{VROW}, v9, 8, v{VROW}
    v_mov_b32 v16, -1
    v_mov_b32 v17, -1
    v_mov_b32 v18, -1
    v_mov_b32 v19, -1
    v_lshlrev_b32 v14, 4, v0
    v_and_b32 v61, 15, v2
    v_lshrrev_b32 v62, 4, v2
    v_lshlrev_b32 v63, 2, v61
    v_lshl_add_u32 v63, v62, 4, v63
    v_mul_u32_u24 v54, 7168, v62
    v_lshl_add_u32 v54, v61, 4, v54
    s_lshl_b32 s11, s17, 13
    s_add_u32 s11, s11, {CONV_LDS}
    """)
    assert E <= 4
    so = ["0", "s84", "s85", "s86"]
    A = lambda buf, p: 64 + buf * 64 + 4 * p
    B = lambda buf, j: 96 + buf * 64 + 4 * j
    AD = 40; HR = 192; QP = 20
    for w in range(4): k(f"v_subrev_u32 v{4+w}, {60-4*w}, v63")
    k("s_waitcnt lgkmcnt(0)")
    k(f"""
    v_and_b32 v8, 3, v61
    v_mul_u32_u24 v8, {CS}, v8
    v_lshrrev_b32 v9, 2, v61
    v_add_u32 v9, v9, v62
    v_lshl_add_u32 v56, v9, 4, v8
    v_add_u32 v56, s62, v56
    v_lshrrev_b32 v8, 3, v61
    v_mul_u32_u24 v9, {XS}, v8
    v_and_b32 v10, 7, v61
    v_lshlrev_b32 v13, 6, v10
    v_sub_u32 v9, v9, v13
    v_lshl_add_u32 v9, v62, 4, v9
    v_add_u32 v9, {4*CS + 4032 - 3584}, v9
    v_add_u32 v57, s62, v9
    v_lshrrev_b32 v13, 1, v10
    v_xor_b32 v13, v13, v62
    v_lshl_add_u32 v13, v10, 2, v13
    v_lshlrev_b32 v13, 4, v13
    v_lshl_add_u32 v13, v8, 12, v13
    v_add_u32 v59, s62, v13
    v_lshrrev_b32 v8, 5, v2
    v_mul_u32_u24 v8, {XS}, v8
    v_and_b32 v9, 31, v2
    v_lshl_add_u32 v8, v9, 4, v8
    v_add_u32 v8, s62, v8
    v_mov_b32 v44, 0
    v_mov_b32 v45, 0
    v_mov_b32 v46, 0
    v_mov_b32 v47, 0
    ds_write_b128 v8, v[44:47] offset:{4*CS + 4096}
    v_lshlrev_b32 v55, 3, v62
    v_bfe_u32 v9, v2, 2, 2
    v_add_u32 v55, v55, v9
    v_lshlrev_b32 v55, 8, v55
    v_and_b32 v9, 3, v2
    v_lshl_add_u32 v55, v9, 3, v55
    v_add_u32 v55, s11, v55
    v_add_u32 v60, s62, v{VR}
    s_and_b32 s16, s18, 1
    s_lshl_b32 s16, s16, 4
    s_lshr_b32 s63, s63, s16
    s_and_b32 s63, s63, 0xffff
    v_mov_b32 v9, s63
    s_lshr_b32 s{S_FKV}, s61, 4
    s_lshl_b32 s{S_FKV}, s{S_FKV}, 11
    s_add_u32 s{S_FKV}, s{S_FKV}, {WS_FLAG + F_KV}
    s_lshl_b32 s78, s61, 7
    s_add_u32 s78, s78, {WS_FLAG + F_KV}
    v_lshlrev_b32 v{TMP+13}, 7, v61
    v_and_b32 v{VF16}, 31, v2
    v_lshlrev_b32 v{VF16}, 2, v{VF16}
    s_mul_i32 s{S_N}, s87, 0x9e3779b1
    s_add_u32 s{S_N}, s{S_N}, 0x7f4a7c15
    s_add_u32 s16, s{S_N}, 1
    v_mov_b32 v{VTAG}, s16
    """)
    for w in range(4): k(f"v_cmp_eq_u32 vcc, 0, v{4+w}\nv_cndmask_b32 v{AD+w}, 0, v9, vcc")
    for i in range(4):
        for h in range(2): h_ld = k(f"buffer_load_dwordx4 v[{HR+8*i+4*h}:{HR+8*i+4*h+3}], v{VR}, s[24:27], 0 offen offset:{i*1024 + 16*h} {hnt}")
    for w in range(4): k(f"buffer_load_dword v{A(0,0)+w}, v{4+w}, s[24:27], 0 offen")
    for i in range(4):
        k(f"s_add_u32 s16, s{S_ROWY}, {WS_Y + 4096*i}\nbuffer_store_dwordx4 v[16:19], v14, {SW}, s16 offen sc1")
    k(f"buffer_store_dwordx4 v[16:19], v15, {SW}, s45 offen sc1")
    qid = {}
    def q_line(i): return f"buffer_load_dwordx4 a[{64+4*i}:{67+4*i}], v53, s[32:35], s{S_ROWY} offen offset:{64*i} {qnt}"
    if diag == 6: stamp(12)
    k.wait(vm=lkv); k("s_barrier")
    if diag == 6: stamp(13)
    KR = lambda t: 74 + 2 * t
    VV = lambda t: 90 + 2 * t
    for t in range(-3, 8): lk = k(f"ds_read_b64 v[{KR(t)}:{KR(t)+1}], v52 offset:{GS + 128*t if t >= 0 else 128*(8+t)}")
    for t in range(8): lv = k(f"ds_read_b64 v[{VV(t)}:{VV(t)+1}], v52 offset:{17*GS + 128*t}")
    W = lambda c, j: 116 + 4 * c + j
    for c in range(4):
        for j in range(4): unpk(k, W(c, j), 108 + 2 * c + (j >> 1), j & 1)
    KS = lambda c, t: 132 + 8 * c + t
    KF = lambda t: 167 + t
    k.wait(lg=lk)
    for c in range(4):
        for t in range(-3, 8): unpk(k, KF(t), KR(t) + (c >> 1), c & 1)
        for t in range(8): k(f"v_mul_f32 v{KS(c,t)}, v{W(c,3)}, v{KF(t-3)}")
        for j in (2, 1, 0):
            for t in range(8): k(f"v_fmac_f32 v{KS(c,t)}, v{W(c,j)}, v{KF(t-j)}")
        k.wait(lg=lv)
        for t in range(8): unpk(k, KF(t), VV(t) + (c >> 1), c & 1)
        for t in range(8): k(f"v_mul_f32 v{KS(c,t)}, v{KS(c,t)}, v{KF(t)}")
        for i in range(4): k(f"v_cvt_pk_bf16_f32 v{176+4*c+i}, v{KS(c,7-2*i)}, v{KS(c,6-2*i)}")
        k(f"buffer_store_dwordx4 v[{176+4*c}:{179+4*c}], v50, {SW}, {so[c]} offen sc1")
    stamp(26)
    kv_st = k.nvm
    k.wait(vm=h_ld)
    for i in range(4):
        r = HR + 8 * i; t = 72 + 8 * i
        for e in range(6): k(f"v_mov_b32 v{t+e}, v{r+1+e}")
        for cc, src in enumerate((t, r + 2, t + 2, r + 4)):
            k(f"ds_write_b128 v60, v[{src}:{src+3}] offset:{cc*CS + i*1024}")
    if diag == 6: stamp(14)
    k.wait(vm=kv_st)
    if diag == 6: stamp(15)
    k("s_barrier")
    if diag == 6: stamp(16)
    k("s_cmp_lg_u32 s17, 0\ns_cbranch_scc1 L_nokvf")
    k(flag_store(78)); k.nvm -= 1
    k.label("L_nokvf")
    k(f"s_lshl_b32 s16, s2, 2\ns_add_u32 s16, s16, {WS_FLAG + F_ARM}\ns_cmp_lg_u32 s17, 1\ns_cbranch_scc1 L_noarm")
    k(flag_store(16)); k.nvm -= 1
    k.label("L_noarm")
    KM2 = 56 - KT2
    k(f"""
    s_lshl_b32 s{S_M0}, s17, 12
    s_lshr_b32 s13, s59, 1
    s_lshl_b32 s12, s13, 3
    s_add_u32 s12, s12, s34
    s_lshl_b32 s14, s33, 2
    s_and_b32 s15, s60, 3
    s_add_u32 s14, s14, s15
    s_lshl_b32 s14, s14, 2
    s_add_u32 s14, s14, s17
    s_lshl_b32 s16, s32, 2
    s_add_u32 s16, s16, s17
    s_mul_i32 s{S_W1}, s12, {W1T*1024}
    s_add_u32 s{S_W1}, s{S_W1}, {WS_W1}
    s_mul_i32 s{S_W2}, s35, {W2T*1024}
    s_add_u32 s{S_W2}, s{S_W2}, {WS_W2}
    s_lshl_b32 s{S_XN}, s14, 17
    s_add_u32 s{S_XN}, s{S_XN}, {WS_XN}
    s_lshl_b32 s{S_PS}, s16, 14
    s_lshl_b32 s15, s34, 10
    s_add_u32 s{S_PS}, s{S_PS}, s15
    s_lshl_b32 s15, s33, 22
    s_add_u32 s{S_PS}, s{S_PS}, s15
    s_add_u32 s{S_PS}, s{S_PS}, {WS_P}
    s_lshr_b32 s{S_ROWL}, s19, 1
    s_lshl_b32 s{S_ROWF}, s{S_ROWL}, 15
    s_lshl_b32 s{S_ROWL}, s{S_ROWL}, 13
    s_and_b32 s15, s19, 1
    s_lshl_b32 s15, s15, 7
    s_add_u32 s{S_ROWL}, s{S_ROWL}, s15
    s_add_u32 s{S_ROWF}, s{S_ROWF}, s15
    s_lshl_b32 s{S_FXN_C}, s14, 7
    s_lshl_b32 s15, s13, 12
    s_add_u32 s{S_FXN_C}, s{S_FXN_C}, s15
    s_add_u32 s{S_FXN_C}, s{S_FXN_C}, {WS_FLAG + F_XN}
    s_lshr_b32 s{S_FXN_P}, s19, 3
    s_lshl_b32 s{S_FXN_P}, s{S_FXN_P}, 7
    s_lshl_b32 s15, s34, 2
    s_add_u32 s{S_FXN_P}, s{S_FXN_P}, s15
    s_add_u32 s{S_FXN_P}, s{S_FXN_P}, s{S_M0}
    s_add_u32 s{S_FXN_P}, s{S_FXN_P}, {WS_FLAG + F_XN}
    s_lshr_b32 s{S_FPF_C}, s19, 2
    s_lshl_b32 s{S_FPF_C}, s{S_FPF_C}, 11
    s_add_u32 s{S_FPF_C}, s{S_FPF_C}, {WS_FLAG + F_PE}
    s_lshl_b32 s{S_FPF_P}, s16, 11
    s_lshl_b32 s15, s35, 7
    s_add_u32 s{S_FPF_P}, s{S_FPF_P}, s15
    s_add_u32 s{S_FPF_P}, s{S_FPF_P}, {WS_FLAG + F_PE}
    s_lshl_b32 s{S_FH_P}, s14, 8
    s_lshr_b32 s15, s12, 4
    s_lshl_b32 s15, s15, 7
    s_add_u32 s{S_FH_P}, s{S_FH_P}, s15
    s_and_b32 s15, s12, 15
    s_lshl_b32 s15, s15, 2
    s_add_u32 s{S_FH_P}, s{S_FH_P}, s15
    s_add_u32 s{S_FH_P}, s{S_FH_P}, {WS_FLAG + F_H}
    s_lshr_b32 s{S_FH_C}, s16, 1
    s_lshl_b32 s{S_FH_C}, s{S_FH_C}, 8
    s_lshl_b32 s15, s33, 7
    s_add_u32 s{S_FH_C}, s{S_FH_C}, s15
    s_add_u32 s{S_FH_C}, s{S_FH_C}, {WS_FLAG + F_H}
    s_mul_i32 s{S_HL}, s16, {2*TBH}
    s_mul_i32 s15, s33, {56*1024}
    s_add_u32 s{S_HL}, s{S_HL}, s15
    s_add_u32 s{S_HL}, s{S_HL}, {WS_H}
    s_mul_i32 s{S_HS}, s14, {4*TBH}
    s_lshr_b32 s15, s12, 4
    s_mul_i32 s15, s15, {56*1024}
    s_add_u32 s{S_HS}, s{S_HS}, s15
    s_and_b32 s15, s12, 15
    s_lshl_b32 s15, s15, 9
    s_add_u32 s{S_HS}, s{S_HS}, s15
    s_add_u32 s{S_HS}, s{S_HS}, {WS_H}
    s_lshl_b32 s{S_FW2_C}, s35, 8
    s_add_u32 s{S_FW2_C}, s{S_FW2_C}, {WS_FLAG + F_W2}
    s_mul_i32 s15, s12, 7
    s_lshr_b32 s15, s15, 3
    s_min_u32 s15, s15, 26
    s_lshl_b32 s15, s15, 7
    s_add_u32 s{S_FW1_C}, s15, {WS_FLAG + F_W1}
    """)
    k(f"""
    s_add_u32 s15, s32, s34
    s_and_b32 s15, s15, 1
    s_mul_i32 s86, s15, {1024 * swz}
    s_mul_i32 s15, s15, {8192 * swz}
    s_add_u32 s92, s{S_W2}, s15
    s_sub_u32 s93, s{S_W2}, s15
    """)
    k(f"""
    s_lshl_b32 s12, s2, 2
    s_add_u32 s12, s12, s17
    s_lshr_b32 s13, s12, 3
    s_and_b32 s12, s12, 7
    s_cmp_ge_u32 s13, 56
    s_cselect_b32 s14, 1, 0
    s_cselect_b32 s15, 56, 0
    s_sub_u32 s13, s13, s15
    s_lshl_b32 s15, s14, 3
    s_add_u32 s15, s15, s12
    s_lshl_b32 s{S_FW2_P}, s15, 8
    s_lshl_b32 s16, s13, 2
    s_add_u32 s{S_FW2_P}, s{S_FW2_P}, s16
    s_add_u32 s{S_FW2_P}, s{S_FW2_P}, {WS_FLAG + F_W2}
    s_mul_i32 s{S_SHD}, s15, {W2T*1024}
    s_and_b32 s32, s13, {1 if chain else 0}
    s_sub_u32 s33, s13, s32
    s_lshl_b32 s16, s33, 13
    s_lshl_b32 s60, s33, 11
    s_add_u32 s60, s60, {KM2 * 6 * 1024}
    s_cmp_lt_u32 s13, {KM2}
    s_cselect_b32 s16, s16, s60
    s_cselect_b32 s60, {2 if chain else 1}, {KT2}
    s_lshl_b32 s60, s60, 11
    s_lshl_b32 s32, s32, 10
    s_add_u32 s16, s16, s32
    s_add_u32 s{S_SHD}, s{S_SHD}, s16
    s_add_u32 s{S_SHD}, s{S_SHD}, {WS_W2}
    s_and_b32 s15, s13, 7
    s_mul_i32 s15, s15, 224
    s_lshr_b32 s16, s13, 3
    s_lshl_b32 s16, s16, 4
    s_add_u32 s15, s15, s16
    s_mul_i32 s14, s14, 1792
    s_add_u32 s15, s15, s14
    s_add_u32 s16, s15, 112
    s_lshl_b32 s12, s12, 8
    s_lshl_b32 s{S_SHA}, s15, 11
    s_add_u32 s{S_SHA}, s{S_SHA}, s12
    s_lshl_b32 s{S_SHB}, s16, 11
    s_add_u32 s{S_SHB}, s{S_SHB}, s12
    v_add_u32 v{VR+1}, 0x10000, v{VR}
    v_add_u32 v{VD}, s{S_M0}, v{VR}
    v_lshrrev_b32 v21, 5, v2
    v_and_b32 v22, 31, v2
    v_lshlrev_b32 v22, 4, v22
    v_mul_u32_u24 v23, {TBH}, v21
    v_add_u32 v{VST}, v23, v22
    v_mov_b32 v{VC2}, {f32bits(c1*0.044715):#x}
    v_lshlrev_b32 v{VF}, 2, v2
    v_lshrrev_b32 v24, 4, v2
    v_and_b32 v25, 15, v2
    v_lshlrev_b32 v25, 4, v25
    v_lshl_add_u32 v{VS0}, v24, 11, v25
    v_bfe_u32 v25, v2, 2, 3
    v_lshlrev_b32 v25, 8, v25
    v_lshl_add_u32 v25, v21, 14, v25
    v_and_b32 v24, 3, v2
    v_lshl_add_u32 v25, v24, 4, v25
    v_add_u32 v{VS1}, s{S_M0}, v25
    """)

    x = k(poll_load(S_FKV))
    poll_check(x, S_FKV, 16)
    stamp(27)
    xl = []
    for i in range(4):
        k(f"buffer_load_dwordx4 v[{128+8*i}:{131+8*i}], v{VR}, s[72:75], 0 offen offset:{i*1024}")
        xl.append(k(f"buffer_load_dword v{132+8*i}, v{VR}, s[72:75], 0 offen offset:{i*1024 + 16}"))
    OFFS = [[84, 85, 89, 90, 91, 94, 95, 69], [70 + i for i in range(8)]]
    WSRC, WBASE, WFLAG = (10, 13), ((24, 25), (96, 97)), (62, 63)
    assert all((x * 9363) >> 16 == x // 7 for x in range(232)) and chain
    for r in range(2):
        k(f"""
        s_mul_i32 s12, s2, {3 if r else 4}
        s_add_u32 s12, s12, s17
        s_add_u32 s12, s12, {1024 * r}
        s_mul_hi_u32 s14, s12, {-(-(1 << 32) // 28)}
        s_mul_i32 s16, s14, 28
        s_sub_u32 s12, s12, s16
        s_and_b32 s15, s14, 1
        s_lshr_b32 s14, s14, 1
        s_cmp_eq_u32 s15, 0
        s_cselect_b32 s{WBASE[r][0]}, s96, s98
        s_cselect_b32 s{WBASE[r][1]}, s97, s99
        s_mul_i32 s{WSRC[r]}, s14, {32*7168}
        s_lshl_b32 s16, s12, 8
        s_add_u32 s{WSRC[r]}, s{WSRC[r]}, s16
        s_lshl_b32 s78, s14, 1
        s_add_u32 s78, s78, s15
        s_lshl_b32 s78, s78, 2
        s_lshl_b32 s16, s12, 7
        s_add_u32 s78, s78, s16
        s_add_u32 s78, s78, {WS_FLAG + F_W1 - 8*KM}
        s_and_b32 s18, s14, 1
        s_sub_u32 s57, s14, s18
        s_add_u32 s57, s57, s15
        s_mul_i32 s58, s57, 14
        s_lshl_b32 s59, s57, 1
        s_add_u32 s59, s59, {12*KM}
        s_cmp_lt_u32 s14, {KM}
        s_cselect_b32 s58, s58, s59
        s_cselect_b32 s59, 2, {2*KT}
        s_cselect_b32 s{WFLAG[r]}, 0, s78
        s_add_u32 s58, s58, s18
        s_add_u32 s58, s58, {WS_W1 >> 10}
        s_lshl_b32 s12, s12, 3
        s_mul_i32 s16, s12, 9363
        s_lshr_b32 s16, s16, 16
        s_mul_i32 s78, s16, 7
        s_sub_u32 s78, s12, s78
        s_mul_i32 s16, s16, {W1T}
        s_add_u32 s58, s58, s16
        s_mul_i32 s16, s78, s59
        s_add_u32 s58, s58, s16
        s_lshl_b32 s{OFFS[r][0]}, s58, 10
        s_lshl_b32 s59, s59, 10
        s_mul_i32 s79, s59, 6
        s_sub_u32 s79, {W1T * 1024}, s79
        """)
        for i in range(7):
            k(f"s_cmp_eq_u32 s78, {6 - i}\ns_cselect_b32 s16, s79, s59\ns_add_u32 s{OFFS[r][i+1]}, s{OFFS[r][i]}, s16")
    k(f"s_mov_b32 s26, {0 if now & 1 else W_BYTES}\ns_cmp_eq_u32 s17, 3\ns_cselect_b32 s{WFLAG[1]}, 0, s{WFLAG[1]}\ns_cselect_b32 s30, 0, s30\ns_cselect_b32 s98, 0, {0 if now & 2 else W_BYTES}")
    srd(k, 32, 100, MB4)
    def w_load(r, j):
        return [f"s_add_u32 m0, s11, {1024*j + 32768*r}", f"s_add_u32 s12, s{WSRC[r]}, {4*7168*j}", f"buffer_load_dwordx4 v54, s[24:27], s12 offen {wnt} lds"]
    for i in range(4):
        r = 128 + 8 * i; t = 160 + 4 * i
        k.wait(vm=xl[i])
        k(f"ds_write_b128 v60, v[{r}:{r+3}] offset:{4*CS + XS + i*1024}")
        for e in range(4): k(f"v_alignbit_b32 v{t+e}, v{r+e+1}, v{r+e}, 16")
        k(f"ds_write_b128 v60, v[{t}:{t+3}] offset:{4*CS + i*1024}")
    stamp(1)
    Y = lambda j: 8 + 4 * j
    def reads(i):
        buf = i & 1; out = []
        for x in range(8):
            out.append(("B", x, f"ds_read_b128 v[{B(buf,x)}:{B(buf,x)+3}], v57 offset:{3584-512*x+64*i}"))
            if (i, x) != (0, 0):
                out.append(("A", x, f"ds_read_b128 v[{A(buf,x)}:{A(buf,x)+3}], v56 offset:{64*(i-1)+512*x}"))
        return out
    ids = {}
    for kind, x, txt in reads(0): ids[(0, kind, x)] = k(txt)
    for j in range(8):
        k.wait(lg=ids[(0, "B", j)])
        k(f"v_mfma_f32_16x16x32_bf16 v[{Y(j)}:{Y(j)+3}], v[{AD}:{AD+3}], v[{B(0,j)}:{B(0,j)+3}], 0")
    side = {i: [] for i in range(8)}
    def sh_reads(r):
        o = []
        for i in range(8):
            f = 32 * r + 4 * i
            o += [("r", None, f"ds_read_b64_tr_b16 a[{f}:{f+1}], v55 offset:{32*i + 32768*r}"), ("r", (r, i), f"ds_read_b64_tr_b16 a[{f+2}:{f+3}], v55 offset:{32*i + 1024 + 32768*r}")]
        return o
    def sh_stores(r):
        return [("s", (r, i), f"buffer_store_dwordx4 a[{32*r+4*i}:{32*r+4*i+3}], v{VR}, {SX if r else SW}, s{OFFS[r][i]} offen sc1") for i in range(8)]
    side[arm_step] += [("v", "arm", f"s_mov_b32 s79, {WS_FLAG + F_ARM}\n" + poll_load(79, "arm"))]
    for n_, st_ in enumerate(wsteps):
        r, j = divmod(n_, 8)
        if n_ == 8: side[st_].append(("x", None, "s_mov_b32 s24, s96\ns_mov_b32 s25, s97\ns_mov_b32 s26, s98"))
        side[st_].append(("v", f"w{r}", "\n".join(w_load(r, j))))
    side[q_step] += [("v", "q", q_line(i)) for i in range(4)]
    rd0 = sh_reads(0)
    side[a_step] += [("w", 0)] + rd0[:10]
    side[a_step + 1] += rd0[10:] + sh_stores(0)[:4]
    side[a_step + 2] += sh_stores(0)[4:]
    sid = dict(qid)
    for i in range(8):
        buf = i & 1
        nxt = reads(i + 1) if i < 7 else []
        order = sorted([(p, j) for p in range(8) for j in range(8 - p)], key=(lambda t: (t[0] + t[1], t[0] if (t[0] + t[1]) & 1 else -t[0])) if cchain else (lambda t: (max(t), t[0] + t[1])))
        sd = side[i]
        for n, (p, j) in enumerate(order):
            k.wait(lg=max(ids.get((i, "A", p), 0), ids[(i, "B", j)]))
            jp = p + j
            k(f"v_mfma_f32_16x16x32_bf16 v[{Y(jp)}:{Y(jp)+3}], v[{A(buf,p)}:{A(buf,p)+3}], v[{B(buf,j)}:{B(buf,j)+3}], v[{Y(jp)}:{Y(jp)+3}]")
            if n % 2 == 1 and nxt:
                kind, x, txt = nxt.pop(0); ids[(i + 1, kind, x)] = k(txt)
            if n % 2 == 0 and sd and (sd[0][0] not in "sv" or n % 4 == 0):
                it = sd.pop(0)
                if it[0] == "w": k.wait(vm=sid["w0"])
                elif it[0] == "s":
                    k.wait(lg=sid[it[1]]); sid["st0"] = k(it[2])
                else:
                    x = k(it[2])
                    if it[1]: sid[it[1]] = x
        assert not nxt and not sd
    stamp(2)
    for j in range(8): k(f"ds_write_b128 v59, v[{Y(j)}:{Y(j)+3}] offset:{512*j}")
    k(f"""
    v_lshrrev_b32 v4, 2, v0
    v_bfe_u32 v5, v4, 3, 2
    v_xor_b32 v5, v5, v4
    v_lshlrev_b32 v5, 4, v5
    v_and_b32 v6, 3, v0
    v_lshl_add_u32 v5, v6, 2, v5
    v_lshlrev_b32 v6, 4, v6
    v_lshl_add_u32 v6, v4, 14, v6
    s_lshl_b32 s12, s61, 6
    s_add_u32 s12, s12, {WS_Y}
    """)
    for c in range(1, 4): k(f"v_add_u32 v{40+c}, {c*CH_LDS}, v5")
    k("v_mov_b32 v40, v5")
    poll_check(sid["arm"], 79, "arm")
    k.wait(vm=sid["st0"], lg=k.nlg); k("s_barrier")
    rid = {}
    for i in range(4):
        for c in range(4):
            rid[i] = k(f"ds_read2st64_b32 v[{64+8*i+2*c}:{65+8*i+2*c}], v{40+c} offset0:{4*i} offset1:{16+4*i}")
    for i in range(4):
        k.wait(lg=rid[i])
        for par in range(2):
            for h in range(2):
                k(f"v_cvt_pk_bf16_f32 v{96+4*i+2*par+h}, v{64+8*i+4*h+par}, v{64+8*i+4*h+2+par}")
        k(f"buffer_store_dwordx4 v[{96+4*i}:{99+4*i}], v6, {SW}, s12 offen sc1")
        if i < 3: k("s_add_u32 s12, s12, 0x100000")
    stamp(3)
    XP, YP, P0, P1, X, Yf, T, AY, AS0, AS1, AL, AO = 8, 24, 40, 56, 72, 104, 136, 0, 1, 2, 3, 4
    def row_addr():
        k(f"""
        v_and_b32 v6, 7, v{VTID}
        v_bfe_u32 v5, v{VTID}, 3, 2
        v_lshrrev_b32 v7, 5, v{VTID}
        v_lshl_add_u32 v7, v7, 4, v5
        v_lshlrev_b32 v{AY}, 3, v6
        v_lshl_add_u32 v{AY}, v7, 7, v{AY}
        v_lshlrev_b32 v{AO}, 11, v6
        v_lshl_add_u32 v{AO}, v7, 4, v{AO}
        v_lshrrev_b32 v{AS0}, 6, v{VTID}
        v_lshlrev_b32 v{AS0}, 3, v{AS0}
        v_lshl_add_u32 v{AS0}, v6, 5, v{AS0}
        v_bfe_u32 v7, v{VTID}, 4, 1
        v_lshl_add_u32 v{AS0}, v7, 2, v{AS0}
        v_add_u32 v{AS0}, {LDS_ST}, v{AS0}
        v_lshlrev_b32 v{AS1}, 5, v6
        v_add_u32 v{AS1}, {LDS_ST}, v{AS1}
        v_lshlrev_b32 v{AL}, 4, v{VTID}
        v_add_u32 v{AL}, {LDS_Y}, v{AL}
        """)
    def unpack(dst, src):
        for e in range(32): unpk(k, dst + e, src + e // 2, e & 1)
    def stats(off):
        k(f"v_pk_add_f32 v[{T}:{T+1}], v[{X}:{X+1}], v[{X+2}:{X+3}]")
        k(f"v_pk_mul_f32 v[{T+2}:{T+3}], v[{X}:{X+1}], v[{X}:{X+1}]")
        for e in range(2, 32, 2):
            if e > 2: k(f"v_pk_add_f32 v[{T}:{T+1}], v[{T}:{T+1}], v[{X+e}:{X+e+1}]")
            k(f"v_pk_fma_f32 v[{T+2}:{T+3}], v[{X+e}:{X+e+1}], v[{X+e}:{X+e+1}], v[{T+2}:{T+3}]")
        R = T + 8
        k(f"""
        v_add_f32 v{T}, v{T}, v{T+1}
        v_add_f32 v{T+2}, v{T+2}, v{T+3}
        v_permlane16_swap_b32 v{T}, v{T+2}
        v_add_f32 v{T}, v{T}, v{T+2}
        v_add_f32_dpp v{T}, v{T}, v{T} row_ror:8 row_mask:0xf bank_mask:0xf
        v_mov_b32 v{T+1}, v{T}
        v_permlane32_swap_b32 v{T}, v{T+1}
        v_add_f32 v{T}, v{T}, v{T+1}
        ds_write_b32 v{AS0}, v{T} offset:{off}
        s_waitcnt lgkmcnt(0)
        s_barrier
        ds_read_b128 v[{R}:{R+3}], v{AS1} offset:{off}
        ds_read_b128 v[{R+4}:{R+7}], v{AS1} offset:{off+16}
        s_waitcnt lgkmcnt(0)
        v_pk_add_f32 v[{R}:{R+1}], v[{R}:{R+1}], v[{R+2}:{R+3}]
        v_pk_add_f32 v[{R+4}:{R+5}], v[{R+4}:{R+5}], v[{R+6}:{R+7}]
        v_pk_add_f32 v[{R}:{R+1}], v[{R}:{R+1}], v[{R+4}:{R+5}]
        v_mul_f32 v{R}, {f32bits(1/1024):#x}, v{R}
        v_mul_f32 v{R+1}, {f32bits(1/1024):#x}, v{R+1}
        v_fma_f32 v{R+1}, -v{R}, v{R}, v{R+1}
        v_max_f32 v{R+1}, 0, v{R+1}
        v_cvt_pk_bf16_f32 v{R+2}, v{R}, v{R+1}
        v_lshlrev_b32 v{R}, 16, v{R+2}
        v_and_b32 v{R+1}, 0xffff0000, v{R+2}
        v_add_f32 v{R+1}, {f32bits(1e-5):#x}, v{R+1}
        v_cvt_pk_bf16_f32 v{R+1}, v{R+1}, v{R+1}
        v_lshlrev_b32 v{R+1}, 16, v{R+1}
        v_sqrt_f32 v{R+1}, v{R+1}
        v_cvt_pk_bf16_f32 v{R+1}, v{R+1}, v{R+1}
        v_lshlrev_b32 v{R+1}, 16, v{R+1}
        v_rcp_f32 v{T+4}, v{R+1}
        v_mov_b32 v{T+5}, v{T+4}
        v_mul_f32_e64 v{T+6}, -v{R}, v{T+4}
        v_mov_b32 v{T+7}, v{T+6}
        """)
    def sentinel_loop(name, loads, regs, between=None, skip_first=False, tagged=False, own_wait=False):
        k(f"s_mov_b32 s{S_SP}, {SPIN}")
        regs = list(regs)
        if not skip_first: loads()
        if between: between()
        k(f"s_branch {name}_chk")
        k.label(name)
        if pnap: k(f"s_sleep {pnap}")
        loads()
        if own_wait: k("s_waitcnt vmcnt(0)")
        k.label(name + "_chk")
        if own_wait:
            k(f"v_max_u32 v{T+16}, v{regs[0]}, v{regs[1]}")
            for i in range(2, len(regs), 2): k(f"v_max3_u32 v{T+16}, v{T+16}, v{regs[i]}, v{regs[i+1]}")
            k(f"v_cmp_eq_u32 vcc, -1, v{T+16}")
        elif tagged:
            k(f"s_waitcnt vmcnt(0)\nv_or3_b32 v{T+16}, v{regs[0]}, v{regs[1]}, v{TMP+8}\nv_bitop3_b32 v{T+17}, v{regs[0]}, v{regs[1]}, v{TMP+8} bitop3:0x80")
            for i in range(2, len(regs), 2):
                k(f"v_or3_b32 v{T+16}, v{T+16}, v{regs[i]}, v{regs[i+1]}\nv_bitop3_b32 v{T+17}, v{T+17}, v{regs[i]}, v{regs[i+1]} bitop3:0x80")
            k(f"v_xor_b32 v{T+16}, v{T+16}, v{T+17}\nv_lshlrev_b32 v{T+16}, 16, v{T+16}\nv_cmp_ne_u32 vcc, 0, v{T+16}")
        else:
            k(f"s_waitcnt vmcnt(0)\nv_max_u32 v{T+16}, v{regs[0]}, v{regs[1]}")
            for i in range(2, len(regs), 2): k(f"v_max3_u32 v{T+16}, v{T+16}, v{regs[i]}, v{regs[i+1]}")
            k(f"v_cmp_eq_u32 vcc, -1, v{T+16}")
        k(f"s_sub_u32 s{S_SP}, s{S_SP}, 1\ns_cbranch_scc1 {name}_out\ns_cbranch_vccnz {name}")
        k.label(name + "_out")

    row_addr()
    def y_shadow():
        mark = k.nvm
        k.wait(vm=max(sid["w1"], sid["q"]))
        for it in sh_reads(1):
            x = k(it[2])
            if it[1]: sid[it[1]] = x
        for e in range(16): k(f"v_accvgpr_read_b32 v{XP+e}, a{64+e}")
        unpack(X, XP)
        for it in sh_stores(1):
            k.wait(lg=sid[it[1]]); k(it[2])
        k(f"s_lshl_b32 s12, s2, 2\ns_add_u32 s12, s12, s17\ns_cmp_lt_u32 s12, 896\ns_cselect_b32 s26, {W_BYTES}, 0\ns_cselect_b32 s30, {WS_TOTAL}, 0\ns_mov_b32 s24, s4\ns_mov_b32 s25, s5")
        stats(0)
        k.wait(vm=mark)
    def y_loads():
        assert WS_Y == 0
        for i in range(4):
            for h in range(2):
                r = YP + 4 * i + 2 * h
                k(f"buffer_load_dwordx2 v[{r}:{r+1}], v{AY}, {SW}, s{S_ROWY} offen offset:{512*i + 64*h} sc1")
    if diag == 6: stamp(19)
    sentinel_loop("L_ypoll", y_loads, range(YP, YP + 16), y_shadow, own_wait=True)
    stamp(4)
    def raw_stage(sidx):
        k(f"s_add_u32 m0, s{S_M0}, {sidx * 16384}\ns_add_u32 s{S_DMA}, s{S_W1}, {sidx * 16384}")
        for i in range(4): k(f"buffer_load_dwordx4 v{VD}, {SW}, s{S_DMA} offen offset:{1024*i} lds")
    def weave(body_fn, stages, span):
        n0 = len(k.lines); body_fn()
        body = k.lines[n0:]; del k.lines[n0:]
        for sidx in stages: raw_stage(sidx)
        dm = k.lines[n0:]; del k.lines[n0:]
        step = max(1, min(len(body), span) // len(dm))
        for n_, l in enumerate(body):
            if n_ % step == 0 and dm: k.lines.append(dm.pop(0))
            k.lines.append(l)
        k.lines += dm
    k("s_barrier")
    def y_keep():
        unpack(Yf, YP)
        for i in range(4): k(f"ds_write_b128 v{AL}, v[{YP+4*i}:{YP+4*i+3}] offset:{4096*i}")
    if diag == 6: stamp(20)
    y_keep()
    if diag == 6: stamp(21)

    k.label("L_layer")
    k(f"s_add_u32 s84, s{S_HL}, s86\ns_sub_u32 s85, s{S_HL}, s86")
    SWZ_END = (KM2 // (2 * swz)) * 2 * swz if swz else 0
    k.nvm = k.vm_done = 0; k.nlg = k.lg_done = 0
    ring = [("W1", s) for s in range(28)]
    S1_POS = 0
    SH_POS = sh_pos
    ring[SH_POS:SH_POS] = [("SH", 0), ("SH", 1)]
    assert SH_POS % NS + 1 < 4 and S1_POS % NS + 1 < 4
    ring += [("W2", s) for s in range(28)]
    NREAL = len(ring)
    st = {"s": None}
    def dma(idx, i):
        kind, s = ring[idx]; pre_ = []
        if kind == "S1":
            st["s"] = None
            return [f"s_add_u32 m0, s{S_M0}, {(idx % NS) * 16384 + 1024 * i}", f"s_add_u32 s{S_DMA}, s63, {4 * 7168 * (4 * s + i)}",
                    f"buffer_load_dwordx4 v{TMP+4}, s[92:95], s{S_DMA} offen lds"]
        if kind == "SH":
            st["s"] = None
            return [f"s_add_u32 m0, s{S_M0}, {(idx % NS) * 16384 + 1024 * i}", f"s_add_u32 s{S_DMA}, s{S_SHB if s else S_SHA}, {8192 * i}",
                    f"buffer_load_dwordx4 v{VS0}, {SD}, s{S_DMA} offen {dnt} lds"]
        if st["s"] != idx:
            pre_ = [f"s_add_u32 m0, s{S_M0}, {(idx % NS) * 16384}", f"s_add_u32 s{S_DMA}, s{(92 + (2 * s // swz) % 2 if 2 * s < SWZ_END else S_W2) if kind == 'W2' else S_W1}, {s * 16384}"]
            st["s"] = idx
        return pre_ + [f"buffer_load_dwordx4 v{VD}, {'s[88:91]' if kind == 'NX' else SW}, s{S_DMA} offen offset:{1024*i} lds"]
    w_id = {}; t_id = {}
    def pre_stage(idx):
        for i in range(4): w_id[idx] = k("\n".join(dma(idx, i)))
    for idx in range(4): w_id[idx] = 0
    def gate_math():
        for e in range(0, 32, 2):
            k(f"v_pk_fma_f32 v[{T}:{T+1}], v[{X+e}:{X+e+1}], v[{T+4}:{T+5}], v[{T+6}:{T+7}]")
            k(f"v_pk_fma_f32 v[{X+e}:{X+e+1}], v[{T}:{T+1}], v[{Yf+e}:{Yf+e+1}], v[{X+e}:{X+e+1}]")
            k(f"v_cvt_pk_bf16_f32 v{XP+e//2}, v{X+e}, v{X+e+1}")
        for i in range(4): k(f"ds_write_b128 v{AL}, v[{XP+4*i}:{XP+4*i+3}] offset:{16384 + 4096*i}")
        unpack(X, XP)
        stats(256)
    weave(gate_math, range(npre), 120)
    k(f"s_lshl_b32 s{S_B}, s{S_LAY}, 22\ns_add_u32 s{S_B}, s{S_B}, s{S_ROWF}\ns_add_u32 s{S_B}, s{S_B}, {WS_XN}")
    for e in range(0, 32, 2):
        k(f"v_pk_fma_f32 v[{X+e}:{X+e+1}], v[{X+e}:{X+e+1}], v[{T+4}:{T+5}], v[{T+6}:{T+7}]")
        k(f"v_cvt_pk_bf16_f32 v{P0+e//2}, v{X+e}, v{X+e+1}")
        if e % 8 == 6:
            i = e // 8
            k(f"buffer_store_dwordx4 v[{P0+4*i}:{P0+4*i+3}], v{VROW}, {SW}, s{S_B} offen offset:{1024*i} sc1")
    stamp(5)
    xn_st = k.nvm
    ET = 160
    for t in range(4): k(f"s_add_u32 s{S_T+t}, s{S_XN}, {t*32768}")
    def e_loads():
        for u in range(E):
            for t in range(4):
                r = ET + 16 * u + 4 * t
                k(f"buffer_load_dwordx4 v[{r}:{r+3}], v{VR}, {SW}, s{S_T+t} offen offset:{1024*u} sc1")
    def e_between():
        k.wait(vm=xn_st); k("s_barrier")
        k(flag_store(S_FXN_P))
        n_ = k.nvm
        for r in range(2):
            k(f"s_cmp_eq_u32 s{62+r}, 0\ns_cbranch_scc1 L_now{r}"); k(flag_store(62 + r)); k.label(f"L_now{r}")
        k("s_mov_b32 s62, 0\ns_mov_b32 s63, 0")
        k.nvm = n_
        if diag == 6: stamp(22)
    if e_late:
        e_between(); sentinel_loop("L_epoll", e_loads, range(ET, ET + 16 * E))
    else: sentinel_loop("L_epoll", e_loads, range(ET, ET + 16 * E), e_between)
    if diag == 6: stamp(23)
    k(f"s_cmp_lg_u32 s{S_LAY}, 0\ns_cbranch_scc1 L_have")
    n0 = k.nvm
    for sidx in range(npre, 7): raw_stage(sidx)
    k.nvm = n0
    k.label("L_have")
    for sidx in range(npre, 7): w_id[sidx] = n0 + 1
    st["s"] = None
    for r in range(16 * E): k(f"v_accvgpr_write_b32 a{4*RW + r}, v{ET + r}")
    stamp(6)

    def sweep(kd, u0, u1, gs):
        if chain: return [(kd, u + e, g) for u in range(u0, u1, 2) for g in gs for e in range(2)]
        return [(kd, u, g) for u in range(u0, u1) for g in gs]
    assert not chain or (KM % 2 == 0 and KM2 % 2 == 0 and E % 2 == 0)
    groups = sweep(1, 0, KM, range(14))
    tail_start = len(groups)
    for b in range(7): groups += sweep(1, KM, 32, (b, 7 + b))
    G2S = len(groups)
    groups += sweep(2, 0, KM2, range(8))
    T2S = len(groups)
    for p in range(4): groups += sweep(2, KM2, 56, (2 * p, 2 * p + 1))
    NGR = len(groups); GPB = 2 * KT
    NTk = {1: 4, 2: 2}
    tm = [0]
    for kd, _, _ in groups: tm.append(tm[-1] + NTk[kd])
    real = [i for i, r_ in enumerate(ring) if r_[0] in ("W1", "W2")]
    stage_of = lambda i: real[i // 16]
    bars = {16 * n - la_bar: real[min(n + bper - 1, 55)] for n in range(npre, 56, bper)}
    pub_at = {}
    for p_, r_ in sorted(bars.items()):
        for x in real:
            if x <= r_: pub_at.setdefault(x, p_)
    bar_list = sorted(bars)
    first_use = {}; last_use = {}
    for i, (kd, u, g) in enumerate(groups):
        first_use.setdefault((kd, u), i & ~1 if chain else i); last_use[(kd, u)] = i | 1 if chain else i
    def slot(kd, u, t):
        return (u % KT) * 4 + t if kd == 1 else (4 * (KM % KT) + 2 * u + t) % (4 * KT)
    def AT(kd, u, t):
        if kd == 2 and u < park: return f"v[{112 + 8*u + 4*t}:{115 + 8*u + 4*t}]"
        a = 4 * RW + 4 * slot(kd, u - (park if kd == 2 else 0), t)
        return f"a[{a}:{a+3}]"
    AW = lambda i: 4 * (i % RW)
    acc = lambda kd, g, t: (g * NTk[kd] + t) * 4
    tok_base = {t: (S_XN, 0) for t in range(4)}
    for u in range(E):
        for t in range(4): t_id[((1, u), t)] = 0
    def tok(kd, u, t):
        off = u * 1024; pre_ = []
        src = S_XN if kd == 1 else 84 + (u // swz) % 2 if u < SWZ_END else S_HL
        if tok_base.get(t, (None, 0))[0] != src or not 0 <= off - tok_base[t][1] <= 4095:
            tok_base[t] = (src, off & ~4095)
            pre_ = [f"s_add_u32 s{S_T+t}, s{src}, {t * (32768 if kd == 1 else TBH) + tok_base[t][1]}"]
        return pre_ + [f"buffer_load_dwordx4 {AT(kd, u, t)}, v{VR}, {SW}, s{S_T+t} offen offset:{off - tok_base[t][1]}"]
    PH_B = [1, 3, 4, 5, 6]; PH_U = [0, 16, 32, 40, 48]
    P_SHR = shr
    P_SH_END = shr + 20
    P_PX = 0
    P_PF = tail_start + pf_at
    P_W1S = 0
    P_PW1 = 120
    P_PW2 = pw2
    P_PH = [ph0] + [first_use[(2, u_)] - pb for u_, pb in zip(PH_U[1:], ph_back)]
    P_PPF = P_PH[4] + 2 * chk + 4
    allp = sorted(P_PH + [P_PPF]); assert all(b_ - a_ > 2 * chk for a_, b_ in zip(allp, allp[1:])), allp
    CHK = {1: chk, 2: 2 * chk}
    CT_LAB = [150, 290, 370, 445, 590, 800]
    CT_AT = [20, 205, 300, 380, 470, 640]
    assert P_PPF > 660
    FREE_AT = list(free_at)
    def done_bar(idx):
        if ring[idx][0] == "SH": return P_SH_END
        if ring[idx][0] == "S1": return P_W1S + 20
        last = 16 * real.index(idx) + 15
        return next(p for p in bar_list if p > last)
    def earliest(it):
        if it[1] == "W":
            idx = it[2]
            e = done_bar(idx - NS) if idx >= NS else -1
            if ring[idx][0] == "W2": e = max(e, P_PW2 + CHK[1] + 1)
            if ring[idx][0] == "W1" and 16 * ring[idx][1] + 15 >= tail_start: e = max(e, P_PW1 + CHK[1] + 1)
            return e
        kd, u = it[2]
        if kd == 1: return P_PX + CHK[1] + 1 if u < KT else last_use[(1, u - KT)] + 1
        v_ = u - park
        if v_ < 0: e = FREE_AT[u // 2]
        else: e = last_use[(1, KM + v_ // 2)] + 1 if v_ < 2 * KT else last_use[(2, u - 2 * KT)] + 1
        return max(e, P_PH[max(j for j in range(5) if PH_U[j] <= u)] + CHK[2 if u >= 16 else 1] + 1)
    items = []
    for idx in range(7, NREAL):
        d = tm[P_SHR] - sh_lead if ring[idx][0] == "SH" else tm[P_W1S] - 40 if ring[idx][0] == "S1" else tm[pub_at[idx]]
        items += [(d, "W", idx, i) for i in range(4)]
    for (kd, u), fu in first_use.items():
        if kd == 1 and u < E: continue
        items += [(tm[fu], "T", (kd, u), t) for t in range(NTk[kd])]
    items.sort(key=lambda x: x[0])
    nxt_t = 1e9; sched = []
    for it in reversed(items):
        late = it[0] >= tm[G2S]
        nxt_t = min(it[0] - (la2 if late else la1), nxt_t - 1.0 / (rate2 if nxt_t > tm[G2S] else rate1))
        e = earliest(it)
        sched.append((max(nxt_t, tm[e] if e >= 0 else -1e9),) + it[1:])
    sched.reverse()
    last_tok = max(x[0] for x in sched if x[1] == "T" and x[2][0] == 1)
    prev = last_tok
    for n_, it in enumerate(sched):
        if it[1] == "W" and it[0] > last_tok and prev < tm[G2S] - 8:
            prev = max(prev + 8, tm[earliest(it)]); sched[n_] = (min(it[0], prev),) + it[1:]
    wq = [x for x in sched if x[1] == "W"]
    wq.sort(key=lambda x: (x[2], x[3]))
    run = 1e9
    for n_ in range(len(wq) - 1, -1, -1):
        e = earliest(wq[n_]); run = min(run, wq[n_][0])
        wq[n_] = (max(run, tm[e] if e >= 0 else -1e9),) + wq[n_][1:]
    prev = max(x[0] for x in sched)
    for idx in range(NREAL, len(ring)):
        for i in range(4 if ring[idx][0] == "NX" else 0):
            prev = max(prev + 6, tm[done_bar(idx - NS)]); wq.append((prev, "W", idx, i))
    items = sorted(wq + [x for x in sched if x[1] == "T"], key=lambda x: x[0])
    prev = -1e9; slackv = []
    for n_, it in enumerate(items):
        if it[0] >= 0:
            prev = max(it[0], prev + 1.0 / (rmax if prev < tm[G2S] else rmax2)); items[n_] = (prev,) + it[1:]
        if it[1] == "T": slackv.append((tm[first_use[it[2]]] - items[n_][0], it[2]))
    MINSL = sorted(slackv)[:3]
    def lines(it):
        return dma(it[2], it[3]) if it[1] == "W" else tok(it[2][0], it[2][1], it[3])
    def record(it, i):
        if it[1] == "W": w_id[it[2]] = i
        else: t_id[(it[2], it[3])] = i
    while items and items[0][0] < 0:
        it = items.pop(0); record(it, k("\n".join(lines(it))))
    def rd(i):
        off = (stage_of(i) % NS) * 16384 + (i % 16) * 1024
        return f"ds_read_b128 a[{AW(i)}:{AW(i)+3}], v{VR + off // 65536} offset:{off % 65536}"
    def gelu4(G, U, P, tb):
        Tm = [tb + e for e in range(4)]
        o = [f"v_mul_f32 v{Tm[e]}, v{G+e}, v{G+e}" for e in range(4)]
        o += [f"v_fmaak_f32 v{Tm[e]}, v{VC2}, v{Tm[e]}, {f32bits(c1):#x}" for e in range(4)]
        o += [f"v_mul_f32 v{Tm[e]}, v{Tm[e]}, v{G+e}" for e in range(4)]
        for e in range(4): o += [f"v_exp_f32 v{Tm[e]}, v{Tm[e]}", f"v_mul_f32 v{U+e}, v{U+e}, v{G+e}"]
        o += [f"v_add_f32 v{Tm[e]}, 1.0, v{Tm[e]}" for e in range(4)]
        o += [f"v_rcp_f32 v{Tm[e]}, v{Tm[e]}" for e in range(4)]
        o += [f"v_mul_f32 v{U+e}, v{U+e}, v{Tm[e]}" for e in range(4)]
        o += [f"v_cvt_pk_bf16_f32 v{P}, v{U}, v{U+1}", f"v_cvt_pk_bf16_f32 v{P+1}, v{U+2}, v{U+3}"]
        return o
    def epilogue(b, t):
        a = acc(1, b, 2 * t); tb = TMP + 4 * t; sr = (S_C, S_E)[t]
        o = gelu4(a, acc(1, 7 + b, 2 * t), a, tb) + gelu4(acc(1, b, 2 * t + 1), acc(1, 7 + b, 2 * t + 1), a + 2, tb)
        o += [f"s_add_u32 s{sr}, s{S_HS}, {8192 * b + 2 * TBH * t}",
              f"v_permlane32_swap_b32 v{a}, v{a+2}", f"v_permlane32_swap_b32 v{a+1}, v{a+3}",
              f"buffer_store_dwordx4 v[{a}:{a+3}], v{VST}, {SW}, s{sr} offen sc1"]
        return [(x, b) for x in o]
    def p_store(p):
        o = []
        for t in range(2 if p >= 0 else 0):
            a = acc(2, 2 * p, t); b = acc(2, 2 * p + 1, t)
            o += [f"v_cvt_pk_bf16_f32 v{a}, v{a}, v{a+1}", f"v_cvt_pk_bf16_f32 v{a+1}, v{a+2}, v{a+3}",
                  f"v_cvt_pk_bf16_f32 v{a+2}, v{b}, v{b+1}", f"v_cvt_pk_bf16_f32 v{a+3}, v{b+2}, v{b+3}",
                  f"s_add_u32 s{S_C}, s{S_PS}, {8192 * t + p * 0x100000}",
                  f"buffer_store_dwordx4 v[{a}:{a+3}], v{VR}, {SW}, s{S_C} offen sc1"]
        return o
    cost = lambda s: 2 if s.startswith(("v_exp", "v_rcp", "v_permlane", "buffer_")) else 1

    published = npre - 1; r_id = {}; rp = 0; FL_AT = []; PE_AT = []; ready_b = -1; ready_at = 0
    while rp < RW - 2:
        r_id[rp] = k(rd(rp)); rp += 1
    seen = set(); epi = [[], []]; q = []; hold = 0; hst = {}; fl_due = {}; fl_next = 0; turn = 0
    last_st = {"h": None, "sh": None, "pf": None}; pend = {}; named = {}
    def emit_q():
        t_, c = q.pop(0)
        if c and c[0] == "L": k.wait(lg=named[c[1]])
        if c and c[0] == "Wv": k.wait(vm=w_id[c[1]])
        id_ = k(t_)
        if not c: return
        if c[0] == "V": record(c[1], id_)
        elif c[0] == "R": r_id[c[1]] = id_
        elif c[0] == "N": named[c[1]] = id_
        elif c[0] == "L": last_st["sh"] = id_
        elif c[0] in ("PF", "PG"): last_st["pf"] = id_
    for i, (kd, u, g) in enumerate(groups):
        NT = NTk[kd]
        if i == tail_start: stamp(7)
        if i == G2S: stamp(8); G2L = len(k.lines)
        if i == T2S and diag == 5: stamp(18)
        if i in bars:
            pub = bars[i]
            assert not any(it[1] == "W" and it[2] <= pub and ring[it[2]][0] not in ("SH", "S1") for it in items), (i, pub)
            while any(c and c[0] == "V" and c[1][1] == "W" and c[1][2] <= pub for _, c in q): emit_q()
            k.wait(vm=w_id[pub]); k("s_barrier"); published = max(published, pub)
        n = 0
        while rp < NGR and rp <= i + RW - 2 and stage_of(rp) <= published and n < 2:
            q.append((rd(rp), ("R", rp))); rp += 1; n += 1
        if items and items[0][0] <= tm[i]:
            it = items.pop(0); ls = lines(it)
            if it[1] == "T" and it[2][0] == 2 and it[2][1] < park:
                assert all((it[2][1] // 2, c_) in hst for c_ in (0, 1)), (i, it)
            q += [(x, None) for x in ls[:-1]] + [(ls[-1], ("V", it))]
        if P_SHR <= i < P_SHR + 16 and (i - P_SHR) % 4 == 0:
            assert not any(it[1] == "W" and ring[it[2]][0] == "SH" for it in items)
            p = (i - P_SHR) // 4
            base = (SH_POS % NS) * 16384
            for h in range(2):
                f = TMP + 8 + 4 * h; off = base + p * 64 + h * 8
                q.append((f"ds_read_b64_tr_b16 v[{f}:{f+1}], v{VS1} offset:{off}", ("Wv", SH_POS + 1)))
                q.append((f"ds_read_b64_tr_b16 v[{f+2}:{f+3}], v{VS1} offset:{off + 2048}", ("N", (p, h))))
        if P_SHR + 2 <= i < P_SHR + 18 and (i - P_SHR) % 4 == 2:
            p = (i - P_SHR) // 4
            q.append((f"s_add_u32 s{S_D}, s{S_D}, s60" if p else f"s_mov_b32 s{S_D}, s{S_SHD}", None))
            for h in range(2):
                f = TMP + 8 + 4 * h
                q.append((f"buffer_store_dwordx4 v[{f}:{f+3}], v{VR}, {SX}, s{S_D} offen offset:{(2048 if chain else 1024)*h} sc1", ("L", (p, h))))
        if ct and i in CT_AT:
            j = CT_AT.index(i)
            q += [(f"v_lshlrev_b32 v{TMP+13}, 3, v{VR}", None), (f"s_mov_b32 s{S_SP}, L_ct{j}-L_body", None),
                  (f"buffer_load_dword v{TMP+14}, v{TMP+13}, s[80:83], s{S_SP} offen", None)]
        if i in CT_LAB: k.label(f"L_ct{CT_LAB.index(i)}")
        if i == P_SH_END + 12:
            k.wait(vm=last_st["sh"]); k(f"s_mov_b64 exec, 1\nbuffer_store_dword v{VTAG}, off, {SX}, s{S_FW2_P} sc1\ns_mov_b64 exec, -1")
        PFR, PFS = (TMP, S_C) if pf_at < GPB else (TMP + 8, S_D)
        if i == P_PF: q += [(f"v_mov_b32 v{PFR+e}, -1", None) for e in range(4)]
        arm = list(range(0 if sent else 4, 8))
        if P_PF <= i < P_PF + len(arm) * pf_step and (i - P_PF) % pf_step == 0:
            t = arm[(i - P_PF) // pf_step]
            q += [(f"s_add_u32 s{PFS}, s{S_PS}, {8192 * (t & 1) + (t >> 1) * 0x100000}", None),
                  (f"buffer_store_dwordx4 v[{PFR}:{PFR+3}], v{VR}, {SW}, s{PFS} offen sc1", ("PF" if PFR == TMP else "PG",))]
        TW_AT = P_PW2 + chk + 4
        if TW_AT <= i < TW_AT + tw * tw_step and (i - TW_AT) % tw_step == 0:
            j = (i - TW_AT) // tw_step
            q += [(f"v_lshlrev_b32 v{TMP+13}, 3, v{VR}", None), (f"s_add_u32 s{S_SP}, s91, {tw0 * 1024 + j * 131072}", None),
                  (f"buffer_load_dword v{TMP+14}, v{TMP+13}, {SW}, s{S_SP} offen", None)]
        if sent and i == P_PF + 8 * pf_step + 30: named["pe"] = (0, last_st["pf"])
        if sent and i == P_PPF - 8: q += [(f"v_and_b32 v{TMP+13}, 60, v{VF}", None), (f"v_lshlrev_b32 v{TMP+13}, 5, v{TMP+13}", None)]
        if not sent and i == NGR - pe_back - 8:
            q += [(f"v_and_b32 v{TMP+13}, 60, v{VF}", None), (f"v_lshlrev_b32 v{TMP+13}, 5, v{TMP+13}", None)]
        if not sent and i == NGR - pe_back: q.append((poll_load(S_FPF_C), ("N", "pe_ld")))
        if "pe" in named and tm[i] >= named["pe"][0]:
            k.wait(vm=named.pop("pe")[1])
            k(flag_store(S_FPF_P)); k(f"s_add_u32 s{S_FPF_P}, s{S_FPF_P}, 0x20000")
            PE_AT.append(i)
        if fl_next in fl_due and tm[i] >= fl_due[fl_next][0]:
            if diag == 4: stamp(12 + 2 * fl_next)
            k.wait(vm=fl_due[fl_next][1])
            if diag == 4: stamp(13 + 2 * fl_next)
            k(flag_store(S_FH_P)); k(f"s_add_u32 s{S_FH_P}, s{S_FH_P}, 0x4000")
            FL_AT.append(i); fl_next += 1
        polls = [(P_PW1, S_FW1_C, "w1", 1), (P_PW2, S_FW2_C, 56, 1)] + [(P_PH[j], S_FH_C, 16, j + 1) for j in range(4)] + [(P_PPF if sent else -100, S_FPF_C, 16, 1), (P_PX, S_FXN_C, 8, 1), (P_PH[4], S_FH_C, 16, 5)]
        for z, (pos, soff, n_, lvl) in enumerate(polls):
            if i == pos: pend[pos] = k(poll_load(soff))
            if i == pos + CHK[kd] and pos in pend:
                if z >= 7: z += 1
                if diag == 3: stamp(12 + 2 * z)
                poll_check(pend.pop(pos), soff, n_, lvl)
                if soff == S_FH_C: k(f"s_add_u32 s{S_FH_C}, s{S_FH_C}, 0x4000")
                if diag == 3: stamp(13 + 2 * z)
        if tail_start + GPB <= i <= G2S and (i - tail_start) % GPB == 0:
            b = (i - tail_start) // GPB - 1
            assert not any(c_ and c_[0] == "PF" for _, c_ in q)
            if not epi[0] and not epi[1]: hold = 4
            for t in range(2): epi[t] += epilogue(b, t)
            ready_b = b; ready_at = tm[i] + 4
        if i > T2S and (i - T2S) % (2 * KT2) == 4:
            assert fl_next == 5 and not epi[0]
            pp_ = (i - T2S) // (2 * KT2) - 1
            epi[0] += [(x, 100 + pp_) for x in p_store(pp_)]
        if i == G2S: assert all(x[1] >= 4 for c_ in epi for x in c_)
        def waits(i, kd, u, t):
            if i not in r_id or ((kd, u), t) not in t_id: return None
            lgw = r_id[i]
            if lgw > k.lg_done:
                for j in range(1, wgran):
                    if i + j in r_id and k.nlg - r_id[i + j] >= 2: lgw = r_id[i + j]
            vmw = t_id[((kd, u), t)]
            if vmw > k.vm_done and i > 28 and ((kd, u), NTk[kd] - 1) in t_id: vmw = t_id[((kd, u), NTk[kd] - 1)]
            return vmw, lgw
        def pick(i, j):
            if not chain: return i, j
            m = (i & 1) * NTk[groups[i][0]] + j
            n, e = m >> 1, m & 1
            if zig:
                e ^= n & 1
                if (i >> 1) & 1: n = NTk[groups[i][0]] - 1 - n
            return (i & ~1) + e, n
        def waits2(i, j):
            gi, tt = pick(i, j)
            return waits(gi, groups[gi][0], groups[gi][1], tt)
        for t in range(NT):
            while waits2(i, t) is None: emit_q()
            vmw, lgw = waits2(i, t)
            k.wait(vm=vmw, lg=lgw)
            gi, tt = pick(i, t)
            a = acc(kd, g, tt)
            c = f"v[{a}:{a+3}]" if (kd, g, tt) in seen else "0"
            seen.add((kd, g, tt))
            at = AT(kd, groups[gi][1], tt)
            k(f"v_mfma_f32_16x16x32_bf16 v[{a}:{a+3}], a[{AW(gi)}:{AW(gi)+3}], {at}, {c}")
            budget = 2 if kd == 1 else b2
            if len(epi[0]) + len(epi[1]) > thr and (tm[i] + t) % 2 == 0: budget += 1
            if t + 1 < NT: nw = waits2(i, t + 1)
            elif i + 1 < NGR:
                nw = waits2(i + 1, 0)
                if i + 1 in bars: budget -= 1
            else: nw = (0, 0)
            if nw is None or nw[0] > k.vm_done or nw[1] > k.lg_done: budget -= 1
            used = 0
            while q and used < 2:
                mem = q[0][0].startswith(("ds_", "buffer_"))
                c_ = cost(q[0][0])
                if (mem and used) or (c_ > budget and not (len(q) > 5 and used == 0)): break
                if used and len(q) <= NT - t: break
                emit_q(); budget -= c_; used += 1
            while budget > 0:
                ok = [c_ for c_ in (turn, 1 - turn) if epi[c_] and cost(epi[c_][0][0]) <= budget
                      and not (epi[c_][0][1] == ready_b and tm[i] + t < ready_at)]
                if not ok: break
                big = [c_ for c_ in ok if cost(epi[c_][0][0]) == 2]
                c_ = big[0] if big else ok[0]
                if abs(len(epi[c_]) - len(epi[1 - c_])) > 24 and len(epi[c_]) < len(epi[1 - c_]):
                    if 1 - c_ in ok: c_ = 1 - c_
                    else: break
                x, b = epi[c_].pop(0); budget -= cost(x); turn = 1 - c_
                id_ = k(x)
                if b == 101 and not epi[0] and not sent: named["pe"] = (tm[i] + t + pe_lag, id_)
                if x.startswith("buffer_store") and b < 7:
                    hst[(b, c_)] = id_
                    if b in PH_B and (b, 0) in hst and (b, 1) in hst:
                        fl_due[PH_B.index(b)] = (tm[i] + t + fl_lag, id_)
    while epi[0] and epi[0][0][1] == 102: k(epi[0].pop(0)[0])
    assert len(PE_AT) == 1
    assert not items and not epi[0] and not epi[1] and not q and not pend and fl_next == 5
    assert all(tm[f] + 60 < tm[p] for f, p in zip(FL_AT, P_PH)), (FL_AT, P_PH)
    k.info = dict(pe=(PE_AT, NGR), minsl=[(int(a_), b_) for a_, b_ in MINSL], flags=FL_AT, polls=P_PH, slack=[tm[p] - tm[f] for f, p in zip(FL_AT, P_PH)])
    if abl:
        keep = []
        for l in k.lines[G2L:]:
            x = l.strip()
            if "T" in abl and x.startswith("buffer_load_dwordx4 a["): continue
            if "W" in abl and x.endswith(" lds"): continue
            if "D" in abl and x.startswith("ds_read_b128"): continue
            if "B" in abl and x == "s_barrier": continue
            if "V" in abl and x.startswith(("v_mul", "v_fmaak", "v_exp", "v_rcp", "v_add_f32")): continue
            keep.append(l)
        k.lines[G2L:] = keep
    stamp(9)
    PP = 160
    for x in p_store(3): k(x)
    if not sent:
        pe_ld = named["pe_ld"]
        k(flag_store(S_FPF_P)); k(f"s_add_u32 s{S_FPF_P}, s{S_FPF_P}, 0x20000")
    VRL = TMP + 15
    k(f"s_lshl_b32 s{S_B}, s{S_LAY}, 23\ns_add_u32 s{S_B}, s{S_B}, s{S_ROWL}")
    k(f"v_lshrrev_b32 v{TMP+14}, 12, v{VROW}\nv_and_b32 v{VRL}, 0x3ff, v{VROW}\nv_lshl_add_u32 v{VRL}, v{TMP+14}, 10, v{VRL}")
    def p_loads(which):
        def f():
            for i in which:
                for j in range(2):
                    r = PP + 8 * i + 4 * j
                    k(f"s_add_u32 s{S_C}, s{S_B}, {WS_P + j*MB4 + i*0x100000}")
                    x = k(f"buffer_load_dwordx4 v[{r}:{r+3}], v{VRL}, {SW}, s{S_C} offen sc1")
            return x
        return f
    def add_p(which):
        for i in which:
            for e in range(8 * i, 8 * i + 8, 2):
                for j in range(2):
                    r = PP + 8 * i + 4 * j + (e % 8) // 2
                    unpk(k, T + 2 * j, r, 0); unpk(k, T + 2 * j + 1, r, 1)
                k(f"v_pk_add_f32 v[{T}:{T+1}], v[{T}:{T+1}], v[{T+2}:{T+3}]")
                k(f"v_pk_add_f32 v[{X+e}:{X+e+1}], v[{X+e}:{X+e+1}], v[{T}:{T+1}]")
                k(f"v_cvt_pk_bf16_f32 v{XP+e//2}, v{X+e}, v{X+e+1}")
                unpk(k, X + e, XP + e // 2, 0); unpk(k, X + e + 1, XP + e // 2, 1)
    if not sent:
        if diag == 5: stamp(12)
        poll_check(pe_ld, S_FPF_C, 16)
        if diag == 5: stamp(13)
        e_ld = p_loads((0, 1))()
        k(f"s_add_u32 s{S_FPF_C}, s{S_FPF_C}, 0x20000")
        row_addr()
        for i in range(4): k(f"ds_read_b128 v[{XP+4*i}:{XP+4*i+3}], v{AL} offset:{16384 + 4096*i}")
        for i in range(4): k(f"ds_read_b128 v[{YP+4*i}:{YP+4*i+3}], v{AL} offset:{4096*i}")
        pl_ld = k(poll_load(S_FPF_C))
        k("s_waitcnt lgkmcnt(0)")
        unpack(X, XP)
        if diag == 5: stamp(14)
        poll_check(pl_ld, S_FPF_C, 16)
        if diag == 5: stamp(15)
        k(f"s_add_u32 s{S_FPF_C}, s{S_FPF_C}, 0x20000")
        def mid():
            k("s_barrier")
            add_p((0, 1)); unpack(Yf, YP)
            if diag == 5: stamp(16)
        sentinel_loop("L_ppoll", p_loads((2, 3)), range(PP + 16, PP + 32), mid)
    else:
        if diag == 5: stamp(12); stamp(13)
        k(f"s_add_u32 s{S_FPF_C}, s{S_FPF_C}, 0x20000")
        def first():
            row_addr()
            for i in range(4): k(f"ds_read_b128 v[{XP+4*i}:{XP+4*i+3}], v{AL} offset:{16384 + 4096*i}")
            for i in range(4): k(f"ds_read_b128 v[{YP+4*i}:{YP+4*i+3}], v{AL} offset:{4096*i}")
            k("s_waitcnt lgkmcnt(0)\ns_barrier")
            unpack(X, XP); unpack(Yf, YP)
            if diag == 5: stamp(14)
        if ord2:
            sentinel_loop("L_ppoll2", p_loads((0, 1, 2)), range(PP, PP + 24), first)
            if diag == 5: stamp(15)
            sentinel_loop("L_ppoll", p_loads((3,)), range(PP + 24, PP + 32), lambda: add_p((0, 1, 2)))
        else:
            p_loads((0, 1, 2))()
            first()
            sentinel_loop("L_ppoll", p_loads((3,)), range(PP + 24, PP + 32))
            if diag == 5: stamp(15)
            sentinel_loop("L_ppoll2", p_loads((0, 1, 2)), range(PP, PP + 24), skip_first=True)
        if diag == 5: stamp(16)
    stamp(10)
    k(f"s_cmp_lg_u32 s{S_LAY}, 0\ns_cbranch_scc1 L_final")
    def tail_math():
        add_p((2, 3) if not sent else (3,) if ord2 else (0, 1, 2, 3)); stats(0)
    weave(tail_math, range(npre, 7), 200)
    stamp(11)
    if diag: k(f"v_mov_b32 v{VSTAMP-1}, v{VSTAMP}")
    k(f"""
    s_mov_b32 s{S_LAY}, 1
    s_mov_b32 s26, 0
    s_mov_b32 s30, 0
    s_add_u32 s{S_XN}, s{S_XN}, {MB4}
    s_add_u32 s{S_HL}, s{S_HL}, {H_STRIDE}
    s_add_u32 s{S_HS}, s{S_HS}, {H_STRIDE}
    s_add_u32 s{S_PS}, s{S_PS}, {2*MB4}
    s_add_u32 s{S_FXN_P}, s{S_FXN_P}, 0x4000
    s_add_u32 s{S_FXN_C}, s{S_FXN_C}, 0x4000
    s_branch L_layer
    """)
    k.label("L_final")
    add_p((2, 3) if not sent else (3,) if ord2 else (0, 1, 2, 3))
    k(f"s_or_b32 s16, s2, s17\ns_cbranch_scc1 L_noepoch\ns_add_u32 s87, s87, 1\nv_mov_b32 v{VP}, s87\ns_mov_b32 s16, {WS_FLAG + F_EPOCH}")
    k(f"s_mov_b64 exec, 1\nbuffer_store_dword v{VP}, off, {SW}, s16 sc1\ns_mov_b64 exec, -1")
    k.label("L_noepoch")
    srd(k, 32, 6, MB4)
    for i in range(4): k(f"buffer_store_dwordx4 v[{XP+4*i}:{XP+4*i+3}], v{AO}, s[32:35], s{S_ROWY} offen offset:{64*i} {outm}")
    if diag:
        k("s_waitcnt vmcnt(0)"); stamp(11)
        if diag == 7:
            k(f"s_cmp_lg_u32 s2, {dbg_wg}\ns_cbranch_scc1 L_nodbg\ns_cmp_lg_u32 s17, 0\ns_cbranch_scc1 L_nodbg")
            k(f"s_load_dwordx2 s[32:33], s[0:1], {ARG['dbg']}\nv_readlane_b32 s12, v{VSTAMP}, 12\nv_mov_b32 v8, 0")
            sel = [(1, x) for x in (26, 27, 1, 2, 3, 4, 5, 6, 7, 8, 9, 10)] + [(0, x) for x in (6, 8, 9, 11)]
            for n_, (w_, x) in enumerate(sel):
                k(f"v_readlane_b32 s13, v{VSTAMP - w_}, {x}\ns_nop 3\ns_sub_u32 s13, s13, s12\nv_writelane_b32 v8, s13, {n_}")
            k(f"s_waitcnt lgkmcnt(0)\ns_mov_b32 s34, 64\ns_mov_b32 s35, 0x20000\nbuffer_store_dword v8, v{VF}, s[32:35], 0 offen")
            k.label("L_nodbg")
        k(f"s_lshl_b32 s12, s2, 11\ns_lshl_b32 s13, s17, 9\ns_add_u32 s12, s12, s13\ns_add_u32 s12, s12, 0x8100000")
        k(f"buffer_store_dword v{VSTAMP-1}, v{VF}, {SW}, s12 offen\nbuffer_store_dword v{VSTAMP}, v{VF}, {SW}, s12 offen offset:256")
    k("s_endpgm")
    for lab, pre_, body in slow:
        k.label(lab); k("\n".join(pre_))
        k.label(lab + "_l"); k("\n".join(body)); k(f"s_cbranch_scc1 {lab}_l")
        k.label(lab + "_out"); k(f"s_waitcnt vmcnt(0)\ns_branch {lab}_ok")
    k.label("L_end"); k("s_endpgm")
    return (k, 512, 256), (k.name, 256, 256, 163840)

HEADER = open("interleave_layers__ssm_conv_h3__glu_gated_geglu__prompt.s.ref").read().split("; Override launch")[0]

def build(path, stamps=False, as_list=True, hpad=0, wpad=0, **kw):
    global TBH, W1T, W2T
    TBH = 224 * 512 + hpad; W1T = 448 + wpad; W2T = 448 + wpad
    asmlib.STAMPS[0] = stamps
    kk, l = gen_mega(**kw)
    txt = module(HEADER, [l], [kk])
    if not as_list: txt = txt.replace(f"; @launch kernel={l[0]} ", "; @launch ")
    txt = "\n".join(x.strip() if x.startswith("    ") else x for x in txt.split("\n"))
    open(path, "w").write(txt)
    return len(kk[0].lines), kk[0].padded, kk[0].info

if __name__ == "__main__":
    print(build("v12.s")); build("v12s.s", stamps=True); build("v12f.s", stamps=3)
```

```python
import math, struct, sys
import asmlib
from asmlib import *

MB4 = 0x400000
WS_TOTAL = 0x10000000
WS_Y, WS_KV = 0x0, 0x400000
WS_XN = 0x900000
WS_P = 0x5400000
WS_H = 0x1200000
H_STRIDE = 0x1000000
WS_W1, WS_W2, WS_FLAG = 0x3200000, 0x4200000, 0x5200000
WS_PL = 0x9000000
F_W0 = 0x14000
F_PE = 0x80000
W1T, W2T = 448, 448
F_W1, F_W2, F_PF, F_H, F_XN, F_KV, F_ARM, F_EPOCH = 0x0, 0x1000, 0x2000, 0x20000, 0x8000, 0x100000, 0x11000, 0x12000
H_BYTES = 2048 * 3584 * 2
W_BYTES = 1024 * 3584 * 2
TBH = 224 * 512
ARG = dict(q=0, k=8, v=16, shift=24, ssm=32, D=40, wg=56, wu=64, wd=72, out=80, dbg=88, ws=96)
lg = lambda x: x.bit_length() - 1
f32bits = lambda x: struct.unpack("<I", struct.pack("<f", x))[0]
SPIN = 0x20000

def srd(k, d, base, nbytes, off=0):
    if off: k(f"s_add_u32 s{d}, s{base}, {off:#x}\ns_addc_u32 s{d+1}, s{base+1}, 0")
    else: k(f"s_mov_b32 s{d}, s{base}\ns_mov_b32 s{d+1}, s{base+1}")
    k(f"s_mov_b32 s{d+2}, {nbytes:#x}\ns_mov_b32 s{d+3}, 0x20000")

def unpk(k, dst, src, hi):
    k(f"v_and_b32 v{dst}, 0xffff0000, v{src}" if hi else f"v_lshlrev_b32 v{dst}, 16, v{src}")

def touch_code(k, first, last, vaddr, vdst, sb, v0=0, n=1, step=32768):
    k.nl += 1
    here = f"L_{k.name}_pc{k.nl}"
    k(f"s_getpc_b64 s[{sb}:{sb+1}]")
    k.label(here)
    k(f"""
    s_add_u32 s{sb}, s{sb}, {first}-{here}
    s_addc_u32 s{sb+1}, s{sb+1}, 0
    s_mov_b32 s{sb+2}, {last}-{first}
    s_mov_b32 s{sb+3}, 0x20000
    v_lshlrev_b32 v{vaddr}, 7, v{v0}
    """)
    for i in range(n):
        if i: k(f"v_add_u32 v{vaddr}, {step}, v{vaddr}")
        k(f"buffer_load_dword v{vdst}, v{vaddr}, s[{sb}:{sb+3}], 0 offen")

CS = 4160; XS = 4640; CH_LDS = 4 * CS + 2 * XS; CONV_LDS = 4 * CH_LDS
NS = 8; RW = 8
LDS_Y, LDS_XR, LDS_ST = 131072, 147456, 131072 - 512
S_LAY, S_WAVE, S_WS = 3, 17, 8
SW = "s[20:23]"; SD = "s[24:27]"; SX = "s[28:31]"
(S_M0, S_W1, S_W2, S_XN, S_HL, S_HS, S_PS, S_ROWF, S_ROWY, S_FH_P, S_FH_C, S_FW2_P, S_FW2_C, S_FPF_P, S_FPF_C,
 S_FXN_P, S_FXN_C, S_SHA, S_SHB, S_SHD, S_HS6) = range(36, 57)
S_FW1_C = 19
S_PL, S_ROWL, S_TAG16, S_MSK = 56, 88, 89, 90
S_N = 68
S_DMA, S_SP, S_T = 57, 58, 10
S_A, S_B, S_C, S_D, S_E = 14, 15, 16, 18, 59
VR, VD, VST, VC2, VF, VTID, VS0, VS1, VROW, VP, VF16 = 224, 226, 227, 228, 229, 230, 231, 232, 233, 234, 235
TMP = 236
VTAG = 253
VSTAMP = 255

def gen_mega(KT=14, la_bar=5, la1=260, rate1=0.175, la2=96, rate2=0.225, wgran=2, rep=4, nap=3, q_step=6, r1_step=6, arm_first=False, npre=2, n0st=4, npre2=7, w0_at=3, sh_step=4, chain=True, bper=2, zig=True, cchain=True,  wsteps=(0, 0, 0, 0, 0, 0, 1, 1, 1, 1, 1, 1, 2, 2, 2, 2), a_step=3, sh_pos=17, shr=258, sh_lead=100, pw2=336, ord2=True, swz=4, kvnt='', qnt='', hnt='', dnt='', outm='nt', dbg_wg=77, now=0, wnt='', ct=True, pnap=2, ph_back=(90, 100, 100, 90), b2=3, fl_lag=48, thr=170, chk=10, pf_step=4, pf_at=44, pe_back=6, sent=True, park=8, free_at=(335, 368, 402, 434), ph0=392, tw=0, tw0=96, tw_step=8, pe_lag=32, rmax=0.2, rmax2=0.25, w1_step=1, w1s=2, E=2, e_late=True, KT2=12, abl=""):
    k = K("interleave_layers__ssm_conv_h3__glu_gated_geglu__prompt_kernel")
    diag = asmlib.STAMPS[0]
    def stamp(i):
        if diag:
            k(f"s_memrealtime s[64:65]\ns_memtime s[66:67]\ns_waitcnt lgkmcnt(0)\nv_writelane_b32 v{VSTAMP}, s64, {i}\nv_writelane_b32 v{VSTAMP}, s66, {32 + i}")
    slow = []
    def poll_load(soff, width=1):
        if width == "w0": return f"buffer_load_dwordx2 v[{TMP}:{TMP+1}], v{TMP+13}, {SW}, s{soff} offen sc1"
        if width == "arm": return f"buffer_load_dwordx4 v[{TMP}:{TMP+3}], v{VR}, {SW}, s{soff} offen sc1"
        va = VF if soff in (S_FW1_C, S_FW2_C) else TMP + 13 if soff in (S_FPF_C, S_FKV) else VF16
        return f"buffer_load_dword v{VP}, v{va}, {SW}, s{soff} offen sc1"
    def poll_test(n, width, soff):
        if n == "w0":
            return [f"v_xor_b32 v{TMP}, v{TMP}, v{VTAG}", f"v_xor_b32 v{TMP+1}, v{TMP+1}, v{VTAG}", f"v_or_b32 v{VP}, v{TMP}, v{TMP+1}",
                    f"v_cmp_ne_u32 vcc, 0, v{VP}", f"s_or_b32 s{S_A}, vcc_lo, vcc_hi", f"s_and_b32 s{S_A}, s{S_A}, {(1 << (32 - KT)) - 1:#x}"]
        if n == "arm":
            o = [f"v_xor_b32 v{TMP+i}, v{TMP+i}, v{VTAG}" for i in range(4)]
            o += [f"v_or3_b32 v{VP}, v{TMP}, v{TMP+1}, v{TMP+2}", f"v_or_b32 v{VP}, v{VP}, v{TMP+3}", f"v_cmp_ne_u32 vcc, 0, v{VP}"]
            n = 64
        else: o = [f"v_cmp_ne_u32 vcc, v{VTAG}, v{VP}"]
        if n == "w1": o += [f"s_or_b32 s{S_A}, vcc_lo, vcc_hi", f"s_and_b32 s{S_A}, s{S_A}, {(1 << (2 * KT)) - 1:#x}"]
        elif n <= 32: o.append(f"s_and_b32 s{S_A}, vcc_lo, {(1 << n) - 1:#x}")
        elif n < 64: o += [f"s_and_b32 s{S_A}, vcc_hi, {(1 << (n - 32)) - 1:#x}", f"s_or_b32 s{S_A}, s{S_A}, vcc_lo"]
        else: o.append(f"s_or_b32 s{S_A}, vcc_lo, vcc_hi")
        return o
    def poll_check(ld, soff, n, width=1):
        k.nl += 1; lab = f"L_poll{k.nl}"
        k.wait(vm=ld)
        k("\n".join(poll_test(n, width, soff)) + f"\ns_cbranch_scc1 {lab}")
        k.label(lab + "_ok")
        slow.append((lab, [f"s_mov_b32 s{S_SP}, {SPIN}"], [f"s_sleep {nap}", poll_load(soff, n if n in ("arm", "w0") else width), f"s_sub_u32 s{S_SP}, s{S_SP}, 1", f"s_cbranch_scc1 {lab}_out",
                    "s_waitcnt vmcnt(0)"] + poll_test(n, width, soff)))
    def flag_store(soff):
        if soff in (S_FPF_P, 78):
            return f"s_mov_b32 exec_hi, 0\nbuffer_store_dword v{VTAG}, v{VF16}, {SW}, s{soff} offen sc1\ns_mov_b32 exec_hi, -1"
        return f"s_mov_b64 exec, 1\nbuffer_store_dword v{VTAG}, off, {SW}, s{soff} sc1\ns_mov_b64 exec, -1"

    c1 = -2 * math.sqrt(2 / math.pi) * math.log2(math.e)
    k("s_cmp_ge_u32 s2, 256\ns_cbranch_scc1 L_end")
    S_FKV = 69
    if diag == 7: k(f"v_mov_b32 v{VSTAMP}, 0"); stamp(12)
    k(f"""
    s_load_dwordx4 s[72:75], s[0:1], {ARG['k']}
    s_load_dwordx2 s[8:9], s[0:1], {ARG['ws']}
    s_load_dwordx2 s[76:77], s[0:1], {ARG['shift']}
    s_load_dwordx4 s[4:7], s[0:1], {ARG['ssm']}
    s_load_dwordx4 s[96:99], s[0:1], {ARG['wg']}
    s_load_dwordx2 s[100:101], s[0:1], {ARG['q']}
    s_and_b32 s59, s2, 7
    s_lshr_b32 s60, s2, 3
    s_lshl_b32 s16, s60, 4
    v_and_b32 v3, 15, v0
    v_add_u32 v3, s16, v3
    """)
    touch_code(k, "L_body", "L_end", 4, 51, 80, v0=3)
    k.label("L_body")
    GS = 1056; KB = CONV_LDS; VB = KB + 17 * GS
    k(f"""
    v_lshrrev_b32 v1, 6, v0
    v_and_b32 v2, 63, v0
    v_readfirstlane_b32 s17, v1
    s_lshl_b32 s61, s59, 5
    s_add_u32 s61, s61, s60
    s_and_b32 s16, s61, 15
    s_lshl_b32 s16, s16, 18
    s_lshr_b32 s18, s61, 4
    s_lshl_b32 s18, s18, 7
    s_add_u32 s16, s16, s18
    v_lshrrev_b32 v3, 3, v2
    v_lshlrev_b32 v3, 11, v3
    v_and_b32 v7, 7, v2
    v_lshl_add_u32 v3, v7, 4, v3
    v_add_u32 v3, s16, v3
    v_subrev_u32 v8, 0x4000, v3
    s_lshl_b32 s84, s17, 16
    s_mul_i32 s85, s17, {4*GS}
    s_and_b32 s16, s61, 0xf0
    v_bfe_u32 v49, v0, 3, 3
    v_lshrrev_b32 v9, 7, v0
    v_lshl_add_u32 v49, v9, 3, v49
    v_add_u32 v9, s16, v49
    v_lshlrev_b32 v7, 5, v9
    s_lshr_b32 s32, s59, 1
    s_lshl_b32 s32, s32, 2
    s_and_b32 s33, s60, 3
    s_add_u32 s32, s32, s33
    s_and_b32 s33, s59, 1
    s_lshr_b32 s34, s60, 2
    s_lshl_b32 s35, s33, 3
    s_add_u32 s35, s35, s34
    s_lshl_b32 s19, s32, 4
    s_add_u32 s19, s19, s35
    s_lshl_b32 s{S_ROWY}, s19, 14
    s_lshr_b32 s45, s19, 1
    s_lshl_b32 s45, s45, 15
    s_and_b32 s16, s19, 1
    s_lshl_b32 s16, s16, 7
    s_add_u32 s45, s45, s16
    s_and_b32 s16, s17, 1
    s_lshl_b32 s16, s16, 11
    s_add_u32 s45, s45, s16
    s_lshr_b32 s16, s17, 1
    s_lshl_b32 s16, s16, 22
    s_add_u32 s45, s45, s16
    s_add_u32 s45, s45, {WS_XN}
    v_and_b32 v15, 7, v0
    v_lshlrev_b32 v15, 4, v15
    v_lshrrev_b32 v14, 3, v2
    v_lshl_add_u32 v15, v14, 8, v15
    v_mov_b32 v16, -1
    v_mov_b32 v17, -1
    v_mov_b32 v18, -1
    v_mov_b32 v19, -1
    v_lshlrev_b32 v14, 4, v0
    """)
    if diag and diag != 7: k(f"v_mov_b32 v{VSTAMP}, 0")
    k("s_waitcnt lgkmcnt(0)")
    srd(k, 24, 72, MB4); srd(k, 28, 74, MB4); srd(k, 36, 76, 8192); srd(k, 20, 8, WS_TOTAL)
    def arm_stores():
        for i in range(4):
            k(f"s_add_u32 s16, s{S_ROWY}, {WS_Y + 4096*i}\nbuffer_store_dwordx4 v[16:19], v14, {SW}, s16 offen sc1")
        k(f"buffer_store_dwordx4 v[16:19], v15, {SW}, s45 offen sc1")
    if arm_first: arm_stores()
    k(f"s_mov_b32 m0, {KB}\ns_nop 0\nbuffer_load_dwordx4 v8, s[24:27], 0 offen {kvnt} lds")
    for base, sr in ((KB + GS, "s[24:27]"), (VB, "s[28:31]")):
        for j in range(4):
            k(f"s_add_u32 m0, s85, {base + j*GS}\ns_add_u32 s16, s84, {j*16384}")
            k(f"buffer_load_dwordx4 v3, {sr}, s16 offen {kvnt} lds")
    if not arm_first: arm_stores()
    k("buffer_load_dwordx4 v[108:111], v7, s[36:39], 0 offen")
    lkv = k("buffer_load_dwordx4 v[112:115], v7, s[36:39], 0 offen offset:16")
    stamp(0)
    k(f"s_add_u32 s70, s8, {WS_FLAG + F_EPOCH}\ns_addc_u32 s71, s9, 0\ns_load_dword s87, s[70:71], 0")
    srd(k, 28, 8, WS_TOTAL)
    KM = 32 - KT
    assert KM == 18
    k(f"""
    s_mov_b32 s{S_LAY}, 0
    v_mov_b32 v{VTID}, v0
    v_lshlrev_b32 v{VR}, 4, v2
    s_lshl_b32 s18, s61, 2
    s_add_u32 s18, s18, s17
    s_mul_i32 s62, s17, {CH_LDS}
    s_lshl_b32 s16, s18, 12
    s_add_u32 s64, s4, s16
    s_addc_u32 s65, s5, 0
    s_add_u32 s16, s16, {WS_KV}
    s_add_u32 s72, s8, s16
    s_addc_u32 s73, s9, 0
    s_mov_b32 s74, 4096
    s_mov_b32 s75, 0x20000
    s_and_b32 s16, s18, 0xfffffffe
    s_lshl_b32 s16, s16, 1
    s_add_u32 s6, s6, s16
    s_addc_u32 s7, s7, 0
    s_mov_b32 s24, s64
    s_mov_b32 s25, s65
    s_mov_b32 s26, 4096
    s_load_dword s63, s[6:7], 0
    s_load_dwordx4 s[4:7], s[0:1], {ARG['wd']}
    s_mov_b32 s84, 4096
    s_mov_b32 s85, 8192
    s_mov_b32 s86, 12288
    v_and_b32 v48, 7, v0
    v_bfe_u32 v10, v0, 6, 1
    v_lshl_add_u32 v48, v10, 3, v48
    v_mul_u32_u24 v52, {GS}, v48
    v_lshl_add_u32 v52, v49, 3, v52
    v_add_u32 v52, {KB}, v52
    s_and_b32 s16, s61, 15
    s_lshl_b32 s16, s16, 4
    v_add_u32 v48, s16, v48
    v_sub_u32 v50, 255, v48
    v_lshlrev_b32 v50, 4, v50
    v_lshl_add_u32 v50, v9, 14, v50
    v_add_u32 v50, {WS_KV}, v50
    v_and_b32 v8, 7, v0
    v_lshrrev_b32 v9, 3, v0
    v_and_b32 v13, 3, v9
    v_lshrrev_b32 v9, 2, v9
    v_lshl_add_u32 v9, v9, 4, v13
    v_lshlrev_b32 v53, 11, v8
    v_lshl_add_u32 v53, v9, 4, v53
    v_lshlrev_b32 v{VROW}, 4, v8
    v_lshl_add_u32 v{VROW}, v9, 8, v{VROW}
    v_and_b32 v61, 15, v2
    v_lshrrev_b32 v62, 4, v2
    v_lshlrev_b32 v63, 2, v61
    v_lshl_add_u32 v63, v62, 4, v63
    v_mul_u32_u24 v54, 7168, v62
    v_lshl_add_u32 v54, v61, 4, v54
    s_lshl_b32 s11, s17, 13
    s_add_u32 s11, s11, {CONV_LDS}
    """)
    assert E <= 4
    so = ["0", "s84", "s85", "s86"]
    A = lambda buf, p: 64 + buf * 64 + 4 * p
    B = lambda buf, j: 96 + buf * 64 + 4 * j
    AD = 40; HR = 192; QP = 20
    for w in range(4): k(f"v_subrev_u32 v{4+w}, {60-4*w}, v63")
    k("s_waitcnt lgkmcnt(0)")
    k(f"""
    v_and_b32 v8, 3, v61
    v_mul_u32_u24 v8, {CS}, v8
    v_lshrrev_b32 v9, 2, v61
    v_add_u32 v9, v9, v62
    v_lshl_add_u32 v56, v9, 4, v8
    v_add_u32 v56, s62, v56
    v_lshrrev_b32 v8, 3, v61
    v_mul_u32_u24 v9, {XS}, v8
    v_and_b32 v10, 7, v61
    v_lshlrev_b32 v13, 6, v10
    v_sub_u32 v9, v9, v13
    v_lshl_add_u32 v9, v62, 4, v9
    v_add_u32 v9, {4*CS + 4032 - 3584}, v9
    v_add_u32 v57, s62, v9
    v_lshrrev_b32 v13, 1, v10
    v_xor_b32 v13, v13, v62
    v_lshl_add_u32 v13, v10, 2, v13
    v_lshlrev_b32 v13, 4, v13
    v_lshl_add_u32 v13, v8, 12, v13
    v_add_u32 v59, s62, v13
    v_lshrrev_b32 v8, 5, v2
    v_mul_u32_u24 v8, {XS}, v8
    v_and_b32 v9, 31, v2
    v_lshl_add_u32 v8, v9, 4, v8
    v_add_u32 v8, s62, v8
    v_mov_b32 v44, 0
    v_mov_b32 v45, 0
    v_mov_b32 v46, 0
    v_mov_b32 v47, 0
    ds_write_b128 v8, v[44:47] offset:{4*CS + 4096}
    v_lshlrev_b32 v55, 3, v62
    v_bfe_u32 v9, v2, 2, 2
    v_add_u32 v55, v55, v9
    v_lshlrev_b32 v55, 8, v55
    v_and_b32 v9, 3, v2
    v_lshl_add_u32 v55, v9, 3, v55
    v_add_u32 v55, s11, v55
    v_add_u32 v60, s62, v{VR}
    s_and_b32 s16, s18, 1
    s_lshl_b32 s16, s16, 4
    s_lshr_b32 s63, s63, s16
    s_and_b32 s63, s63, 0xffff
    v_mov_b32 v9, s63
    s_lshr_b32 s{S_FKV}, s61, 4
    s_lshl_b32 s{S_FKV}, s{S_FKV}, 11
    s_add_u32 s{S_FKV}, s{S_FKV}, {WS_FLAG + F_KV}
    s_lshl_b32 s78, s61, 7
    s_add_u32 s78, s78, {WS_FLAG + F_KV}
    v_lshlrev_b32 v{TMP+13}, 7, v61
    v_and_b32 v{VF16}, 31, v2
    v_lshlrev_b32 v{VF16}, 2, v{VF16}
    s_mul_i32 s{S_N}, s87, 0x9e3779b1
    s_add_u32 s{S_N}, s{S_N}, 0x7f4a7c15
    s_add_u32 s16, s{S_N}, 1
    v_mov_b32 v{VTAG}, s16
    """)
    for w in range(4): k(f"v_cmp_eq_u32 vcc, 0, v{4+w}\nv_cndmask_b32 v{AD+w}, 0, v9, vcc")
    for i in range(4):
        for h in range(2): h_ld = k(f"buffer_load_dwordx4 v[{HR+8*i+4*h}:{HR+8*i+4*h+3}], v{VR}, s[24:27], 0 offen offset:{i*1024 + 16*h} {hnt}")
    for w in range(4): k(f"buffer_load_dword v{A(0,0)+w}, v{4+w}, s[24:27], 0 offen")
    qid = {}
    def q_line(i): return f"buffer_load_dwordx4 a[{64+4*i}:{67+4*i}], v53, s[32:35], s{S_ROWY} offen offset:{64*i} {qnt}"
    if diag == 6: stamp(12)
    k.wait(vm=lkv); k("s_barrier")
    if diag == 6: stamp(13)
    k(f"s_lshl_b32 s16, s2, 2\ns_add_u32 s16, s16, {WS_FLAG + F_ARM}\ns_cmp_lg_u32 s17, 1\ns_cbranch_scc1 L_noarm")
    k(flag_store(16)); k.nvm -= 1
    k.label("L_noarm")
    KR = lambda t: 74 + 2 * t
    VV = lambda t: 90 + 2 * t
    for t in range(-3, 8): lk = k(f"ds_read_b64 v[{KR(t)}:{KR(t)+1}], v52 offset:{GS + 128*t if t >= 0 else 128*(8+t)}")
    for t in range(8): lv = k(f"ds_read_b64 v[{VV(t)}:{VV(t)+1}], v52 offset:{17*GS + 128*t}")
    W = lambda c, j: 116 + 4 * c + j
    for c in range(4):
        for j in range(4): unpk(k, W(c, j), 108 + 2 * c + (j >> 1), j & 1)
    KS = lambda c, t: 132 + 8 * c + t
    KF = lambda t: 167 + t
    k.wait(lg=lk)
    for c in range(4):
        for t in range(-3, 8): unpk(k, KF(t), KR(t) + (c >> 1), c & 1)
        for t in range(8): k(f"v_mul_f32 v{KS(c,t)}, v{W(c,3)}, v{KF(t-3)}")
        for j in (2, 1, 0):
            for t in range(8): k(f"v_fmac_f32 v{KS(c,t)}, v{W(c,j)}, v{KF(t-j)}")
        k.wait(lg=lv)
        for t in range(8): unpk(k, KF(t), VV(t) + (c >> 1), c & 1)
        for t in range(8): k(f"v_mul_f32 v{KS(c,t)}, v{KS(c,t)}, v{KF(t)}")
        for i in range(4): k(f"v_cvt_pk_bf16_f32 v{176+4*c+i}, v{KS(c,7-2*i)}, v{KS(c,6-2*i)}")
        k(f"buffer_store_dwordx4 v[{176+4*c}:{179+4*c}], v50, {SW}, {so[c]} offen sc1")
    stamp(26)
    kv_st = k.nvm
    k.wait(vm=h_ld)
    for i in range(4):
        r = HR + 8 * i; t = 72 + 8 * i
        for e in range(6): k(f"v_mov_b32 v{t+e}, v{r+1+e}")
        for cc, src in enumerate((t, r + 2, t + 2, r + 4)):
            k(f"ds_write_b128 v60, v[{src}:{src+3}] offset:{cc*CS + i*1024}")
    if diag == 6: stamp(14)
    k.wait(vm=kv_st)
    if diag == 6: stamp(15)
    k("s_barrier")
    if diag == 6: stamp(16)
    k("s_cmp_lg_u32 s17, 0\ns_cbranch_scc1 L_nokvf")
    k(flag_store(78)); k.nvm -= 1
    k.label("L_nokvf")
    KM2 = 56 - KT2
    k(f"""
    s_lshl_b32 s{S_M0}, s17, 12
    s_lshr_b32 s13, s59, 1
    s_lshl_b32 s12, s13, 3
    s_add_u32 s12, s12, s34
    s_lshl_b32 s14, s33, 2
    s_and_b32 s15, s60, 3
    s_add_u32 s14, s14, s15
    s_lshl_b32 s14, s14, 2
    s_add_u32 s14, s14, s17
    s_lshl_b32 s16, s32, 2
    s_add_u32 s16, s16, s17
    s_mul_i32 s{S_W1}, s12, {W1T*1024}
    s_add_u32 s{S_W1}, s{S_W1}, {WS_W1}
    s_mul_i32 s{S_W2}, s35, {W2T*1024}
    s_add_u32 s{S_W2}, s{S_W2}, {WS_W2}
    s_lshl_b32 s{S_XN}, s14, 17
    s_add_u32 s{S_XN}, s{S_XN}, {WS_XN}
    s_lshl_b32 s{S_PS}, s16, 14
    s_lshl_b32 s15, s34, 10
    s_add_u32 s{S_PS}, s{S_PS}, s15
    s_lshl_b32 s15, s33, 22
    s_add_u32 s{S_PS}, s{S_PS}, s15
    s_add_u32 s{S_PS}, s{S_PS}, {WS_P}
    s_lshr_b32 s{S_ROWL}, s19, 1
    s_lshl_b32 s{S_ROWF}, s{S_ROWL}, 15
    s_lshl_b32 s{S_ROWL}, s{S_ROWL}, 13
    s_and_b32 s15, s19, 1
    s_lshl_b32 s15, s15, 7
    s_add_u32 s{S_ROWL}, s{S_ROWL}, s15
    s_add_u32 s{S_ROWF}, s{S_ROWF}, s15
    s_lshl_b32 s{S_FXN_C}, s14, 7
    s_lshl_b32 s15, s13, 12
    s_add_u32 s{S_FXN_C}, s{S_FXN_C}, s15
    s_add_u32 s{S_FXN_C}, s{S_FXN_C}, {WS_FLAG + F_XN}
    s_lshr_b32 s{S_FXN_P}, s19, 3
    s_lshl_b32 s{S_FXN_P}, s{S_FXN_P}, 7
    s_lshl_b32 s15, s34, 2
    s_add_u32 s{S_FXN_P}, s{S_FXN_P}, s15
    s_add_u32 s{S_FXN_P}, s{S_FXN_P}, s{S_M0}
    s_add_u32 s{S_FXN_P}, s{S_FXN_P}, {WS_FLAG + F_XN}
    s_lshr_b32 s{S_FPF_C}, s19, 2
    s_lshl_b32 s{S_FPF_C}, s{S_FPF_C}, 11
    s_add_u32 s{S_FPF_C}, s{S_FPF_C}, {WS_FLAG + F_PE}
    s_lshl_b32 s{S_FPF_P}, s16, 11
    s_lshl_b32 s15, s35, 7
    s_add_u32 s{S_FPF_P}, s{S_FPF_P}, s15
    s_add_u32 s{S_FPF_P}, s{S_FPF_P}, {WS_FLAG + F_PE}
    s_lshl_b32 s{S_FH_P}, s14, 8
    s_lshr_b32 s15, s12, 4
    s_lshl_b32 s15, s15, 7
    s_add_u32 s{S_FH_P}, s{S_FH_P}, s15
    s_and_b32 s15, s12, 15
    s_lshl_b32 s15, s15, 2
    s_add_u32 s{S_FH_P}, s{S_FH_P}, s15
    s_add_u32 s{S_FH_P}, s{S_FH_P}, {WS_FLAG + F_H}
    s_lshr_b32 s{S_FH_C}, s16, 1
    s_lshl_b32 s{S_FH_C}, s{S_FH_C}, 8
    s_lshl_b32 s15, s33, 7
    s_add_u32 s{S_FH_C}, s{S_FH_C}, s15
    s_add_u32 s{S_FH_C}, s{S_FH_C}, {WS_FLAG + F_H}
    s_mul_i32 s{S_HL}, s16, {2*TBH}
    s_mul_i32 s15, s33, {56*1024}
    s_add_u32 s{S_HL}, s{S_HL}, s15
    s_add_u32 s{S_HL}, s{S_HL}, {WS_H}
    s_mul_i32 s{S_HS}, s14, {4*TBH}
    s_lshr_b32 s15, s12, 4
    s_mul_i32 s15, s15, {56*1024}
    s_add_u32 s{S_HS}, s{S_HS}, s15
    s_and_b32 s15, s12, 15
    s_lshl_b32 s15, s15, 9
    s_add_u32 s{S_HS}, s{S_HS}, s15
    s_add_u32 s{S_HS}, s{S_HS}, {WS_H}
    s_lshl_b32 s{S_FW2_C}, s35, 8
    s_add_u32 s{S_FW2_C}, s{S_FW2_C}, {WS_FLAG + F_W2}
    s_mul_i32 s15, s12, 7
    s_lshr_b32 s15, s15, 3
    s_min_u32 s15, s15, 26
    s_lshl_b32 s15, s15, 7
    s_add_u32 s{S_FW1_C}, s15, {WS_FLAG + F_W1}
    """)
    k(f"""
    s_add_u32 s15, s32, s34
    s_and_b32 s15, s15, 1
    s_mul_i32 s86, s15, {1024 * swz}
    s_mul_i32 s15, s15, {8192 * swz}
    s_add_u32 s92, s{S_W2}, s15
    s_sub_u32 s93, s{S_W2}, s15
    """)
    k(f"""
    s_lshl_b32 s12, s2, 2
    s_add_u32 s12, s12, s17
    s_lshr_b32 s13, s12, 3
    s_and_b32 s12, s12, 7
    s_cmp_ge_u32 s13, 56
    s_cselect_b32 s14, 1, 0
    s_cselect_b32 s15, 56, 0
    s_sub_u32 s13, s13, s15
    s_lshl_b32 s15, s14, 3
    s_add_u32 s15, s15, s12
    s_lshl_b32 s{S_FW2_P}, s15, 8
    s_lshl_b32 s16, s13, 2
    s_add_u32 s{S_FW2_P}, s{S_FW2_P}, s16
    s_add_u32 s{S_FW2_P}, s{S_FW2_P}, {WS_FLAG + F_W2}
    s_mul_i32 s{S_SHD}, s15, {W2T*1024}
    s_and_b32 s32, s13, {1 if chain else 0}
    s_sub_u32 s33, s13, s32
    s_lshl_b32 s16, s33, 13
    s_lshl_b32 s60, s33, 11
    s_add_u32 s60, s60, {KM2 * 6 * 1024}
    s_cmp_lt_u32 s13, {KM2}
    s_cselect_b32 s16, s16, s60
    s_cselect_b32 s60, {2 if chain else 1}, {KT2}
    s_lshl_b32 s60, s60, 11
    s_lshl_b32 s32, s32, 10
    s_add_u32 s16, s16, s32
    s_add_u32 s{S_SHD}, s{S_SHD}, s16
    s_add_u32 s{S_SHD}, s{S_SHD}, {WS_W2}
    s_and_b32 s15, s13, 7
    s_mul_i32 s15, s15, 224
    s_lshr_b32 s16, s13, 3
    s_lshl_b32 s16, s16, 4
    s_add_u32 s15, s15, s16
    s_mul_i32 s14, s14, 1792
    s_add_u32 s15, s15, s14
    s_add_u32 s16, s15, 112
    s_lshl_b32 s12, s12, 8
    s_lshl_b32 s{S_SHA}, s15, 11
    s_add_u32 s{S_SHA}, s{S_SHA}, s12
    s_lshl_b32 s{S_SHB}, s16, 11
    s_add_u32 s{S_SHB}, s{S_SHB}, s12
    v_add_u32 v{VR+1}, 0x10000, v{VR}
    v_add_u32 v{VD}, s{S_M0}, v{VR}
    v_lshrrev_b32 v21, 5, v2
    v_and_b32 v22, 31, v2
    v_lshlrev_b32 v22, 4, v22
    v_mul_u32_u24 v23, {TBH}, v21
    v_add_u32 v{VST}, v23, v22
    v_mov_b32 v{VC2}, {f32bits(c1*0.044715):#x}
    v_lshlrev_b32 v{VF}, 2, v2
    v_lshrrev_b32 v24, 4, v2
    v_and_b32 v25, 15, v2
    v_lshlrev_b32 v25, 4, v25
    v_lshl_add_u32 v{VS0}, v24, 11, v25
    v_bfe_u32 v25, v2, 2, 3
    v_lshlrev_b32 v25, 8, v25
    v_lshl_add_u32 v25, v21, 14, v25
    v_and_b32 v24, 3, v2
    v_lshl_add_u32 v25, v24, 4, v25
    v_add_u32 v{VS1}, s{S_M0}, v25
    """)

    x = k(poll_load(S_FKV))
    poll_check(x, S_FKV, 16)
    stamp(27)
    xl = []
    for i in range(4):
        k(f"buffer_load_dwordx4 v[{128+8*i}:{131+8*i}], v{VR}, s[72:75], 0 offen offset:{i*1024}")
        xl.append(k(f"buffer_load_dword v{132+8*i}, v{VR}, s[72:75], 0 offen offset:{i*1024 + 16}"))
    k(f"s_mov_b32 s64, {WS_FLAG + F_ARM}")
    arm_ld = k(poll_load(64, "arm"))
    OFFS = [[84, 85, 89, 90, 91, 94, 95, 69], [70 + i for i in range(8)]]
    WSRC, WBASE, WFLAG = (10, 13), ((24, 25), (96, 97)), (62, 63)
    assert all((x * 9363) >> 16 == x // 7 for x in range(232)) and chain
    for r in range(2):
        k(f"""
        s_mul_i32 s12, s2, {3 if r else 4}
        s_add_u32 s12, s12, s17
        s_add_u32 s12, s12, {1024 * r}
        s_mul_hi_u32 s14, s12, {-(-(1 << 32) // 28)}
        s_mul_i32 s16, s14, 28
        s_sub_u32 s12, s12, s16
        s_and_b32 s15, s14, 1
        s_lshr_b32 s14, s14, 1
        s_cmp_eq_u32 s15, 0
        s_cselect_b32 s{WBASE[r][0]}, s96, s98
        s_cselect_b32 s{WBASE[r][1]}, s97, s99
        s_mul_i32 s{WSRC[r]}, s14, {32*7168}
        s_lshl_b32 s16, s12, 8
        s_add_u32 s{WSRC[r]}, s{WSRC[r]}, s16
        s_lshl_b32 s78, s14, 1
        s_add_u32 s78, s78, s15
        s_lshl_b32 s78, s78, 2
        s_lshl_b32 s16, s12, 7
        s_add_u32 s78, s78, s16
        s_add_u32 s79, s78, s16
        s_add_u32 s79, s79, {WS_FLAG + F_W0}
        s_add_u32 s78, s78, {WS_FLAG + F_W1 - 8*KM}
        s_and_b32 s18, s14, 1
        s_sub_u32 s57, s14, s18
        s_add_u32 s57, s57, s15
        s_mul_i32 s58, s57, 14
        s_lshl_b32 s59, s57, 1
        s_add_u32 s59, s59, {12*KM}
        s_cmp_lt_u32 s14, {KM}
        s_cselect_b32 s58, s58, s59
        s_cselect_b32 s59, 2, {2*KT}
        s_cselect_b32 s{WFLAG[r]}, s79, s78
        s_add_u32 s58, s58, s18
        s_add_u32 s58, s58, {WS_W1 >> 10}
        s_lshl_b32 s12, s12, 3
        s_mul_i32 s16, s12, 9363
        s_lshr_b32 s16, s16, 16
        s_mul_i32 s78, s16, 7
        s_sub_u32 s78, s12, s78
        s_mul_i32 s16, s16, {W1T}
        s_add_u32 s58, s58, s16
        s_mul_i32 s16, s78, s59
        s_add_u32 s58, s58, s16
        s_lshl_b32 s{OFFS[r][0]}, s58, 10
        s_lshl_b32 s59, s59, 10
        s_mul_i32 s79, s59, 6
        s_sub_u32 s79, {W1T * 1024}, s79
        """)
        for i in range(7):
            k(f"s_cmp_eq_u32 s78, {6 - i}\ns_cselect_b32 s16, s79, s59\ns_add_u32 s{OFFS[r][i+1]}, s{OFFS[r][i]}, s16")
    k(f"s_mov_b32 s26, {0 if now & 1 else W_BYTES}\ns_cmp_eq_u32 s17, 3\ns_cselect_b32 s{WFLAG[1]}, 0, s{WFLAG[1]}\ns_cselect_b32 s30, 0, s30\ns_cselect_b32 s98, 0, {0 if now & 2 else W_BYTES}")
    srd(k, 32, 100, MB4)
    def w_load(r, j):
        return [f"s_add_u32 m0, s11, {1024*j + 32768*r}", f"s_add_u32 s12, s{WSRC[r]}, {4*7168*j}", f"buffer_load_dwordx4 v54, s[24:27], s12 offen {wnt} lds"]
    for i in range(4):
        r = 128 + 8 * i; t = 160 + 4 * i
        k.wait(vm=xl[i])
        k(f"ds_write_b128 v60, v[{r}:{r+3}] offset:{4*CS + XS + i*1024}")
        for e in range(4): k(f"v_alignbit_b32 v{t+e}, v{r+e+1}, v{r+e}, 16")
        k(f"ds_write_b128 v60, v[{t}:{t+3}] offset:{4*CS + i*1024}")
    poll_check(arm_ld, 64, "arm")
    stamp(1)
    Y = lambda j: 8 + 4 * j
    def reads(i):
        buf = i & 1; out = []
        for x in range(8):
            out.append(("B", x, f"ds_read_b128 v[{B(buf,x)}:{B(buf,x)+3}], v57 offset:{3584-512*x+64*i}"))
            if (i, x) != (0, 0):
                out.append(("A", x, f"ds_read_b128 v[{A(buf,x)}:{A(buf,x)+3}], v56 offset:{64*(i-1)+512*x}"))
        return out
    ids = {}
    for kind, x, txt in reads(0): ids[(0, kind, x)] = k(txt)
    for j in range(8):
        k.wait(lg=ids[(0, "B", j)])
        k(f"v_mfma_f32_16x16x32_bf16 v[{Y(j)}:{Y(j)+3}], v[{AD}:{AD+3}], v[{B(0,j)}:{B(0,j)+3}], 0")
    side = {i: [] for i in range(8)}
    def sh_reads(r):
        o = []
        for i in range(8):
            f = 32 * r + 4 * i
            o += [("r", None, f"ds_read_b64_tr_b16 a[{f}:{f+1}], v55 offset:{32*i + 32768*r}"), ("r", (r, i), f"ds_read_b64_tr_b16 a[{f+2}:{f+3}], v55 offset:{32*i + 1024 + 32768*r}")]
        return o
    def sh_stores(r):
        return [("s", (r, i), f"buffer_store_dwordx4 a[{32*r+4*i}:{32*r+4*i+3}], v{VR}, {SX if r else SW}, s{OFFS[r][i]} offen sc1") for i in range(8)]
    for n_, st_ in enumerate(wsteps):
        r, j = divmod(n_, 8)
        if n_ == 8: side[st_].append(("x", None, "s_mov_b32 s24, s96\ns_mov_b32 s25, s97\ns_mov_b32 s26, s98"))
        side[st_].append(("v", f"w{r}", "\n".join(w_load(r, j))))
    side[q_step] += [("v", "q", q_line(i)) for i in range(4)]
    rd0 = sh_reads(0)
    side[a_step] += [("w", 0)] + rd0[:10]
    side[a_step + 1] += rd0[10:] + sh_stores(0)[:4]
    side[a_step + 2] += sh_stores(0)[4:]
    sid = dict(qid)
    for i in range(8):
        buf = i & 1
        nxt = reads(i + 1) if i < 7 else []
        order = sorted([(p, j) for p in range(8) for j in range(8 - p)], key=(lambda t: (t[0] + t[1], t[0] if (t[0] + t[1]) & 1 else -t[0])) if cchain else (lambda t: (max(t), t[0] + t[1])))
        sd = side[i]
        for n, (p, j) in enumerate(order):
            k.wait(lg=max(ids.get((i, "A", p), 0), ids[(i, "B", j)]))
            jp = p + j
            k(f"v_mfma_f32_16x16x32_bf16 v[{Y(jp)}:{Y(jp)+3}], v[{A(buf,p)}:{A(buf,p)+3}], v[{B(buf,j)}:{B(buf,j)+3}], v[{Y(jp)}:{Y(jp)+3}]")
            if n % 2 == 1 and nxt:
                kind, x, txt = nxt.pop(0); ids[(i + 1, kind, x)] = k(txt)
            if n % 2 == 0 and sd and (sd[0][0] not in "sv" or n % 4 == 0):
                it = sd.pop(0)
                if it[0] == "w": k.wait(vm=sid["w0"])
                elif it[0] == "s":
                    k.wait(lg=sid[it[1]]); sid["st0"] = k(it[2])
                else:
                    x = k(it[2])
                    if it[1]: sid[it[1]] = x
        assert not nxt and not sd
    stamp(2)
    for j in range(8): k(f"ds_write_b128 v59, v[{Y(j)}:{Y(j)+3}] offset:{512*j}")
    k(f"""
    v_lshrrev_b32 v4, 2, v0
    v_bfe_u32 v5, v4, 3, 2
    v_xor_b32 v5, v5, v4
    v_lshlrev_b32 v5, 4, v5
    v_and_b32 v6, 3, v0
    v_lshl_add_u32 v5, v6, 2, v5
    v_lshlrev_b32 v6, 4, v6
    v_lshl_add_u32 v6, v4, 14, v6
    s_lshl_b32 s12, s61, 6
    s_add_u32 s12, s12, {WS_Y}
    """)
    for c in range(1, 4): k(f"v_add_u32 v{40+c}, {c*CH_LDS}, v5")
    k("v_mov_b32 v40, v5")
    k.wait(lg=k.nlg); k("s_barrier")
    rid = {}
    for i in range(4):
        for c in range(4):
            rid[i] = k(f"ds_read2st64_b32 v[{64+8*i+2*c}:{65+8*i+2*c}], v{40+c} offset0:{4*i} offset1:{16+4*i}")
    for i in range(4):
        k.wait(lg=rid[i])
        for par in range(2):
            for h in range(2):
                k(f"v_cvt_pk_bf16_f32 v{96+4*i+2*par+h}, v{64+8*i+4*h+par}, v{64+8*i+4*h+2+par}")
        k(f"buffer_store_dwordx4 v[{96+4*i}:{99+4*i}], v6, {SW}, s12 offen sc1")
        if i < 3: k("s_add_u32 s12, s12, 0x100000")
    stamp(3)
    XP, YP, P0, P1, X, Yf, T, AY, AS0, AS1, AL, AO = 8, 24, 40, 56, 72, 104, 136, 0, 1, 2, 3, 4
    def row_addr():
        k(f"""
        v_and_b32 v6, 7, v{VTID}
        v_bfe_u32 v5, v{VTID}, 3, 2
        v_lshrrev_b32 v7, 5, v{VTID}
        v_lshl_add_u32 v7, v7, 4, v5
        v_lshlrev_b32 v{AY}, 3, v6
        v_lshl_add_u32 v{AY}, v7, 7, v{AY}
        v_lshlrev_b32 v{AO}, 11, v6
        v_lshl_add_u32 v{AO}, v7, 4, v{AO}
        v_lshrrev_b32 v{AS0}, 6, v{VTID}
        v_lshlrev_b32 v{AS0}, 3, v{AS0}
        v_lshl_add_u32 v{AS0}, v6, 5, v{AS0}
        v_bfe_u32 v7, v{VTID}, 4, 1
        v_lshl_add_u32 v{AS0}, v7, 2, v{AS0}
        v_add_u32 v{AS0}, {LDS_ST}, v{AS0}
        v_lshlrev_b32 v{AS1}, 5, v6
        v_add_u32 v{AS1}, {LDS_ST}, v{AS1}
        v_lshlrev_b32 v{AL}, 4, v{VTID}
        v_add_u32 v{AL}, {LDS_Y}, v{AL}
        """)
    def unpack(dst, src):
        for e in range(32): unpk(k, dst + e, src + e // 2, e & 1)
    def stats(off):
        k(f"v_pk_add_f32 v[{T}:{T+1}], v[{X}:{X+1}], v[{X+2}:{X+3}]")
        k(f"v_pk_mul_f32 v[{T+2}:{T+3}], v[{X}:{X+1}], v[{X}:{X+1}]")
        for e in range(2, 32, 2):
            if e > 2: k(f"v_pk_add_f32 v[{T}:{T+1}], v[{T}:{T+1}], v[{X+e}:{X+e+1}]")
            k(f"v_pk_fma_f32 v[{T+2}:{T+3}], v[{X+e}:{X+e+1}], v[{X+e}:{X+e+1}], v[{T+2}:{T+3}]")
        R = T + 8
        k(f"""
        v_add_f32 v{T}, v{T}, v{T+1}
        v_add_f32 v{T+2}, v{T+2}, v{T+3}
        v_permlane16_swap_b32 v{T}, v{T+2}
        v_add_f32 v{T}, v{T}, v{T+2}
        v_add_f32_dpp v{T}, v{T}, v{T} row_ror:8 row_mask:0xf bank_mask:0xf
        v_mov_b32 v{T+1}, v{T}
        v_permlane32_swap_b32 v{T}, v{T+1}
        v_add_f32 v{T}, v{T}, v{T+1}
        ds_write_b32 v{AS0}, v{T} offset:{off}
        s_waitcnt lgkmcnt(0)
        s_barrier
        ds_read_b128 v[{R}:{R+3}], v{AS1} offset:{off}
        ds_read_b128 v[{R+4}:{R+7}], v{AS1} offset:{off+16}
        s_waitcnt lgkmcnt(0)
        v_pk_add_f32 v[{R}:{R+1}], v[{R}:{R+1}], v[{R+2}:{R+3}]
        v_pk_add_f32 v[{R+4}:{R+5}], v[{R+4}:{R+5}], v[{R+6}:{R+7}]
        v_pk_add_f32 v[{R}:{R+1}], v[{R}:{R+1}], v[{R+4}:{R+5}]
        v_mul_f32 v{R}, {f32bits(1/1024):#x}, v{R}
        v_mul_f32 v{R+1}, {f32bits(1/1024):#x}, v{R+1}
        v_fma_f32 v{R+1}, -v{R}, v{R}, v{R+1}
        v_max_f32 v{R+1}, 0, v{R+1}
        v_cvt_pk_bf16_f32 v{R+2}, v{R}, v{R+1}
        v_lshlrev_b32 v{R}, 16, v{R+2}
        v_and_b32 v{R+1}, 0xffff0000, v{R+2}
        v_add_f32 v{R+1}, {f32bits(1e-5):#x}, v{R+1}
        v_cvt_pk_bf16_f32 v{R+1}, v{R+1}, v{R+1}
        v_lshlrev_b32 v{R+1}, 16, v{R+1}
        v_sqrt_f32 v{R+1}, v{R+1}
        v_cvt_pk_bf16_f32 v{R+1}, v{R+1}, v{R+1}
        v_lshlrev_b32 v{R+1}, 16, v{R+1}
        v_rcp_f32 v{T+4}, v{R+1}
        v_mov_b32 v{T+5}, v{T+4}
        v_mul_f32_e64 v{T+6}, -v{R}, v{T+4}
        v_mov_b32 v{T+7}, v{T+6}
        """)
    def sentinel_loop(name, loads, regs, between=None, skip_first=False, tagged=False, own_wait=False):
        k(f"s_mov_b32 s{S_SP}, {SPIN}")
        regs = list(regs)
        if not skip_first: loads()
        if between: between()
        k(f"s_branch {name}_chk")
        k.label(name)
        if pnap: k(f"s_sleep {pnap}")
        loads()
        if own_wait: k("s_waitcnt vmcnt(0)")
        k.label(name + "_chk")
        if own_wait:
            k(f"v_max_u32 v{T+16}, v{regs[0]}, v{regs[1]}")
            for i in range(2, len(regs), 2): k(f"v_max3_u32 v{T+16}, v{T+16}, v{regs[i]}, v{regs[i+1]}")
            k(f"v_cmp_eq_u32 vcc, -1, v{T+16}")
        elif tagged:
            k(f"s_waitcnt vmcnt(0)\nv_or3_b32 v{T+16}, v{regs[0]}, v{regs[1]}, v{TMP+8}\nv_bitop3_b32 v{T+17}, v{regs[0]}, v{regs[1]}, v{TMP+8} bitop3:0x80")
            for i in range(2, len(regs), 2):
                k(f"v_or3_b32 v{T+16}, v{T+16}, v{regs[i]}, v{regs[i+1]}\nv_bitop3_b32 v{T+17}, v{T+17}, v{regs[i]}, v{regs[i+1]} bitop3:0x80")
            k(f"v_xor_b32 v{T+16}, v{T+16}, v{T+17}\nv_lshlrev_b32 v{T+16}, 16, v{T+16}\nv_cmp_ne_u32 vcc, 0, v{T+16}")
        else:
            k(f"s_waitcnt vmcnt(0)\nv_max_u32 v{T+16}, v{regs[0]}, v{regs[1]}")
            for i in range(2, len(regs), 2): k(f"v_max3_u32 v{T+16}, v{T+16}, v{regs[i]}, v{regs[i+1]}")
            k(f"v_cmp_eq_u32 vcc, -1, v{T+16}")
        k(f"s_sub_u32 s{S_SP}, s{S_SP}, 1\ns_cbranch_scc1 {name}_out\ns_cbranch_vccnz {name}")
        k.label(name + "_out")

    row_addr()
    def y_shadow():
        mark = k.nvm
        k.wait(vm=max(sid["w1"], sid["q"]))
        for it in sh_reads(1):
            x = k(it[2])
            if it[1]: sid[it[1]] = x
        for e in range(16): k(f"v_accvgpr_read_b32 v{XP+e}, a{64+e}")
        unpack(X, XP)
        for it in sh_stores(1):
            k.wait(lg=sid[it[1]]); k(it[2])
        k(f"s_lshl_b32 s12, s2, 2\ns_add_u32 s12, s12, s17\ns_cmp_lt_u32 s12, 896\ns_cselect_b32 s26, {W_BYTES}, 0\ns_cselect_b32 s30, {WS_TOTAL}, 0\ns_mov_b32 s24, s4\ns_mov_b32 s25, s5")
        stats(0)
        k.wait(vm=mark)
        k(flag_store(62))
    def y_loads():
        assert WS_Y == 0
        for i in range(4):
            for h in range(2):
                r = YP + 4 * i + 2 * h
                k(f"buffer_load_dwordx2 v[{r}:{r+1}], v{AY}, {SW}, s{S_ROWY} offen offset:{512*i + 64*h} sc1")
    if diag == 6: stamp(19)
    sentinel_loop("L_ypoll", y_loads, range(YP, YP + 16), y_shadow, own_wait=True)
    stamp(4)
    def raw_stage(sidx):
        k(f"s_add_u32 m0, s{S_M0}, {sidx * 16384}\ns_add_u32 s{S_DMA}, s{S_W1}, {sidx * 16384}")
        for i in range(4): k(f"buffer_load_dwordx4 v{VD}, {SW}, s{S_DMA} offen offset:{1024*i} lds")
    def weave(body_fn, stages, span):
        n0 = len(k.lines); body_fn()
        body = k.lines[n0:]; del k.lines[n0:]
        for sidx in stages: raw_stage(sidx)
        dm = k.lines[n0:]; del k.lines[n0:]
        step = max(1, min(len(body), span) // len(dm))
        for n_, l in enumerate(body):
            if n_ % step == 0 and dm: k.lines.append(dm.pop(0))
            k.lines.append(l)
        k.lines += dm
    def y_keep():
        unpack(Yf, YP)
        for i in range(4): k(f"ds_write_b128 v{AL}, v[{YP+4*i}:{YP+4*i+3}] offset:{4096*i}")
    if diag == 6: stamp(20)
    y_keep()
    if diag == 6: stamp(21)

    k.label("L_layer")
    k(f"s_add_u32 s84, s{S_HL}, s86\ns_sub_u32 s85, s{S_HL}, s86")
    SWZ_END = (KM2 // (2 * swz)) * 2 * swz if swz else 0
    k.nvm = k.vm_done = 0; k.nlg = k.lg_done = 0
    ring = [("W1", s) for s in range(28)]
    S1_POS = 0
    SH_POS = sh_pos
    ring[SH_POS:SH_POS] = [("SH", 0), ("SH", 1)]
    assert SH_POS % NS + 1 < 4 and S1_POS % NS + 1 < 4
    ring += [("W2", s) for s in range(28)]
    NREAL = len(ring)
    st = {"s": None}
    def dma(idx, i):
        kind, s = ring[idx]; pre_ = []
        if kind == "S1":
            st["s"] = None
            return [f"s_add_u32 m0, s{S_M0}, {(idx % NS) * 16384 + 1024 * i}", f"s_add_u32 s{S_DMA}, s63, {4 * 7168 * (4 * s + i)}",
                    f"buffer_load_dwordx4 v{TMP+4}, s[92:95], s{S_DMA} offen lds"]
        if kind == "SH":
            st["s"] = None
            return [f"s_add_u32 m0, s{S_M0}, {(idx % NS) * 16384 + 1024 * i}", f"s_add_u32 s{S_DMA}, s{S_SHB if s else S_SHA}, {8192 * i}",
                    f"buffer_load_dwordx4 v{VS0}, {SD}, s{S_DMA} offen {dnt} lds"]
        if st["s"] != idx:
            pre_ = [f"s_add_u32 m0, s{S_M0}, {(idx % NS) * 16384}", f"s_add_u32 s{S_DMA}, s{(92 + (2 * s // swz) % 2 if 2 * s < SWZ_END else S_W2) if kind == 'W2' else S_W1}, {s * 16384}"]
            st["s"] = idx
        return pre_ + [f"buffer_load_dwordx4 v{VD}, {'s[88:91]' if kind == 'NX' else SW}, s{S_DMA} offen offset:{1024*i} lds"]
    w_id = {}; t_id = {}
    def pre_stage(idx):
        for i in range(4): w_id[idx] = k("\n".join(dma(idx, i)))
    for idx in range(4): w_id[idx] = 0
    def gate_math():
        for e in range(0, 32, 2):
            k(f"v_pk_fma_f32 v[{T}:{T+1}], v[{X+e}:{X+e+1}], v[{T+4}:{T+5}], v[{T+6}:{T+7}]")
            k(f"v_pk_fma_f32 v[{X+e}:{X+e+1}], v[{T}:{T+1}], v[{Yf+e}:{Yf+e+1}], v[{X+e}:{X+e+1}]")
            k(f"v_cvt_pk_bf16_f32 v{XP+e//2}, v{X+e}, v{X+e+1}")
        for i in range(4): k(f"ds_write_b128 v{AL}, v[{XP+4*i}:{XP+4*i+3}] offset:{16384 + 4096*i}")
        unpack(X, XP)
        stats(256)
    gate_math()
    k(f"s_lshl_b32 s{S_B}, s{S_LAY}, 22\ns_add_u32 s{S_B}, s{S_B}, s{S_ROWF}\ns_add_u32 s{S_B}, s{S_B}, {WS_XN}")
    for e in range(0, 32, 2):
        k(f"v_pk_fma_f32 v[{X+e}:{X+e+1}], v[{X+e}:{X+e+1}], v[{T+4}:{T+5}], v[{T+6}:{T+7}]")
        k(f"v_cvt_pk_bf16_f32 v{P0+e//2}, v{X+e}, v{X+e+1}")
        if e % 8 == 6:
            i = e // 8
            k(f"buffer_store_dwordx4 v[{P0+4*i}:{P0+4*i+3}], v{VROW}, {SW}, s{S_B} offen offset:{1024*i} sc1")
    stamp(5)
    xn_st = k.nvm
    ET = 160
    for t in range(4): k(f"s_add_u32 s{S_T+t}, s{S_XN}, {t*32768}")
    def e_loads():
        for u in range(E):
            for t in range(4):
                r = ET + 16 * u + 4 * t
                k(f"buffer_load_dwordx4 v[{r}:{r+3}], v{VR}, {SW}, s{S_T+t} offen offset:{1024*u} sc1")
    def e_between():
        k.wait(vm=xn_st); k("s_barrier")
        k(flag_store(S_FXN_P))
        n_ = k.nvm
        k("s_cmp_eq_u32 s63, 0\ns_cbranch_scc1 L_now1"); k(flag_store(63)); k.label("L_now1")
        k("s_mov_b32 s63, 0")
        k.nvm = n_
        if diag == 6: stamp(22)
    k(f"s_sub_u32 s62, s{S_FW1_C}, {WS_FLAG + F_W1}\ns_lshl_b32 s62, s62, 1\ns_add_u32 s62, s62, {WS_FLAG + F_W0}\nv_lshlrev_b32 v{TMP+13}, 1, v{VF}")
    e_between()
    w0_ld = k(poll_load(62, "w0"))
    def e_shadow():
        poll_check(w0_ld, 62, "w0")
        k(f"s_cmp_lg_u32 s{S_LAY}, 0\ns_cbranch_scc1 L_have0")
        for sidx in range(n0st): raw_stage(sidx)
        k(f"s_waitcnt vmcnt({4 * n0st})\ns_branch L_epoll_chk")
        k.label("L_have0")
        k("s_waitcnt vmcnt(0)")
    sentinel_loop("L_epoll", e_loads, range(ET, ET + 16 * E), e_shadow, own_wait=True)
    if diag == 6: stamp(23)
    k(f"s_cmp_lg_u32 s{S_LAY}, 0\ns_cbranch_scc1 L_have")
    n0 = k.nvm
    for sidx in range(n0st, 7): raw_stage(sidx)
    k.lines.append(f"    s_waitcnt vmcnt({4 * (7 - npre)})")
    k("s_barrier")
    k.nvm = n0
    k.label("L_have")
    for sidx in range(npre, 7): w_id[sidx] = n0 + 1
    st["s"] = None
    for r in range(16 * E): k(f"v_accvgpr_write_b32 a{4*RW + r}, v{ET + r}")
    stamp(6)

    def sweep(kd, u0, u1, gs):
        if chain: return [(kd, u + e, g) for u in range(u0, u1, 2) for g in gs for e in range(2)]
        return [(kd, u, g) for u in range(u0, u1) for g in gs]
    assert not chain or (KM % 2 == 0 and KM2 % 2 == 0 and E % 2 == 0)
    groups = sweep(1, 0, KM, range(14))
    tail_start = len(groups)
    for b in range(7): groups += sweep(1, KM, 32, (b, 7 + b))
    G2S = len(groups)
    groups += sweep(2, 0, KM2, range(8))
    T2S = len(groups)
    for p in range(4): groups += sweep(2, KM2, 56, (2 * p, 2 * p + 1))
    NGR = len(groups); GPB = 2 * KT
    NTk = {1: 4, 2: 2}
    tm = [0]
    for kd, _, _ in groups: tm.append(tm[-1] + NTk[kd])
    real = [i for i, r_ in enumerate(ring) if r_[0] in ("W1", "W2")]
    stage_of = lambda i: real[i // 16]
    bars = {16 * n - la_bar: real[min(n + bper - 1, 55)] for n in range(npre, 56, bper)}
    pub_at = {}
    for p_, r_ in sorted(bars.items()):
        for x in real:
            if x <= r_: pub_at.setdefault(x, p_)
    bar_list = sorted(bars)
    first_use = {}; last_use = {}
    for i, (kd, u, g) in enumerate(groups):
        first_use.setdefault((kd, u), i & ~1 if chain else i); last_use[(kd, u)] = i | 1 if chain else i
    def slot(kd, u, t):
        return (u % KT) * 4 + t if kd == 1 else (4 * (KM % KT) + 2 * u + t) % (4 * KT)
    def AT(kd, u, t):
        if kd == 2 and u < park: return f"v[{112 + 8*u + 4*t}:{115 + 8*u + 4*t}]"
        a = 4 * RW + 4 * slot(kd, u - (park if kd == 2 else 0), t)
        return f"a[{a}:{a+3}]"
    AW = lambda i: 4 * (i % RW)
    acc = lambda kd, g, t: (g * NTk[kd] + t) * 4
    tok_base = {t: (S_XN, 0) for t in range(4)}
    for u in range(E):
        for t in range(4): t_id[((1, u), t)] = 0
    def tok(kd, u, t):
        off = u * 1024; pre_ = []
        src = S_XN if kd == 1 else 84 + (u // swz) % 2 if u < SWZ_END else S_HL
        if tok_base.get(t, (None, 0))[0] != src or not 0 <= off - tok_base[t][1] <= 4095:
            tok_base[t] = (src, off & ~4095)
            pre_ = [f"s_add_u32 s{S_T+t}, s{src}, {t * (32768 if kd == 1 else TBH) + tok_base[t][1]}"]
        return pre_ + [f"buffer_load_dwordx4 {AT(kd, u, t)}, v{VR}, {SW}, s{S_T+t} offen offset:{off - tok_base[t][1]}"]
    PH_B = [1, 3, 4, 5, 6]; PH_U = [0, 16, 32, 40, 48]
    P_SHR = shr
    P_SH_END = shr + 20
    P_PX = 0
    P_PF = tail_start + pf_at
    P_W1S = 0
    P_PW1 = 120
    P_PW2 = pw2
    P_PH = [ph0] + [first_use[(2, u_)] - pb for u_, pb in zip(PH_U[1:], ph_back)]
    P_PPF = P_PH[4] + 2 * chk + 4
    allp = sorted(P_PH + [P_PPF]); assert all(b_ - a_ > 2 * chk for a_, b_ in zip(allp, allp[1:])), allp
    CHK = {1: chk, 2: 2 * chk}
    CT_LAB = [150, 290, 370, 445, 590, 800]
    CT_AT = [20, 205, 300, 380, 470, 640]
    assert P_PPF > 660
    FREE_AT = list(free_at)
    def done_bar(idx):
        if ring[idx][0] == "SH": return P_SH_END
        if ring[idx][0] == "S1": return P_W1S + 20
        last = 16 * real.index(idx) + 15
        return next(p for p in bar_list if p > last)
    def earliest(it):
        if it[1] == "W":
            idx = it[2]
            e = done_bar(idx - NS) if idx >= NS else -1
            if ring[idx][0] == "W2": e = max(e, P_PW2 + CHK[1] + 1)
            if ring[idx][0] == "W1" and 16 * ring[idx][1] + 15 >= tail_start: e = max(e, P_PW1 + CHK[1] + 1)
            return e
        kd, u = it[2]
        if kd == 1: return P_PX + CHK[1] + 1 if u < KT else last_use[(1, u - KT)] + 1
        v_ = u - park
        if v_ < 0: e = FREE_AT[u // 2]
        else: e = last_use[(1, KM + v_ // 2)] + 1 if v_ < 2 * KT else last_use[(2, u - 2 * KT)] + 1
        return max(e, P_PH[max(j for j in range(5) if PH_U[j] <= u)] + CHK[2 if u >= 16 else 1] + 1)
    items = []
    for idx in range(7, NREAL):
        d = tm[P_SHR] - sh_lead if ring[idx][0] == "SH" else tm[P_W1S] - 40 if ring[idx][0] == "S1" else tm[pub_at[idx]]
        items += [(d, "W", idx, i) for i in range(4)]
    for (kd, u), fu in first_use.items():
        if kd == 1 and u < E: continue
        items += [(tm[fu], "T", (kd, u), t) for t in range(NTk[kd])]
    items.sort(key=lambda x: x[0])
    nxt_t = 1e9; sched = []
    for it in reversed(items):
        late = it[0] >= tm[G2S]
        nxt_t = min(it[0] - (la2 if late else la1), nxt_t - 1.0 / (rate2 if nxt_t > tm[G2S] else rate1))
        e = earliest(it)
        sched.append((max(nxt_t, tm[e] if e >= 0 else -1e9),) + it[1:])
    sched.reverse()
    last_tok = max(x[0] for x in sched if x[1] == "T" and x[2][0] == 1)
    prev = last_tok
    for n_, it in enumerate(sched):
        if it[1] == "W" and it[0] > last_tok and prev < tm[G2S] - 8:
            prev = max(prev + 8, tm[earliest(it)]); sched[n_] = (min(it[0], prev),) + it[1:]
    wq = [x for x in sched if x[1] == "W"]
    wq.sort(key=lambda x: (x[2], x[3]))
    run = 1e9
    for n_ in range(len(wq) - 1, -1, -1):
        e = earliest(wq[n_]); run = min(run, wq[n_][0])
        wq[n_] = (max(run, tm[e] if e >= 0 else -1e9),) + wq[n_][1:]
    prev = max(x[0] for x in sched)
    for idx in range(NREAL, len(ring)):
        for i in range(4 if ring[idx][0] == "NX" else 0):
            prev = max(prev + 6, tm[done_bar(idx - NS)]); wq.append((prev, "W", idx, i))
    items = sorted(wq + [x for x in sched if x[1] == "T"], key=lambda x: x[0])
    prev = -1e9; slackv = []
    for n_, it in enumerate(items):
        if it[0] >= 0:
            prev = max(it[0], prev + 1.0 / (rmax if prev < tm[G2S] else rmax2)); items[n_] = (prev,) + it[1:]
        if it[1] == "T": slackv.append((tm[first_use[it[2]]] - items[n_][0], it[2]))
    MINSL = sorted(slackv)[:3]
    def lines(it):
        return dma(it[2], it[3]) if it[1] == "W" else tok(it[2][0], it[2][1], it[3])
    def record(it, i):
        if it[1] == "W": w_id[it[2]] = i
        else: t_id[(it[2], it[3])] = i
    while items and items[0][0] < 0:
        it = items.pop(0); record(it, k("\n".join(lines(it))))
    def rd(i):
        off = (stage_of(i) % NS) * 16384 + (i % 16) * 1024
        return f"ds_read_b128 a[{AW(i)}:{AW(i)+3}], v{VR + off // 65536} offset:{off % 65536}"
    def gelu4(G, U, P, tb):
        Tm = [tb + e for e in range(4)]
        o = [f"v_mul_f32 v{Tm[e]}, v{G+e}, v{G+e}" for e in range(4)]
        o += [f"v_fmaak_f32 v{Tm[e]}, v{VC2}, v{Tm[e]}, {f32bits(c1):#x}" for e in range(4)]
        o += [f"v_mul_f32 v{Tm[e]}, v{Tm[e]}, v{G+e}" for e in range(4)]
        for e in range(4): o += [f"v_exp_f32 v{Tm[e]}, v{Tm[e]}", f"v_mul_f32 v{U+e}, v{U+e}, v{G+e}"]
        o += [f"v_add_f32 v{Tm[e]}, 1.0, v{Tm[e]}" for e in range(4)]
        o += [f"v_rcp_f32 v{Tm[e]}, v{Tm[e]}" for e in range(4)]
        o += [f"v_mul_f32 v{U+e}, v{U+e}, v{Tm[e]}" for e in range(4)]
        o += [f"v_cvt_pk_bf16_f32 v{P}, v{U}, v{U+1}", f"v_cvt_pk_bf16_f32 v{P+1}, v{U+2}, v{U+3}"]
        return o
    def epilogue(b, t):
        a = acc(1, b, 2 * t); tb = TMP + 4 * t; sr = (S_C, S_E)[t]
        o = gelu4(a, acc(1, 7 + b, 2 * t), a, tb) + gelu4(acc(1, b, 2 * t + 1), acc(1, 7 + b, 2 * t + 1), a + 2, tb)
        o += [f"s_add_u32 s{sr}, s{S_HS}, {8192 * b + 2 * TBH * t}",
              f"v_permlane32_swap_b32 v{a}, v{a+2}", f"v_permlane32_swap_b32 v{a+1}, v{a+3}",
              f"buffer_store_dwordx4 v[{a}:{a+3}], v{VST}, {SW}, s{sr} offen sc1"]
        return [(x, b) for x in o]
    def p_store(p):
        o = []
        for t in range(2 if p >= 0 else 0):
            a = acc(2, 2 * p, t); b = acc(2, 2 * p + 1, t)
            o += [f"v_cvt_pk_bf16_f32 v{a}, v{a}, v{a+1}", f"v_cvt_pk_bf16_f32 v{a+1}, v{a+2}, v{a+3}",
                  f"v_cvt_pk_bf16_f32 v{a+2}, v{b}, v{b+1}", f"v_cvt_pk_bf16_f32 v{a+3}, v{b+2}, v{b+3}",
                  f"s_add_u32 s{S_C}, s{S_PS}, {8192 * t + p * 0x100000}",
                  f"buffer_store_dwordx4 v[{a}:{a+3}], v{VR}, {SW}, s{S_C} offen sc1"]
        return o
    cost = lambda s: 2 if s.startswith(("v_exp", "v_rcp", "v_permlane", "buffer_")) else 1

    published = npre - 1; r_id = {}; rp = 0; FL_AT = []; PE_AT = []; ready_b = -1; ready_at = 0
    while rp < RW - 2:
        r_id[rp] = k(rd(rp)); rp += 1
    seen = set(); epi = [[], []]; q = []; hold = 0; hst = {}; fl_due = {}; fl_next = 0; turn = 0
    last_st = {"h": None, "sh": None, "pf": None}; pend = {}; named = {}
    def emit_q():
        t_, c = q.pop(0)
        if c and c[0] == "L": k.wait(lg=named[c[1]])
        if c and c[0] == "Wv": k.wait(vm=w_id[c[1]])
        id_ = k(t_)
        if not c: return
        if c[0] == "V": record(c[1], id_)
        elif c[0] == "R": r_id[c[1]] = id_
        elif c[0] == "N": named[c[1]] = id_
        elif c[0] == "L": last_st["sh"] = id_
        elif c[0] in ("PF", "PG"): last_st["pf"] = id_
    for i, (kd, u, g) in enumerate(groups):
        NT = NTk[kd]
        if i == tail_start: stamp(7)
        if i == G2S: stamp(8); G2L = len(k.lines)
        if i == T2S and diag == 5: stamp(18)
        if i in bars:
            pub = bars[i]
            assert not any(it[1] == "W" and it[2] <= pub and ring[it[2]][0] not in ("SH", "S1") for it in items), (i, pub)
            while any(c and c[0] == "V" and c[1][1] == "W" and c[1][2] <= pub for _, c in q): emit_q()
            k.wait(vm=w_id[pub]); k("s_barrier"); published = max(published, pub)
        n = 0
        while rp < NGR and rp <= i + RW - 2 and stage_of(rp) <= published and n < 2:
            q.append((rd(rp), ("R", rp))); rp += 1; n += 1
        if items and items[0][0] <= tm[i]:
            it = items.pop(0); ls = lines(it)
            if it[1] == "T" and it[2][0] == 2 and it[2][1] < park:
                assert all((it[2][1] // 2, c_) in hst for c_ in (0, 1)), (i, it)
            q += [(x, None) for x in ls[:-1]] + [(ls[-1], ("V", it))]
        if P_SHR <= i < P_SHR + 16 and (i - P_SHR) % 4 == 0:
            assert not any(it[1] == "W" and ring[it[2]][0] == "SH" for it in items)
            p = (i - P_SHR) // 4
            base = (SH_POS % NS) * 16384
            for h in range(2):
                f = TMP + 8 + 4 * h; off = base + p * 64 + h * 8
                q.append((f"ds_read_b64_tr_b16 v[{f}:{f+1}], v{VS1} offset:{off}", ("Wv", SH_POS + 1)))
                q.append((f"ds_read_b64_tr_b16 v[{f+2}:{f+3}], v{VS1} offset:{off + 2048}", ("N", (p, h))))
        if P_SHR + 2 <= i < P_SHR + 18 and (i - P_SHR) % 4 == 2:
            p = (i - P_SHR) // 4
            q.append((f"s_add_u32 s{S_D}, s{S_D}, s60" if p else f"s_mov_b32 s{S_D}, s{S_SHD}", None))
            for h in range(2):
                f = TMP + 8 + 4 * h
                q.append((f"buffer_store_dwordx4 v[{f}:{f+3}], v{VR}, {SX}, s{S_D} offen offset:{(2048 if chain else 1024)*h} sc1", ("L", (p, h))))
        if ct and i in CT_AT:
            j = CT_AT.index(i)
            q += [(f"v_lshlrev_b32 v{TMP+13}, 3, v{VR}", None), (f"s_mov_b32 s{S_SP}, L_ct{j}-L_body", None),
                  (f"buffer_load_dword v{TMP+14}, v{TMP+13}, s[80:83], s{S_SP} offen", None)]
        if i in CT_LAB: k.label(f"L_ct{CT_LAB.index(i)}")
        if i == P_SH_END + 12:
            k.wait(vm=last_st["sh"]); k(f"s_mov_b64 exec, 1\nbuffer_store_dword v{VTAG}, off, {SX}, s{S_FW2_P} sc1\ns_mov_b64 exec, -1")
        PFR, PFS = (TMP, S_C) if pf_at < GPB else (TMP + 8, S_D)
        if i == P_PF: q += [(f"v_mov_b32 v{PFR+e}, -1", None) for e in range(4)]
        arm = list(range(0 if sent else 4, 8))
        if P_PF <= i < P_PF + len(arm) * pf_step and (i - P_PF) % pf_step == 0:
            t = arm[(i - P_PF) // pf_step]
            q += [(f"s_add_u32 s{PFS}, s{S_PS}, {8192 * (t & 1) + (t >> 1) * 0x100000}", None),
                  (f"buffer_store_dwordx4 v[{PFR}:{PFR+3}], v{VR}, {SW}, s{PFS} offen sc1", ("PF" if PFR == TMP else "PG",))]
        TW_AT = P_PW2 + chk + 4
        if TW_AT <= i < TW_AT + tw * tw_step and (i - TW_AT) % tw_step == 0:
            j = (i - TW_AT) // tw_step
            q += [(f"v_lshlrev_b32 v{TMP+13}, 3, v{VR}", None), (f"s_add_u32 s{S_SP}, s91, {tw0 * 1024 + j * 131072}", None),
                  (f"buffer_load_dword v{TMP+14}, v{TMP+13}, {SW}, s{S_SP} offen", None)]
        if sent and i == P_PF + 8 * pf_step + 30: named["pe"] = (0, last_st["pf"])
        if sent and i == P_PPF - 8: q += [(f"v_and_b32 v{TMP+13}, 60, v{VF}", None), (f"v_lshlrev_b32 v{TMP+13}, 5, v{TMP+13}", None)]
        if not sent and i == NGR - pe_back - 8:
            q += [(f"v_and_b32 v{TMP+13}, 60, v{VF}", None), (f"v_lshlrev_b32 v{TMP+13}, 5, v{TMP+13}", None)]
        if not sent and i == NGR - pe_back: q.append((poll_load(S_FPF_C), ("N", "pe_ld")))
        if "pe" in named and tm[i] >= named["pe"][0]:
            k.wait(vm=named.pop("pe")[1])
            k(flag_store(S_FPF_P)); k(f"s_add_u32 s{S_FPF_P}, s{S_FPF_P}, 0x20000")
            PE_AT.append(i)
        if fl_next in fl_due and tm[i] >= fl_due[fl_next][0]:
            if diag == 4: stamp(12 + 2 * fl_next)
            k.wait(vm=fl_due[fl_next][1])
            if diag == 4: stamp(13 + 2 * fl_next)
            k(flag_store(S_FH_P)); k(f"s_add_u32 s{S_FH_P}, s{S_FH_P}, 0x4000")
            FL_AT.append(i); fl_next += 1
        polls = [(P_PW1, S_FW1_C, "w1", 1), (P_PW2, S_FW2_C, 56, 1)] + [(P_PH[j], S_FH_C, 16, j + 1) for j in range(4)] + [(P_PPF if sent else -100, S_FPF_C, 16, 1), (P_PX, S_FXN_C, 8, 1), (P_PH[4], S_FH_C, 16, 5)]
        for z, (pos, soff, n_, lvl) in enumerate(polls):
            if i == pos: pend[pos] = k(poll_load(soff))
            if i == pos + CHK[kd] and pos in pend:
                if z >= 7: z += 1
                if diag == 3: stamp(12 + 2 * z)
                poll_check(pend.pop(pos), soff, n_, lvl)
                if soff == S_FH_C: k(f"s_add_u32 s{S_FH_C}, s{S_FH_C}, 0x4000")
                if diag == 3: stamp(13 + 2 * z)
        if tail_start + GPB <= i <= G2S and (i - tail_start) % GPB == 0:
            b = (i - tail_start) // GPB - 1
            assert not any(c_ and c_[0] == "PF" for _, c_ in q)
            if not epi[0] and not epi[1]: hold = 4
            for t in range(2): epi[t] += epilogue(b, t)
            ready_b = b; ready_at = tm[i] + 4
        if i > T2S and (i - T2S) % (2 * KT2) == 4:
            assert fl_next == 5 and not epi[0]
            pp_ = (i - T2S) // (2 * KT2) - 1
            epi[0] += [(x, 100 + pp_) for x in p_store(pp_)]
        if i == G2S: assert all(x[1] >= 4 for c_ in epi for x in c_)
        def waits(i, kd, u, t):
            if i not in r_id or ((kd, u), t) not in t_id: return None
            lgw = r_id[i]
            if lgw > k.lg_done:
                for j in range(1, wgran):
                    if i + j in r_id and k.nlg - r_id[i + j] >= 2: lgw = r_id[i + j]
            vmw = t_id[((kd, u), t)]
            if vmw > k.vm_done and i > 28 and ((kd, u), NTk[kd] - 1) in t_id: vmw = t_id[((kd, u), NTk[kd] - 1)]
            return vmw, lgw
        def pick(i, j):
            if not chain: return i, j
            m = (i & 1) * NTk[groups[i][0]] + j
            n, e = m >> 1, m & 1
            if zig:
                e ^= n & 1
                if (i >> 1) & 1: n = NTk[groups[i][0]] - 1 - n
            return (i & ~1) + e, n
        def waits2(i, j):
            gi, tt = pick(i, j)
            return waits(gi, groups[gi][0], groups[gi][1], tt)
        for t in range(NT):
            while waits2(i, t) is None: emit_q()
            vmw, lgw = waits2(i, t)
            k.wait(vm=vmw, lg=lgw)
            gi, tt = pick(i, t)
            a = acc(kd, g, tt)
            c = f"v[{a}:{a+3}]" if (kd, g, tt) in seen else "0"
            seen.add((kd, g, tt))
            at = AT(kd, groups[gi][1], tt)
            k(f"v_mfma_f32_16x16x32_bf16 v[{a}:{a+3}], a[{AW(gi)}:{AW(gi)+3}], {at}, {c}")
            budget = 2 if kd == 1 else b2
            if len(epi[0]) + len(epi[1]) > thr and (tm[i] + t) % 2 == 0: budget += 1
            if t + 1 < NT: nw = waits2(i, t + 1)
            elif i + 1 < NGR:
                nw = waits2(i + 1, 0)
                if i + 1 in bars: budget -= 1
            else: nw = (0, 0)
            if nw is None or nw[0] > k.vm_done or nw[1] > k.lg_done: budget -= 1
            used = 0
            while q and used < 2:
                mem = q[0][0].startswith(("ds_", "buffer_"))
                c_ = cost(q[0][0])
                if (mem and used) or (c_ > budget and not (len(q) > 5 and used == 0)): break
                if used and len(q) <= NT - t: break
                emit_q(); budget -= c_; used += 1
            while budget > 0:
                ok = [c_ for c_ in (turn, 1 - turn) if epi[c_] and cost(epi[c_][0][0]) <= budget
                      and not (epi[c_][0][1] == ready_b and tm[i] + t < ready_at)]
                if not ok: break
                big = [c_ for c_ in ok if cost(epi[c_][0][0]) == 2]
                c_ = big[0] if big else ok[0]
                if abs(len(epi[c_]) - len(epi[1 - c_])) > 24 and len(epi[c_]) < len(epi[1 - c_]):
                    if 1 - c_ in ok: c_ = 1 - c_
                    else: break
                x, b = epi[c_].pop(0); budget -= cost(x); turn = 1 - c_
                id_ = k(x)
                if b == 101 and not epi[0] and not sent: named["pe"] = (tm[i] + t + pe_lag, id_)
                if x.startswith("buffer_store") and b < 7:
                    hst[(b, c_)] = id_
                    if b in PH_B and (b, 0) in hst and (b, 1) in hst:
                        fl_due[PH_B.index(b)] = (tm[i] + t + fl_lag, id_)
    while epi[0] and epi[0][0][1] == 102: k(epi[0].pop(0)[0])
    assert len(PE_AT) == 1
    assert not items and not epi[0] and not epi[1] and not q and not pend and fl_next == 5
    assert all(tm[f] + 60 < tm[p] for f, p in zip(FL_AT, P_PH)), (FL_AT, P_PH)
    k.info = dict(pe=(PE_AT, NGR), minsl=[(int(a_), b_) for a_, b_ in MINSL], flags=FL_AT, polls=P_PH, slack=[tm[p] - tm[f] for f, p in zip(FL_AT, P_PH)])
    if abl:
        keep = []
        for l in k.lines[G2L:]:
            x = l.strip()
            if "T" in abl and x.startswith("buffer_load_dwordx4 a["): continue
            if "W" in abl and x.endswith(" lds"): continue
            if "D" in abl and x.startswith("ds_read_b128"): continue
            if "B" in abl and x == "s_barrier": continue
            if "V" in abl and x.startswith(("v_mul", "v_fmaak", "v_exp", "v_rcp", "v_add_f32")): continue
            keep.append(l)
        k.lines[G2L:] = keep
    stamp(9)
    PP = 160
    for x in p_store(3): k(x)
    if not sent:
        pe_ld = named["pe_ld"]
        k(flag_store(S_FPF_P)); k(f"s_add_u32 s{S_FPF_P}, s{S_FPF_P}, 0x20000")
    VRL = TMP + 15
    k(f"s_lshl_b32 s{S_B}, s{S_LAY}, 23\ns_add_u32 s{S_B}, s{S_B}, s{S_ROWL}")
    k(f"v_lshrrev_b32 v{TMP+14}, 12, v{VROW}\nv_and_b32 v{VRL}, 0x3ff, v{VROW}\nv_lshl_add_u32 v{VRL}, v{TMP+14}, 10, v{VRL}")
    def p_loads(which):
        def f():
            for i in which:
                for j in range(2):
                    r = PP + 8 * i + 4 * j
                    k(f"s_add_u32 s{S_C}, s{S_B}, {WS_P + j*MB4 + i*0x100000}")
                    x = k(f"buffer_load_dwordx4 v[{r}:{r+3}], v{VRL}, {SW}, s{S_C} offen sc1")
            return x
        return f
    def add_p(which):
        for i in which:
            for e in range(8 * i, 8 * i + 8, 2):
                for j in range(2):
                    r = PP + 8 * i + 4 * j + (e % 8) // 2
                    unpk(k, T + 2 * j, r, 0); unpk(k, T + 2 * j + 1, r, 1)
                k(f"v_pk_add_f32 v[{T}:{T+1}], v[{T}:{T+1}], v[{T+2}:{T+3}]")
                k(f"v_pk_add_f32 v[{X+e}:{X+e+1}], v[{X+e}:{X+e+1}], v[{T}:{T+1}]")
                k(f"v_cvt_pk_bf16_f32 v{XP+e//2}, v{X+e}, v{X+e+1}")
                unpk(k, X + e, XP + e // 2, 0); unpk(k, X + e + 1, XP + e // 2, 1)
    if not sent:
        if diag == 5: stamp(12)
        poll_check(pe_ld, S_FPF_C, 16)
        if diag == 5: stamp(13)
        e_ld = p_loads((0, 1))()
        k(f"s_add_u32 s{S_FPF_C}, s{S_FPF_C}, 0x20000")
        row_addr()
        for i in range(4): k(f"ds_read_b128 v[{XP+4*i}:{XP+4*i+3}], v{AL} offset:{16384 + 4096*i}")
        for i in range(4): k(f"ds_read_b128 v[{YP+4*i}:{YP+4*i+3}], v{AL} offset:{4096*i}")
        pl_ld = k(poll_load(S_FPF_C))
        k("s_waitcnt lgkmcnt(0)")
        unpack(X, XP)
        if diag == 5: stamp(14)
        poll_check(pl_ld, S_FPF_C, 16)
        if diag == 5: stamp(15)
        k(f"s_add_u32 s{S_FPF_C}, s{S_FPF_C}, 0x20000")
        def mid():
            k("s_barrier")
            add_p((0, 1)); unpack(Yf, YP)
            if diag == 5: stamp(16)
        sentinel_loop("L_ppoll", p_loads((2, 3)), range(PP + 16, PP + 32), mid)
    else:
        if diag == 5: stamp(12); stamp(13)
        k(f"s_add_u32 s{S_FPF_C}, s{S_FPF_C}, 0x20000")
        def first():
            row_addr()
            for i in range(4): k(f"ds_read_b128 v[{XP+4*i}:{XP+4*i+3}], v{AL} offset:{16384 + 4096*i}")
            for i in range(4): k(f"ds_read_b128 v[{YP+4*i}:{YP+4*i+3}], v{AL} offset:{4096*i}")
            k("s_waitcnt lgkmcnt(0)\ns_barrier")
            unpack(X, XP); unpack(Yf, YP)
            if diag == 5: stamp(14)
        if ord2:
            sentinel_loop("L_ppoll2", p_loads((0, 1, 2)), range(PP, PP + 24), first)
            if diag == 5: stamp(15)
            sentinel_loop("L_ppoll", p_loads((3,)), range(PP + 24, PP + 32), lambda: add_p((0, 1, 2)))
        else:
            p_loads((0, 1, 2))()
            first()
            sentinel_loop("L_ppoll", p_loads((3,)), range(PP + 24, PP + 32))
            if diag == 5: stamp(15)
            sentinel_loop("L_ppoll2", p_loads((0, 1, 2)), range(PP, PP + 24), skip_first=True)
        if diag == 5: stamp(16)
    stamp(10)
    k(f"s_cmp_lg_u32 s{S_LAY}, 0\ns_cbranch_scc1 L_final")
    def tail_math():
        add_p((2, 3) if not sent else (3,) if ord2 else (0, 1, 2, 3)); stats(0)
    weave(tail_math, range(7), 200)
    stamp(11)
    if diag: k(f"v_mov_b32 v{VSTAMP-1}, v{VSTAMP}")
    k(f"""
    s_mov_b32 s{S_LAY}, 1
    s_mov_b32 s26, 0
    s_mov_b32 s30, 0
    s_add_u32 s{S_XN}, s{S_XN}, {MB4}
    s_add_u32 s{S_HL}, s{S_HL}, {H_STRIDE}
    s_add_u32 s{S_HS}, s{S_HS}, {H_STRIDE}
    s_add_u32 s{S_PS}, s{S_PS}, {2*MB4}
    s_add_u32 s{S_FXN_P}, s{S_FXN_P}, 0x4000
    s_add_u32 s{S_FXN_C}, s{S_FXN_C}, 0x4000
    s_branch L_layer
    """)
    k.label("L_final")
    add_p((2, 3) if not sent else (3,) if ord2 else (0, 1, 2, 3))
    k(f"s_or_b32 s16, s2, s17\ns_cbranch_scc1 L_noepoch\ns_add_u32 s87, s87, 1\nv_mov_b32 v{VP}, s87\ns_mov_b32 s16, {WS_FLAG + F_EPOCH}")
    k(f"s_mov_b64 exec, 1\nbuffer_store_dword v{VP}, off, {SW}, s16 sc1\ns_mov_b64 exec, -1")
    k.label("L_noepoch")
    srd(k, 32, 6, MB4)
    for i in range(4): k(f"buffer_store_dwordx4 v[{XP+4*i}:{XP+4*i+3}], v{AO}, s[32:35], s{S_ROWY} offen offset:{64*i} {outm}")
    if diag:
        k("s_waitcnt vmcnt(0)"); stamp(11)
        if diag == 7:
            k(f"s_cmp_lg_u32 s2, {dbg_wg}\ns_cbranch_scc1 L_nodbg\ns_cmp_lg_u32 s17, 0\ns_cbranch_scc1 L_nodbg")
            k(f"s_load_dwordx2 s[32:33], s[0:1], {ARG['dbg']}\nv_readlane_b32 s12, v{VSTAMP}, 12\nv_mov_b32 v8, 0")
            sel = [(1, x) for x in (26, 27, 1, 2, 3, 4, 5, 6, 7, 8, 9, 10)] + [(0, x) for x in (6, 8, 9, 11)]
            for n_, (w_, x) in enumerate(sel):
                k(f"v_readlane_b32 s13, v{VSTAMP - w_}, {x}\ns_nop 3\ns_sub_u32 s13, s13, s12\nv_writelane_b32 v8, s13, {n_}")
            k(f"s_waitcnt lgkmcnt(0)\ns_mov_b32 s34, 64\ns_mov_b32 s35, 0x20000\nbuffer_store_dword v8, v{VF}, s[32:35], 0 offen")
            k.label("L_nodbg")
        k(f"s_lshl_b32 s12, s2, 11\ns_lshl_b32 s13, s17, 9\ns_add_u32 s12, s12, s13\ns_add_u32 s12, s12, 0x8100000")
        k(f"buffer_store_dword v{VSTAMP-1}, v{VF}, {SW}, s12 offen\nbuffer_store_dword v{VSTAMP}, v{VF}, {SW}, s12 offen offset:256")
    k("s_endpgm")
    for lab, pre_, body in slow:
        k.label(lab); k("\n".join(pre_))
        k.label(lab + "_l"); k("\n".join(body)); k(f"s_cbranch_scc1 {lab}_l")
        k.label(lab + "_out"); k(f"s_waitcnt vmcnt(0)\ns_branch {lab}_ok")
    k.label("L_end"); k("s_endpgm")
    return (k, 512, 256), (k.name, 256, 256, 163840)

HEADER = open("interleave_layers__ssm_conv_h3__glu_gated_geglu__prompt.s.ref").read().split("; Override launch")[0]

def build(path, stamps=False, as_list=True, hpad=0, wpad=0, **kw):
    global TBH, W1T, W2T
    TBH = 224 * 512 + hpad; W1T = 448 + wpad; W2T = 448 + wpad
    asmlib.STAMPS[0] = stamps
    kk, l = gen_mega(**kw)
    txt = module(HEADER, [l], [kk])
    if not as_list: txt = txt.replace(f"; @launch kernel={l[0]} ", "; @launch ")
    txt = "\n".join(x.strip() if x.startswith("    ") else x for x in txt.split("\n"))
    open(path, "w").write(txt)
    return len(kk[0].lines), kk[0].padded, kk[0].info

if __name__ == "__main__":
    print(build("v13.s")); build("v13s.s", stamps=True); build("v13f.s", stamps=3)
```

```python
import v10, v11, v12, v13
v10.build("o_0.s", as_list=False, cchain=False, thr=170)
v11.build("o_1.s", as_list=False, q_at=2, q_step=6)
v12.build("o_2.s", as_list=False, cchain=True)
v13.build("o_3.s", as_list=False)
v12.build("o_4.s", as_list=False, cchain=True, sh_pos=10, shr=165, sh_lead=60)
v12.build("o_5.s", as_list=False, cchain=True, npre=4, wsteps=(0,0,0,0,0,0,0,0,1,1,1,1,1,1,1,2), thr=150, free_at=(326, 358, 390, 420), ph0=386, ph_back=(110, 130, 130, 110))
```

```python
import math, struct, sys
import asmlib
from asmlib import *

MB4 = 0x400000
WS_TOTAL = 0x10000000
WS_Y, WS_KV = 0x0, 0x400000
WS_XN = 0x900000
WS_P = 0x5400000
WS_H = 0x1200000
H_STRIDE = 0x1000000
WS_W1, WS_W2, WS_FLAG = 0x3200000, 0x4200000, 0x5200000
WS_PL = 0x9000000
F_W0 = 0x14000
F_PE = 0x80000
W1T, W2T = 448, 448
F_W1, F_W2, F_PF, F_H, F_XN, F_KV, F_ARM, F_EPOCH = 0x0, 0x1000, 0x2000, 0x20000, 0x8000, 0x100000, 0x11000, 0x12000
H_BYTES = 2048 * 3584 * 2
W_BYTES = 1024 * 3584 * 2
TBH = 224 * 512
ARG = dict(q=0, k=8, v=16, shift=24, ssm=32, D=40, wg=56, wu=64, wd=72, out=80, dbg=88, ws=96)
lg = lambda x: x.bit_length() - 1
f32bits = lambda x: struct.unpack("<I", struct.pack("<f", x))[0]
SPIN = 0x20000

def srd(k, d, base, nbytes, off=0):
    if off: k(f"s_add_u32 s{d}, s{base}, {off:#x}\ns_addc_u32 s{d+1}, s{base+1}, 0")
    else: k(f"s_mov_b32 s{d}, s{base}\ns_mov_b32 s{d+1}, s{base+1}")
    k(f"s_mov_b32 s{d+2}, {nbytes:#x}\ns_mov_b32 s{d+3}, 0x20000")

def unpk(k, dst, src, hi):
    k(f"v_and_b32 v{dst}, 0xffff0000, v{src}" if hi else f"v_lshlrev_b32 v{dst}, 16, v{src}")

def touch_code(k, first, last, vaddr, vdst, sb, v0=0, n=1, step=32768):
    k.nl += 1
    here = f"L_{k.name}_pc{k.nl}"
    k(f"s_getpc_b64 s[{sb}:{sb+1}]")
    k.label(here)
    k(f"""
    s_add_u32 s{sb}, s{sb}, {first}-{here}
    s_addc_u32 s{sb+1}, s{sb+1}, 0
    s_mov_b32 s{sb+2}, {last}-{first}
    s_mov_b32 s{sb+3}, 0x20000
    v_lshlrev_b32 v{vaddr}, 7, v{v0}
    """)
    for i in range(n):
        if i: k(f"v_add_u32 v{vaddr}, {step}, v{vaddr}")
        k(f"buffer_load_dword v{vdst}, v{vaddr}, s[{sb}:{sb+3}], 0 offen")

CS = 4160; XS = 4640; CH_LDS = 4 * CS + 2 * XS; CONV_LDS = 4 * CH_LDS
NS = 8; RW = 8
LDS_Y, LDS_XR, LDS_ST = 131072, 147456, 131072 - 512
S_LAY, S_WAVE, S_WS = 3, 17, 8
SW = "s[20:23]"; SD = "s[24:27]"; SX = "s[28:31]"
(S_M0, S_W1, S_W2, S_XN, S_HL, S_HS, S_PS, S_ROWF, S_ROWY, S_FH_P, S_FH_C, S_FW2_P, S_FW2_C, S_FPF_P, S_FPF_C,
 S_FXN_P, S_FXN_C, S_SHA, S_SHB, S_SHD, S_HS6) = range(36, 57)
S_FW1_C = 19
S_PL, S_ROWL, S_TAG16, S_MSK = 56, 88, 89, 90
S_N = 68
S_DMA, S_SP, S_T = 57, 58, 10
S_A, S_B, S_C, S_D, S_E = 14, 15, 16, 18, 59
VR, VD, VST, VC2, VF, VTID, VS0, VS1, VROW, VP, VF16 = 224, 226, 227, 228, 229, 230, 231, 232, 233, 234, 235
TMP = 236
VTAG = 253
VSTAMP = 255

def gen_mega(KT=14, la_bar=5, la1=260, rate1=0.175, la2=96, rate2=0.225, wgran=2, rep=4, nap=0, q_step=6, r1_step=6, arm_step=6, npre=4, npre2=7, w0_at=3, sh_step=4, chain=True, bper=2, zig=True, cchain=True, nx=0, e_mid=False, arm4=True, lean=False, hre=False, hmod='sc1', tmod='sc1', wmod='sc1', rw=8, tlb=0, tlb_n=4, tr0=0, tr_step=16, sh_gap=4, nx_gap=6, wsw=True,  wsteps=(0, 0, 0, 0, 0, 0, 0, 0, 1, 1, 1, 1, 1, 1, 1, 2), a_step=3, sh_pos=17, shr=258, sh_lead=100, pw2=336, ord2=True, swz=4, kvnt='', qnt='', hnt='', dnt='', outm='nt', dbg_wg=77, now=0, wnt='', ct=True, pnap=0, ph_back=(110, 130, 130, 120), b2=3, fl_lag=48, thr=150, chk=10, pf_step=4, pf_at=44, pe_back=6, sent=True, park=8, free_at=(326, 358, 390, 420), ph0=386, tw=0, tw0=96, tw_step=8, pe_lag=32, rmax=0.2, rmax2=0.25, w1_step=1, w1s=2, E=2, e_late=True, KT2=16, abl=""):
    k = K("interleave_layers__ssm_conv_h3__glu_gated_geglu__prompt_kernel")
    diag = asmlib.STAMPS[0]
    RW = rw; assert 4 * RW + 16 * KT <= 256
    def stamp(i):
        if diag:
            k(f"s_memrealtime s[64:65]\ns_memtime s[66:67]\ns_waitcnt lgkmcnt(0)\nv_writelane_b32 v{VSTAMP}, s64, {i}\nv_writelane_b32 v{VSTAMP}, s66, {32 + i}")
    slow = []
    def poll_load(soff, width=1):
        if width == "w0": return f"buffer_load_dwordx2 v[{TMP}:{TMP+1}], v{TMP+13}, {SW}, s{soff} offen sc1"
        if width == "arm": return f"buffer_load_dwordx4 v[{TMP}:{TMP+3}], v{VR}, {SW}, s{soff} offen sc1"
        va = VF if soff in (S_FW1_C, S_FW2_C) else TMP + 13 if soff in (S_FPF_C, S_FKV) else VF16
        return f"buffer_load_dword v{VP}, v{va}, {SW}, s{soff} offen sc1"
    def poll_test(n, width, soff):
        if n == "w0":
            return [f"v_xor_b32 v{TMP}, v{TMP}, v{VTAG}", f"v_xor_b32 v{TMP+1}, v{TMP+1}, v{VTAG}", f"v_or_b32 v{VP}, v{TMP}, v{TMP+1}",
                    f"v_cmp_ne_u32 vcc, 0, v{VP}", f"s_or_b32 s{S_A}, vcc_lo, vcc_hi", f"s_and_b32 s{S_A}, s{S_A}, {(1 << (32 - KT)) - 1:#x}"]
        if n == "arm":
            o = [f"v_xor_b32 v{TMP+i}, v{TMP+i}, v{VTAG}" for i in range(4)]
            o += [f"v_or3_b32 v{VP}, v{TMP}, v{TMP+1}, v{TMP+2}", f"v_or_b32 v{VP}, v{VP}, v{TMP+3}", f"v_cmp_ne_u32 vcc, 0, v{VP}"]
            n = 64
        else: o = [f"v_cmp_ne_u32 vcc, v{VTAG}, v{VP}"]
        if n == "w1": o += [f"s_or_b32 s{S_A}, vcc_lo, vcc_hi", f"s_and_b32 s{S_A}, s{S_A}, {(1 << 28) - 1:#x}"]
        elif n <= 32: o.append(f"s_and_b32 s{S_A}, vcc_lo, {(1 << n) - 1:#x}")
        elif n < 64: o += [f"s_and_b32 s{S_A}, vcc_hi, {(1 << (n - 32)) - 1:#x}", f"s_or_b32 s{S_A}, s{S_A}, vcc_lo"]
        else: o.append(f"s_or_b32 s{S_A}, vcc_lo, vcc_hi")
        return o
    def poll_check(ld, soff, n, width=1):
        k.nl += 1; lab = f"L_poll{k.nl}"
        k.wait(vm=ld)
        k("\n".join(poll_test(n, width, soff)) + f"\ns_cbranch_scc1 {lab}")
        k.label(lab + "_ok")
        slow.append((lab, [f"s_mov_b32 s{S_SP}, {SPIN}"], ([f"s_sleep {nap}"] if nap else []) + [poll_load(soff, n if n in ("arm", "w0") else width), f"s_sub_u32 s{S_SP}, s{S_SP}, 1", f"s_cbranch_scc1 {lab}_out",
                    "s_waitcnt vmcnt(0)"] + poll_test(n, width, soff)))
    def flag_store(soff):
        if soff in (S_FPF_P, 78):
            return f"s_mov_b32 exec_hi, 0\nbuffer_store_dword v{VTAG}, v{VF16}, {SW}, s{soff} offen sc1\ns_mov_b32 exec_hi, -1"
        return f"s_mov_b64 exec, 1\nbuffer_store_dword v{VTAG}, off, {SW}, s{soff} sc1\ns_mov_b64 exec, -1"

    c1 = -2 * math.sqrt(2 / math.pi) * math.log2(math.e)
    k("s_cmp_ge_u32 s2, 256\ns_cbranch_scc1 L_end")
    S_FKV = 69
    if diag == 7: k(f"v_mov_b32 v{VSTAMP}, 0"); stamp(12)
    k(f"""
    s_load_dwordx4 s[72:75], s[0:1], {ARG['k']}
    s_load_dwordx2 s[8:9], s[0:1], {ARG['ws']}
    s_load_dwordx2 s[76:77], s[0:1], {ARG['shift']}
    s_load_dwordx4 s[4:7], s[0:1], {ARG['ssm']}
    s_load_dwordx4 s[96:99], s[0:1], {ARG['wg']}
    s_load_dwordx2 s[100:101], s[0:1], {ARG['q']}
    s_and_b32 s59, s2, 7
    s_lshr_b32 s60, s2, 3
    s_lshl_b32 s16, s60, 4
    v_and_b32 v3, 15, v0
    v_add_u32 v3, s16, v3
    """)
    touch_code(k, "L_body", "L_end", 4, 51, 80, v0=3)
    k.label("L_body")
    GS = 1056; KB = CONV_LDS; VB = KB + 17 * GS
    k(f"""
    v_lshrrev_b32 v1, 6, v0
    v_and_b32 v2, 63, v0
    v_readfirstlane_b32 s17, v1
    s_lshl_b32 s61, s59, 5
    s_add_u32 s61, s61, s60
    s_and_b32 s16, s61, 15
    s_lshl_b32 s16, s16, 18
    s_lshr_b32 s18, s61, 4
    s_lshl_b32 s18, s18, 7
    s_add_u32 s16, s16, s18
    v_lshrrev_b32 v3, 3, v2
    v_lshlrev_b32 v3, 11, v3
    v_and_b32 v7, 7, v2
    v_lshl_add_u32 v3, v7, 4, v3
    v_add_u32 v3, s16, v3
    v_subrev_u32 v8, 0x4000, v3
    s_lshl_b32 s84, s17, 16
    s_mul_i32 s85, s17, {4*GS}
    s_and_b32 s16, s61, 0xf0
    v_bfe_u32 v49, v0, 3, 3
    v_lshrrev_b32 v9, 7, v0
    v_lshl_add_u32 v49, v9, 3, v49
    v_add_u32 v9, s16, v49
    v_lshlrev_b32 v7, 5, v9
    """)
    if diag and diag != 7: k(f"v_mov_b32 v{VSTAMP}, 0")
    k("s_waitcnt lgkmcnt(0)")
    srd(k, 24, 72, MB4); srd(k, 28, 74, MB4); srd(k, 32, 76, 8192)
    k(f"s_mov_b32 m0, {KB}\ns_nop 0\nbuffer_load_dwordx4 v8, s[24:27], 0 offen {kvnt} lds")
    for base, sr in ((KB + GS, "s[24:27]"), (VB, "s[28:31]")):
        for j in range(4):
            k(f"s_add_u32 m0, s85, {base + j*GS}\ns_add_u32 s16, s84, {j*16384}")
            k(f"buffer_load_dwordx4 v3, {sr}, s16 offen {kvnt} lds")
    k("buffer_load_dwordx4 v[108:111], v7, s[32:35], 0 offen")
    lkv = k("buffer_load_dwordx4 v[112:115], v7, s[32:35], 0 offen offset:16")
    stamp(0)
    k(f"s_add_u32 s70, s8, {WS_FLAG + F_EPOCH}\ns_addc_u32 s71, s9, 0\ns_load_dword s87, s[70:71], 0")
    srd(k, 20, 8, WS_TOTAL); srd(k, 28, 8, WS_TOTAL)
    KM = 32 - KT
    k(f"""
    s_mov_b32 s{S_LAY}, 0
    v_mov_b32 v{VTID}, v0
    v_lshlrev_b32 v{VR}, 4, v2
    s_lshl_b32 s18, s61, 2
    s_add_u32 s18, s18, s17
    s_mul_i32 s62, s17, {CH_LDS}
    s_lshl_b32 s16, s18, 12
    s_add_u32 s64, s4, s16
    s_addc_u32 s65, s5, 0
    s_add_u32 s16, s16, {WS_KV}
    s_add_u32 s72, s8, s16
    s_addc_u32 s73, s9, 0
    s_mov_b32 s74, 4096
    s_mov_b32 s75, 0x20000
    s_and_b32 s16, s18, 0xfffffffe
    s_lshl_b32 s16, s16, 1
    s_add_u32 s6, s6, s16
    s_addc_u32 s7, s7, 0
    s_mov_b32 s24, s64
    s_mov_b32 s25, s65
    s_mov_b32 s26, 4096
    s_load_dword s63, s[6:7], 0
    s_load_dwordx4 s[4:7], s[0:1], {ARG['wd']}
    s_mov_b32 s84, 4096
    s_mov_b32 s85, 8192
    s_mov_b32 s86, 12288
    v_and_b32 v48, 7, v0
    v_bfe_u32 v10, v0, 6, 1
    v_lshl_add_u32 v48, v10, 3, v48
    v_mul_u32_u24 v52, {GS}, v48
    v_lshl_add_u32 v52, v49, 3, v52
    v_add_u32 v52, {KB}, v52
    s_and_b32 s16, s61, 15
    s_lshl_b32 s16, s16, 4
    v_add_u32 v48, s16, v48
    v_sub_u32 v50, 255, v48
    v_lshlrev_b32 v50, 4, v50
    v_lshl_add_u32 v50, v9, 14, v50
    v_add_u32 v50, {WS_KV}, v50
    s_lshr_b32 s32, s59, 1
    s_lshl_b32 s32, s32, 2
    s_and_b32 s33, s60, 3
    s_add_u32 s32, s32, s33
    s_and_b32 s33, s59, 1
    s_lshr_b32 s34, s60, 2
    s_lshl_b32 s35, s33, 3
    s_add_u32 s35, s35, s34
    s_lshl_b32 s19, s32, 4
    s_add_u32 s19, s19, s35
    s_lshl_b32 s{S_ROWY}, s19, 14
    s_lshr_b32 s45, s19, 1
    s_lshl_b32 s45, s45, 15
    s_and_b32 s16, s19, 1
    s_lshl_b32 s16, s16, 7
    s_add_u32 s45, s45, s16
    s_and_b32 s16, s17, 1
    s_lshl_b32 s16, s16, 11
    s_add_u32 s45, s45, s16
    s_lshr_b32 s16, s17, 1
    s_lshl_b32 s16, s16, 22
    s_add_u32 s45, s45, s16
    s_add_u32 s45, s45, {WS_XN}
    v_and_b32 v8, 7, v0
    v_lshrrev_b32 v9, 3, v2
    v_lshlrev_b32 v15, 4, v8
    v_lshl_add_u32 v15, v9, 8, v15
    v_lshrrev_b32 v9, 3, v0
    v_and_b32 v13, 3, v9
    v_lshrrev_b32 v9, 2, v9
    v_lshl_add_u32 v9, v9, 4, v13
    v_lshlrev_b32 v53, 11, v8
    v_lshl_add_u32 v53, v9, 4, v53
    v_lshlrev_b32 v{VROW}, 4, v8
    v_lshl_add_u32 v{VROW}, v9, 8, v{VROW}
    v_mov_b32 v16, -1
    v_mov_b32 v17, -1
    v_mov_b32 v18, -1
    v_mov_b32 v19, -1
    v_lshlrev_b32 v14, 4, v0
    v_and_b32 v61, 15, v2
    v_lshrrev_b32 v62, 4, v2
    v_lshlrev_b32 v63, 2, v61
    v_lshl_add_u32 v63, v62, 4, v63
    v_mul_u32_u24 v54, 7168, v62
    v_lshlrev_b32 v13, {1 if wsw else 8}, v62
    v_and_b32 v13, 15, v13
    v_xor_b32 v13, v13, v61
    v_lshl_add_u32 v20, v13, 4, v54
    v_xor_b32 v13, {8 if wsw else 0}, v13
    v_lshl_add_u32 v58, v13, 4, v54
    v_mov_b32 v54, v20
    s_lshl_b32 s11, s17, 13
    s_add_u32 s11, s11, {CONV_LDS}
    """)
    assert E <= 4
    so = ["0", "s84", "s85", "s86"]
    A = lambda buf, p: 64 + buf * 64 + 4 * p
    B = lambda buf, j: 96 + buf * 64 + 4 * j
    AD = 40; HR = 192; QP = 20
    for w in range(4): k(f"v_subrev_u32 v{4+w}, {60-4*w}, v63")
    k("s_waitcnt lgkmcnt(0)")
    k(f"""
    v_and_b32 v8, 3, v61
    v_mul_u32_u24 v8, {CS}, v8
    v_lshrrev_b32 v9, 2, v61
    v_add_u32 v9, v9, v62
    v_lshl_add_u32 v56, v9, 4, v8
    v_add_u32 v56, s62, v56
    v_lshrrev_b32 v8, 3, v61
    v_mul_u32_u24 v9, {XS}, v8
    v_and_b32 v10, 7, v61
    v_lshlrev_b32 v13, 6, v10
    v_sub_u32 v9, v9, v13
    v_lshl_add_u32 v9, v62, 4, v9
    v_add_u32 v9, {4*CS + 4032 - 3584}, v9
    v_add_u32 v57, s62, v9
    v_lshrrev_b32 v13, 1, v10
    v_xor_b32 v13, v13, v62
    v_lshl_add_u32 v13, v10, 2, v13
    v_lshlrev_b32 v13, 4, v13
    v_lshl_add_u32 v13, v8, 12, v13
    v_add_u32 v59, s62, v13
    v_lshrrev_b32 v8, 5, v2
    v_mul_u32_u24 v8, {XS}, v8
    v_and_b32 v9, 31, v2
    v_lshl_add_u32 v8, v9, 4, v8
    v_add_u32 v8, s62, v8
    v_mov_b32 v44, 0
    v_mov_b32 v45, 0
    v_mov_b32 v46, 0
    v_mov_b32 v47, 0
    ds_write_b128 v8, v[44:47] offset:{4*CS + 4096}
    v_lshlrev_b32 v55, 3, v62
    v_bfe_u32 v9, v2, 2, 2
    v_add_u32 v55, v55, v9
    v_lshlrev_b32 v55, 8, v55
    v_and_b32 v9, 3, v2
    v_lshl_add_u32 v55, v9, 3, v55
    v_bfe_u32 v9, v2, 2, {3 if wsw else 0}
    v_lshl_add_u32 v55, v9, 5, v55
    v_add_u32 v55, s11, v55
    v_add_u32 v60, s62, v{VR}
    s_and_b32 s16, s18, 1
    s_lshl_b32 s16, s16, 4
    s_lshr_b32 s63, s63, s16
    s_and_b32 s63, s63, 0xffff
    v_mov_b32 v9, s63
    s_lshr_b32 s{S_FKV}, s61, 4
    s_lshl_b32 s{S_FKV}, s{S_FKV}, 11
    s_add_u32 s{S_FKV}, s{S_FKV}, {WS_FLAG + F_KV}
    s_lshl_b32 s78, s61, 7
    s_add_u32 s78, s78, {WS_FLAG + F_KV}
    v_lshlrev_b32 v{TMP+13}, 7, v61
    v_and_b32 v{VF16}, 31, v2
    v_lshlrev_b32 v{VF16}, 2, v{VF16}
    s_mul_i32 s{S_N}, s87, 0x9e3779b1
    s_add_u32 s{S_N}, s{S_N}, 0x7f4a7c15
    s_add_u32 s16, s{S_N}, 1
    v_mov_b32 v{VTAG}, s16
    """)
    for w in range(4): k(f"v_cmp_eq_u32 vcc, 0, v{4+w}\nv_cndmask_b32 v{AD+w}, 0, v9, vcc")
    for i in range(4):
        for h in range(2): h_ld = k(f"buffer_load_dwordx4 v[{HR+8*i+4*h}:{HR+8*i+4*h+3}], v{VR}, s[24:27], 0 offen offset:{i*1024 + 16*h} {hnt}")
    for w in range(4): k(f"buffer_load_dword v{A(0,0)+w}, v{4+w}, s[24:27], 0 offen")
    if tlb:
        k(f"s_mul_i32 s16, s60, {tlb_n}\nv_and_b32 v21, {tlb_n - 1}, v2\nv_add_u32 v21, s16, v21\nv_lshlrev_b32 v21, {tlb}, v21\nv_add_u32 v21, {(1 << tlb) - 64}, v21")
        k(f"s_cmp_lg_u32 s17, 3\ns_cbranch_scc1 L_notlb")
        n_ = k.nvm
        srd(k, 40, 8, WS_P + 4 * MB4); k("buffer_load_dword v51, v21, s[40:43], 0 offen")
        for b, sz in ((96, W_BYTES), (98, W_BYTES), (4, W_BYTES), (100, MB4), (6, MB4)):
            srd(k, 40, b, sz); k("buffer_load_dword v51, v21, s[40:43], 0 offen")
        k.nvm = n_
        k.label("L_notlb")
    for i in range(4):
        k(f"s_add_u32 s16, s{S_ROWY}, {WS_Y + 4096*i}\nbuffer_store_dwordx4 v[16:19], v14, {SW}, s16 offen sc1")
    k(f"buffer_store_dwordx4 v[16:19], v15, {SW}, s45 offen sc1")
    qid = {}
    def q_line(i): return f"buffer_load_dwordx4 a[{64+4*i}:{67+4*i}], v53, s[32:35], s{S_ROWY} offen offset:{64*i} {qnt}"
    if diag == 6: stamp(12)
    k.wait(vm=lkv); k("s_barrier")
    if diag == 6: stamp(13)
    KR = lambda t: 74 + 2 * t
    VV = lambda t: 90 + 2 * t
    for t in range(-3, 8): lk = k(f"ds_read_b64 v[{KR(t)}:{KR(t)+1}], v52 offset:{GS + 128*t if t >= 0 else 128*(8+t)}")
    for t in range(8): lv = k(f"ds_read_b64 v[{VV(t)}:{VV(t)+1}], v52 offset:{17*GS + 128*t}")
    W = lambda c, j: 116 + 4 * c + j
    for c in range(4):
        for j in range(4): unpk(k, W(c, j), 108 + 2 * c + (j >> 1), j & 1)
    KS = lambda c, t: 132 + 8 * c + t
    KF = lambda t: 167 + t
    k.wait(lg=lk)
    for c in range(4):
        for t in range(-3, 8): unpk(k, KF(t), KR(t) + (c >> 1), c & 1)
        for t in range(8): k(f"v_mul_f32 v{KS(c,t)}, v{W(c,3)}, v{KF(t-3)}")
        for j in (2, 1, 0):
            for t in range(8): k(f"v_fmac_f32 v{KS(c,t)}, v{W(c,j)}, v{KF(t-j)}")
        k.wait(lg=lv)
        for t in range(8): unpk(k, KF(t), VV(t) + (c >> 1), c & 1)
        for t in range(8): k(f"v_mul_f32 v{KS(c,t)}, v{KS(c,t)}, v{KF(t)}")
        for i in range(4): k(f"v_cvt_pk_bf16_f32 v{176+4*c+i}, v{KS(c,7-2*i)}, v{KS(c,6-2*i)}")
        k(f"buffer_store_dwordx4 v[{176+4*c}:{179+4*c}], v50, {SW}, {so[c]} offen sc1")
    stamp(26)
    kv_st = k.nvm
    k.wait(vm=h_ld)
    for i in range(4):
        r = HR + 8 * i; t = 72 + 8 * i
        for e in range(6): k(f"v_mov_b32 v{t+e}, v{r+1+e}")
        for cc, src in enumerate((t, r + 2, t + 2, r + 4)):
            k(f"ds_write_b128 v60, v[{src}:{src+3}] offset:{cc*CS + i*1024}")
    if diag == 6: stamp(14)
    k.wait(vm=kv_st)
    if diag == 6: stamp(15)
    k("s_barrier")
    if diag == 6: stamp(16)
    k("s_cmp_lg_u32 s17, 0\ns_cbranch_scc1 L_nokvf")
    k(flag_store(78)); k.nvm -= 1
    k.label("L_nokvf")
    k(f"s_lshl_b32 s16, s2, 2\ns_add_u32 s16, s16, {WS_FLAG + F_ARM}\ns_cmp_lg_u32 s17, 1\ns_cbranch_scc1 L_noarm")
    k(flag_store(16)); k.nvm -= 1
    k.label("L_noarm")
    KM2 = 56 - KT2
    k(f"""
    s_lshl_b32 s{S_M0}, s17, 12
    s_lshr_b32 s13, s59, 1
    s_lshl_b32 s12, s13, 3
    s_add_u32 s12, s12, s34
    s_lshl_b32 s14, s33, 2
    s_and_b32 s15, s60, 3
    s_add_u32 s14, s14, s15
    s_lshl_b32 s14, s14, 2
    s_add_u32 s14, s14, s17
    s_lshl_b32 s16, s32, 2
    s_add_u32 s16, s16, s17
    s_mul_i32 s{S_W1}, s12, {W1T*1024}
    s_add_u32 s{S_W1}, s{S_W1}, {WS_W1}
    s_mul_i32 s{S_W2}, s35, {W2T*1024}
    s_add_u32 s{S_W2}, s{S_W2}, {WS_W2}
    s_lshl_b32 s{S_XN}, s14, 17
    s_add_u32 s{S_XN}, s{S_XN}, {WS_XN}
    s_lshl_b32 s{S_PS}, s16, 14
    s_lshl_b32 s15, s34, 10
    s_add_u32 s{S_PS}, s{S_PS}, s15
    s_lshl_b32 s15, s33, 22
    s_add_u32 s{S_PS}, s{S_PS}, s15
    s_add_u32 s{S_PS}, s{S_PS}, {WS_P}
    s_lshr_b32 s{S_ROWL}, s19, 1
    s_lshl_b32 s{S_ROWF}, s{S_ROWL}, 15
    s_lshl_b32 s{S_ROWL}, s{S_ROWL}, 13
    s_and_b32 s15, s19, 1
    s_lshl_b32 s15, s15, 7
    s_add_u32 s{S_ROWL}, s{S_ROWL}, s15
    s_add_u32 s{S_ROWF}, s{S_ROWF}, s15
    s_lshl_b32 s{S_FXN_C}, s14, 7
    s_lshl_b32 s15, s13, 12
    s_add_u32 s{S_FXN_C}, s{S_FXN_C}, s15
    s_add_u32 s{S_FXN_C}, s{S_FXN_C}, {WS_FLAG + F_XN}
    s_lshr_b32 s{S_FXN_P}, s19, 3
    s_lshl_b32 s{S_FXN_P}, s{S_FXN_P}, 7
    s_lshl_b32 s15, s34, 2
    s_add_u32 s{S_FXN_P}, s{S_FXN_P}, s15
    s_add_u32 s{S_FXN_P}, s{S_FXN_P}, s{S_M0}
    s_add_u32 s{S_FXN_P}, s{S_FXN_P}, {WS_FLAG + F_XN}
    s_lshr_b32 s{S_FPF_C}, s19, 2
    s_lshl_b32 s{S_FPF_C}, s{S_FPF_C}, 11
    s_add_u32 s{S_FPF_C}, s{S_FPF_C}, {WS_FLAG + F_PE}
    s_lshl_b32 s{S_FPF_P}, s16, 11
    s_lshl_b32 s15, s35, 7
    s_add_u32 s{S_FPF_P}, s{S_FPF_P}, s15
    s_add_u32 s{S_FPF_P}, s{S_FPF_P}, {WS_FLAG + F_PE}
    s_lshl_b32 s{S_FH_P}, s14, 8
    s_lshr_b32 s15, s12, 4
    s_lshl_b32 s15, s15, 7
    s_add_u32 s{S_FH_P}, s{S_FH_P}, s15
    s_and_b32 s15, s12, 15
    s_lshl_b32 s15, s15, 2
    s_add_u32 s{S_FH_P}, s{S_FH_P}, s15
    s_add_u32 s{S_FH_P}, s{S_FH_P}, {WS_FLAG + F_H}
    s_lshr_b32 s{S_FH_C}, s16, 1
    s_lshl_b32 s{S_FH_C}, s{S_FH_C}, 8
    s_lshl_b32 s15, s33, 7
    s_add_u32 s{S_FH_C}, s{S_FH_C}, s15
    s_add_u32 s{S_FH_C}, s{S_FH_C}, {WS_FLAG + F_H}
    s_mul_i32 s{S_HL}, s16, {2*TBH}
    s_mul_i32 s15, s33, {56*1024}
    s_add_u32 s{S_HL}, s{S_HL}, s15
    s_add_u32 s{S_HL}, s{S_HL}, {WS_H}
    s_mul_i32 s{S_HS}, s14, {4*TBH}
    s_lshr_b32 s15, s12, 4
    s_mul_i32 s15, s15, {56*1024}
    s_add_u32 s{S_HS}, s{S_HS}, s15
    s_and_b32 s15, s12, 15
    s_lshl_b32 s15, s15, 9
    s_add_u32 s{S_HS}, s{S_HS}, s15
    s_add_u32 s{S_HS}, s{S_HS}, {WS_H}
    s_lshl_b32 s{S_FW2_C}, s35, 8
    s_add_u32 s{S_FW2_C}, s{S_FW2_C}, {WS_FLAG + F_W2}
    s_mul_i32 s15, s12, 7
    s_lshr_b32 s15, s15, 3
    s_min_u32 s15, s15, 26
    s_lshl_b32 s15, s15, 7
    s_add_u32 s{S_FW1_C}, s15, {WS_FLAG + F_W1}
    """)
    k(f"""
    s_add_u32 s15, s32, s34
    s_and_b32 s15, s15, 1
    s_mul_i32 s86, s15, {1024 * swz}
    s_mul_i32 s15, s15, {8192 * swz}
    s_add_u32 s92, s{S_W2}, s15
    s_sub_u32 s93, s{S_W2}, s15
    """)
    k(f"""
    s_lshl_b32 s12, s2, 2
    s_add_u32 s12, s12, s17
    s_lshr_b32 s13, s12, 3
    s_and_b32 s12, s12, 7
    s_cmp_ge_u32 s13, 56
    s_cselect_b32 s14, 1, 0
    s_cselect_b32 s15, 56, 0
    s_sub_u32 s13, s13, s15
    s_lshl_b32 s15, s14, 3
    s_add_u32 s15, s15, s12
    s_lshl_b32 s{S_FW2_P}, s15, 8
    s_lshl_b32 s16, s13, 2
    s_add_u32 s{S_FW2_P}, s{S_FW2_P}, s16
    s_add_u32 s{S_FW2_P}, s{S_FW2_P}, {WS_FLAG + F_W2}
    s_mul_i32 s{S_SHD}, s15, {W2T*1024}
    s_and_b32 s32, s13, {1 if chain else 0}
    s_sub_u32 s33, s13, s32
    s_lshl_b32 s16, s33, 13
    s_lshl_b32 s60, s33, 11
    s_add_u32 s60, s60, {KM2 * 6 * 1024}
    s_cmp_lt_u32 s13, {KM2}
    s_cselect_b32 s16, s16, s60
    s_cselect_b32 s60, {2 if chain else 1}, {KT2}
    s_lshl_b32 s60, s60, 11
    s_lshl_b32 s32, s32, 10
    s_add_u32 s16, s16, s32
    s_add_u32 s{S_SHD}, s{S_SHD}, s16
    s_add_u32 s{S_SHD}, s{S_SHD}, {WS_W2}
    s_and_b32 s15, s13, 7
    s_mul_i32 s15, s15, 224
    s_lshr_b32 s16, s13, 3
    s_lshl_b32 s16, s16, 4
    s_add_u32 s15, s15, s16
    s_mul_i32 s14, s14, 1792
    s_add_u32 s15, s15, s14
    s_add_u32 s16, s15, 112
    s_lshl_b32 s12, s12, 8
    s_lshl_b32 s{S_SHA}, s15, 11
    s_add_u32 s{S_SHA}, s{S_SHA}, s12
    s_lshl_b32 s{S_SHB}, s16, 11
    s_add_u32 s{S_SHB}, s{S_SHB}, s12
    v_add_u32 v{VR+1}, 0x10000, v{VR}
    v_add_u32 v{VD}, s{S_M0}, v{VR}
    v_lshrrev_b32 v21, 5, v2
    v_and_b32 v22, 31, v2
    v_lshlrev_b32 v22, 4, v22
    v_mul_u32_u24 v23, {TBH}, v21
    v_add_u32 v{VST}, v23, v22
    v_mov_b32 v{VC2}, {f32bits(c1*0.044715):#x}
    v_lshlrev_b32 v{VF}, 2, v2
    v_lshrrev_b32 v24, 4, v2
    v_and_b32 v25, 15, v2
    v_lshlrev_b32 v25, 4, v25
    v_lshl_add_u32 v{VS0}, v24, 11, v25
    v_bfe_u32 v25, v2, 2, 3
    v_lshlrev_b32 v25, 8, v25
    v_lshl_add_u32 v25, v21, 14, v25
    v_and_b32 v24, 3, v2
    v_lshl_add_u32 v25, v24, 4, v25
    v_add_u32 v{VS1}, s{S_M0}, v25
    """)

    x = k(poll_load(S_FKV))
    poll_check(x, S_FKV, 16)
    stamp(27)
    xl = []
    for i in range(4):
        k(f"buffer_load_dwordx4 v[{128+8*i}:{131+8*i}], v{VR}, s[72:75], 0 offen offset:{i*1024} sc1")
        xl.append(k(f"buffer_load_dword v{132+8*i}, v{VR}, s[72:75], 0 offen offset:{i*1024 + 16} sc1"))
    OFFS = [[84, 85, 89, 90, 91, 94, 95, 69], [70 + i for i in range(8)]]
    WSRC, WBASE, WFLAG = (10, 13), ((24, 25), (96, 97)), (62, 63)
    assert all((x * 9363) >> 16 == x // 7 for x in range(232)) and chain
    for r in range(2):
        k(f"""
        s_mul_i32 s12, s2, {3 if r else 4}
        s_add_u32 s12, s12, s17
        s_add_u32 s12, s12, {1024 * r}
        s_mul_hi_u32 s14, s12, {-(-(1 << 32) // 28)}
        s_mul_i32 s16, s14, 28
        s_sub_u32 s12, s12, s16
        s_and_b32 s15, s14, 1
        s_lshr_b32 s14, s14, 1
        s_cmp_eq_u32 s15, 0
        s_cselect_b32 s{WBASE[r][0]}, s96, s98
        s_cselect_b32 s{WBASE[r][1]}, s97, s99
        s_mul_i32 s{WSRC[r]}, s14, {32*7168}
        s_lshl_b32 s16, s12, 8
        s_add_u32 s{WSRC[r]}, s{WSRC[r]}, s16
        s_lshl_b32 s78, s14, 1
        s_add_u32 s78, s78, s15
        s_lshl_b32 s78, s78, 2
        s_lshl_b32 s16, s12, 7
        s_add_u32 s78, s78, s16
        s_add_u32 s78, s78, {WS_FLAG + F_W1 - 8*18}
        s_and_b32 s18, s14, 1
        s_sub_u32 s57, s14, s18
        s_add_u32 s57, s57, s15
        s_mul_i32 s58, s57, 14
        s_lshl_b32 s59, s57, 1
        s_add_u32 s59, s59, {12*KM}
        s_cmp_lt_u32 s14, {KM}
        s_cselect_b32 s58, s58, s59
        s_cselect_b32 s59, 2, {2*KT}
        s_cmp_lt_u32 s14, 18
        s_cselect_b32 s{WFLAG[r]}, 0, s78
        s_add_u32 s58, s58, s18
        s_add_u32 s58, s58, {WS_W1 >> 10}
        s_lshl_b32 s12, s12, 3
        s_mul_i32 s16, s12, 9363
        s_lshr_b32 s16, s16, 16
        s_mul_i32 s78, s16, 7
        s_sub_u32 s78, s12, s78
        s_mul_i32 s16, s16, {W1T}
        s_add_u32 s58, s58, s16
        s_mul_i32 s16, s78, s59
        s_add_u32 s58, s58, s16
        s_lshl_b32 s{OFFS[r][0]}, s58, 10
        s_lshl_b32 s59, s59, 10
        s_mul_i32 s79, s59, 6
        s_sub_u32 s79, {W1T * 1024}, s79
        """)
        for i in range(7):
            k(f"s_cmp_eq_u32 s78, {6 - i}\ns_cselect_b32 s16, s79, s59\ns_add_u32 s{OFFS[r][i+1]}, s{OFFS[r][i]}, s16")
    k(f"s_mov_b32 s26, {0 if now & 1 else W_BYTES}\ns_cmp_eq_u32 s17, 3\ns_cselect_b32 s{WFLAG[1]}, 0, s{WFLAG[1]}\ns_cselect_b32 s30, 0, s30\ns_cselect_b32 s98, 0, {0 if now & 2 else W_BYTES}")
    srd(k, 32, 100, MB4)
    def w_load(r, j):
        return [f"s_add_u32 m0, s11, {1024*j + 32768*r}", f"s_add_u32 s12, s{WSRC[r]}, {4*7168*j}", f"buffer_load_dwordx4 v{58 if (j >> 1) & 1 else 54}, s[24:27], s12 offen {wnt} lds"]
    for i in range(4):
        r = 128 + 8 * i; t = 160 + 4 * i
        k.wait(vm=xl[i])
        k(f"ds_write_b128 v60, v[{r}:{r+3}] offset:{4*CS + XS + i*1024}")
        for e in range(4): k(f"v_alignbit_b32 v{t+e}, v{r+e+1}, v{r+e}, 16")
        k(f"ds_write_b128 v60, v[{t}:{t+3}] offset:{4*CS + i*1024}")
    stamp(1)
    Y = lambda j: 8 + 4 * j
    def reads(i):
        buf = i & 1; out = []
        for x in range(8):
            out.append(("B", x, f"ds_read_b128 v[{B(buf,x)}:{B(buf,x)+3}], v57 offset:{3584-512*x+64*i}"))
            if (i, x) != (0, 0):
                out.append(("A", x, f"ds_read_b128 v[{A(buf,x)}:{A(buf,x)+3}], v56 offset:{64*(i-1)+512*x}"))
        return out
    ids = {}
    for kind, x, txt in reads(0): ids[(0, kind, x)] = k(txt)
    for j in range(8):
        k.wait(lg=ids[(0, "B", j)])
        k(f"v_mfma_f32_16x16x32_bf16 v[{Y(j)}:{Y(j)+3}], v[{AD}:{AD+3}], v[{B(0,j)}:{B(0,j)+3}], 0")
    side = {i: [] for i in range(8)}
    def sh_reads(r):
        o = []
        for i in range(8):
            f = 32 * r + 4 * i
            ra = 48 + (i & 1)
            o += [("r", None, f"v_xor_b32 v{ra}, {32*i}, v55\nds_read_b64_tr_b16 a[{f}:{f+1}], v{ra} offset:{32768*r}"),
                  ("r", (r, i), f"ds_read_b64_tr_b16 a[{f+2}:{f+3}], v{ra} offset:{1024 + 32768*r}")]
        return o
    def sh_stores(r):
        return [("s", (r, i), f"buffer_store_dwordx4 a[{32*r+4*i}:{32*r+4*i+3}], v{VR}, {SX if r else SW}, s{OFFS[r][i]} offen sc1") for i in range(8)]
    side[arm_step] += [("v", "arm", f"s_mov_b32 s79, {WS_FLAG + F_ARM}\n" + poll_load(79, "arm"))]
    for n_, st_ in enumerate(wsteps):
        r, j = divmod(n_, 8)
        if n_ == 8: side[st_].append(("x", None, "s_mov_b32 s24, s96\ns_mov_b32 s25, s97\ns_mov_b32 s26, s98"))
        side[st_].append(("v", f"w{r}", "\n".join(w_load(r, j))))
    side[q_step] += [("v", "q", q_line(i)) for i in range(4)]
    rd0 = sh_reads(0)
    side[a_step] += [("w", 0)] + rd0[:10]
    side[a_step + 1] += rd0[10:] + sh_stores(0)[:4]
    side[a_step + 2] += sh_stores(0)[4:]
    sid = dict(qid)
    for i in range(8):
        buf = i & 1
        nxt = reads(i + 1) if i < 7 else []
        order = sorted([(p, j) for p in range(8) for j in range(8 - p)], key=(lambda t: (t[0] + t[1], t[0] if (t[0] + t[1]) & 1 else -t[0])) if cchain else (lambda t: (max(t), t[0] + t[1])))
        sd = side[i]
        for n, (p, j) in enumerate(order):
            k.wait(lg=max(ids.get((i, "A", p), 0), ids[(i, "B", j)]))
            jp = p + j
            k(f"v_mfma_f32_16x16x32_bf16 v[{Y(jp)}:{Y(jp)+3}], v[{A(buf,p)}:{A(buf,p)+3}], v[{B(buf,j)}:{B(buf,j)+3}], v[{Y(jp)}:{Y(jp)+3}]")
            if n % 2 == 1 and nxt:
                kind, x, txt = nxt.pop(0); ids[(i + 1, kind, x)] = k(txt)
            if n % 2 == 0 and sd and (sd[0][0] not in "sv" or n % 4 == 0):
                it = sd.pop(0)
                if it[0] == "w": k.wait(vm=sid["w0"])
                elif it[0] == "s":
                    k.wait(lg=sid[it[1]]); sid["st0"] = k(it[2])
                else:
                    x = k(it[2])
                    if it[1]: sid[it[1]] = x
        assert not nxt and not sd
    stamp(2)
    for j in range(8): k(f"ds_write_b128 v59, v[{Y(j)}:{Y(j)+3}] offset:{512*j}")
    k(f"""
    v_lshrrev_b32 v4, 2, v0
    v_bfe_u32 v5, v4, 3, 2
    v_xor_b32 v5, v5, v4
    v_lshlrev_b32 v5, 4, v5
    v_and_b32 v6, 3, v0
    v_lshl_add_u32 v5, v6, 2, v5
    v_lshlrev_b32 v6, 4, v6
    v_lshl_add_u32 v6, v4, 14, v6
    s_lshl_b32 s12, s61, 6
    s_add_u32 s12, s12, {WS_Y}
    """)
    for c in range(1, 4): k(f"v_add_u32 v{40+c}, {c*CH_LDS}, v5")
    k("v_mov_b32 v40, v5")
    poll_check(sid["arm"], 79, "arm")
    k.wait(vm=sid["st0"], lg=k.nlg); k("s_barrier")
    rid = {}
    for i in range(4):
        for c in range(4):
            rid[i] = k(f"ds_read2st64_b32 v[{64+8*i+2*c}:{65+8*i+2*c}], v{40+c} offset0:{4*i} offset1:{16+4*i}")
    for i in range(4):
        k.wait(lg=rid[i])
        for par in range(2):
            for h in range(2):
                k(f"v_cvt_pk_bf16_f32 v{96+4*i+2*par+h}, v{64+8*i+4*h+par}, v{64+8*i+4*h+2+par}")
        k(f"buffer_store_dwordx4 v[{96+4*i}:{99+4*i}], v6, {SW}, s12 offen sc1")
        if i < 3: k("s_add_u32 s12, s12, 0x100000")
    stamp(3)
    XP, YP, P0, P1, X, Yf, T, AY, AS0, AS1, AL, AO = 8, 24, 40, 56, 72, 104, 136, 0, 1, 2, 3, 4
    def row_addr():
        k(f"""
        v_and_b32 v6, 7, v{VTID}
        v_bfe_u32 v5, v{VTID}, 3, 2
        v_lshrrev_b32 v7, 5, v{VTID}
        v_lshl_add_u32 v7, v7, 4, v5
        v_lshlrev_b32 v{AY}, 3, v6
        v_lshl_add_u32 v{AY}, v7, 7, v{AY}
        v_lshlrev_b32 v{AO}, 11, v6
        v_lshl_add_u32 v{AO}, v7, 4, v{AO}
        v_lshrrev_b32 v{AS0}, 6, v{VTID}
        v_lshlrev_b32 v{AS0}, 3, v{AS0}
        v_lshl_add_u32 v{AS0}, v6, 5, v{AS0}
        v_bfe_u32 v7, v{VTID}, 4, 1
        v_lshl_add_u32 v{AS0}, v7, 2, v{AS0}
        v_add_u32 v{AS0}, {LDS_ST}, v{AS0}
        v_lshlrev_b32 v{AS1}, 5, v6
        v_add_u32 v{AS1}, {LDS_ST}, v{AS1}
        v_lshlrev_b32 v{AL}, 4, v{VTID}
        v_add_u32 v{AL}, {LDS_Y}, v{AL}
        """)
    def unpack(dst, src):
        for e in range(32): unpk(k, dst + e, src + e // 2, e & 1)
    def stats(off):
        k(f"v_pk_add_f32 v[{T}:{T+1}], v[{X}:{X+1}], v[{X+2}:{X+3}]")
        k(f"v_pk_mul_f32 v[{T+2}:{T+3}], v[{X}:{X+1}], v[{X}:{X+1}]")
        for e in range(2, 32, 2):
            if e > 2: k(f"v_pk_add_f32 v[{T}:{T+1}], v[{T}:{T+1}], v[{X+e}:{X+e+1}]")
            k(f"v_pk_fma_f32 v[{T+2}:{T+3}], v[{X+e}:{X+e+1}], v[{X+e}:{X+e+1}], v[{T+2}:{T+3}]")
        R = T + 8
        k(f"""
        v_add_f32 v{T}, v{T}, v{T+1}
        v_add_f32 v{T+2}, v{T+2}, v{T+3}
        v_permlane16_swap_b32 v{T}, v{T+2}
        v_add_f32 v{T}, v{T}, v{T+2}
        v_add_f32_dpp v{T}, v{T}, v{T} row_ror:8 row_mask:0xf bank_mask:0xf
        v_mov_b32 v{T+1}, v{T}
        v_permlane32_swap_b32 v{T}, v{T+1}
        v_add_f32 v{T}, v{T}, v{T+1}
        ds_write_b32 v{AS0}, v{T} offset:{off}
        s_waitcnt lgkmcnt(0)
        s_barrier
        ds_read_b128 v[{R}:{R+3}], v{AS1} offset:{off}
        ds_read_b128 v[{R+4}:{R+7}], v{AS1} offset:{off+16}
        s_waitcnt lgkmcnt(0)
        v_pk_add_f32 v[{R}:{R+1}], v[{R}:{R+1}], v[{R+2}:{R+3}]
        v_pk_add_f32 v[{R+4}:{R+5}], v[{R+4}:{R+5}], v[{R+6}:{R+7}]
        v_pk_add_f32 v[{R}:{R+1}], v[{R}:{R+1}], v[{R+4}:{R+5}]
        v_mul_f32 v{R}, {f32bits(1/1024):#x}, v{R}
        v_mul_f32 v{R+1}, {f32bits(1/1024):#x}, v{R+1}
        v_fma_f32 v{R+1}, -v{R}, v{R}, v{R+1}
        v_max_f32 v{R+1}, 0, v{R+1}
        v_cvt_pk_bf16_f32 v{R+2}, v{R}, v{R+1}
        v_lshlrev_b32 v{R}, 16, v{R+2}
        v_and_b32 v{R+1}, 0xffff0000, v{R+2}
        v_add_f32 v{R+1}, {f32bits(1e-5):#x}, v{R+1}
        v_cvt_pk_bf16_f32 v{R+1}, v{R+1}, v{R+1}
        v_lshlrev_b32 v{R+1}, 16, v{R+1}
        v_sqrt_f32 v{R+1}, v{R+1}
        v_cvt_pk_bf16_f32 v{R+1}, v{R+1}, v{R+1}
        v_lshlrev_b32 v{R+1}, 16, v{R+1}
        v_rcp_f32 v{T+4}, v{R+1}
        v_mov_b32 v{T+5}, v{T+4}
        v_mul_f32_e64 v{T+6}, -v{R}, v{T+4}
        v_mov_b32 v{T+7}, v{T+6}
        """)
    def sentinel_loop(name, loads, regs, between=None, skip_first=False, tagged=False, own_wait=False):
        k(f"s_mov_b32 s{S_SP}, {SPIN}")
        regs = list(regs)
        if not skip_first: loads()
        if between: between()
        k(f"s_branch {name}_chk")
        k.label(name)
        if pnap: k(f"s_sleep {pnap}")
        loads()
        if own_wait: k("s_waitcnt vmcnt(0)")
        k.label(name + "_chk")
        if own_wait:
            k(f"v_max_u32 v{T+16}, v{regs[0]}, v{regs[1]}")
            for i in range(2, len(regs), 2): k(f"v_max3_u32 v{T+16}, v{T+16}, v{regs[i]}, v{regs[i+1]}")
            k(f"v_cmp_eq_u32 vcc, -1, v{T+16}")
        elif tagged:
            k(f"s_waitcnt vmcnt(0)\nv_or3_b32 v{T+16}, v{regs[0]}, v{regs[1]}, v{TMP+8}\nv_bitop3_b32 v{T+17}, v{regs[0]}, v{regs[1]}, v{TMP+8} bitop3:0x80")
            for i in range(2, len(regs), 2):
                k(f"v_or3_b32 v{T+16}, v{T+16}, v{regs[i]}, v{regs[i+1]}\nv_bitop3_b32 v{T+17}, v{T+17}, v{regs[i]}, v{regs[i+1]} bitop3:0x80")
            k(f"v_xor_b32 v{T+16}, v{T+16}, v{T+17}\nv_lshlrev_b32 v{T+16}, 16, v{T+16}\nv_cmp_ne_u32 vcc, 0, v{T+16}")
        else:
            k(f"s_waitcnt vmcnt(0)\nv_max_u32 v{T+16}, v{regs[0]}, v{regs[1]}")
            for i in range(2, len(regs), 2): k(f"v_max3_u32 v{T+16}, v{T+16}, v{regs[i]}, v{regs[i+1]}")
            k(f"v_cmp_eq_u32 vcc, -1, v{T+16}")
        k(f"s_sub_u32 s{S_SP}, s{S_SP}, 1\ns_cbranch_scc1 {name}_out\ns_cbranch_vccnz {name}")
        k.label(name + "_out")

    row_addr()
    def y_shadow():
        mark = k.nvm
        k.wait(vm=max(sid["w1"], sid["q"]))
        for it in sh_reads(1):
            x = k(it[2])
            if it[1]: sid[it[1]] = x
        for e in range(16): k(f"v_accvgpr_read_b32 v{XP+e}, a{64+e}")
        unpack(X, XP)
        for it in sh_stores(1):
            k.wait(lg=sid[it[1]]); k(it[2])
        k(f"s_lshl_b32 s12, s2, 2\ns_add_u32 s12, s12, s17\ns_cmp_lt_u32 s12, 896\ns_cselect_b32 s26, {W_BYTES}, 0\ns_cselect_b32 s30, {WS_TOTAL}, 0\ns_mov_b32 s24, s4\ns_mov_b32 s25, s5")
        srd(k, 72, 8, WS_TOTAL)
        stats(0)
        k.wait(vm=mark)
    def y_loads():
        assert WS_Y == 0
        for i in range(4):
            for h in range(2):
                r = YP + 4 * i + 2 * h
                k(f"buffer_load_dwordx2 v[{r}:{r+1}], v{AY}, {SW}, s{S_ROWY} offen offset:{512*i + 64*h} sc1")
    if diag == 6: stamp(19)
    sentinel_loop("L_ypoll", y_loads, range(YP, YP + 16), y_shadow, own_wait=True)
    stamp(4)
    def raw_stage(sidx):
        k(f"s_add_u32 m0, s{S_M0}, {sidx * 16384}\ns_add_u32 s{S_DMA}, s{S_W1}, {sidx * 16384}")
        for i in range(4): k(f"buffer_load_dwordx4 v{VD}, {SW}, s{S_DMA} offen offset:{1024*i} {wmod} lds")
    def weave(body_fn, stages, span):
        n0 = len(k.lines); body_fn()
        body = k.lines[n0:]; del k.lines[n0:]
        for sidx in stages: raw_stage(sidx)
        dm = k.lines[n0:]; del k.lines[n0:]
        step = max(1, min(len(body), span) // max(1, len(dm)))
        for n_, l in enumerate(body):
            if n_ % step == 0 and dm: k.lines.append(dm.pop(0))
            k.lines.append(l)
        k.lines += dm
    k("s_barrier")
    def y_keep():
        unpack(Yf, YP)
        for i in range(4): k(f"ds_write_b128 v{AL}, v[{YP+4*i}:{YP+4*i+3}] offset:{4096*i}")
    if diag == 6: stamp(20)
    if nx: weave(y_keep, [x for x in range(npre) if 2 <= x < 2 + nx], 36)
    else: y_keep()
    if diag == 6: stamp(21)

    k.label("L_layer")
    k(f"s_add_u32 s84, s{S_HL}, s86\ns_sub_u32 s85, s{S_HL}, s86")
    SWZ_END = (KM2 // (2 * swz)) * 2 * swz if swz else 0
    k.nvm = k.vm_done = 0; k.nlg = k.lg_done = 0
    ring = [("W1", s) for s in range(28)]
    S1_POS = 0
    SH_POS = sh_pos
    ring[SH_POS:SH_POS] = [("SH", 0), ("SH", 1)]
    assert SH_POS % NS + 1 < 4 and S1_POS % NS + 1 < 4
    ring += [("W2", s) for s in range(28)]
    NREAL = len(ring); assert NREAL % NS == 2
    ring += [("NX", 2 + j) for j in range(nx)]
    NXS = set(range(2, 2 + nx))
    st = {"s": None}
    def dma(idx, i):
        kind, s = ring[idx]; pre_ = []
        if kind == "S1":
            st["s"] = None
            return [f"s_add_u32 m0, s{S_M0}, {(idx % NS) * 16384 + 1024 * i}", f"s_add_u32 s{S_DMA}, s63, {4 * 7168 * (4 * s + i)}",
                    f"buffer_load_dwordx4 v{TMP+4}, s[92:95], s{S_DMA} offen lds"]
        if kind == "SH":
            st["s"] = None
            return [f"s_add_u32 m0, s{S_M0}, {(idx % NS) * 16384 + 1024 * i}", f"s_add_u32 s{S_DMA}, s{S_SHB if s else S_SHA}, {8192 * i}",
                    f"buffer_load_dwordx4 v{VS0}, {SD}, s{S_DMA} offen {dnt} lds"]
        if st["s"] != idx:
            pre_ = [f"s_add_u32 m0, s{S_M0}, {(idx % NS) * 16384}", f"s_add_u32 s{S_DMA}, s{(92 + (2 * s // swz) % 2 if 2 * s < SWZ_END else S_W2) if kind == 'W2' else S_W1}, {s * 16384}"]
            st["s"] = idx
        return pre_ + [f"buffer_load_dwordx4 v{VD}, {'s[72:75]' if kind == 'NX' else SW}, s{S_DMA} offen offset:{1024*i} {wmod} lds"]
    w_id = {}; t_id = {}
    def pre_stage(idx):
        for i in range(4): w_id[idx] = k("\n".join(dma(idx, i)))
    for idx in range(4): w_id[idx] = 0
    def gate_math():
        for e in range(0, 32, 2):
            k(f"v_pk_fma_f32 v[{T}:{T+1}], v[{X+e}:{X+e+1}], v[{T+4}:{T+5}], v[{T+6}:{T+7}]")
            k(f"v_pk_fma_f32 v[{X+e}:{X+e+1}], v[{T}:{T+1}], v[{Yf+e}:{Yf+e+1}], v[{X+e}:{X+e+1}]")
            k(f"v_cvt_pk_bf16_f32 v{XP+e//2}, v{X+e}, v{X+e+1}")
        for i in range(4): k(f"ds_write_b128 v{AL}, v[{XP+4*i}:{XP+4*i+3}] offset:{16384 + 4096*i}")
        if not lean: unpack(X, XP)
        stats(256)
    weave(gate_math, [x for x in range(npre) if x not in NXS], 120)
    k(f"s_lshl_b32 s{S_B}, s{S_LAY}, 22\ns_add_u32 s{S_B}, s{S_B}, s{S_ROWF}\ns_add_u32 s{S_B}, s{S_B}, {WS_XN}")
    for e in range(0, 32, 2):
        k(f"v_pk_fma_f32 v[{X+e}:{X+e+1}], v[{X+e}:{X+e+1}], v[{T+4}:{T+5}], v[{T+6}:{T+7}]")
        k(f"v_cvt_pk_bf16_f32 v{P0+e//2}, v{X+e}, v{X+e+1}")
        if e % 8 == 6:
            i = e // 8
            k(f"buffer_store_dwordx4 v[{P0+4*i}:{P0+4*i+3}], v{VROW}, {SW}, s{S_B} offen offset:{1024*i} sc1")
    stamp(5)
    xn_st = k.nvm
    ET = 160
    for t in range(4): k(f"s_add_u32 s{S_T+t}, s{S_XN}, {t*32768}")
    def e_loads():
        for u in range(E):
            for t in range(4):
                r = ET + 16 * u + 4 * t
                k(f"buffer_load_dwordx4 v[{r}:{r+3}], v{VR}, {SW}, s{S_T+t} offen offset:{1024*u} sc1")
    def e_between():
        k.wait(vm=xn_st); k("s_barrier")
        k(flag_store(S_FXN_P))
        n_ = k.nvm
        for r in range(2):
            k(f"s_cmp_eq_u32 s{62+r}, 0\ns_cbranch_scc1 L_now{r}"); k(flag_store(62 + r)); k.label(f"L_now{r}")
        k("s_mov_b32 s62, 0\ns_mov_b32 s63, 0")
        k.nvm = n_
        if diag == 6: stamp(22)
    if e_mid:
        k.wait(vm=xn_st); sentinel_loop("L_epoll", e_loads, range(ET, ET + 16 * E), e_between)
    elif e_late:
        e_between(); sentinel_loop("L_epoll", e_loads, range(ET, ET + 16 * E))
    else: sentinel_loop("L_epoll", e_loads, range(ET, ET + 16 * E), e_between)
    if diag == 6: stamp(23)
    k(f"s_cmp_lg_u32 s{S_LAY}, 0\ns_cbranch_scc1 L_have")
    n0 = k.nvm
    for sidx in range(npre, 7): raw_stage(sidx)
    k.nvm = n0
    k.label("L_have")
    for sidx in range(npre, 7): w_id[sidx] = n0 + 1
    st["s"] = None
    for r in range(16 * E): k(f"v_accvgpr_write_b32 a{4*RW + r}, v{ET + r}")
    stamp(6)

    def sweep(kd, u0, u1, gs):
        if chain: return [(kd, u + e, g) for u in range(u0, u1, 2) for g in gs for e in range(2)]
        return [(kd, u, g) for u in range(u0, u1) for g in gs]
    assert not chain or (KM % 2 == 0 and KM2 % 2 == 0 and E % 2 == 0)
    groups = sweep(1, 0, KM, range(14))
    tail_start = len(groups)
    for b in range(7): groups += sweep(1, KM, 32, (b, 7 + b))
    G2S = len(groups)
    groups += sweep(2, 0, KM2, range(8))
    T2S = len(groups)
    for p in range(4): groups += sweep(2, KM2, 56, (2 * p, 2 * p + 1))
    NGR = len(groups); GPB = 2 * KT
    NTk = {1: 4, 2: 2}
    tm = [0]
    for kd, _, _ in groups: tm.append(tm[-1] + NTk[kd])
    real = [i for i, r_ in enumerate(ring) if r_[0] in ("W1", "W2")]
    stage_of = lambda i: real[i // 16]
    bars = {16 * n - la_bar: real[min(n + bper - 1, 55)] for n in range(npre, 56, bper)}
    pub_at = {}
    for p_, r_ in sorted(bars.items()):
        for x in real:
            if x <= r_: pub_at.setdefault(x, p_)
    bar_list = sorted(bars)
    first_use = {}; last_use = {}
    for i, (kd, u, g) in enumerate(groups):
        first_use.setdefault((kd, u), i & ~1 if chain else i); last_use[(kd, u)] = i | 1 if chain else i
    def slot(kd, u, t):
        return (u % KT) * 4 + t if kd == 1 else (4 * (KM % KT) + 2 * u + t) % (4 * KT)
    def AT(kd, u, t):
        if kd == 2 and u < park: return f"v[{112 + 8*u + 4*t}:{115 + 8*u + 4*t}]"
        a = 4 * RW + 4 * slot(kd, u - (park if kd == 2 else 0), t)
        return f"a[{a}:{a+3}]"
    AW = lambda i: 4 * (i % RW)
    acc = lambda kd, g, t: (g * NTk[kd] + t) * 4
    tok_base = {t: (S_XN, 0) for t in range(4)}
    for u in range(E):
        for t in range(4): t_id[((1, u), t)] = 0
    def tok(kd, u, t):
        off = u * 1024; pre_ = []
        src = S_XN if kd == 1 else 84 + (u // swz) % 2 if u < SWZ_END else S_HL
        if tok_base.get(t, (None, 0))[0] != src or not 0 <= off - tok_base[t][1] <= 4095:
            tok_base[t] = (src, off & ~4095)
            pre_ = [f"s_add_u32 s{S_T+t}, s{src}, {t * (32768 if kd == 1 else TBH) + tok_base[t][1]}"]
        return pre_ + [f"buffer_load_dwordx4 {AT(kd, u, t)}, v{VR}, {SW}, s{S_T+t} offen offset:{off - tok_base[t][1]} {hmod if kd == 2 else tmod}"]
    PH_B = [1, 3, 4, 5, 6]; PH_U = [0, 16, 32, 40, 48]
    P_SHR = shr
    P_SH_END = shr + 4 * sh_gap + 4
    P_PX = 0
    P_PF = tail_start + pf_at
    P_W1S = 0
    P_PW1 = 120
    P_PW2 = pw2
    P_PH = [ph0] + [first_use[(2, u_)] - pb for u_, pb in zip(PH_U[1:], ph_back)]
    P_PPF = P_PH[4] + 2 * chk + 4
    allp = sorted(P_PH + [P_PPF]); assert all(b_ - a_ > 2 * chk for a_, b_ in zip(allp, allp[1:])), allp
    CHK = {1: chk, 2: 2 * chk}
    CT_LAB = [150, 290, 370, 445, 590, 800]
    CT_AT = [20, 205, 300, 380, 470, 640]
    assert P_PPF > 660
    FREE_AT = list(free_at)
    def done_bar(idx):
        if ring[idx][0] == "SH": return P_SH_END
        if ring[idx][0] == "S1": return P_W1S + 20
        last = 16 * real.index(idx) + 15
        return next(p for p in bar_list if p > last)
    def earliest(it):
        if it[1] == "W":
            idx = it[2]
            e = done_bar(idx - NS) if idx >= NS else -1
            if ring[idx][0] == "W2": e = max(e, P_PW2 + CHK[1] + 1)
            if ring[idx][0] == "W1" and 16 * ring[idx][1] + 15 >= 14 * 18: e = max(e, P_PW1 + CHK[1] + 1)
            return e
        kd, u = it[2]
        if kd == 1: return P_PX + CHK[1] + 1 if u < KT else last_use[(1, u - KT)] + 1
        v_ = u - park
        if v_ < 0: e = FREE_AT[u // 2]
        else: e = last_use[(1, KM + v_ // 2)] + 1 if v_ < 2 * KT else last_use[(2, u - 2 * KT)] + 1
        return max(e, P_PH[max(j for j in range(5) if PH_U[j] <= u)] + CHK[2 if u >= 16 else 1] + 1)
    items = []
    for idx in range(7, NREAL):
        d = tm[P_SHR] - sh_lead if ring[idx][0] == "SH" else tm[P_W1S] - 40 if ring[idx][0] == "S1" else tm[pub_at[idx]]
        items += [(d, "W", idx, i) for i in range(4)]
    for (kd, u), fu in first_use.items():
        if kd == 1 and u < E: continue
        items += [(tm[fu], "T", (kd, u), t) for t in range(NTk[kd])]
    items.sort(key=lambda x: x[0])
    nxt_t = 1e9; sched = []
    for it in reversed(items):
        late = it[0] >= tm[G2S]
        nxt_t = min(it[0] - (la2 if late else la1), nxt_t - 1.0 / (rate2 if nxt_t > tm[G2S] else rate1))
        e = earliest(it)
        sched.append((max(nxt_t, tm[e] if e >= 0 else -1e9),) + it[1:])
    sched.reverse()
    last_tok = max(x[0] for x in sched if x[1] == "T" and x[2][0] == 1)
    prev = last_tok
    for n_, it in enumerate(sched):
        if it[1] == "W" and it[0] > last_tok and prev < tm[G2S] - 8:
            prev = max(prev + 8, tm[earliest(it)]); sched[n_] = (min(it[0], prev),) + it[1:]
    wq = [x for x in sched if x[1] == "W"]
    wq.sort(key=lambda x: (x[2], x[3]))
    run = 1e9
    for n_ in range(len(wq) - 1, -1, -1):
        e = earliest(wq[n_]); run = min(run, wq[n_][0])
        wq[n_] = (max(run, tm[e] if e >= 0 else -1e9),) + wq[n_][1:]
    prev = max(x[0] for x in sched)
    for idx in range(NREAL, len(ring)):
        for i in range(4 if ring[idx][0] == "NX" else 0):
            prev = max(prev + nx_gap, tm[done_bar(idx - NS)]); wq.append((prev, "W", idx, i))
    items = sorted(wq + [x for x in sched if x[1] == "T"], key=lambda x: x[0])
    prev = -1e9; slackv = []
    for n_, it in enumerate(items):
        if it[0] >= 0:
            prev = max(it[0], prev + 1.0 / (rmax if prev < tm[G2S] else rmax2)); items[n_] = (prev,) + it[1:]
        if it[1] == "T": slackv.append((tm[first_use[it[2]]] - items[n_][0], it[2]))
    MINSL = sorted(slackv)[:3]
    def lines(it):
        return dma(it[2], it[3]) if it[1] == "W" else tok(it[2][0], it[2][1], it[3])
    def record(it, i):
        if it[1] == "W": w_id[it[2]] = i
        else: t_id[(it[2], it[3])] = i
    while items and items[0][0] < 0:
        it = items.pop(0); record(it, k("\n".join(lines(it))))
    def rd(i):
        off = (stage_of(i) % NS) * 16384 + (i % 16) * 1024
        return f"ds_read_b128 a[{AW(i)}:{AW(i)+3}], v{VR + off // 65536} offset:{off % 65536}"
    def gelu4(G, U, P, tb):
        Tm = [tb + e for e in range(4)]
        o = [f"v_mul_f32 v{Tm[e]}, v{G+e}, v{G+e}" for e in range(4)]
        o += [f"v_fmaak_f32 v{Tm[e]}, v{VC2}, v{Tm[e]}, {f32bits(c1):#x}" for e in range(4)]
        o += [f"v_mul_f32 v{Tm[e]}, v{Tm[e]}, v{G+e}" for e in range(4)]
        for e in range(4): o += [f"v_exp_f32 v{Tm[e]}, v{Tm[e]}", f"v_mul_f32 v{U+e}, v{U+e}, v{G+e}"]
        o += [f"v_add_f32 v{Tm[e]}, 1.0, v{Tm[e]}" for e in range(4)]
        o += [f"v_rcp_f32 v{Tm[e]}, v{Tm[e]}" for e in range(4)]
        o += [f"v_mul_f32 v{U+e}, v{U+e}, v{Tm[e]}" for e in range(4)]
        o += [f"v_cvt_pk_bf16_f32 v{P}, v{U}, v{U+1}", f"v_cvt_pk_bf16_f32 v{P+1}, v{U+2}, v{U+3}"]
        return o
    def epilogue(b, t):
        a = acc(1, b, 2 * t); tb = TMP + 4 * t; sr = (S_C, S_E)[t]
        o = gelu4(a, acc(1, 7 + b, 2 * t), a, tb) + gelu4(acc(1, b, 2 * t + 1), acc(1, 7 + b, 2 * t + 1), a + 2, tb)
        o += [f"s_add_u32 s{sr}, s{S_HS}, {8192 * b + 2 * TBH * t}",
              f"v_permlane32_swap_b32 v{a}, v{a+2}", f"v_permlane32_swap_b32 v{a+1}, v{a+3}",
              f"buffer_store_dwordx4 v[{a}:{a+3}], v{VST}, {SW}, s{sr} offen sc1"]
        return [(x, b) for x in o]
    def p_store(p):
        o = []
        for t in range(2 if p >= 0 else 0):
            a = acc(2, 2 * p, t); b = acc(2, 2 * p + 1, t)
            o += [f"v_cvt_pk_bf16_f32 v{a}, v{a}, v{a+1}", f"v_cvt_pk_bf16_f32 v{a+1}, v{a+2}, v{a+3}",
                  f"v_cvt_pk_bf16_f32 v{a+2}, v{b}, v{b+1}", f"v_cvt_pk_bf16_f32 v{a+3}, v{b+2}, v{b+3}",
                  f"s_add_u32 s{S_C}, s{S_PS}, {8192 * t + p * 0x100000}",
                  f"buffer_store_dwordx4 v[{a}:{a+3}], v{VR}, {SW}, s{S_C} offen sc1"]
        return o
    cost = lambda s: 2 if s.startswith(("v_exp", "v_rcp", "v_permlane", "buffer_")) else 1

    published = npre - 1; r_id = {}; rp = 0; FL_AT = []; PE_AT = []; ready_b = -1; ready_at = 0
    while rp < RW - 2:
        r_id[rp] = k(rd(rp)); rp += 1
    seen = set(); epi = [[], []]; q = []; hold = 0; hst = {}; fl_due = {}; fl_next = 0; turn = 0
    last_st = {"h": None, "sh": None, "pf": None}; pend = {}; named = {}
    def emit_q():
        t_, c = q.pop(0)
        if c and c[0] == "L": k.wait(lg=named[c[1]])
        if c and c[0] == "Wv": k.wait(vm=w_id[c[1]])
        id_ = k(t_)
        if not c: return
        if c[0] == "V": record(c[1], id_)
        elif c[0] == "R": r_id[c[1]] = id_
        elif c[0] == "N": named[c[1]] = id_
        elif c[0] == "L": last_st["sh"] = id_
        elif c[0] in ("PF", "PG"): last_st["pf"] = id_
    for i, (kd, u, g) in enumerate(groups):
        NT = NTk[kd]
        if i == tail_start: stamp(7)
        if i == G2S: stamp(8); G2L = len(k.lines)
        if i == T2S and diag == 5: stamp(18)
        if i in bars:
            pub = bars[i]
            assert not any(it[1] == "W" and it[2] <= pub and ring[it[2]][0] not in ("SH", "S1") for it in items), (i, pub)
            while any(c and c[0] == "V" and c[1][1] == "W" and c[1][2] <= pub for _, c in q): emit_q()
            k.wait(vm=w_id[pub]); k("s_barrier"); published = max(published, pub)
        n = 0
        while rp < NGR and rp <= i + RW - 2 and stage_of(rp) <= published and n < 2:
            q.append((rd(rp), ("R", rp))); rp += 1; n += 1
        if items and items[0][0] <= tm[i]:
            it = items.pop(0); ls = lines(it)
            if it[1] == "T" and it[2][0] == 2 and it[2][1] < park:
                assert all((it[2][1] // 2, c_) in hst for c_ in (0, 1)), (i, it)
            q += [(x, None) for x in ls[:-1]] + [(ls[-1], ("V", it))]
        if P_SHR <= i < P_SHR + 4 * sh_gap and (i - P_SHR) % sh_gap == 0:
            assert not any(it[1] == "W" and ring[it[2]][0] == "SH" for it in items)
            p = (i - P_SHR) // sh_gap
            base = (SH_POS % NS) * 16384
            for h in range(2):
                f = TMP + 8 + 4 * h; off = base + p * 64 + h * 8
                q.append((f"ds_read_b64_tr_b16 v[{f}:{f+1}], v{VS1} offset:{off}", ("Wv", SH_POS + 1)))
                q.append((f"ds_read_b64_tr_b16 v[{f+2}:{f+3}], v{VS1} offset:{off + 2048}", ("N", (p, h))))
        if P_SHR + 2 <= i < P_SHR + 4 * sh_gap + 2 and (i - P_SHR) % sh_gap == 2:
            p = (i - P_SHR) // sh_gap
            q.append((f"s_add_u32 s{S_D}, s{S_D}, s60" if p else f"s_mov_b32 s{S_D}, s{S_SHD}", None))
            for h in range(2):
                f = TMP + 8 + 4 * h
                q.append((f"buffer_store_dwordx4 v[{f}:{f+3}], v{VR}, {SX}, s{S_D} offen offset:{(2048 if chain else 1024)*h} sc1", ("L", (p, h))))
        if tr0 and tr0 <= i < tr0 + 8 * tr_step and (i - tr0) % tr_step == 0:
            j = (i - tr0) // tr_step
            q += [(f"s_add_u32 s{S_D}, s{S_SHB if j >> 2 else S_SHA}, {8192 * (j & 3)}", None),
                  (f"buffer_load_dwordx4 v[{TMP+4}:{TMP+7}], v{VS0}, {SD}, s{S_D} offen", None)]
        if ct and i in CT_AT:
            j = CT_AT.index(i)
            q += [(f"v_lshlrev_b32 v{TMP+13}, 3, v{VR}", None), (f"s_mov_b32 s{S_SP}, L_ct{j}-L_body", None),
                  (f"buffer_load_dword v{TMP+14}, v{TMP+13}, s[80:83], s{S_SP} offen", None)]
        if i in CT_LAB: k.label(f"L_ct{CT_LAB.index(i)}")
        if i == P_SH_END + 12:
            k.wait(vm=last_st["sh"]); k(f"s_mov_b64 exec, 1\nbuffer_store_dword v{VTAG}, off, {SX}, s{S_FW2_P} sc1\ns_mov_b64 exec, -1")
        PFR, PFS = (TMP, S_C) if pf_at < GPB else (TMP + 8, S_D)
        if i == P_PF: q += [(f"v_mov_b32 v{PFR+e}, -1", None) for e in range(4)]
        arm = list(range(0 if sent and not arm4 else 4, 8))
        if P_PF <= i < P_PF + len(arm) * pf_step and (i - P_PF) % pf_step == 0:
            t = arm[(i - P_PF) // pf_step]
            q += [(f"s_add_u32 s{PFS}, s{S_PS}, {8192 * (t & 1) + (t >> 1) * 0x100000}", None),
                  (f"buffer_store_dwordx4 v[{PFR}:{PFR+3}], v{VR}, {SW}, s{PFS} offen sc1", ("PF" if PFR == TMP else "PG",))]
        TW_AT = P_PW2 + chk + 4
        if TW_AT <= i < TW_AT + tw * tw_step and (i - TW_AT) % tw_step == 0:
            j = (i - TW_AT) // tw_step
            q += [(f"v_lshlrev_b32 v{TMP+13}, 3, v{VR}", None), (f"s_add_u32 s{S_SP}, s91, {tw0 * 1024 + j * 131072}", None),
                  (f"buffer_load_dword v{TMP+14}, v{TMP+13}, {SW}, s{S_SP} offen", None)]
        if sent and i == P_PF + 8 * pf_step + 30: named["pe"] = (0, last_st["pf"])
        if sent and i == P_PPF - 8: q += [(f"v_and_b32 v{TMP+13}, 60, v{VF}", None), (f"v_lshlrev_b32 v{TMP+13}, 5, v{TMP+13}", None)]
        if not sent and i == NGR - pe_back - 8:
            q += [(f"v_and_b32 v{TMP+13}, 60, v{VF}", None), (f"v_lshlrev_b32 v{TMP+13}, 5, v{TMP+13}", None)]
        if not sent and i == NGR - pe_back: q.append((poll_load(S_FPF_C), ("N", "pe_ld")))
        if "pe" in named and tm[i] >= named["pe"][0]:
            k.wait(vm=named.pop("pe")[1])
            k(flag_store(S_FPF_P)); k(f"s_add_u32 s{S_FPF_P}, s{S_FPF_P}, 0x20000")
            PE_AT.append(i)
        if fl_next in fl_due and tm[i] >= fl_due[fl_next][0]:
            if diag == 4: stamp(12 + 2 * fl_next)
            k.wait(vm=fl_due[fl_next][1])
            if diag == 4: stamp(13 + 2 * fl_next)
            k(flag_store(S_FH_P)); k(f"s_add_u32 s{S_FH_P}, s{S_FH_P}, 0x4000")
            FL_AT.append(i); fl_next += 1
        polls = [(P_PW1, S_FW1_C, "w1", 1), (P_PW2, S_FW2_C, 56, 1)] + [(P_PH[j], S_FH_C, 16, j + 1) for j in range(4)] + [(P_PPF if sent else -100, S_FPF_C, 16, 1), (P_PX, S_FXN_C, 8, 1), (P_PH[4], S_FH_C, 16, 5)]
        for z, (pos, soff, n_, lvl) in enumerate(polls):
            if i == pos: pend[pos] = k(poll_load(soff))
            if i == pos + CHK[kd] and pos in pend:
                if z >= 7: z += 1
                if diag == 3: stamp(12 + 2 * z)
                poll_check(pend.pop(pos), soff, n_, lvl)
                if soff == S_FH_C: k(f"s_add_u32 s{S_FH_C}, s{S_FH_C}, 0x4000")
                if diag == 3: stamp(13 + 2 * z)
        if tail_start + GPB <= i <= G2S and (i - tail_start) % GPB == 0:
            b = (i - tail_start) // GPB - 1
            assert not any(c_ and c_[0] == "PF" for _, c_ in q)
            if not epi[0] and not epi[1]: hold = 4
            for t in range(2): epi[t] += epilogue(b, t)
            ready_b = b; ready_at = tm[i] + 4
        if i > T2S and (i - T2S) % (2 * KT2) == 4:
            assert fl_next == 5 and not epi[0]
            pp_ = (i - T2S) // (2 * KT2) - 1
            if arm4 and pp_ == 2: k.wait(vm=named["p1"])
            epi[0] += [(x, 100 + pp_) for x in p_store(pp_)]
        if i == G2S: assert all(x[1] >= 4 for c_ in epi for x in c_)
        def waits(i, kd, u, t):
            if i not in r_id or ((kd, u), t) not in t_id: return None
            lgw = r_id[i]
            if lgw > k.lg_done:
                for j in range(1, wgran):
                    if i + j in r_id and k.nlg - r_id[i + j] >= 2: lgw = r_id[i + j]
            vmw = t_id[((kd, u), t)]
            if vmw > k.vm_done and i > 28 and ((kd, u), NTk[kd] - 1) in t_id: vmw = t_id[((kd, u), NTk[kd] - 1)]
            return vmw, lgw
        def pick(i, j):
            if not chain: return i, j
            m = (i & 1) * NTk[groups[i][0]] + j
            n, e = m >> 1, m & 1
            if zig:
                e ^= n & 1
                if (i >> 1) & 1: n = NTk[groups[i][0]] - 1 - n
            return (i & ~1) + e, n
        def waits2(i, j):
            gi, tt = pick(i, j)
            return waits(gi, groups[gi][0], groups[gi][1], tt)
        for t in range(NT):
            while waits2(i, t) is None: emit_q()
            vmw, lgw = waits2(i, t)
            k.wait(vm=vmw, lg=lgw)
            gi, tt = pick(i, t)
            a = acc(kd, g, tt)
            c = f"v[{a}:{a+3}]" if (kd, g, tt) in seen else "0"
            seen.add((kd, g, tt))
            at = AT(kd, groups[gi][1], tt)
            k(f"v_mfma_f32_16x16x32_bf16 v[{a}:{a+3}], a[{AW(gi)}:{AW(gi)+3}], {at}, {c}")
            budget = 2 if kd == 1 else b2
            if len(epi[0]) + len(epi[1]) > thr and (tm[i] + t) % 2 == 0: budget += 1
            if t + 1 < NT: nw = waits2(i, t + 1)
            elif i + 1 < NGR:
                nw = waits2(i + 1, 0)
                if i + 1 in bars: budget -= 1
            else: nw = (0, 0)
            if nw is None or nw[0] > k.vm_done or nw[1] > k.lg_done: budget -= 1
            used = 0
            while q and used < 2:
                mem = q[0][0].startswith(("ds_", "buffer_"))
                c_ = cost(q[0][0])
                if (mem and used) or (c_ > budget and not (len(q) > 5 and used == 0)): break
                if used and len(q) <= NT - t: break
                emit_q(); budget -= c_; used += 1
            while budget > 0:
                ok = [c_ for c_ in (turn, 1 - turn) if epi[c_] and cost(epi[c_][0][0]) <= budget
                      and not (epi[c_][0][1] == ready_b and tm[i] + t < ready_at)]
                if not ok: break
                big = [c_ for c_ in ok if cost(epi[c_][0][0]) == 2]
                c_ = big[0] if big else ok[0]
                if abs(len(epi[c_]) - len(epi[1 - c_])) > 24 and len(epi[c_]) < len(epi[1 - c_]):
                    if 1 - c_ in ok: c_ = 1 - c_
                    else: break
                x, b = epi[c_].pop(0); budget -= cost(x); turn = 1 - c_
                id_ = k(x)
                if b == 101 and not epi[0]: named["p1"] = id_
                if b == 101 and not epi[0] and not sent: named["pe"] = (tm[i] + t + pe_lag, id_)
                if x.startswith("buffer_store") and b < 7:
                    hst[(b, c_)] = id_
                    if b in PH_B and (b, 0) in hst and (b, 1) in hst:
                        fl_due[PH_B.index(b)] = (tm[i] + t + fl_lag, id_)
    while epi[0] and epi[0][0][1] == 102: k(epi[0].pop(0)[0])
    assert len(PE_AT) == 1
    assert not items and not epi[0] and not epi[1] and not q and not pend and fl_next == 5
    assert all(tm[f] + 60 < tm[p] for f, p in zip(FL_AT, P_PH)), (FL_AT, P_PH)
    k.info = dict(pe=(PE_AT, NGR), minsl=[(int(a_), b_) for a_, b_ in MINSL], flags=FL_AT, polls=P_PH, slack=[tm[p] - tm[f] for f, p in zip(FL_AT, P_PH)])
    if abl:
        keep = []
        for l in k.lines[G2L:]:
            x = l.strip()
            if "T" in abl and x.startswith("buffer_load_dwordx4 a["): continue
            if "W" in abl and x.endswith(" lds"): continue
            if "D" in abl and x.startswith("ds_read_b128"): continue
            if "B" in abl and x == "s_barrier": continue
            if "V" in abl and x.startswith(("v_mul", "v_fmaak", "v_exp", "v_rcp", "v_add_f32")): continue
            keep.append(l)
        k.lines[G2L:] = keep
    stamp(9)
    PP = 160
    for x in p_store(3): k(x)
    if not sent:
        pe_ld = named["pe_ld"]
        k(flag_store(S_FPF_P)); k(f"s_add_u32 s{S_FPF_P}, s{S_FPF_P}, 0x20000")
    VRL = TMP + 15
    k(f"s_lshl_b32 s{S_B}, s{S_LAY}, 23\ns_add_u32 s{S_B}, s{S_B}, s{S_ROWL}")
    k(f"v_lshrrev_b32 v{TMP+14}, 12, v{VROW}\nv_and_b32 v{VRL}, 0x3ff, v{VROW}\nv_lshl_add_u32 v{VRL}, v{TMP+14}, 10, v{VRL}")
    def p_loads(which):
        def f():
            for i in which:
                for j in range(2):
                    r = PP + 8 * i + 4 * j
                    k(f"s_add_u32 s{S_C}, s{S_B}, {WS_P + j*MB4 + i*0x100000}")
                    x = k(f"buffer_load_dwordx4 v[{r}:{r+3}], v{VRL}, {SW}, s{S_C} offen sc1")
            return x
        return f
    def add_p(which):
        for i in which:
            for e in range(8 * i, 8 * i + 8, 2):
                for j in range(2):
                    r = PP + 8 * i + 4 * j + (e % 8) // 2
                    unpk(k, T + 2 * j, r, 0); unpk(k, T + 2 * j + 1, r, 1)
                k(f"v_pk_add_f32 v[{T}:{T+1}], v[{T}:{T+1}], v[{T+2}:{T+3}]")
                k(f"v_pk_add_f32 v[{X+e}:{X+e+1}], v[{X+e}:{X+e+1}], v[{T}:{T+1}]")
                k(f"v_cvt_pk_bf16_f32 v{XP+e//2}, v{X+e}, v{X+e+1}")
                if not lean: unpk(k, X + e, XP + e // 2, 0); unpk(k, X + e + 1, XP + e // 2, 1)
    if not sent:
        if diag == 5: stamp(12)
        poll_check(pe_ld, S_FPF_C, 16)
        if diag == 5: stamp(13)
        e_ld = p_loads((0, 1))()
        k(f"s_add_u32 s{S_FPF_C}, s{S_FPF_C}, 0x20000")
        row_addr()
        for i in range(4): k(f"ds_read_b128 v[{XP+4*i}:{XP+4*i+3}], v{AL} offset:{16384 + 4096*i}")
        for i in range(4): k(f"ds_read_b128 v[{YP+4*i}:{YP+4*i+3}], v{AL} offset:{4096*i}")
        pl_ld = k(poll_load(S_FPF_C))
        k("s_waitcnt lgkmcnt(0)")
        unpack(X, XP)
        if diag == 5: stamp(14)
        poll_check(pl_ld, S_FPF_C, 16)
        if diag == 5: stamp(15)
        k(f"s_add_u32 s{S_FPF_C}, s{S_FPF_C}, 0x20000")
        def mid():
            k("s_barrier")
            add_p((0, 1)); unpack(Yf, YP)
            if diag == 5: stamp(16)
        sentinel_loop("L_ppoll", p_loads((2, 3)), range(PP + 16, PP + 32), mid)
    else:
        if diag == 5: stamp(12); stamp(13)
        k(f"s_add_u32 s{S_FPF_C}, s{S_FPF_C}, 0x20000")
        def first():
            row_addr()
            for i in range(4): k(f"ds_read_b128 v[{XP+4*i}:{XP+4*i+3}], v{AL} offset:{16384 + 4096*i}")
            for i in range(4): k(f"ds_read_b128 v[{YP+4*i}:{YP+4*i+3}], v{AL} offset:{4096*i}")
            k("s_waitcnt lgkmcnt(0)\ns_barrier")
            unpack(X, XP); unpack(Yf, YP)
            if diag == 5: stamp(14)
        if arm4:
            sentinel_loop("L_ppoll2", p_loads((2,)), range(PP + 16, PP + 24), first)
            e_ld = p_loads((0, 1))()
            def mid4():
                add_p((2,)); k.wait(vm=e_ld); add_p((0, 1))
            sentinel_loop("L_ppoll", p_loads((3,)), range(PP + 24, PP + 32), mid4)
        elif ord2:
            sentinel_loop("L_ppoll2", p_loads((0, 1, 2)), range(PP, PP + 24), first)
            if diag == 5: stamp(15)
            sentinel_loop("L_ppoll", p_loads((3,)), range(PP + 24, PP + 32), lambda: add_p((0, 1, 2)))
        else:
            p_loads((0, 1, 2))()
            first()
            sentinel_loop("L_ppoll", p_loads((3,)), range(PP + 24, PP + 32))
            if diag == 5: stamp(15)
            sentinel_loop("L_ppoll2", p_loads((0, 1, 2)), range(PP, PP + 24), skip_first=True)
        if diag == 5: stamp(16)
    stamp(10)
    k(f"s_cmp_lg_u32 s{S_LAY}, 0\ns_cbranch_scc1 L_final")
    def tail_math():
        add_p((2, 3) if not sent else (3,) if ord2 else (0, 1, 2, 3)); stats(0)
    weave(tail_math, [x for x in range(npre, 7) if x not in NXS], 200)
    stamp(11)
    if diag: k(f"v_mov_b32 v{VSTAMP-1}, v{VSTAMP}")
    k(f"""
    s_mov_b32 s{S_LAY}, 1
    s_mov_b32 s26, 0
    s_mov_b32 s74, 0
    s_mov_b32 s30, 0
    s_add_u32 s{S_XN}, s{S_XN}, {MB4}
    s_add_u32 s{S_HL}, s{S_HL}, {0 if hre else H_STRIDE}
    s_add_u32 s{S_HS}, s{S_HS}, {0 if hre else H_STRIDE}
    s_add_u32 s{S_PS}, s{S_PS}, {2*MB4}
    s_add_u32 s{S_FXN_P}, s{S_FXN_P}, 0x4000
    s_add_u32 s{S_FXN_C}, s{S_FXN_C}, 0x4000
    s_branch L_layer
    """)
    k.label("L_final")
    add_p((2, 3) if not sent else (3,) if ord2 else (0, 1, 2, 3))
    k(f"s_or_b32 s16, s2, s17\ns_cbranch_scc1 L_noepoch\ns_add_u32 s87, s87, 1\nv_mov_b32 v{VP}, s87\ns_mov_b32 s16, {WS_FLAG + F_EPOCH}")
    k(f"s_mov_b64 exec, 1\nbuffer_store_dword v{VP}, off, {SW}, s16 sc1\ns_mov_b64 exec, -1")
    k.label("L_noepoch")
    srd(k, 32, 6, MB4)
    for i in range(4): k(f"buffer_store_dwordx4 v[{XP+4*i}:{XP+4*i+3}], v{AO}, s[32:35], s{S_ROWY} offen offset:{64*i} {outm}")
    if diag:
        k("s_waitcnt vmcnt(0)"); stamp(11)
        if diag == 7:
            k(f"s_cmp_lg_u32 s2, {dbg_wg}\ns_cbranch_scc1 L_nodbg\ns_cmp_lg_u32 s17, 0\ns_cbranch_scc1 L_nodbg")
            k(f"s_load_dwordx2 s[32:33], s[0:1], {ARG['dbg']}\nv_readlane_b32 s12, v{VSTAMP}, 12\nv_mov_b32 v8, 0")
            sel = [(1, x) for x in (26, 27, 1, 2, 3, 4, 5, 6, 7, 8, 9, 10)] + [(0, x) for x in (6, 8, 9, 11)]
            for n_, (w_, x) in enumerate(sel):
                k(f"v_readlane_b32 s13, v{VSTAMP - w_}, {x}\ns_nop 3\ns_sub_u32 s13, s13, s12\nv_writelane_b32 v8, s13, {n_}")
            k(f"s_waitcnt lgkmcnt(0)\ns_mov_b32 s34, 64\ns_mov_b32 s35, 0x20000\nbuffer_store_dword v8, v{VF}, s[32:35], 0 offen")
            k.label("L_nodbg")
        k(f"s_lshl_b32 s12, s2, 11\ns_lshl_b32 s13, s17, 9\ns_add_u32 s12, s12, s13\ns_add_u32 s12, s12, 0x8100000")
        k(f"buffer_store_dword v{VSTAMP-1}, v{VF}, {SW}, s12 offen\nbuffer_store_dword v{VSTAMP}, v{VF}, {SW}, s12 offen offset:256")
    k("s_endpgm")
    for lab, pre_, body in slow:
        k.label(lab); k("\n".join(pre_))
        k.label(lab + "_l"); k("\n".join(body)); k(f"s_cbranch_scc1 {lab}_l")
        k.label(lab + "_out"); k(f"s_waitcnt vmcnt(0)\ns_branch {lab}_ok")
    k.label("L_end"); k("s_endpgm")
    return (k, 512, 256), (k.name, 256, 256, 163840)

HEADER = open("interleave_layers__ssm_conv_h3__glu_gated_geglu__prompt.s.ref").read().split("; Override launch")[0]

def build(path, stamps=False, as_list=True, hpad=0, wpad=0, **kw):
    global TBH, W1T, W2T
    TBH = 224 * 512 + hpad; W1T = 448 + wpad; W2T = 448 + wpad
    asmlib.STAMPS[0] = stamps
    kk, l = gen_mega(**kw)
    txt = module(HEADER, [l], [kk])
    if not as_list: txt = txt.replace(f"; @launch kernel={l[0]} ", "; @launch ")
    txt = "\n".join(x.strip() if x.startswith("    ") else x for x in txt.split("\n"))
    open(path, "w").write(txt)
    return len(kk[0].lines), kk[0].padded, kk[0].info

if __name__ == "__main__":
    print(build("v16.s")); build("v16s.s", stamps=True); build("v16f.s", stamps=3)
```

```python
import math, struct, sys
import asmlib
from asmlib import *

MB4 = 0x400000
WS_TOTAL = 0x10000000
WS_Y, WS_KV = 0x0, 0x400000
WS_XN = 0x900000
WS_P = 0x5400000
WS_H = 0x1200000
H_STRIDE = 0x1000000
WS_W1, WS_W2, WS_FLAG = 0x3200000, 0x4200000, 0x5200000
WS_PL = 0x9000000
F_W0 = 0x14000
F_PE = 0x80000
W1T, W2T = 448, 448
F_W1, F_W2, F_PF, F_H, F_XN, F_KV, F_ARM, F_EPOCH = 0x0, 0x1000, 0x2000, 0x20000, 0x8000, 0x100000, 0x11000, 0x12000
H_BYTES = 2048 * 3584 * 2
W_BYTES = 1024 * 3584 * 2
TBH = 224 * 512
ARG = dict(q=0, k=8, v=16, shift=24, ssm=32, D=40, wg=56, wu=64, wd=72, out=80, dbg=88, ws=96)
lg = lambda x: x.bit_length() - 1
f32bits = lambda x: struct.unpack("<I", struct.pack("<f", x))[0]
SPIN = 0x20000

def srd(k, d, base, nbytes, off=0):
    if off: k(f"s_add_u32 s{d}, s{base}, {off:#x}\ns_addc_u32 s{d+1}, s{base+1}, 0")
    else: k(f"s_mov_b32 s{d}, s{base}\ns_mov_b32 s{d+1}, s{base+1}")
    k(f"s_mov_b32 s{d+2}, {nbytes:#x}\ns_mov_b32 s{d+3}, 0x20000")

def unpk(k, dst, src, hi):
    k(f"v_and_b32 v{dst}, 0xffff0000, v{src}" if hi else f"v_lshlrev_b32 v{dst}, 16, v{src}")

def touch_code(k, first, last, vaddr, vdst, sb, v0=0, n=1, step=32768):
    k.nl += 1
    here = f"L_{k.name}_pc{k.nl}"
    k(f"s_getpc_b64 s[{sb}:{sb+1}]")
    k.label(here)
    k(f"""
    s_add_u32 s{sb}, s{sb}, {first}-{here}
    s_addc_u32 s{sb+1}, s{sb+1}, 0
    s_mov_b32 s{sb+2}, {last}-{first}
    s_mov_b32 s{sb+3}, 0x20000
    v_lshlrev_b32 v{vaddr}, 7, v{v0}
    """)
    for i in range(n):
        if i: k(f"v_add_u32 v{vaddr}, {step}, v{vaddr}")
        k(f"buffer_load_dword v{vdst}, v{vaddr}, s[{sb}:{sb+3}], 0 offen")

CS = 4160; XS = 4640; CH_LDS = 4 * CS + 2 * XS; CONV_LDS = 4 * CH_LDS
NS = 8; RW = 8
LDS_Y, LDS_XR, LDS_ST = 131072, 147456, 131072 - 512
S_LAY, S_WAVE, S_WS = 3, 17, 8
SW = "s[20:23]"; SD = "s[24:27]"; SX = "s[28:31]"
(S_M0, S_W1, S_W2, S_XN, S_HL, S_HS, S_PS, S_ROWF, S_ROWY, S_FH_P, S_FH_C, S_FW2_P, S_FW2_C, S_FPF_P, S_FPF_C,
 S_FXN_P, S_FXN_C, S_SHA, S_SHB, S_SHD, S_HS6) = range(36, 57)
S_FW1_C = 19
S_PL, S_ROWL, S_TAG16, S_MSK = 56, 88, 89, 90
S_N = 68
S_DMA, S_SP, S_T = 57, 58, 10
S_A, S_B, S_C, S_D, S_E = 14, 15, 16, 18, 59
VR, VD, VST, VC2, VF, VTID, VS0, VS1, VROW, VP, VF16 = 224, 226, 227, 228, 229, 230, 231, 232, 233, 234, 235
TMP = 236
VTAG = 253
VSTAMP = 255

def gen_mega(KT=14, la_bar=7, la1=260, rate1=0.175, la2=96, rate2=0.225, wgran=2, rep=4, nap=0, q_step=6, r1_step=6, arm_step=6, npre=4, npre2=7, w0_at=3, sh_step=4, chain=True, bper=2, zig=True, cchain=True, nx=0, e_mid=False, arm4=True, lean=False, hre=False, hmod='sc1', tmod='sc1', wmod='sc1', rw=8, ins=None, est=None, phb=(1, 3, 4, 5, 6), slack=110, back=260, bi=2, vp=(2, 3, 4, 5), tlb=0, tlb_n=4, tr0=0, tr_step=16, sh_gap=4, nx_gap=6, wsw=True,  wsteps=(0, 0, 0, 0, 0, 0, 0, 0, 1, 1, 1, 1, 1, 1, 1, 2), a_step=3, sh_pos=17, shr=258, sh_lead=100, pw2=336, ord2=True, swz=4, kvnt='', qnt='', hnt='', dnt='', outm='nt', dbg_wg=77, now=0, wnt='', ct=True, pnap=0, ph_back=(110, 130, 130, 120), b2=3, fl_lag=48, thr=150, chk=10, pf_step=4, pf_at=44, pe_back=6, sent=True, park=8, free_at=(326, 358, 390, 420), ph0=386, tw=0, tw0=96, tw_step=8, pe_lag=32, rmax=0.2, rmax2=0.25, w1_step=1, w1s=2, E=2, e_late=True, KT2=16, abl=""):
    k = K("interleave_layers__ssm_conv_h3__glu_gated_geglu__prompt_kernel")
    diag = asmlib.STAMPS[0]
    RW = rw; assert 4 * RW + 16 * KT <= 256
    def stamp(i):
        if diag:
            k(f"s_memrealtime s[64:65]\ns_memtime s[66:67]\ns_waitcnt lgkmcnt(0)\nv_writelane_b32 v{VSTAMP}, s64, {i}\nv_writelane_b32 v{VSTAMP}, s66, {32 + i}")
    slow = []
    def poll_load(soff, width=1):
        if width == "w0": return f"buffer_load_dwordx2 v[{TMP}:{TMP+1}], v{TMP+13}, {SW}, s{soff} offen sc1"
        if width == "arm": return f"buffer_load_dwordx4 v[{TMP}:{TMP+3}], v{VR}, {SW}, s{soff} offen sc1"
        va = VF if soff in (S_FW1_C, S_FW2_C) else TMP + 13 if soff in (S_FPF_C, S_FKV) else VF16
        return f"buffer_load_dword v{VP}, v{va}, {SW}, s{soff} offen sc1"
    def poll_test(n, width, soff):
        if n == "w0":
            return [f"v_xor_b32 v{TMP}, v{TMP}, v{VTAG}", f"v_xor_b32 v{TMP+1}, v{TMP+1}, v{VTAG}", f"v_or_b32 v{VP}, v{TMP}, v{TMP+1}",
                    f"v_cmp_ne_u32 vcc, 0, v{VP}", f"s_or_b32 s{S_A}, vcc_lo, vcc_hi", f"s_and_b32 s{S_A}, s{S_A}, {(1 << (32 - KT)) - 1:#x}"]
        if n == "arm":
            o = [f"v_xor_b32 v{TMP+i}, v{TMP+i}, v{VTAG}" for i in range(4)]
            o += [f"v_or3_b32 v{VP}, v{TMP}, v{TMP+1}, v{TMP+2}", f"v_or_b32 v{VP}, v{VP}, v{TMP+3}", f"v_cmp_ne_u32 vcc, 0, v{VP}"]
            n = 64
        else: o = [f"v_cmp_ne_u32 vcc, v{VTAG}, v{VP}"]
        if n == "w1": o += [f"s_or_b32 s{S_A}, vcc_lo, vcc_hi", f"s_and_b32 s{S_A}, s{S_A}, {(1 << 28) - 1:#x}"]
        elif n <= 32: o.append(f"s_and_b32 s{S_A}, vcc_lo, {(1 << n) - 1:#x}")
        elif n < 64: o += [f"s_and_b32 s{S_A}, vcc_hi, {(1 << (n - 32)) - 1:#x}", f"s_or_b32 s{S_A}, s{S_A}, vcc_lo"]
        else: o.append(f"s_or_b32 s{S_A}, vcc_lo, vcc_hi")
        return o
    def poll_check(ld, soff, n, width=1):
        k.nl += 1; lab = f"L_poll{k.nl}"
        k.wait(vm=ld)
        k("\n".join(poll_test(n, width, soff)) + f"\ns_cbranch_scc1 {lab}")
        k.label(lab + "_ok")
        slow.append((lab, [f"s_mov_b32 s{S_SP}, {SPIN}"], ([f"s_sleep {nap}"] if nap else []) + [poll_load(soff, n if n in ("arm", "w0") else width), f"s_sub_u32 s{S_SP}, s{S_SP}, 1", f"s_cbranch_scc1 {lab}_out",
                    "s_waitcnt vmcnt(0)"] + poll_test(n, width, soff)))
    def flag_store(soff):
        if soff in (S_FPF_P, 78):
            return f"s_mov_b32 exec_hi, 0\nbuffer_store_dword v{VTAG}, v{VF16}, {SW}, s{soff} offen sc1\ns_mov_b32 exec_hi, -1"
        return f"s_mov_b64 exec, 1\nbuffer_store_dword v{VTAG}, off, {SW}, s{soff} sc1\ns_mov_b64 exec, -1"

    c1 = -2 * math.sqrt(2 / math.pi) * math.log2(math.e)
    k("s_cmp_ge_u32 s2, 256\ns_cbranch_scc1 L_end")
    S_FKV = 69
    if diag == 7: k(f"v_mov_b32 v{VSTAMP}, 0"); stamp(12)
    k(f"""
    s_load_dwordx4 s[72:75], s[0:1], {ARG['k']}
    s_load_dwordx2 s[8:9], s[0:1], {ARG['ws']}
    s_load_dwordx2 s[76:77], s[0:1], {ARG['shift']}
    s_load_dwordx4 s[4:7], s[0:1], {ARG['ssm']}
    s_load_dwordx4 s[96:99], s[0:1], {ARG['wg']}
    s_load_dwordx2 s[100:101], s[0:1], {ARG['q']}
    s_and_b32 s59, s2, 7
    s_lshr_b32 s60, s2, 3
    s_lshl_b32 s16, s60, 4
    v_and_b32 v3, 15, v0
    v_add_u32 v3, s16, v3
    """)
    touch_code(k, "L_body", "L_end", 4, 51, 80, v0=3)
    k.label("L_body")
    GS = 1056; KB = CONV_LDS; VB = KB + 17 * GS
    k(f"""
    v_lshrrev_b32 v1, 6, v0
    v_and_b32 v2, 63, v0
    v_readfirstlane_b32 s17, v1
    s_lshl_b32 s61, s59, 5
    s_add_u32 s61, s61, s60
    s_and_b32 s16, s61, 15
    s_lshl_b32 s16, s16, 18
    s_lshr_b32 s18, s61, 4
    s_lshl_b32 s18, s18, 7
    s_add_u32 s16, s16, s18
    v_lshrrev_b32 v3, 3, v2
    v_lshlrev_b32 v3, 11, v3
    v_and_b32 v7, 7, v2
    v_lshl_add_u32 v3, v7, 4, v3
    v_add_u32 v3, s16, v3
    v_subrev_u32 v8, 0x4000, v3
    s_lshl_b32 s84, s17, 16
    s_mul_i32 s85, s17, {4*GS}
    s_and_b32 s16, s61, 0xf0
    v_bfe_u32 v49, v0, 3, 3
    v_lshrrev_b32 v9, 7, v0
    v_lshl_add_u32 v49, v9, 3, v49
    v_add_u32 v9, s16, v49
    v_lshlrev_b32 v7, 5, v9
    """)
    if diag and diag != 7: k(f"v_mov_b32 v{VSTAMP}, 0")
    k("s_waitcnt lgkmcnt(0)")
    srd(k, 24, 72, MB4); srd(k, 28, 74, MB4); srd(k, 32, 76, 8192)
    k(f"s_mov_b32 m0, {KB}\ns_nop 0\nbuffer_load_dwordx4 v8, s[24:27], 0 offen {kvnt} lds")
    for base, sr in ((KB + GS, "s[24:27]"), (VB, "s[28:31]")):
        for j in range(4):
            k(f"s_add_u32 m0, s85, {base + j*GS}\ns_add_u32 s16, s84, {j*16384}")
            k(f"buffer_load_dwordx4 v3, {sr}, s16 offen {kvnt} lds")
    k("buffer_load_dwordx4 v[108:111], v7, s[32:35], 0 offen")
    lkv = k("buffer_load_dwordx4 v[112:115], v7, s[32:35], 0 offen offset:16")
    stamp(0)
    k(f"s_add_u32 s70, s8, {WS_FLAG + F_EPOCH}\ns_addc_u32 s71, s9, 0\ns_load_dword s87, s[70:71], 0")
    srd(k, 20, 8, WS_TOTAL); srd(k, 28, 8, WS_TOTAL)
    KM = 32 - KT
    k(f"""
    s_mov_b32 s{S_LAY}, 0
    v_mov_b32 v{VTID}, v0
    v_lshlrev_b32 v{VR}, 4, v2
    s_lshl_b32 s18, s61, 2
    s_add_u32 s18, s18, s17
    s_mul_i32 s62, s17, {CH_LDS}
    s_lshl_b32 s16, s18, 12
    s_add_u32 s64, s4, s16
    s_addc_u32 s65, s5, 0
    s_add_u32 s16, s16, {WS_KV}
    s_add_u32 s72, s8, s16
    s_addc_u32 s73, s9, 0
    s_mov_b32 s74, 4096
    s_mov_b32 s75, 0x20000
    s_and_b32 s16, s18, 0xfffffffe
    s_lshl_b32 s16, s16, 1
    s_add_u32 s6, s6, s16
    s_addc_u32 s7, s7, 0
    s_mov_b32 s24, s64
    s_mov_b32 s25, s65
    s_mov_b32 s26, 4096
    s_load_dword s63, s[6:7], 0
    s_load_dwordx4 s[4:7], s[0:1], {ARG['wd']}
    s_mov_b32 s84, 4096
    s_mov_b32 s85, 8192
    s_mov_b32 s86, 12288
    v_and_b32 v48, 7, v0
    v_bfe_u32 v10, v0, 6, 1
    v_lshl_add_u32 v48, v10, 3, v48
    v_mul_u32_u24 v52, {GS}, v48
    v_lshl_add_u32 v52, v49, 3, v52
    v_add_u32 v52, {KB}, v52
    s_and_b32 s16, s61, 15
    s_lshl_b32 s16, s16, 4
    v_add_u32 v48, s16, v48
    v_sub_u32 v50, 255, v48
    v_lshlrev_b32 v50, 4, v50
    v_lshl_add_u32 v50, v9, 14, v50
    v_add_u32 v50, {WS_KV}, v50
    s_lshr_b32 s32, s59, 1
    s_lshl_b32 s32, s32, 2
    s_and_b32 s33, s60, 3
    s_add_u32 s32, s32, s33
    s_and_b32 s33, s59, 1
    s_lshr_b32 s34, s60, 2
    s_lshl_b32 s35, s33, 3
    s_add_u32 s35, s35, s34
    s_lshl_b32 s19, s32, 4
    s_add_u32 s19, s19, s35
    s_lshl_b32 s{S_ROWY}, s19, 14
    s_lshr_b32 s45, s19, 1
    s_lshl_b32 s45, s45, 15
    s_and_b32 s16, s19, 1
    s_lshl_b32 s16, s16, 7
    s_add_u32 s45, s45, s16
    s_and_b32 s16, s17, 1
    s_lshl_b32 s16, s16, 11
    s_add_u32 s45, s45, s16
    s_lshr_b32 s16, s17, 1
    s_lshl_b32 s16, s16, 22
    s_add_u32 s45, s45, s16
    s_add_u32 s45, s45, {WS_XN}
    v_and_b32 v8, 7, v0
    v_lshrrev_b32 v9, 3, v2
    v_lshlrev_b32 v15, 4, v8
    v_lshl_add_u32 v15, v9, 8, v15
    v_lshrrev_b32 v9, 3, v0
    v_and_b32 v13, 3, v9
    v_lshrrev_b32 v9, 2, v9
    v_lshl_add_u32 v9, v9, 4, v13
    v_lshlrev_b32 v53, 11, v8
    v_lshl_add_u32 v53, v9, 4, v53
    v_lshlrev_b32 v{VROW}, 4, v8
    v_lshl_add_u32 v{VROW}, v9, 8, v{VROW}
    v_mov_b32 v16, -1
    v_mov_b32 v17, -1
    v_mov_b32 v18, -1
    v_mov_b32 v19, -1
    v_lshlrev_b32 v14, 4, v0
    v_and_b32 v61, 15, v2
    v_lshrrev_b32 v62, 4, v2
    v_lshlrev_b32 v63, 2, v61
    v_lshl_add_u32 v63, v62, 4, v63
    v_mul_u32_u24 v54, 7168, v62
    v_lshlrev_b32 v13, {1 if wsw else 8}, v62
    v_and_b32 v13, 15, v13
    v_xor_b32 v13, v13, v61
    v_lshl_add_u32 v20, v13, 4, v54
    v_xor_b32 v13, {8 if wsw else 0}, v13
    v_lshl_add_u32 v58, v13, 4, v54
    v_mov_b32 v54, v20
    s_lshl_b32 s11, s17, 13
    s_add_u32 s11, s11, {CONV_LDS}
    """)
    assert E <= 4
    so = ["0", "s84", "s85", "s86"]
    A = lambda buf, p: 64 + buf * 64 + 4 * p
    B = lambda buf, j: 96 + buf * 64 + 4 * j
    AD = 40; HR = 192; QP = 20
    for w in range(4): k(f"v_subrev_u32 v{4+w}, {60-4*w}, v63")
    k("s_waitcnt lgkmcnt(0)")
    k(f"""
    v_and_b32 v8, 3, v61
    v_mul_u32_u24 v8, {CS}, v8
    v_lshrrev_b32 v9, 2, v61
    v_add_u32 v9, v9, v62
    v_lshl_add_u32 v56, v9, 4, v8
    v_add_u32 v56, s62, v56
    v_lshrrev_b32 v8, 3, v61
    v_mul_u32_u24 v9, {XS}, v8
    v_and_b32 v10, 7, v61
    v_lshlrev_b32 v13, 6, v10
    v_sub_u32 v9, v9, v13
    v_lshl_add_u32 v9, v62, 4, v9
    v_add_u32 v9, {4*CS + 4032 - 3584}, v9
    v_add_u32 v57, s62, v9
    v_lshrrev_b32 v13, 1, v10
    v_xor_b32 v13, v13, v62
    v_lshl_add_u32 v13, v10, 2, v13
    v_lshlrev_b32 v13, 4, v13
    v_lshl_add_u32 v13, v8, 12, v13
    v_add_u32 v59, s62, v13
    v_lshrrev_b32 v8, 5, v2
    v_mul_u32_u24 v8, {XS}, v8
    v_and_b32 v9, 31, v2
    v_lshl_add_u32 v8, v9, 4, v8
    v_add_u32 v8, s62, v8
    v_mov_b32 v44, 0
    v_mov_b32 v45, 0
    v_mov_b32 v46, 0
    v_mov_b32 v47, 0
    ds_write_b128 v8, v[44:47] offset:{4*CS + 4096}
    v_lshlrev_b32 v55, 3, v62
    v_bfe_u32 v9, v2, 2, 2
    v_add_u32 v55, v55, v9
    v_lshlrev_b32 v55, 8, v55
    v_and_b32 v9, 3, v2
    v_lshl_add_u32 v55, v9, 3, v55
    v_bfe_u32 v9, v2, 2, {3 if wsw else 0}
    v_lshl_add_u32 v55, v9, 5, v55
    v_add_u32 v55, s11, v55
    v_add_u32 v60, s62, v{VR}
    s_and_b32 s16, s18, 1
    s_lshl_b32 s16, s16, 4
    s_lshr_b32 s63, s63, s16
    s_and_b32 s63, s63, 0xffff
    v_mov_b32 v9, s63
    s_lshr_b32 s{S_FKV}, s61, 4
    s_lshl_b32 s{S_FKV}, s{S_FKV}, 11
    s_add_u32 s{S_FKV}, s{S_FKV}, {WS_FLAG + F_KV}
    s_lshl_b32 s78, s61, 7
    s_add_u32 s78, s78, {WS_FLAG + F_KV}
    v_lshlrev_b32 v{TMP+13}, 7, v61
    v_and_b32 v{VF16}, 31, v2
    v_lshlrev_b32 v{VF16}, 2, v{VF16}
    s_mul_i32 s{S_N}, s87, 0x9e3779b1
    s_add_u32 s{S_N}, s{S_N}, 0x7f4a7c15
    s_add_u32 s16, s{S_N}, 1
    v_mov_b32 v{VTAG}, s16
    """)
    for w in range(4): k(f"v_cmp_eq_u32 vcc, 0, v{4+w}\nv_cndmask_b32 v{AD+w}, 0, v9, vcc")
    for i in range(4):
        for h in range(2): h_ld = k(f"buffer_load_dwordx4 v[{HR+8*i+4*h}:{HR+8*i+4*h+3}], v{VR}, s[24:27], 0 offen offset:{i*1024 + 16*h} {hnt}")
    for w in range(4): k(f"buffer_load_dword v{A(0,0)+w}, v{4+w}, s[24:27], 0 offen")
    if tlb:
        k(f"s_mul_i32 s16, s60, {tlb_n}\nv_and_b32 v21, {tlb_n - 1}, v2\nv_add_u32 v21, s16, v21\nv_lshlrev_b32 v21, {tlb}, v21\nv_add_u32 v21, {(1 << tlb) - 64}, v21")
        k(f"s_cmp_lg_u32 s17, 3\ns_cbranch_scc1 L_notlb")
        n_ = k.nvm
        srd(k, 40, 8, WS_P + 4 * MB4); k("buffer_load_dword v51, v21, s[40:43], 0 offen")
        for b, sz in ((96, W_BYTES), (98, W_BYTES), (4, W_BYTES), (100, MB4), (6, MB4)):
            srd(k, 40, b, sz); k("buffer_load_dword v51, v21, s[40:43], 0 offen")
        k.nvm = n_
        k.label("L_notlb")
    for i in range(4):
        k(f"s_add_u32 s16, s{S_ROWY}, {WS_Y + 4096*i}\nbuffer_store_dwordx4 v[16:19], v14, {SW}, s16 offen sc1")
    k(f"buffer_store_dwordx4 v[16:19], v15, {SW}, s45 offen sc1")
    qid = {}
    def q_line(i): return f"buffer_load_dwordx4 a[{64+4*i}:{67+4*i}], v53, s[32:35], s{S_ROWY} offen offset:{64*i} {qnt}"
    if diag == 6: stamp(12)
    k.wait(vm=lkv); k("s_barrier")
    if diag == 6: stamp(13)
    KR = lambda t: 74 + 2 * t
    VV = lambda t: 90 + 2 * t
    for t in range(-3, 8): lk = k(f"ds_read_b64 v[{KR(t)}:{KR(t)+1}], v52 offset:{GS + 128*t if t >= 0 else 128*(8+t)}")
    for t in range(8): lv = k(f"ds_read_b64 v[{VV(t)}:{VV(t)+1}], v52 offset:{17*GS + 128*t}")
    W = lambda c, j: 116 + 4 * c + j
    for c in range(4):
        for j in range(4): unpk(k, W(c, j), 108 + 2 * c + (j >> 1), j & 1)
    KS = lambda c, t: 132 + 8 * c + t
    KF = lambda t: 167 + t
    k.wait(lg=lk)
    for c in range(4):
        for t in range(-3, 8): unpk(k, KF(t), KR(t) + (c >> 1), c & 1)
        for t in range(8): k(f"v_mul_f32 v{KS(c,t)}, v{W(c,3)}, v{KF(t-3)}")
        for j in (2, 1, 0):
            for t in range(8): k(f"v_fmac_f32 v{KS(c,t)}, v{W(c,j)}, v{KF(t-j)}")
        k.wait(lg=lv)
        for t in range(8): unpk(k, KF(t), VV(t) + (c >> 1), c & 1)
        for t in range(8): k(f"v_mul_f32 v{KS(c,t)}, v{KS(c,t)}, v{KF(t)}")
        for i in range(4): k(f"v_cvt_pk_bf16_f32 v{176+4*c+i}, v{KS(c,7-2*i)}, v{KS(c,6-2*i)}")
        k(f"buffer_store_dwordx4 v[{176+4*c}:{179+4*c}], v50, {SW}, {so[c]} offen sc1")
    stamp(26)
    kv_st = k.nvm
    k.wait(vm=h_ld)
    for i in range(4):
        r = HR + 8 * i; t = 72 + 8 * i
        for e in range(6): k(f"v_mov_b32 v{t+e}, v{r+1+e}")
        for cc, src in enumerate((t, r + 2, t + 2, r + 4)):
            k(f"ds_write_b128 v60, v[{src}:{src+3}] offset:{cc*CS + i*1024}")
    if diag == 6: stamp(14)
    k.wait(vm=kv_st)
    if diag == 6: stamp(15)
    k("s_barrier")
    if diag == 6: stamp(16)
    k("s_cmp_lg_u32 s17, 0\ns_cbranch_scc1 L_nokvf")
    k(flag_store(78)); k.nvm -= 1
    k.label("L_nokvf")
    k(f"s_lshl_b32 s16, s2, 2\ns_add_u32 s16, s16, {WS_FLAG + F_ARM}\ns_cmp_lg_u32 s17, 1\ns_cbranch_scc1 L_noarm")
    k(flag_store(16)); k.nvm -= 1
    k.label("L_noarm")
    KM2 = 56 - KT2
    k(f"""
    s_lshl_b32 s{S_M0}, s17, 12
    s_lshr_b32 s13, s59, 1
    s_lshl_b32 s12, s13, 3
    s_add_u32 s12, s12, s34
    s_lshl_b32 s14, s33, 2
    s_and_b32 s15, s60, 3
    s_add_u32 s14, s14, s15
    s_lshl_b32 s14, s14, 2
    s_add_u32 s14, s14, s17
    s_lshl_b32 s16, s32, 2
    s_add_u32 s16, s16, s17
    s_mul_i32 s{S_W1}, s12, {W1T*1024}
    s_add_u32 s{S_W1}, s{S_W1}, {WS_W1}
    s_mul_i32 s{S_W2}, s35, {W2T*1024}
    s_add_u32 s{S_W2}, s{S_W2}, {WS_W2}
    s_lshl_b32 s{S_XN}, s14, 17
    s_add_u32 s{S_XN}, s{S_XN}, {WS_XN}
    s_lshl_b32 s{S_PS}, s16, 14
    s_lshl_b32 s15, s34, 10
    s_add_u32 s{S_PS}, s{S_PS}, s15
    s_lshl_b32 s15, s33, 22
    s_add_u32 s{S_PS}, s{S_PS}, s15
    s_add_u32 s{S_PS}, s{S_PS}, {WS_P}
    s_lshr_b32 s{S_ROWL}, s19, 1
    s_lshl_b32 s{S_ROWF}, s{S_ROWL}, 15
    s_lshl_b32 s{S_ROWL}, s{S_ROWL}, 13
    s_and_b32 s15, s19, 1
    s_lshl_b32 s15, s15, 7
    s_add_u32 s{S_ROWL}, s{S_ROWL}, s15
    s_add_u32 s{S_ROWF}, s{S_ROWF}, s15
    s_lshl_b32 s{S_FXN_C}, s14, 7
    s_lshl_b32 s15, s13, 12
    s_add_u32 s{S_FXN_C}, s{S_FXN_C}, s15
    s_add_u32 s{S_FXN_C}, s{S_FXN_C}, {WS_FLAG + F_XN}
    s_lshr_b32 s{S_FXN_P}, s19, 3
    s_lshl_b32 s{S_FXN_P}, s{S_FXN_P}, 7
    s_lshl_b32 s15, s34, 2
    s_add_u32 s{S_FXN_P}, s{S_FXN_P}, s15
    s_add_u32 s{S_FXN_P}, s{S_FXN_P}, s{S_M0}
    s_add_u32 s{S_FXN_P}, s{S_FXN_P}, {WS_FLAG + F_XN}
    s_lshr_b32 s{S_FPF_C}, s19, 2
    s_lshl_b32 s{S_FPF_C}, s{S_FPF_C}, 11
    s_add_u32 s{S_FPF_C}, s{S_FPF_C}, {WS_FLAG + F_PE}
    s_lshl_b32 s{S_FPF_P}, s16, 11
    s_lshl_b32 s15, s35, 7
    s_add_u32 s{S_FPF_P}, s{S_FPF_P}, s15
    s_add_u32 s{S_FPF_P}, s{S_FPF_P}, {WS_FLAG + F_PE}
    s_lshl_b32 s{S_FH_P}, s14, 8
    s_lshr_b32 s15, s12, 4
    s_lshl_b32 s15, s15, 7
    s_add_u32 s{S_FH_P}, s{S_FH_P}, s15
    s_and_b32 s15, s12, 15
    s_lshl_b32 s15, s15, 2
    s_add_u32 s{S_FH_P}, s{S_FH_P}, s15
    s_add_u32 s{S_FH_P}, s{S_FH_P}, {WS_FLAG + F_H}
    s_lshr_b32 s{S_FH_C}, s16, 1
    s_lshl_b32 s{S_FH_C}, s{S_FH_C}, 8
    s_lshl_b32 s15, s33, 7
    s_add_u32 s{S_FH_C}, s{S_FH_C}, s15
    s_add_u32 s{S_FH_C}, s{S_FH_C}, {WS_FLAG + F_H}
    s_mul_i32 s{S_HL}, s16, {2*TBH}
    s_mul_i32 s15, s33, {56*1024}
    s_add_u32 s{S_HL}, s{S_HL}, s15
    s_add_u32 s{S_HL}, s{S_HL}, {WS_H}
    s_mul_i32 s{S_HS}, s14, {4*TBH}
    s_lshr_b32 s15, s12, 4
    s_mul_i32 s15, s15, {56*1024}
    s_add_u32 s{S_HS}, s{S_HS}, s15
    s_and_b32 s15, s12, 15
    s_lshl_b32 s15, s15, 9
    s_add_u32 s{S_HS}, s{S_HS}, s15
    s_add_u32 s{S_HS}, s{S_HS}, {WS_H}
    s_lshl_b32 s{S_FW2_C}, s35, 8
    s_add_u32 s{S_FW2_C}, s{S_FW2_C}, {WS_FLAG + F_W2}
    s_mul_i32 s15, s12, 7
    s_lshr_b32 s15, s15, 3
    s_min_u32 s15, s15, 26
    s_lshl_b32 s15, s15, 7
    s_add_u32 s{S_FW1_C}, s15, {WS_FLAG + F_W1}
    """)
    k(f"""
    s_add_u32 s15, s32, s34
    s_and_b32 s15, s15, 1
    s_mul_i32 s86, s15, {1024 * swz}
    s_mul_i32 s15, s15, {8192 * swz}
    s_add_u32 s92, s{S_W2}, s15
    s_sub_u32 s93, s{S_W2}, s15
    """)
    k(f"""
    s_lshl_b32 s12, s2, 2
    s_add_u32 s12, s12, s17
    s_lshr_b32 s13, s12, 3
    s_and_b32 s12, s12, 7
    s_cmp_ge_u32 s13, 56
    s_cselect_b32 s14, 1, 0
    s_cselect_b32 s15, 56, 0
    s_sub_u32 s13, s13, s15
    s_lshl_b32 s15, s14, 3
    s_add_u32 s15, s15, s12
    s_lshl_b32 s{S_FW2_P}, s15, 8
    s_lshl_b32 s16, s13, 2
    s_add_u32 s{S_FW2_P}, s{S_FW2_P}, s16
    s_add_u32 s{S_FW2_P}, s{S_FW2_P}, {WS_FLAG + F_W2}
    s_mul_i32 s{S_SHD}, s15, {W2T*1024}
    s_and_b32 s32, s13, {1 if chain else 0}
    s_sub_u32 s33, s13, s32
    s_lshl_b32 s16, s33, 13
    s_lshl_b32 s60, s33, 11
    s_add_u32 s60, s60, {KM2 * 6 * 1024}
    s_cmp_lt_u32 s13, {KM2}
    s_cselect_b32 s16, s16, s60
    s_cselect_b32 s60, {2 if chain else 1}, {KT2}
    s_lshl_b32 s60, s60, 11
    s_lshl_b32 s32, s32, 10
    s_add_u32 s16, s16, s32
    s_add_u32 s{S_SHD}, s{S_SHD}, s16
    s_add_u32 s{S_SHD}, s{S_SHD}, {WS_W2}
    s_and_b32 s15, s13, 7
    s_mul_i32 s15, s15, 224
    s_lshr_b32 s16, s13, 3
    s_lshl_b32 s16, s16, 4
    s_add_u32 s15, s15, s16
    s_mul_i32 s14, s14, 1792
    s_add_u32 s15, s15, s14
    s_add_u32 s16, s15, 112
    s_lshl_b32 s12, s12, 8
    s_lshl_b32 s{S_SHA}, s15, 11
    s_add_u32 s{S_SHA}, s{S_SHA}, s12
    s_lshl_b32 s{S_SHB}, s16, 11
    s_add_u32 s{S_SHB}, s{S_SHB}, s12
    v_add_u32 v{VR+1}, 0x10000, v{VR}
    v_add_u32 v{VD}, s{S_M0}, v{VR}
    v_lshrrev_b32 v21, 5, v2
    v_and_b32 v22, 31, v2
    v_lshlrev_b32 v22, 4, v22
    v_mul_u32_u24 v23, {TBH}, v21
    v_add_u32 v{VST}, v23, v22
    v_mov_b32 v{VC2}, {f32bits(c1*0.044715):#x}
    v_lshlrev_b32 v{VF}, 2, v2
    v_lshrrev_b32 v24, 4, v2
    v_and_b32 v25, 15, v2
    v_lshlrev_b32 v25, 4, v25
    v_lshl_add_u32 v{VS0}, v24, 11, v25
    v_bfe_u32 v25, v2, 2, 3
    v_lshlrev_b32 v25, 8, v25
    v_lshl_add_u32 v25, v21, 14, v25
    v_and_b32 v24, 3, v2
    v_lshl_add_u32 v25, v24, 4, v25
    v_add_u32 v{VS1}, s{S_M0}, v25
    """)

    x = k(poll_load(S_FKV))
    poll_check(x, S_FKV, 16)
    stamp(27)
    xl = []
    for i in range(4):
        k(f"buffer_load_dwordx4 v[{128+8*i}:{131+8*i}], v{VR}, s[72:75], 0 offen offset:{i*1024} sc1")
        xl.append(k(f"buffer_load_dword v{132+8*i}, v{VR}, s[72:75], 0 offen offset:{i*1024 + 16} sc1"))
    OFFS = [[84, 85, 89, 90, 91, 94, 95, 69], [70 + i for i in range(8)]]
    WSRC, WBASE, WFLAG = (10, 13), ((24, 25), (96, 97)), (62, 63)
    assert all((x * 9363) >> 16 == x // 7 for x in range(232)) and chain
    for r in range(2):
        k(f"""
        s_mul_i32 s12, s2, {3 if r else 4}
        s_add_u32 s12, s12, s17
        s_add_u32 s12, s12, {1024 * r}
        s_mul_hi_u32 s14, s12, {-(-(1 << 32) // 28)}
        s_mul_i32 s16, s14, 28
        s_sub_u32 s12, s12, s16
        s_and_b32 s15, s14, 1
        s_lshr_b32 s14, s14, 1
        s_cmp_eq_u32 s15, 0
        s_cselect_b32 s{WBASE[r][0]}, s96, s98
        s_cselect_b32 s{WBASE[r][1]}, s97, s99
        s_mul_i32 s{WSRC[r]}, s14, {32*7168}
        s_lshl_b32 s16, s12, 8
        s_add_u32 s{WSRC[r]}, s{WSRC[r]}, s16
        s_lshl_b32 s78, s14, 1
        s_add_u32 s78, s78, s15
        s_lshl_b32 s78, s78, 2
        s_lshl_b32 s16, s12, 7
        s_add_u32 s78, s78, s16
        s_add_u32 s78, s78, {WS_FLAG + F_W1 - 8*18}
        s_and_b32 s18, s14, 1
        s_sub_u32 s57, s14, s18
        s_add_u32 s57, s57, s15
        s_mul_i32 s58, s57, 14
        s_lshl_b32 s59, s57, 1
        s_add_u32 s59, s59, {12*KM}
        s_cmp_lt_u32 s14, {KM}
        s_cselect_b32 s58, s58, s59
        s_cselect_b32 s59, 2, {2*KT}
        s_cmp_lt_u32 s14, 18
        s_cselect_b32 s{WFLAG[r]}, 0, s78
        s_add_u32 s58, s58, s18
        s_add_u32 s58, s58, {WS_W1 >> 10}
        s_lshl_b32 s12, s12, 3
        s_mul_i32 s16, s12, 9363
        s_lshr_b32 s16, s16, 16
        s_mul_i32 s78, s16, 7
        s_sub_u32 s78, s12, s78
        s_mul_i32 s16, s16, {W1T}
        s_add_u32 s58, s58, s16
        s_mul_i32 s16, s78, s59
        s_add_u32 s58, s58, s16
        s_lshl_b32 s{OFFS[r][0]}, s58, 10
        s_lshl_b32 s59, s59, 10
        s_mul_i32 s79, s59, 6
        s_sub_u32 s79, {W1T * 1024}, s79
        """)
        for i in range(7):
            k(f"s_cmp_eq_u32 s78, {6 - i}\ns_cselect_b32 s16, s79, s59\ns_add_u32 s{OFFS[r][i+1]}, s{OFFS[r][i]}, s16")
    k(f"s_mov_b32 s26, {0 if now & 1 else W_BYTES}\ns_cmp_eq_u32 s17, 3\ns_cselect_b32 s{WFLAG[1]}, 0, s{WFLAG[1]}\ns_cselect_b32 s30, 0, s30\ns_cselect_b32 s98, 0, {0 if now & 2 else W_BYTES}")
    srd(k, 32, 100, MB4)
    def w_load(r, j):
        return [f"s_add_u32 m0, s11, {1024*j + 32768*r}", f"s_add_u32 s12, s{WSRC[r]}, {4*7168*j}", f"buffer_load_dwordx4 v{58 if (j >> 1) & 1 else 54}, s[24:27], s12 offen {wnt} lds"]
    for i in range(4):
        r = 128 + 8 * i; t = 160 + 4 * i
        k.wait(vm=xl[i])
        k(f"ds_write_b128 v60, v[{r}:{r+3}] offset:{4*CS + XS + i*1024}")
        for e in range(4): k(f"v_alignbit_b32 v{t+e}, v{r+e+1}, v{r+e}, 16")
        k(f"ds_write_b128 v60, v[{t}:{t+3}] offset:{4*CS + i*1024}")
    stamp(1)
    Y = lambda j: 8 + 4 * j
    def reads(i):
        buf = i & 1; out = []
        for x in range(8):
            out.append(("B", x, f"ds_read_b128 v[{B(buf,x)}:{B(buf,x)+3}], v57 offset:{3584-512*x+64*i}"))
            if (i, x) != (0, 0):
                out.append(("A", x, f"ds_read_b128 v[{A(buf,x)}:{A(buf,x)+3}], v56 offset:{64*(i-1)+512*x}"))
        return out
    ids = {}
    for kind, x, txt in reads(0): ids[(0, kind, x)] = k(txt)
    for j in range(8):
        k.wait(lg=ids[(0, "B", j)])
        k(f"v_mfma_f32_16x16x32_bf16 v[{Y(j)}:{Y(j)+3}], v[{AD}:{AD+3}], v[{B(0,j)}:{B(0,j)+3}], 0")
    side = {i: [] for i in range(8)}
    def sh_reads(r):
        o = []
        for i in range(8):
            f = 32 * r + 4 * i
            ra = 48 + (i & 1)
            o += [("r", None, f"v_xor_b32 v{ra}, {32*i}, v55\nds_read_b64_tr_b16 a[{f}:{f+1}], v{ra} offset:{32768*r}"),
                  ("r", (r, i), f"ds_read_b64_tr_b16 a[{f+2}:{f+3}], v{ra} offset:{1024 + 32768*r}")]
        return o
    def sh_stores(r):
        return [("s", (r, i), f"buffer_store_dwordx4 a[{32*r+4*i}:{32*r+4*i+3}], v{VR}, {SX if r else SW}, s{OFFS[r][i]} offen sc1") for i in range(8)]
    side[arm_step] += [("v", "arm", f"s_mov_b32 s79, {WS_FLAG + F_ARM}\n" + poll_load(79, "arm"))]
    for n_, st_ in enumerate(wsteps):
        r, j = divmod(n_, 8)
        if n_ == 8: side[st_].append(("x", None, "s_mov_b32 s24, s96\ns_mov_b32 s25, s97\ns_mov_b32 s26, s98"))
        side[st_].append(("v", f"w{r}", "\n".join(w_load(r, j))))
    side[q_step] += [("v", "q", q_line(i)) for i in range(4)]
    rd0 = sh_reads(0)
    side[a_step] += [("w", 0)] + rd0[:10]
    side[a_step + 1] += rd0[10:] + sh_stores(0)[:4]
    side[a_step + 2] += sh_stores(0)[4:]
    sid = dict(qid)
    for i in range(8):
        buf = i & 1
        nxt = reads(i + 1) if i < 7 else []
        order = sorted([(p, j) for p in range(8) for j in range(8 - p)], key=(lambda t: (t[0] + t[1], t[0] if (t[0] + t[1]) & 1 else -t[0])) if cchain else (lambda t: (max(t), t[0] + t[1])))
        sd = side[i]
        for n, (p, j) in enumerate(order):
            k.wait(lg=max(ids.get((i, "A", p), 0), ids[(i, "B", j)]))
            jp = p + j
            k(f"v_mfma_f32_16x16x32_bf16 v[{Y(jp)}:{Y(jp)+3}], v[{A(buf,p)}:{A(buf,p)+3}], v[{B(buf,j)}:{B(buf,j)+3}], v[{Y(jp)}:{Y(jp)+3}]")
            if n % 2 == 1 and nxt:
                kind, x, txt = nxt.pop(0); ids[(i + 1, kind, x)] = k(txt)
            if n % 2 == 0 and sd and (sd[0][0] not in "sv" or n % 4 == 0):
                it = sd.pop(0)
                if it[0] == "w": k.wait(vm=sid["w0"])
                elif it[0] == "s":
                    k.wait(lg=sid[it[1]]); sid["st0"] = k(it[2])
                else:
                    x = k(it[2])
                    if it[1]: sid[it[1]] = x
        assert not nxt and not sd
    stamp(2)
    for j in range(8): k(f"ds_write_b128 v59, v[{Y(j)}:{Y(j)+3}] offset:{512*j}")
    k(f"""
    v_lshrrev_b32 v4, 2, v0
    v_bfe_u32 v5, v4, 3, 2
    v_xor_b32 v5, v5, v4
    v_lshlrev_b32 v5, 4, v5
    v_and_b32 v6, 3, v0
    v_lshl_add_u32 v5, v6, 2, v5
    v_lshlrev_b32 v6, 4, v6
    v_lshl_add_u32 v6, v4, 14, v6
    s_lshl_b32 s12, s61, 6
    s_add_u32 s12, s12, {WS_Y}
    """)
    for c in range(1, 4): k(f"v_add_u32 v{40+c}, {c*CH_LDS}, v5")
    k("v_mov_b32 v40, v5")
    poll_check(sid["arm"], 79, "arm")
    k.wait(vm=sid["st0"], lg=k.nlg); k("s_barrier")
    rid = {}
    for i in range(4):
        for c in range(4):
            rid[i] = k(f"ds_read2st64_b32 v[{64+8*i+2*c}:{65+8*i+2*c}], v{40+c} offset0:{4*i} offset1:{16+4*i}")
    for i in range(4):
        k.wait(lg=rid[i])
        for par in range(2):
            for h in range(2):
                k(f"v_cvt_pk_bf16_f32 v{96+4*i+2*par+h}, v{64+8*i+4*h+par}, v{64+8*i+4*h+2+par}")
        k(f"buffer_store_dwordx4 v[{96+4*i}:{99+4*i}], v6, {SW}, s12 offen sc1")
        if i < 3: k("s_add_u32 s12, s12, 0x100000")
    stamp(3)
    XP, YP, P0, P1, X, Yf, T, AY, AS0, AS1, AL, AO = 8, 24, 40, 56, 72, 104, 136, 0, 1, 2, 3, 4
    def row_addr():
        k(f"""
        v_and_b32 v6, 7, v{VTID}
        v_bfe_u32 v5, v{VTID}, 3, 2
        v_lshrrev_b32 v7, 5, v{VTID}
        v_lshl_add_u32 v7, v7, 4, v5
        v_lshlrev_b32 v{AY}, 3, v6
        v_lshl_add_u32 v{AY}, v7, 7, v{AY}
        v_lshlrev_b32 v{AO}, 11, v6
        v_lshl_add_u32 v{AO}, v7, 4, v{AO}
        v_lshrrev_b32 v{AS0}, 6, v{VTID}
        v_lshlrev_b32 v{AS0}, 3, v{AS0}
        v_lshl_add_u32 v{AS0}, v6, 5, v{AS0}
        v_bfe_u32 v7, v{VTID}, 4, 1
        v_lshl_add_u32 v{AS0}, v7, 2, v{AS0}
        v_add_u32 v{AS0}, {LDS_ST}, v{AS0}
        v_lshlrev_b32 v{AS1}, 5, v6
        v_add_u32 v{AS1}, {LDS_ST}, v{AS1}
        v_lshlrev_b32 v{AL}, 4, v{VTID}
        v_add_u32 v{AL}, {LDS_Y}, v{AL}
        """)
    def unpack(dst, src):
        for e in range(32): unpk(k, dst + e, src + e // 2, e & 1)
    def stats(off):
        k(f"v_pk_add_f32 v[{T}:{T+1}], v[{X}:{X+1}], v[{X+2}:{X+3}]")
        k(f"v_pk_mul_f32 v[{T+2}:{T+3}], v[{X}:{X+1}], v[{X}:{X+1}]")
        for e in range(2, 32, 2):
            if e > 2: k(f"v_pk_add_f32 v[{T}:{T+1}], v[{T}:{T+1}], v[{X+e}:{X+e+1}]")
            k(f"v_pk_fma_f32 v[{T+2}:{T+3}], v[{X+e}:{X+e+1}], v[{X+e}:{X+e+1}], v[{T+2}:{T+3}]")
        R = T + 8
        k(f"""
        v_add_f32 v{T}, v{T}, v{T+1}
        v_add_f32 v{T+2}, v{T+2}, v{T+3}
        v_permlane16_swap_b32 v{T}, v{T+2}
        v_add_f32 v{T}, v{T}, v{T+2}
        v_add_f32_dpp v{T}, v{T}, v{T} row_ror:8 row_mask:0xf bank_mask:0xf
        v_mov_b32 v{T+1}, v{T}
        v_permlane32_swap_b32 v{T}, v{T+1}
        v_add_f32 v{T}, v{T}, v{T+1}
        ds_write_b32 v{AS0}, v{T} offset:{off}
        s_waitcnt lgkmcnt(0)
        s_barrier
        ds_read_b128 v[{R}:{R+3}], v{AS1} offset:{off}
        ds_read_b128 v[{R+4}:{R+7}], v{AS1} offset:{off+16}
        s_waitcnt lgkmcnt(0)
        v_pk_add_f32 v[{R}:{R+1}], v[{R}:{R+1}], v[{R+2}:{R+3}]
        v_pk_add_f32 v[{R+4}:{R+5}], v[{R+4}:{R+5}], v[{R+6}:{R+7}]
        v_pk_add_f32 v[{R}:{R+1}], v[{R}:{R+1}], v[{R+4}:{R+5}]
        v_mul_f32 v{R}, {f32bits(1/1024):#x}, v{R}
        v_mul_f32 v{R+1}, {f32bits(1/1024):#x}, v{R+1}
        v_fma_f32 v{R+1}, -v{R}, v{R}, v{R+1}
        v_max_f32 v{R+1}, 0, v{R+1}
        v_cvt_pk_bf16_f32 v{R+2}, v{R}, v{R+1}
        v_lshlrev_b32 v{R}, 16, v{R+2}
        v_and_b32 v{R+1}, 0xffff0000, v{R+2}
        v_add_f32 v{R+1}, {f32bits(1e-5):#x}, v{R+1}
        v_cvt_pk_bf16_f32 v{R+1}, v{R+1}, v{R+1}
        v_lshlrev_b32 v{R+1}, 16, v{R+1}
        v_sqrt_f32 v{R+1}, v{R+1}
        v_cvt_pk_bf16_f32 v{R+1}, v{R+1}, v{R+1}
        v_lshlrev_b32 v{R+1}, 16, v{R+1}
        v_rcp_f32 v{T+4}, v{R+1}
        v_mov_b32 v{T+5}, v{T+4}
        v_mul_f32_e64 v{T+6}, -v{R}, v{T+4}
        v_mov_b32 v{T+7}, v{T+6}
        """)
    def sentinel_loop(name, loads, regs, between=None, skip_first=False, tagged=False, own_wait=False):
        k(f"s_mov_b32 s{S_SP}, {SPIN}")
        regs = list(regs)
        if not skip_first: loads()
        if between: between()
        k(f"s_branch {name}_chk")
        k.label(name)
        if pnap: k(f"s_sleep {pnap}")
        loads()
        if own_wait: k("s_waitcnt vmcnt(0)")
        k.label(name + "_chk")
        if own_wait:
            k(f"v_max_u32 v{T+16}, v{regs[0]}, v{regs[1]}")
            for i in range(2, len(regs), 2): k(f"v_max3_u32 v{T+16}, v{T+16}, v{regs[i]}, v{regs[i+1]}")
            k(f"v_cmp_eq_u32 vcc, -1, v{T+16}")
        elif tagged:
            k(f"s_waitcnt vmcnt(0)\nv_or3_b32 v{T+16}, v{regs[0]}, v{regs[1]}, v{TMP+8}\nv_bitop3_b32 v{T+17}, v{regs[0]}, v{regs[1]}, v{TMP+8} bitop3:0x80")
            for i in range(2, len(regs), 2):
                k(f"v_or3_b32 v{T+16}, v{T+16}, v{regs[i]}, v{regs[i+1]}\nv_bitop3_b32 v{T+17}, v{T+17}, v{regs[i]}, v{regs[i+1]} bitop3:0x80")
            k(f"v_xor_b32 v{T+16}, v{T+16}, v{T+17}\nv_lshlrev_b32 v{T+16}, 16, v{T+16}\nv_cmp_ne_u32 vcc, 0, v{T+16}")
        else:
            k(f"s_waitcnt vmcnt(0)\nv_max_u32 v{T+16}, v{regs[0]}, v{regs[1]}")
            for i in range(2, len(regs), 2): k(f"v_max3_u32 v{T+16}, v{T+16}, v{regs[i]}, v{regs[i+1]}")
            k(f"v_cmp_eq_u32 vcc, -1, v{T+16}")
        k(f"s_sub_u32 s{S_SP}, s{S_SP}, 1\ns_cbranch_scc1 {name}_out\ns_cbranch_vccnz {name}")
        k.label(name + "_out")

    row_addr()
    def y_shadow():
        mark = k.nvm
        k.wait(vm=max(sid["w1"], sid["q"]))
        for it in sh_reads(1):
            x = k(it[2])
            if it[1]: sid[it[1]] = x
        for e in range(16): k(f"v_accvgpr_read_b32 v{XP+e}, a{64+e}")
        unpack(X, XP)
        for it in sh_stores(1):
            k.wait(lg=sid[it[1]]); k(it[2])
        k(f"s_lshl_b32 s12, s2, 2\ns_add_u32 s12, s12, s17\ns_cmp_lt_u32 s12, 896\ns_cselect_b32 s26, {W_BYTES}, 0\ns_cselect_b32 s30, {WS_TOTAL}, 0\ns_mov_b32 s24, s4\ns_mov_b32 s25, s5")
        srd(k, 72, 8, WS_TOTAL)
        stats(0)
        k.wait(vm=mark)
    def y_loads():
        assert WS_Y == 0
        for i in range(4):
            for h in range(2):
                r = YP + 4 * i + 2 * h
                k(f"buffer_load_dwordx2 v[{r}:{r+1}], v{AY}, {SW}, s{S_ROWY} offen offset:{512*i + 64*h} sc1")
    if diag == 6: stamp(19)
    sentinel_loop("L_ypoll", y_loads, range(YP, YP + 16), y_shadow, own_wait=True)
    stamp(4)
    def raw_stage(sidx):
        k(f"s_add_u32 m0, s{S_M0}, {sidx * 16384}\ns_add_u32 s{S_DMA}, s{S_W1}, {sidx * 16384}")
        for i in range(4): k(f"buffer_load_dwordx4 v{VD}, {SW}, s{S_DMA} offen offset:{1024*i} {wmod} lds")
    def weave(body_fn, stages, span):
        n0 = len(k.lines); body_fn()
        body = k.lines[n0:]; del k.lines[n0:]
        for sidx in stages: raw_stage(sidx)
        dm = k.lines[n0:]; del k.lines[n0:]
        step = max(1, min(len(body), span) // max(1, len(dm)))
        for n_, l in enumerate(body):
            if n_ % step == 0 and dm: k.lines.append(dm.pop(0))
            k.lines.append(l)
        k.lines += dm
    k("s_barrier")
    def y_keep():
        unpack(Yf, YP)
        for i in range(4): k(f"ds_write_b128 v{AL}, v[{YP+4*i}:{YP+4*i+3}] offset:{4096*i}")
    if diag == 6: stamp(20)
    if nx: weave(y_keep, [x for x in range(npre) if 2 <= x < 2 + nx], 36)
    else: y_keep()
    if diag == 6: stamp(21)

    k.label("L_layer")
    k(f"s_add_u32 s84, s{S_HL}, s86\ns_sub_u32 s85, s{S_HL}, s86")
    SWZ_END = (KM2 // (2 * swz)) * 2 * swz if swz else 0
    k.nvm = k.vm_done = 0; k.nlg = k.lg_done = 0
    order = []; n2 = 0
    for s_ in range(28):
        order.append((1, s_))
        for _ in range((ins or {}).get(s_, 0) if s_ < 27 else 28 - n2):
            order.append((2, n2)); n2 += 1
    ring = [(f"W{kd_}", s_) for kd_, s_ in order]
    S1_POS = 0
    SH_POS = sh_pos
    ring[SH_POS:SH_POS] = [("SH", 0), ("SH", 1)]
    assert SH_POS % NS + 1 < 4 and S1_POS % NS + 1 < 4
    NREAL = len(ring); assert NREAL % NS == 2
    ring += [("NX", 2 + j) for j in range(nx)]
    NXS = set(range(2, 2 + nx))
    st = {"s": None}
    def dma(idx, i):
        kind, s = ring[idx]; pre_ = []
        if kind == "S1":
            st["s"] = None
            return [f"s_add_u32 m0, s{S_M0}, {(idx % NS) * 16384 + 1024 * i}", f"s_add_u32 s{S_DMA}, s63, {4 * 7168 * (4 * s + i)}",
                    f"buffer_load_dwordx4 v{TMP+4}, s[92:95], s{S_DMA} offen lds"]
        if kind == "SH":
            st["s"] = None
            return [f"s_add_u32 m0, s{S_M0}, {(idx % NS) * 16384 + 1024 * i}", f"s_add_u32 s{S_DMA}, s{S_SHB if s else S_SHA}, {8192 * i}",
                    f"buffer_load_dwordx4 v{VS0}, {SD}, s{S_DMA} offen {dnt} lds"]
        if st["s"] != idx:
            pre_ = [f"s_add_u32 m0, s{S_M0}, {(idx % NS) * 16384}", f"s_add_u32 s{S_DMA}, s{(92 + (2 * s // swz) % 2 if 2 * s < SWZ_END else S_W2) if kind == 'W2' else S_W1}, {s * 16384}"]
            st["s"] = idx
        return pre_ + [f"buffer_load_dwordx4 v{VD}, {'s[72:75]' if kind == 'NX' else SW}, s{S_DMA} offen offset:{1024*i} {wmod} lds"]
    w_id = {}; t_id = {}
    def pre_stage(idx):
        for i in range(4): w_id[idx] = k("\n".join(dma(idx, i)))
    for idx in range(4): w_id[idx] = 0
    def gate_math():
        for e in range(0, 32, 2):
            k(f"v_pk_fma_f32 v[{T}:{T+1}], v[{X+e}:{X+e+1}], v[{T+4}:{T+5}], v[{T+6}:{T+7}]")
            k(f"v_pk_fma_f32 v[{X+e}:{X+e+1}], v[{T}:{T+1}], v[{Yf+e}:{Yf+e+1}], v[{X+e}:{X+e+1}]")
            k(f"v_cvt_pk_bf16_f32 v{XP+e//2}, v{X+e}, v{X+e+1}")
        for i in range(4): k(f"ds_write_b128 v{AL}, v[{XP+4*i}:{XP+4*i+3}] offset:{16384 + 4096*i}")
        if not lean: unpack(X, XP)
        stats(256)
    weave(gate_math, [x for x in range(npre) if x not in NXS], 120)
    k(f"s_lshl_b32 s{S_B}, s{S_LAY}, 22\ns_add_u32 s{S_B}, s{S_B}, s{S_ROWF}\ns_add_u32 s{S_B}, s{S_B}, {WS_XN}")
    for e in range(0, 32, 2):
        k(f"v_pk_fma_f32 v[{X+e}:{X+e+1}], v[{X+e}:{X+e+1}], v[{T+4}:{T+5}], v[{T+6}:{T+7}]")
        k(f"v_cvt_pk_bf16_f32 v{P0+e//2}, v{X+e}, v{X+e+1}")
        if e % 8 == 6:
            i = e // 8
            k(f"buffer_store_dwordx4 v[{P0+4*i}:{P0+4*i+3}], v{VROW}, {SW}, s{S_B} offen offset:{1024*i} sc1")
    stamp(5)
    xn_st = k.nvm
    ET = 160
    for t in range(4): k(f"s_add_u32 s{S_T+t}, s{S_XN}, {t*32768}")
    def e_loads():
        for u in range(E):
            for t in range(4):
                r = ET + 16 * u + 4 * t
                k(f"buffer_load_dwordx4 v[{r}:{r+3}], v{VR}, {SW}, s{S_T+t} offen offset:{1024*u} sc1")
    def e_between():
        k.wait(vm=xn_st); k("s_barrier")
        k(flag_store(S_FXN_P))
        n_ = k.nvm
        for r in range(2):
            k(f"s_cmp_eq_u32 s{62+r}, 0\ns_cbranch_scc1 L_now{r}"); k(flag_store(62 + r)); k.label(f"L_now{r}")
        k("s_mov_b32 s62, 0\ns_mov_b32 s63, 0")
        k.nvm = n_
        if diag == 6: stamp(22)
    if e_mid:
        k.wait(vm=xn_st); sentinel_loop("L_epoll", e_loads, range(ET, ET + 16 * E), e_between)
    elif e_late:
        e_between(); sentinel_loop("L_epoll", e_loads, range(ET, ET + 16 * E))
    else: sentinel_loop("L_epoll", e_loads, range(ET, ET + 16 * E), e_between)
    if diag == 6: stamp(23)
    k(f"s_cmp_lg_u32 s{S_LAY}, 0\ns_cbranch_scc1 L_have")
    n0 = k.nvm
    for sidx in range(npre, 7): raw_stage(sidx)
    k.nvm = n0
    k.label("L_have")
    for sidx in range(npre, 7): w_id[sidx] = n0 + 1
    st["s"] = None
    for r in range(16 * E): k(f"v_accvgpr_write_b32 a{4*RW + r}, v{ET + r}")
    stamp(6)

    def sweep(kd, u0, u1, gs):
        if chain: return [(kd, u + e, g) for u in range(u0, u1, 2) for g in gs for e in range(2)]
        return [(kd, u, g) for u in range(u0, u1) for g in gs]
    assert not chain or (KM % 2 == 0 and KM2 % 2 == 0 and E % 2 == 0)
    gl = {1: sweep(1, 0, KM, range(14)), 2: sweep(2, 0, KM2, range(8))}
    tail_start = len(gl[1]); GPB = 2 * KT; t2 = len(gl[2])
    for b in range(7): gl[1] += sweep(1, KM, 32, (b, 7 + b))
    for p in range(4): gl[2] += sweep(2, KM2, 56, (2 * p, 2 * p + 1))
    groups = []; pos = {1: [], 2: []}
    for kd_, s_ in order:
        for j in range(16 * s_, 16 * s_ + 16):
            pos[kd_].append(len(groups)); groups.append(gl[kd_][j])
    NGR = len(groups)
    G2S = pos[1][-1] + 1; G2F = pos[2][0]; T2S = pos[2][t2]
    assert T2S > G2S
    EPI_AT = {pos[1][tail_start + (b + 1) * GPB - 1] + 1: b for b in range(7)}
    NTk = {1: 4, 2: 2}
    tm = [0]
    for kd, _, _ in groups: tm.append(tm[-1] + NTk[kd])
    at_t = lambda t_: next(i_ for i_ in range(NGR + 1) if tm[i_] >= t_)
    chkpos = lambda p_: at_t(tm[p_] + 4 * chk)
    if est is None:
        ea = sorted(EPI_AT); est = dict(done=[at_t(tm[x] + 100) for x in ea], size=[14 * tm[i_] for i_ in range(NGR)])
    real = [i for i, r_ in enumerate(ring) if r_[0] in ("W1", "W2")]
    stage_of = lambda i: real[i // 16]
    bars = {16 * n - la_bar: real[min(n + bper - 1, 55)] for n in range(npre, 56, bper)}
    pub_at = {}
    for p_, r_ in sorted(bars.items()):
        for x in real:
            if x <= r_: pub_at.setdefault(x, p_)
    bar_list = sorted(bars)
    first_use = {}; last_use = {}
    for i, (kd, u, g) in enumerate(groups):
        first_use.setdefault((kd, u), i & ~1 if chain else i); last_use[(kd, u)] = i | 1 if chain else i
    acc = lambda kd, g, t: (g * 4 + t) * 4 if kd == 1 else (g * 2 + t) * 4 + (80 if g >= 4 else 0)
    pool = []
    for b in vp:
        for base in (16 * b, 16 * b + 8, 112 + 16 * b, 120 + 16 * b): pool.append([est["done"][b] + 1, "v", base, b])
    for u in range(KM, 32):
        for h in range(2): pool.append([last_use[(1, u)] + 1, "a", 4 * RW + 16 * (u % KT) + 8 * h, None])
    slot2 = {}
    for u in range(56):
        sl = min(pool, key=lambda x: x[0]); slot2[u] = tuple(sl)
        sl[0] = last_use[(2, u)] + 1; sl[3] = None
    def AT(kd, u, t):
        f, a = ("a", 4 * RW + 16 * (u % KT) + 4 * t) if kd == 1 else (slot2[u][1], slot2[u][2] + 4 * t)
        return f"{f}[{a}:{a+3}]"
    AW = lambda i: 4 * (i % RW)
    tok_base = {t: (S_XN, 0) for t in range(4)}
    for u in range(E):
        for t in range(4): t_id[((1, u), t)] = 0
    def tok(kd, u, t):
        off = u * 1024; pre_ = []
        src = S_XN if kd == 1 else 84 + (u // swz) % 2 if u < SWZ_END else S_HL
        if tok_base.get(t, (None, 0))[0] != src or not 0 <= off - tok_base[t][1] <= 4095:
            tok_base[t] = (src, off & ~4095)
            pre_ = [f"s_add_u32 s{S_T+t}, s{src}, {t * (32768 if kd == 1 else TBH) + tok_base[t][1]}"]
        return pre_ + [f"buffer_load_dwordx4 {AT(kd, u, t)}, v{VR}, {SW}, s{S_T+t} offen offset:{off - tok_base[t][1]} {hmod if kd == 2 else tmod}"]
    PH_B = list(phb); NPH = len(PH_B); PH_U = [0] + [8 * (b_ + 1) for b_ in PH_B[:-1]]
    P_SHR = shr
    P_SH_END = shr + 4 * sh_gap + 4
    P_PX = 0
    P_PF = tail_start + pf_at
    P_W1S = 0
    P_PW1 = 120
    P_PW2 = pw2
    P_PH = []; nxt_free = chkpos(P_PW2) + 1
    for b_, u_ in zip(PH_B, PH_U):
        P_PH.append(max(nxt_free, at_t(tm[est["done"][b_]] + fl_lag + 4 + slack), at_t(tm[first_use[(2, u_)]] - back))); nxt_free = chkpos(P_PH[-1]) + 1
    P_PPF = nxt_free + 10
    CT_LAB = []; lim = 6500
    for i_ in range(NGR):
        if est["size"][i_] >= lim: CT_LAB.append(i_); lim = est["size"][i_] + 7000
    CT_AT = [max(12, at_t(tm[x] - 330)) for x in CT_LAB]
    def done_bar(idx):
        if ring[idx][0] == "SH": return P_SH_END
        if ring[idx][0] == "S1": return P_W1S + 20
        last = 16 * real.index(idx) + 15
        return next(p for p in bar_list if p > last)
    def earliest(it):
        if it[1] == "W":
            idx = it[2]
            e = done_bar(idx - NS) if idx >= NS else -1
            if ring[idx][0] == "W2": e = max(e, chkpos(P_PW2) + 1)
            if ring[idx][0] == "W1" and 16 * ring[idx][1] + 15 >= 14 * 18: e = max(e, chkpos(P_PW1) + 1)
            return e
        kd, u = it[2]
        if kd == 1: return chkpos(P_PX) + 1 if u < KT else last_use[(1, u - KT)] + 1
        return max(slot2[u][0], chkpos(P_PH[max(j for j in range(NPH) if PH_U[j] <= u)]) + 1)
    items = []
    for idx in range(7, NREAL):
        d = tm[P_SHR] - sh_lead if ring[idx][0] == "SH" else tm[P_W1S] - 40 if ring[idx][0] == "S1" else tm[pub_at[idx]]
        items += [(d, "W", idx, i) for i in range(4)]
    for (kd, u), fu in first_use.items():
        if kd == 1 and u < E: continue
        items += [(tm[fu], "T", (kd, u), t) for t in range(NTk[kd])]
    items.sort(key=lambda x: x[0])
    nxt_t = 1e9; sched = []
    for it in reversed(items):
        late = it[0] >= tm[G2F]
        nxt_t = min(it[0] - (la2 if late else la1), nxt_t - 1.0 / (rate2 if nxt_t > tm[G2S] else rate1))
        e = earliest(it)
        sched.append((max(nxt_t, tm[e] if e >= 0 else -1e9),) + it[1:])
    sched.reverse()
    last_tok = max(x[0] for x in sched if x[1] == "T" and x[2][0] == 1)
    prev = last_tok
    for n_, it in enumerate(sched):
        if it[1] == "W" and it[0] > last_tok and prev < tm[G2S] - 8:
            prev = max(prev + 8, tm[earliest(it)]); sched[n_] = (min(it[0], prev),) + it[1:]
    wq = [x for x in sched if x[1] == "W"]
    wq.sort(key=lambda x: (x[2], x[3]))
    run = 1e9
    for n_ in range(len(wq) - 1, -1, -1):
        e = earliest(wq[n_]); run = min(run, wq[n_][0])
        wq[n_] = (max(run, tm[e] if e >= 0 else -1e9),) + wq[n_][1:]
    prev = max(x[0] for x in sched)
    for idx in range(NREAL, len(ring)):
        for i in range(4 if ring[idx][0] == "NX" else 0):
            prev = max(prev + nx_gap, tm[done_bar(idx - NS)]); wq.append((prev, "W", idx, i))
    items = sorted(wq + [x for x in sched if x[1] == "T"], key=lambda x: x[0])
    prev = -1e9; slackv = []
    for n_, it in enumerate(items):
        if it[0] >= 0:
            prev = max(it[0], prev + 1.0 / (rmax if prev < tm[G2S] else rmax2)); items[n_] = (prev,) + it[1:]
        if it[1] == "T": slackv.append((tm[first_use[it[2]]] - items[n_][0], it[2]))
    MINSL = sorted(slackv)[:3]
    def lines(it):
        return dma(it[2], it[3]) if it[1] == "W" else tok(it[2][0], it[2][1], it[3])
    def record(it, i):
        if it[1] == "W": w_id[it[2]] = i
        else: t_id[(it[2], it[3])] = i
    while items and items[0][0] < 0:
        it = items.pop(0); record(it, k("\n".join(lines(it))))
    def rd(i):
        off = (stage_of(i) % NS) * 16384 + (i % 16) * 1024
        return f"ds_read_b128 a[{AW(i)}:{AW(i)+3}], v{VR + off // 65536} offset:{off % 65536}"
    def gelu4(G, U, P, tb):
        Tm = [tb + e for e in range(4)]
        o = [f"v_mul_f32 v{Tm[e]}, v{G+e}, v{G+e}" for e in range(4)]
        o += [f"v_fmaak_f32 v{Tm[e]}, v{VC2}, v{Tm[e]}, {f32bits(c1):#x}" for e in range(4)]
        o += [f"v_mul_f32 v{Tm[e]}, v{Tm[e]}, v{G+e}" for e in range(4)]
        for e in range(4): o += [f"v_exp_f32 v{Tm[e]}, v{Tm[e]}", f"v_mul_f32 v{U+e}, v{U+e}, v{G+e}"]
        o += [f"v_add_f32 v{Tm[e]}, 1.0, v{Tm[e]}" for e in range(4)]
        o += [f"v_rcp_f32 v{Tm[e]}, v{Tm[e]}" for e in range(4)]
        o += [f"v_mul_f32 v{U+e}, v{U+e}, v{Tm[e]}" for e in range(4)]
        o += [f"v_cvt_pk_bf16_f32 v{P}, v{U}, v{U+1}", f"v_cvt_pk_bf16_f32 v{P+1}, v{U+2}, v{U+3}"]
        return o
    def epilogue(b, t):
        a = acc(1, b, 2 * t); tb = TMP + 4 * t; sr = (S_C, S_E)[t]
        o = gelu4(a, acc(1, 7 + b, 2 * t), a, tb) + gelu4(acc(1, b, 2 * t + 1), acc(1, 7 + b, 2 * t + 1), a + 2, tb)
        o += [f"s_add_u32 s{sr}, s{S_HS}, {8192 * b + 2 * TBH * t}",
              f"v_permlane32_swap_b32 v{a}, v{a+2}", f"v_permlane32_swap_b32 v{a+1}, v{a+3}",
              f"buffer_store_dwordx4 v[{a}:{a+3}], v{VST}, {SW}, s{sr} offen sc1"]
        return [(x, b) for x in o]
    def p_store(p):
        o = []
        for t in range(2 if p >= 0 else 0):
            a = acc(2, 2 * p, t); b = acc(2, 2 * p + 1, t)
            o += [f"v_cvt_pk_bf16_f32 v{a}, v{a}, v{a+1}", f"v_cvt_pk_bf16_f32 v{a+1}, v{a+2}, v{a+3}",
                  f"v_cvt_pk_bf16_f32 v{a+2}, v{b}, v{b+1}", f"v_cvt_pk_bf16_f32 v{a+3}, v{b+2}, v{b+3}",
                  f"s_add_u32 s{S_C}, s{S_PS}, {8192 * t + p * 0x100000}",
                  f"buffer_store_dwordx4 v[{a}:{a+3}], v{VR}, {SW}, s{S_C} offen sc1"]
        return o
    cost = lambda s: 2 if s.startswith(("v_exp", "v_rcp", "v_permlane", "buffer_")) else 1

    published = npre - 1; r_id = {}; rp = 0; FL_AT = []; BAD = []; DONE = {}; SIZE = []; nsz = [len(k.lines), 0]; PE_AT = []; ready_b = -1; ready_at = 0
    while rp < RW - 2:
        r_id[rp] = k(rd(rp)); rp += 1
    seen = set(); epi = [[], []]; q = []; hold = 0; hst = {}; fl_due = {}; fl_next = 0; turn = 0
    last_st = {"h": None, "sh": None, "pf": None}; pend = {}; named = {}
    SHORT = ("v_mul_f32", "v_add_f32", "v_exp_f32", "v_rcp_f32", "s_waitcnt", "s_barrier", "v_permlane32_swap_b32", "s_mov_b64")
    def emit_q():
        t_, c = q.pop(0)
        if c and c[0] == "L": k.wait(lg=named[c[1]])
        if c and c[0] == "Wv": k.wait(vm=w_id[c[1]])
        id_ = k(t_)
        if not c: return
        if c[0] == "V": record(c[1], id_)
        elif c[0] == "R": r_id[c[1]] = id_
        elif c[0] == "N": named[c[1]] = id_
        elif c[0] == "L": last_st["sh"] = id_
        elif c[0] in ("PF", "PG"): last_st["pf"] = id_
    for i, (kd, u, g) in enumerate(groups):
        NT = NTk[kd]
        nsz[1] += sum(4 if l.split()[0] in SHORT else 8 for l in k.lines[nsz[0]:] if not l.endswith(":")); nsz[0] = len(k.lines); SIZE.append(nsz[1])
        if i == tail_start: stamp(7)
        if i == G2S: stamp(8)
        if i == tail_start + GPB + 8: G2L = len(k.lines)
        if i == T2S and diag == 5: stamp(18)
        if i in bars:
            pub = bars[i]
            assert not any(it[1] == "W" and it[2] <= pub and ring[it[2]][0] not in ("SH", "S1") for it in items), (i, pub)
            while any(c and c[0] == "V" and c[1][1] == "W" and c[1][2] <= pub for _, c in q): emit_q()
            k.wait(vm=w_id[pub]); k("s_barrier"); published = max(published, pub)
        n = 0
        while rp < NGR and rp <= i + RW - 2 and stage_of(rp) <= published and n < 2:
            q.append((rd(rp), ("R", rp))); rp += 1; n += 1
        if items and items[0][0] <= tm[i]:
            it = items.pop(0); ls = lines(it)
            if it[1] == "T" and it[2][0] == 2 and slot2[it[2][1]][3] is not None:
                if not all((slot2[it[2][1]][3], c_) in hst for c_ in (0, 1)): BAD.append(("slot", i, it))
            q += [(x, None) for x in ls[:-1]] + [(ls[-1], ("V", it))]
        if P_SHR <= i < P_SHR + 4 * sh_gap and (i - P_SHR) % sh_gap == 0:
            assert not any(it[1] == "W" and ring[it[2]][0] == "SH" for it in items)
            p = (i - P_SHR) // sh_gap
            base = (SH_POS % NS) * 16384
            for h in range(2):
                f = TMP + 8 + 4 * h; off = base + p * 64 + h * 8
                q.append((f"ds_read_b64_tr_b16 v[{f}:{f+1}], v{VS1} offset:{off}", ("Wv", SH_POS + 1)))
                q.append((f"ds_read_b64_tr_b16 v[{f+2}:{f+3}], v{VS1} offset:{off + 2048}", ("N", (p, h))))
        if P_SHR + 2 <= i < P_SHR + 4 * sh_gap + 2 and (i - P_SHR) % sh_gap == 2:
            p = (i - P_SHR) // sh_gap
            q.append((f"s_add_u32 s{S_D}, s{S_D}, s60" if p else f"s_mov_b32 s{S_D}, s{S_SHD}", None))
            for h in range(2):
                f = TMP + 8 + 4 * h
                q.append((f"buffer_store_dwordx4 v[{f}:{f+3}], v{VR}, {SX}, s{S_D} offen offset:{(2048 if chain else 1024)*h} sc1", ("L", (p, h))))
        if tr0 and tr0 <= i < tr0 + 8 * tr_step and (i - tr0) % tr_step == 0:
            j = (i - tr0) // tr_step
            q += [(f"s_add_u32 s{S_D}, s{S_SHB if j >> 2 else S_SHA}, {8192 * (j & 3)}", None),
                  (f"buffer_load_dwordx4 v[{TMP+4}:{TMP+7}], v{VS0}, {SD}, s{S_D} offen", None)]
        if ct and i in CT_AT:
            j = CT_AT.index(i)
            q += [(f"v_lshlrev_b32 v{TMP+16}, 3, v{VR}", None), (f"s_mov_b32 s{S_SP}, L_ct{j}-L_body", None),
                  (f"buffer_load_dword v{TMP+16}, v{TMP+16}, s[80:83], s{S_SP} offen", None)]
        if i in CT_LAB: k.label(f"L_ct{CT_LAB.index(i)}")
        if i == P_SH_END + 12:
            k.wait(vm=last_st["sh"]); k(f"s_mov_b64 exec, 1\nbuffer_store_dword v{VTAG}, off, {SX}, s{S_FW2_P} sc1\ns_mov_b64 exec, -1")
        PFR, PFS = (TMP, S_C) if pf_at < GPB else (TMP + 8, S_D)
        if i == P_PF: q += [(f"v_mov_b32 v{PFR+e}, -1", None) for e in range(4)]
        arm = list(range(0 if sent and not arm4 else 4, 8))
        if P_PF <= i < P_PF + len(arm) * pf_step and (i - P_PF) % pf_step == 0:
            t = arm[(i - P_PF) // pf_step]
            q += [(f"s_add_u32 s{PFS}, s{S_PS}, {8192 * (t & 1) + (t >> 1) * 0x100000}", None),
                  (f"buffer_store_dwordx4 v[{PFR}:{PFR+3}], v{VR}, {SW}, s{PFS} offen sc1", ("PF" if PFR == TMP else "PG",))]
        TW_AT = P_PW2 + chk + 4
        if TW_AT <= i < TW_AT + tw * tw_step and (i - TW_AT) % tw_step == 0:
            j = (i - TW_AT) // tw_step
            q += [(f"v_lshlrev_b32 v{TMP+13}, 3, v{VR}", None), (f"s_add_u32 s{S_SP}, s91, {tw0 * 1024 + j * 131072}", None),
                  (f"buffer_load_dword v{TMP+14}, v{TMP+13}, {SW}, s{S_SP} offen", None)]
        if sent and i == P_PF + 8 * pf_step + 30: named["pe"] = (0, last_st["pf"])
        if sent and i == P_PPF - 8: q += [(f"v_and_b32 v{TMP+13}, 60, v{VF}", None), (f"v_lshlrev_b32 v{TMP+13}, 5, v{TMP+13}", None)]
        if not sent and i == NGR - pe_back - 8:
            q += [(f"v_and_b32 v{TMP+13}, 60, v{VF}", None), (f"v_lshlrev_b32 v{TMP+13}, 5, v{TMP+13}", None)]
        if not sent and i == NGR - pe_back: q.append((poll_load(S_FPF_C), ("N", "pe_ld")))
        if "pe" in named and tm[i] >= named["pe"][0]:
            k.wait(vm=named.pop("pe")[1])
            k(flag_store(S_FPF_P)); k(f"s_add_u32 s{S_FPF_P}, s{S_FPF_P}, 0x20000")
            PE_AT.append(i)
        if fl_next in fl_due and tm[i] >= fl_due[fl_next][0]:
            if diag == 4: stamp(12 + 2 * fl_next)
            k.wait(vm=fl_due[fl_next][1])
            if diag == 4: stamp(13 + 2 * fl_next)
            k(flag_store(S_FH_P)); k(f"s_add_u32 s{S_FH_P}, s{S_FH_P}, 0x4000")
            FL_AT.append(i); fl_next += 1
        polls = [(P_PW1, S_FW1_C, "w1"), (P_PW2, S_FW2_C, 56), (P_PX, S_FXN_C, 8)] + [(p_, S_FH_C, 16) for p_ in P_PH] + ([(P_PPF, S_FPF_C, 16)] if sent else [])
        for pos_, soff, n_ in polls:
            if i == pos_:
                assert not pend
                pend[pos_] = k(poll_load(soff))
            if pos_ in pend and i == chkpos(pos_):
                poll_check(pend.pop(pos_), soff, n_, 1)
                if soff == S_FH_C: k(f"s_add_u32 s{S_FH_C}, s{S_FH_C}, 0x4000")
        if i in EPI_AT:
            b = EPI_AT[i]
            assert not any(c_ and c_[0] == "PF" for _, c_ in q)
            if not epi[0] and not epi[1]: hold = 4
            for t in range(2): epi[t] += epilogue(b, t)
            ready_b = b; ready_at = tm[i] + 4
        if i > T2S and (i - T2S) % (2 * KT2) == 4:
            if fl_next != NPH or epi[0] or epi[1]: BAD.append(("late epilogue", i))
            pp_ = (i - T2S) // (2 * KT2) - 1
            if arm4 and pp_ == 2: k.wait(vm=named["p1"])
            epi[0] += [(x, 100 + pp_) for x in p_store(pp_)]
        if i == G2F and not (0 in DONE and 1 in DONE): BAD.append(("acc", i))
        def waits(i, kd, u, t):
            if i not in r_id or ((kd, u), t) not in t_id: return None
            lgw = r_id[i]
            if lgw > k.lg_done:
                for j in range(1, wgran):
                    if i + j in r_id and k.nlg - r_id[i + j] >= 2: lgw = r_id[i + j]
            vmw = t_id[((kd, u), t)]
            if vmw > k.vm_done and i > 28 and ((kd, u), NTk[kd] - 1) in t_id: vmw = t_id[((kd, u), NTk[kd] - 1)]
            return vmw, lgw
        def pick(i, j):
            if not chain: return i, j
            m = (i & 1) * NTk[groups[i][0]] + j
            n, e = m >> 1, m & 1
            if zig:
                e ^= n & 1
                if (i >> 1) & 1: n = NTk[groups[i][0]] - 1 - n
            return (i & ~1) + e, n
        def waits2(i, j):
            gi, tt = pick(i, j)
            return waits(gi, groups[gi][0], groups[gi][1], tt)
        for t in range(NT):
            while waits2(i, t) is None: emit_q()
            vmw, lgw = waits2(i, t)
            k.wait(vm=vmw, lg=lgw)
            gi, tt = pick(i, t)
            a = acc(kd, g, tt)
            c = f"v[{a}:{a+3}]" if (kd, g, tt) in seen else "0"
            seen.add((kd, g, tt))
            at = AT(kd, groups[gi][1], tt)
            k(f"v_mfma_f32_16x16x32_bf16 v[{a}:{a+3}], a[{AW(gi)}:{AW(gi)+3}], {at}, {c}")
            budget = 2 if kd == 1 else bi if i < G2S else b2
            if len(epi[0]) + len(epi[1]) > thr and (tm[i] + t) % 2 == 0: budget += 1
            if t + 1 < NT: nw = waits2(i, t + 1)
            elif i + 1 < NGR:
                nw = waits2(i + 1, 0)
                if i + 1 in bars: budget -= 1
            else: nw = (0, 0)
            if nw is None or nw[0] > k.vm_done or nw[1] > k.lg_done: budget -= 1
            used = 0
            while q and used < 2:
                mem = q[0][0].startswith(("ds_", "buffer_"))
                c_ = cost(q[0][0])
                if (mem and used) or (c_ > budget and not (len(q) > 5 and used == 0)): break
                if used and len(q) <= NT - t: break
                emit_q(); budget -= c_; used += 1
            while budget > 0:
                ok = [c_ for c_ in (turn, 1 - turn) if epi[c_] and cost(epi[c_][0][0]) <= budget
                      and not (epi[c_][0][1] == ready_b and tm[i] + t < ready_at)]
                if not ok: break
                big = [c_ for c_ in ok if cost(epi[c_][0][0]) == 2]
                c_ = big[0] if big else ok[0]
                if abs(len(epi[c_]) - len(epi[1 - c_])) > 24 and len(epi[c_]) < len(epi[1 - c_]):
                    if 1 - c_ in ok: c_ = 1 - c_
                    else: break
                x, b = epi[c_].pop(0); budget -= cost(x); turn = 1 - c_
                id_ = k(x)
                if b == 101 and not epi[0]: named["p1"] = id_
                if b == 101 and not epi[0] and not sent: named["pe"] = (tm[i] + t + pe_lag, id_)
                if x.startswith("buffer_store") and b < 7:
                    hst[(b, c_)] = id_
                    if (b, 0) in hst and (b, 1) in hst: DONE[b] = i
                    if b in PH_B and (b, 0) in hst and (b, 1) in hst:
                        fl_due[PH_B.index(b)] = (tm[i] + t + fl_lag, id_)
    while epi[0] and epi[0][0][1] == 102: k(epi[0].pop(0)[0])
    assert len(PE_AT) == 1
    assert not items and not epi[0] and not epi[1] and not q and not pend and fl_next == NPH
    if not all(tm[f] + 60 < tm[p] for f, p in zip(FL_AT, P_PH)): BAD.append(("slack", FL_AT, P_PH))
    k.est = dict(done=[DONE[b] for b in range(7)], size=SIZE); k.bad = BAD; k.used = est
    k.info = dict(G=(G2F, G2S, T2S), done=k.est["done"], pe=(PE_AT, NGR), minsl=[(int(a_), b_) for a_, b_ in MINSL], flags=FL_AT, polls=P_PH, slack=[tm[p] - tm[f] for f, p in zip(FL_AT, P_PH)])
    if abl:
        keep = []
        for l in k.lines[G2L:]:
            x = l.strip()
            if "T" in abl and x.startswith("buffer_load_dwordx4") and not x.endswith(" lds"): continue
            if "S" in abl and x.startswith("buffer_store_dwordx4") and f"v{VST}," in x: continue
            if "L" in abl and x.startswith("s_waitcnt lgkmcnt"): continue
            if "W" in abl and x.endswith(" lds"): continue
            if "D" in abl and x.startswith("ds_read_b128"): continue
            if "B" in abl and x == "s_barrier": continue
            if "V" in abl and x.startswith(("v_mul", "v_fmaak", "v_exp", "v_rcp", "v_add_f32")): continue
            keep.append(l)
        k.lines[G2L:] = keep
    stamp(9)
    PP = 160
    for x in p_store(3): k(x)
    if not sent:
        pe_ld = named["pe_ld"]
        k(flag_store(S_FPF_P)); k(f"s_add_u32 s{S_FPF_P}, s{S_FPF_P}, 0x20000")
    VRL = TMP + 15
    k(f"s_lshl_b32 s{S_B}, s{S_LAY}, 23\ns_add_u32 s{S_B}, s{S_B}, s{S_ROWL}")
    k(f"v_lshrrev_b32 v{TMP+14}, 12, v{VROW}\nv_and_b32 v{VRL}, 0x3ff, v{VROW}\nv_lshl_add_u32 v{VRL}, v{TMP+14}, 10, v{VRL}")
    def p_loads(which):
        def f():
            for i in which:
                for j in range(2):
                    r = PP + 8 * i + 4 * j
                    k(f"s_add_u32 s{S_C}, s{S_B}, {WS_P + j*MB4 + i*0x100000}")
                    x = k(f"buffer_load_dwordx4 v[{r}:{r+3}], v{VRL}, {SW}, s{S_C} offen sc1")
            return x
        return f
    def add_p(which):
        for i in which:
            for e in range(8 * i, 8 * i + 8, 2):
                for j in range(2):
                    r = PP + 8 * i + 4 * j + (e % 8) // 2
                    unpk(k, T + 2 * j, r, 0); unpk(k, T + 2 * j + 1, r, 1)
                k(f"v_pk_add_f32 v[{T}:{T+1}], v[{T}:{T+1}], v[{T+2}:{T+3}]")
                k(f"v_pk_add_f32 v[{X+e}:{X+e+1}], v[{X+e}:{X+e+1}], v[{T}:{T+1}]")
                k(f"v_cvt_pk_bf16_f32 v{XP+e//2}, v{X+e}, v{X+e+1}")
                if not lean: unpk(k, X + e, XP + e // 2, 0); unpk(k, X + e + 1, XP + e // 2, 1)
    if not sent:
        if diag == 5: stamp(12)
        poll_check(pe_ld, S_FPF_C, 16)
        if diag == 5: stamp(13)
        e_ld = p_loads((0, 1))()
        k(f"s_add_u32 s{S_FPF_C}, s{S_FPF_C}, 0x20000")
        row_addr()
        for i in range(4): k(f"ds_read_b128 v[{XP+4*i}:{XP+4*i+3}], v{AL} offset:{16384 + 4096*i}")
        for i in range(4): k(f"ds_read_b128 v[{YP+4*i}:{YP+4*i+3}], v{AL} offset:{4096*i}")
        pl_ld = k(poll_load(S_FPF_C))
        k("s_waitcnt lgkmcnt(0)")
        unpack(X, XP)
        if diag == 5: stamp(14)
        poll_check(pl_ld, S_FPF_C, 16)
        if diag == 5: stamp(15)
        k(f"s_add_u32 s{S_FPF_C}, s{S_FPF_C}, 0x20000")
        def mid():
            k("s_barrier")
            add_p((0, 1)); unpack(Yf, YP)
            if diag == 5: stamp(16)
        sentinel_loop("L_ppoll", p_loads((2, 3)), range(PP + 16, PP + 32), mid)
    else:
        if diag == 5: stamp(12); stamp(13)
        k(f"s_add_u32 s{S_FPF_C}, s{S_FPF_C}, 0x20000")
        def first():
            row_addr()
            for i in range(4): k(f"ds_read_b128 v[{XP+4*i}:{XP+4*i+3}], v{AL} offset:{16384 + 4096*i}")
            for i in range(4): k(f"ds_read_b128 v[{YP+4*i}:{YP+4*i+3}], v{AL} offset:{4096*i}")
            k("s_waitcnt lgkmcnt(0)\ns_barrier")
            unpack(X, XP); unpack(Yf, YP)
            if diag == 5: stamp(14)
        if arm4:
            sentinel_loop("L_ppoll2", p_loads((2,)), range(PP + 16, PP + 24), first)
            e_ld = p_loads((0, 1))()
            def mid4():
                add_p((2,)); k.wait(vm=e_ld); add_p((0, 1))
            sentinel_loop("L_ppoll", p_loads((3,)), range(PP + 24, PP + 32), mid4)
        elif ord2:
            sentinel_loop("L_ppoll2", p_loads((0, 1, 2)), range(PP, PP + 24), first)
            if diag == 5: stamp(15)
            sentinel_loop("L_ppoll", p_loads((3,)), range(PP + 24, PP + 32), lambda: add_p((0, 1, 2)))
        else:
            p_loads((0, 1, 2))()
            first()
            sentinel_loop("L_ppoll", p_loads((3,)), range(PP + 24, PP + 32))
            if diag == 5: stamp(15)
            sentinel_loop("L_ppoll2", p_loads((0, 1, 2)), range(PP, PP + 24), skip_first=True)
        if diag == 5: stamp(16)
    stamp(10)
    k(f"s_cmp_lg_u32 s{S_LAY}, 0\ns_cbranch_scc1 L_final")
    def tail_math():
        add_p((2, 3) if not sent else (3,) if ord2 else (0, 1, 2, 3)); stats(0)
    weave(tail_math, [x for x in range(npre, 7) if x not in NXS], 200)
    stamp(11)
    if diag: k(f"v_mov_b32 v{VSTAMP-1}, v{VSTAMP}")
    k(f"""
    s_mov_b32 s{S_LAY}, 1
    s_mov_b32 s26, 0
    s_mov_b32 s74, 0
    s_mov_b32 s30, 0
    s_add_u32 s{S_XN}, s{S_XN}, {MB4}
    s_add_u32 s{S_HL}, s{S_HL}, {0 if hre else H_STRIDE}
    s_add_u32 s{S_HS}, s{S_HS}, {0 if hre else H_STRIDE}
    s_add_u32 s{S_PS}, s{S_PS}, {2*MB4}
    s_add_u32 s{S_FXN_P}, s{S_FXN_P}, 0x4000
    s_add_u32 s{S_FXN_C}, s{S_FXN_C}, 0x4000
    s_branch L_layer
    """)
    k.label("L_final")
    add_p((2, 3) if not sent else (3,) if ord2 else (0, 1, 2, 3))
    k(f"s_or_b32 s16, s2, s17\ns_cbranch_scc1 L_noepoch\ns_add_u32 s87, s87, 1\nv_mov_b32 v{VP}, s87\ns_mov_b32 s16, {WS_FLAG + F_EPOCH}")
    k(f"s_mov_b64 exec, 1\nbuffer_store_dword v{VP}, off, {SW}, s16 sc1\ns_mov_b64 exec, -1")
    k.label("L_noepoch")
    srd(k, 32, 6, MB4)
    for i in range(4): k(f"buffer_store_dwordx4 v[{XP+4*i}:{XP+4*i+3}], v{AO}, s[32:35], s{S_ROWY} offen offset:{64*i} {outm}")
    if diag:
        k("s_waitcnt vmcnt(0)"); stamp(11)
        if diag == 7:
            k(f"s_cmp_lg_u32 s2, {dbg_wg}\ns_cbranch_scc1 L_nodbg\ns_cmp_lg_u32 s17, 0\ns_cbranch_scc1 L_nodbg")
            k(f"s_load_dwordx2 s[32:33], s[0:1], {ARG['dbg']}\nv_readlane_b32 s12, v{VSTAMP}, 12\nv_mov_b32 v8, 0")
            sel = [(1, x) for x in (26, 27, 1, 2, 3, 4, 5, 6, 7, 8, 9, 10)] + [(0, x) for x in (6, 8, 9, 11)]
            for n_, (w_, x) in enumerate(sel):
                k(f"v_readlane_b32 s13, v{VSTAMP - w_}, {x}\ns_nop 3\ns_sub_u32 s13, s13, s12\nv_writelane_b32 v8, s13, {n_}")
            k(f"s_waitcnt lgkmcnt(0)\ns_mov_b32 s34, 64\ns_mov_b32 s35, 0x20000\nbuffer_store_dword v8, v{VF}, s[32:35], 0 offen")
            k.label("L_nodbg")
        k(f"s_lshl_b32 s12, s2, 11\ns_lshl_b32 s13, s17, 9\ns_add_u32 s12, s12, s13\ns_add_u32 s12, s12, 0x8100000")
        k(f"buffer_store_dword v{VSTAMP-1}, v{VF}, {SW}, s12 offen\nbuffer_store_dword v{VSTAMP}, v{VF}, {SW}, s12 offen offset:256")
    k("s_endpgm")
    for lab, pre_, body in slow:
        k.label(lab); k("\n".join(pre_))
        k.label(lab + "_l"); k("\n".join(body)); k(f"s_cbranch_scc1 {lab}_l")
        k.label(lab + "_out"); k(f"s_waitcnt vmcnt(0)\ns_branch {lab}_ok")
    k.label("L_end"); k("s_endpgm")
    return (k, 512, 256), (k.name, 256, 256, 163840)

HEADER = open("interleave_layers__ssm_conv_h3__glu_gated_geglu__prompt.s.ref").read().split("; Override launch")[0]

def build(path, stamps=False, as_list=True, hpad=0, wpad=0, **kw):
    global TBH, W1T, W2T
    TBH = 224 * 512 + hpad; W1T = 448 + wpad; W2T = 448 + wpad
    asmlib.STAMPS[0] = stamps
    est = None
    for _ in range(12):
        kk, l = gen_mega(est=est, **kw)
        new = kk[0].est
        if est is not None and not kk[0].bad and all(a <= b <= a + 6 for a, b in zip(new["done"], est["done"])): break
        if est is not None and _ >= 3: new["done"] = [max(a, b) for a, b in zip(new["done"], est["done"])]
        est = new
    assert not kk[0].bad, kk[0].bad
    txt = module(HEADER, [l], [kk])
    if not as_list: txt = txt.replace(f"; @launch kernel={l[0]} ", "; @launch ")
    txt = "\n".join(x.strip() if x.startswith("    ") else x for x in txt.split("\n"))
    open(path, "w").write(txt)
    return len(kk[0].lines), kk[0].padded, kk[0].info

if __name__ == "__main__":
    print(build("v17.s")); build("v17s.s", stamps=True); build("v17f.s", stamps=3)
```

```python
import v16, v17
v16.build("o_0.s", as_list=False, la_bar=7)
I = {24: 2, 25: 3, 26: 3}; P = (0, 2, 4, 5, 6)
print(v17.build("o_1.s", as_list=False, pw2=318, ins=I, KT2=12, phb=P, bper=1, rate2=0.2, rmax2=0.22)[2]["minsl"])
print(v17.build("o_2.s", as_list=False, pw2=318, ins=I, KT2=12, phb=P, rate2=0.21, rmax2=0.245)[2]["minsl"])
print(v17.build("o_3.s", as_list=False, pw2=318, ins={25: 2, 26: 2})[2]["minsl"])
print(v17.build("o_4.s", as_list=False, pw2=330, ins={25: 3, 26: 3}, KT2=12, bper=1, rate2=0.2, rmax2=0.225)[2]["minsl"])
v16.build("o_5.s", as_list=False)
```
